```python
import torch

def _softmax(x, axis=-1):
    return torch.softmax(x, dim=axis)
def _gelu(x):
    return torch.nn.functional.gelu(x, approximate="tanh")
def _silu(x):
    return torch.nn.functional.silu(x)
def _sigmoid(x):
    return torch.sigmoid(x)
def _layernorm(x, axis=-1, eps=1e-5):
    m = x.mean(dim=axis, keepdim=True)
    v = x.var(dim=axis, keepdim=True, unbiased=False)
    return (x - m) / torch.sqrt(v + eps)
def _scatter_add(tgt, idx, src, axis=0):
    return tgt.clone().index_add_(axis, idx, src)
def _segment_sum(src, seg, n):
    out = torch.zeros((n,) + src.shape[1:], dtype=src.dtype)
    return out.index_add_(0, seg, src)
def _pad(x, pw):
    flat = tuple(v for pair in reversed(pw) for v in pair)
    return torch.nn.functional.pad(x, flat)

kernel_name = 'recurrent_scan__compressed_kv_cla__geglu_ffn__prompt'

def setup_inputs():

    _w = (lambda a: (lambda t: t.to(torch.bfloat16) if t.is_floating_point() else t)(torch.as_tensor(a)))
    def _A_setup():
        B, H, Sq, Sk, D, M = 1, 32, 2048, 2048, 128, 512
        Dc = 4 * D
        return {
            "x": _w((lambda *s: torch.randn(*s, dtype=torch.bfloat16) * 0.05)(B, Sq, M)),
            "c_kv": _w((lambda *s: torch.randn(*s, dtype=torch.bfloat16) * 0.2)(B, Sk, Dc)),
            "w_q": _w((lambda *s: torch.randn(*s, dtype=torch.bfloat16) * 3.2)(M, H, D) * (M ** -0.5)),
            "w_uk": _w((lambda *s: torch.randn(*s, dtype=torch.bfloat16) * 3.2)(Dc, H, D) * (Dc ** -0.5)),
            "w_uv": _w((lambda *s: torch.randn(*s, dtype=torch.bfloat16) * 0.2)(Dc, H, D) * (Dc ** -0.5)),
            "w_o": _w((lambda *s: torch.randn(*s, dtype=torch.bfloat16) * 0.2)(H, D, M) * ((H * D) ** -0.5)),
        }
    _A_in = _A_setup()

    def _B_setup():
        B, S, D, F = 1, 2048, 512, 1376
        return {
            "x": _w((lambda *s: torch.randn(*s, dtype=torch.bfloat16) * 0.05)(B, S, D)),
            "w_gate": _w((lambda *s: torch.randn(*s, dtype=torch.bfloat16) * 0.1)(D, F)),
            "w_up": _w((lambda *s: torch.randn(*s, dtype=torch.bfloat16) * 0.1)(D, F)),
            "w_down": _w((lambda *s: torch.randn(*s, dtype=torch.bfloat16) * 0.1)(F, D)),
        }
    _B_in = _B_setup()

    return {
        "A_x": _A_in["x"],
        "A_c_kv": _A_in["c_kv"],
        "A_w_q": _A_in["w_q"],
        "A_w_uk": _A_in["w_uk"],
        "A_w_uv": _A_in["w_uv"],
        "A_w_o": _A_in["w_o"],
        "B_x": _B_in["x"],
        "B_w_gate": _B_in["w_gate"],
        "B_w_up": _B_in["w_up"],
        "B_w_down": _B_in["w_down"],
    }

def reference(A_x, A_c_kv, A_w_q, A_w_uk, A_w_uv, A_w_o, B_x, B_w_gate, B_w_up, B_w_down):
    def _A_ref(x, c_kv, w_q, w_uk, w_uv, w_o):
        B, Sq, M = x.shape[0], x.shape[1], x.shape[2]
        Sk = c_kv.shape[1]
        H, D = w_q.shape[1], w_q.shape[2]
        q = torch.einsum("bqm,mhd->bhqd", x, w_q)
        k = torch.einsum("bkc,chd->bhkd", c_kv, w_uk)
        v = torch.einsum("bkc,chd->bhkd", c_kv, w_uv)
        scores = torch.einsum("bhqd,bhkd->bhqk", q, k) * (D ** -0.5)
        off = Sk - Sq
        qi = torch.arange(Sq)[:, None]
        kj = torch.arange(Sk)[None, :]
        cmask = kj <= (qi + off)
        scores = torch.where(cmask[None, None], scores, -1e9)
        p = _softmax(scores, axis=-1)
        ctx = torch.einsum("bhqk,bhkd->bhqd", p, v)
        return torch.einsum("bhqd,hdm->bqm", ctx, w_o)

    def _B_ref(x, w_gate, w_up, w_down):
        return (_gelu(x @ w_gate) * (x @ w_up)) @ w_down

    x = A_x
    xn = _layernorm(x, axis=-1)
    s = _A_ref(xn, A_c_kv, A_w_q, A_w_uk, A_w_uv, A_w_o)
    g = _silu(_B_ref(xn, B_w_gate, B_w_up, B_w_down))
    return x + s * g
```

```python
import re

_REG_RE = re.compile(r'^(-|abs\()?([vas])(\d+|\[(\d+):(\d+)\])\)?$')

def parse_reg(tok):
    tok = tok.strip()
    if tok in ('vcc',): return [('s', 106), ('s', 107)]
    if tok == 'vcc_lo': return [('s', 106)]
    if tok == 'vcc_hi': return [('s', 107)]
    if tok == 'exec': return [('s', 126), ('s', 127)]
    if tok == 'm0': return [('s', 124)]
    if tok == 'scc': return [('s', 200)]
    t = tok
    if t.startswith('-'): t = t[1:]
    if t.startswith('abs(') and t.endswith(')'): t = t[4:-1]
    if t.startswith('|') and t.endswith('|'): t = t[1:-1]
    m = re.match(r'^([vas])(\d+)$', t)
    if m: return [(m.group(1), int(m.group(2)))]
    m = re.match(r'^([vas])\[(\d+):(\d+)\]$', t)
    if m: return [(m.group(1), i) for i in range(int(m.group(2)), int(m.group(3)) + 1)]
    return []

SCC = ('s', 200); M0 = ('s', 124); VCC = [('s', 106), ('s', 107)]; EXEC = [('s', 126), ('s', 127)]

TRANS = ('v_exp_f32', 'v_log_f32', 'v_rcp_f32', 'v_rsq_f32', 'v_sqrt_f32', 'v_sin_f32', 'v_cos_f32')

def split_operands(s):
    out, depth, cur = [], 0, ''
    for ch in s:
        if ch in '[(': depth += 1
        if ch in '])': depth -= 1
        if ch == ',' and depth == 0:
            out.append(cur.strip()); cur = ''
        else:
            cur += ch
    if cur.strip(): out.append(cur.strip())
    return out

class Inst:
    __slots__ = ('text', 'op', 'kind', 'reads', 'writes', 'tag', 'srcA', 'srcB', 'srcC', 'passes', 'dpp', 'waittag', 'note', 'wide_store', 'opt')
    def __init__(self, text, tag=None, note=None):
        self.text = text.strip(); self.tag = tag; self.note = note
        self.srcA = self.srcB = self.srcC = None; self.passes = 0; self.dpp = False; self.waittag = None
        self.wide_store = False; self.opt = False
        parts = self.text.split(None, 1)
        op = parts[0]; self.op = op
        rest = parts[1] if len(parts) > 1 else ''
        ops = split_operands(rest)
        mods = []
        if ops:
            last = ops[-1].split()
            ops[-1] = last[0] if last else ''
            mods = last[1:]
        R, W = [], []
        regs = [parse_reg(o) for o in ops]
        base = op.replace('_e32', '').replace('_e64', '').replace('_dpp', '')
        k = 'other'
        if base.startswith('v_mfma'):
            k = 'mfma'; W += regs[0]; R += regs[1] + regs[2] + regs[3]
            self.srcA, self.srcB, self.srcC = regs[1], regs[2], regs[3]
            self.passes = 8 if '32x32x16' in base else (4 if '16x16x32' in base else 16)
        elif base.startswith('v_cmp'):
            k = 'valu'; W += regs[0]; [R.extend(r) for r in regs[1:]]
            if base.startswith('v_cmpx'): W += EXEC
        elif base in ('v_readfirstlane_b32', 'v_readlane_b32'):
            k = 'valu'; W += regs[0]; [R.extend(r) for r in regs[1:]]
        elif base.startswith('v_permlane') :
            k = 'valu'; W += regs[0] + regs[1]; R += regs[0] + regs[1]
        elif base.startswith('v_'):
            k = 'trans' if base in TRANS else 'valu'
            W += regs[0]
            idx = 1
            if base in ('v_add_co_u32', 'v_sub_co_u32', 'v_addc_co_u32', 'v_subb_co_u32', 'v_mad_u64_u32'):
                W += regs[1]; idx = 2
            [R.extend(r) for r in regs[idx:]]
            if base in ('v_fmac_f32', 'v_dot2c_f32_bf16', 'v_writelane_b32'): R += regs[0]
            if base == 'v_cndmask_b32' and len(ops) == 3: R += VCC
            if any(m.startswith(('quad_perm', 'row_', 'wave_')) for m in mods):
                self.dpp = True
                R += regs[0]
        elif base.startswith('buffer_load') or base.startswith('global_load'):
            if 'lds' in mods or '_lds_' in base:
                k = 'lds_dma'; [R.extend(r) for r in regs]; R.append(M0)
            else:
                k = 'vmem_load'; W += regs[0]; [R.extend(r) for r in regs[1:]]
        elif base.startswith('buffer_store') or base.startswith('global_store'):
            k = 'vmem_store'; [R.extend(r) for r in regs]
            self.wide_store = base.endswith('x4') or base.endswith('x3')
        elif base.startswith('buffer_atomic') or base.startswith('global_atomic'):
            k = 'vmem_store'; [R.extend(r) for r in regs]
            if 'sc0' in mods: k = 'vmem_load'; W += regs[0]
        elif base.startswith('buffer_wbl2') or base.startswith('buffer_inv'):
            k = 'vmem_store'
        elif base.startswith('ds_read') or base.startswith('ds_bpermute') or base.startswith('ds_permute') or base.startswith('ds_swizzle'):
            k = 'ds_read'; W += regs[0]; [R.extend(r) for r in regs[1:]]
        elif base.startswith('ds_write'):
            k = 'ds_write'; [R.extend(r) for r in regs]
        elif base.startswith('s_load') or base.startswith('s_memtime') or base.startswith('s_memrealtime') or base.startswith('s_buffer_load'):
            k = 'smem'; W += regs[0]; [R.extend(r) for r in regs[1:]]
        elif base == 's_waitcnt': k = 'waitcnt'
        elif base == 's_nop': k = 'nop'
        elif base == 's_barrier': k = 'barrier'
        elif base in ('s_endpgm',): k = 'end'
        elif base in ('s_setprio', 's_sleep', 's_sethalt'): k = 'salu'
        elif base.startswith('s_cbranch') or base == 's_branch':
            k = 'branch'
            if 'scc' in base: R.append(SCC)
            if 'vcc' in base: R += VCC
            if 'exec' in base: R += EXEC
        elif base.startswith('s_cmp') or base.startswith('s_bitcmp'):
            k = 'salu'; W.append(SCC); [R.extend(r) for r in regs]
        elif base in ('s_setpc_b64',):
            k = 'branch'; R += regs[0]
        elif base in ('s_swappc_b64',):
            k = 'branch'; W += regs[0]; R += regs[1]
        elif base in ('s_getpc_b64',):
            k = 'salu'; W += regs[0]
        elif base.startswith('s_'):
            k = 'salu'; W += regs[0]; [R.extend(r) for r in regs[1:]]
            if base in ('s_addk_i32', 's_mulk_i32'): R += regs[0]
            if base.startswith(('s_cselect', 's_addc', 's_subb', 's_cmov')): R.append(SCC)
            if not base.startswith(('s_mov', 's_mul_i32', 's_mul_hi', 's_cselect', 's_movk', 's_cmov', 's_getreg', 's_setreg')): W.append(SCC)
            if 'saveexec' in base: W += EXEC; R += EXEC
        else:
            raise ValueError('unknown instruction: ' + text)
        self.kind = k
        self.reads = frozenset(R); self.writes = frozenset(W)

class Label:
    def __init__(self, name): self.name = name
class Comment:
    def __init__(self, t): self.text = t
class WaitTag:
    def __init__(self, tags, lgkm=False): self.tags = tags if isinstance(tags, (list, tuple, set)) else [tags]
class Loop:
    def __init__(self, body): self.body = body
class Alt:
    def __init__(self, join=False): self.alts = []; self.join = join
class Fence:
    pass

class Prog:
    def __init__(self):
        self.items = []; self.stack = [self.items]; self.cond = 0
    def __call__(self, text, tag=None):
        for line in text.strip().split('\n'):
            line = line.split(';')[0].strip()
            if not line: continue
            if line == '@COND': self.cond += 1; continue
            if line == '@ENDCOND': self.cond -= 1; continue
            if line.endswith(':'): self.stack[-1].append(Label(line[:-1]))
            else:
                i = Inst(line, tag); i.opt = self.cond > 0
                self.stack[-1].append(i)
    def add(self, item): self.stack[-1].append(item)
    def label(self, n): self.stack[-1].append(Label(n))
    def comment(self, t): self.stack[-1].append(Comment(t))
    def wait_tag(self, tags):
        w = WaitTag(tags); w.opt = self.cond > 0; self.stack[-1].append(w)
    def begin_loop(self):
        body = []; self.stack[-1].append(Loop(body)); self.stack.append(body)
    def end_loop(self): self.stack.pop()
    def begin_alt(self, join=False):
        a = Alt(join); self.stack[-1].append(a); self._alt = a; return a
    def alt_branch(self, a):
        body = []; a.alts.append(body); self.stack.append(body)
    def end_branch(self): self.stack.pop()

class SB:
    def __init__(self):
        self.vm = []
        self.lg = []
    def copy(self):
        s = SB(); s.vm = list(self.vm); s.lg = list(self.lg); return s
    def key(self):
        return (tuple(self.vm), tuple(self.lg))

def _need(queue, pred):
    last = -1
    for i, e in enumerate(queue):
        if pred(e): last = i
    if last < 0: return None
    return sum(1 for e in queue[last + 1:] if not e[3])

def _trim(queue, n):
    if n == 0: return []
    cnt = 0; i = len(queue)
    while i > 0:
        if not queue[i - 1][3]:
            if cnt == n: break
            cnt += 1
        i -= 1
    return queue[i:]

def _parse_wait(text):
    vm = lg = None
    m = re.search(r'vmcnt\((\d+)\)', text)
    if m: vm = int(m.group(1))
    m = re.search(r'lgkmcnt\((\d+)\)', text)
    if m: lg = int(m.group(1))
    return vm, lg

def sim_waits(items, sb, waits, maxq):
    for it in items:
        if isinstance(it, (Label, Comment)): continue
        if isinstance(it, Loop):
            seen = set()
            for _ in range(8):
                k = sb.key()
                if k in seen: break
                seen.add(k)
                sim_waits(it.body, sb, waits, maxq)
            else:
                raise RuntimeError('loop scoreboard did not converge')
            continue
        if isinstance(it, Alt):
            ends = []
            for alt in it.alts:
                c = sb.copy(); sim_waits(alt, c, waits, maxq); ends.append(c)
            if it.join:
                assert all(e.key() == ends[0].key() for e in ends), 'alt branches end with different scoreboards'
                sb.vm = list(ends[0].vm); sb.lg = list(ends[0].lg)
            else:
                sb.vm = []; sb.lg = []
            continue
        vm = lg = None
        if isinstance(it, Fence):
            vm = 0 if sb.vm else None; lg = 0 if sb.lg else None
        elif isinstance(it, WaitTag):
            vm = _need(sb.vm, lambda e: e[2] in it.tags)
            lg = _need(sb.lg, lambda e: e[2] in it.tags)
        else:
            touched = it.reads | it.writes
            vm = _need(sb.vm, lambda e: bool(e[0] & touched))
            lgn = _need(sb.lg, lambda e: bool(e[0] & touched))
            if lgn is not None:
                lg = 0 if any(e[1] for e in sb.lg) else lgn
        if vm is not None or lg is not None:
            o = waits.get(id(it), (None, None))
            nv = vm if o[0] is None else (o[0] if vm is None else min(o[0], vm))
            nl = lg if o[1] is None else (o[1] if lg is None else min(o[1], lg))
            waits[id(it)] = (nv, nl)
        opt = getattr(it, 'opt', False)
        w = waits.get(id(it))
        if w and not opt:
            if w[0] is not None: sb.vm = _trim(sb.vm, min(w[0], 63))
            if w[1] is not None: sb.lg = _trim(sb.lg, min(w[1], 15))
        if not isinstance(it, Inst): continue
        if it.kind == 'waitcnt':
            if opt: continue
            a, b = _parse_wait(it.text)
            if a is not None: sb.vm = _trim(sb.vm, a)
            if b is not None: sb.lg = _trim(sb.lg, b)
        elif it.kind in ('vmem_load', 'vmem_store', 'lds_dma'):
            sb.vm.append((it.writes, None, it.tag, opt))
            maxq[0] = max(maxq[0], len(sb.vm))
        elif it.kind in ('ds_read', 'ds_write'):
            sb.lg.append((it.writes, False, it.tag, opt))
            maxq[1] = max(maxq[1], len(sb.lg))
        elif it.kind == 'smem':
            sb.lg.append((it.writes, True, it.tag, opt))

def flatten(items, waits, out):
    for it in items:
        if isinstance(it, Loop):
            flatten(it.body, waits, out); continue
        if isinstance(it, Alt):
            for alt in it.alts: flatten(alt, waits, out)
            continue
        w = waits.get(id(it))
        if w and (w[0] is not None or w[1] is not None):
            s = 's_waitcnt'
            if w[0] is not None: s += f' vmcnt({min(w[0],63)})'
            if w[1] is not None: s += f' lgkmcnt({min(w[1],15)})'
            out.append(Inst(s))
        if isinstance(it, (WaitTag, Fence)): continue
        out.append(it)

def _states(inst):
    if inst.kind == 'nop':
        return int(inst.text.split()[1], 0) + 1
    return 1

def required_gap(p, c):
    g = 0
    pv = p.kind in ('valu', 'trans'); cv = c.kind in ('valu', 'trans')
    pw_v = {r for r in p.writes if r[0] in 'va'}; pw_s = {r for r in p.writes if r[0] == 's'}
    if p.kind == 'mfma':
        big = {8: 12, 4: 8, 16: 20, 2: 5}[p.passes]; ov = {8: 10, 4: 6, 16: 18, 2: 4}[p.passes]
        D = p.writes
        if c.kind == 'mfma':
            if D & (set(c.srcA) | set(c.srcB)): g = max(g, big)
            cs = set(c.srcC)
            if D & cs:
                if cs == set(D) and c.passes == p.passes: pass
                else: g = max(g, ov)
            elif D & c.writes: g = max(g, ov)
        elif cv or c.kind in ('vmem_load', 'vmem_store', 'lds_dma', 'ds_read', 'ds_write'):
            if D & (c.reads | c.writes): g = max(g, big)
        if cv and (set(p.srcC) & c.writes): g = max(g, {8: 7, 4: 3, 16: 15, 2: 1}[p.passes])
        if c.kind in ('vmem_load', 'ds_read') and (set(p.srcC) & c.writes): g = max(g, {8: 7, 4: 3, 16: 15, 2: 1}[p.passes])
    if pv:
        if c.kind == 'mfma' and (pw_v & c.reads): g = max(g, 2)
        if c.kind == 'mfma' and (set(EXEC) & pw_s): g = max(g, 4)
        if c.kind in ('vmem_load', 'vmem_store', 'lds_dma') and (pw_s & c.reads): g = max(g, 5)
        if cv and (pw_s & c.reads):
            g = max(g, 4 if c.op.startswith(('v_readlane', 'v_writelane')) else 2)
        if c.op.startswith(('v_readfirstlane', 'v_readlane')) and (pw_v & c.reads): g = max(g, 1)
        if c.op.startswith('v_permlane') and (pw_v & c.reads): g = max(g, 2)
        if c.dpp and (pw_v & c.reads): g = max(g, 2)
        if c.dpp and (set(EXEC) & pw_s): g = max(g, 5)
        if p.kind == 'trans' and c.kind == 'valu' and (pw_v & c.reads): g = max(g, 1)
        if p.kind == 'trans' and c.kind in ('vmem_store', 'ds_write', 'mfma') and (pw_v & c.reads): g = max(g, 2)
        if c.kind in ('salu', 'branch') and (pw_s & c.reads): g = max(g, 2)
        if p.op.startswith('v_cmpx') and c.op.startswith(('v_readfirstlane', 'v_readlane', 'v_writelane', 'v_permlane')): g = max(g, 4)
    if p.kind == 'salu' and M0 in p.writes and c.kind == 'lds_dma': g = max(g, 1)
    if p.kind == 'vmem_store' and p.wide_store:
        if (cv or c.kind in ('vmem_load', 'ds_read', 'mfma')) and (p.reads & {r for r in c.writes if r[0] in 'va'}): g = max(g, 2)
    return g

def pad_hazards(seq, loops):
    WIN = 24
    out = []
    def history(lst):
        h = []
        for it in reversed(lst):
            if isinstance(it, Inst):
                h.append(it)
                if len(h) >= WIN: break
        return h
    def need_for(c, hist):
        dist = 0; need = 0
        for p in hist:
            g = required_gap(p, c)
            if g > dist: need = max(need, g - dist)
            dist += _states(p)
            if dist >= 20: break
        return need
    labelpos = {}
    for it in seq:
        if isinstance(it, Label):
            labelpos[it.name] = len(out); out.append(it); continue
        if isinstance(it, Comment): out.append(it); continue
        n = need_for(it, history(out))
        while n > 0:
            k = min(n, 16); out.append(Inst(f's_nop {k-1}')); n -= k
        out.append(it)
    changed = True
    rounds = 0
    while changed:
        changed = False; rounds += 1
        assert rounds < 20
        labelpos = {it.name: i for i, it in enumerate(out) if isinstance(it, Label)}
        for i, it in enumerate(out):
            if isinstance(it, Inst) and it.kind == 'branch' and it.op not in ('s_setpc_b64', 's_swappc_b64'):
                tgt = it.text.split()[-1]
                if tgt not in labelpos: continue
                hist = history(out[:i + 1])
                j = labelpos[tgt]; walked = []
                cnt = 0
                while j < len(out) and cnt < WIN:
                    c = out[j]
                    if isinstance(c, Inst):
                        n = need_for(c, list(reversed(walked)) + hist)
                        if n > 0:
                            out.insert(i, Inst(f's_nop {min(n,16)-1}'))
                            changed = True
                            break
                        walked.append(c); cnt += 1
                        if c.kind in ('end',) or c.op == 's_branch': break
                    j += 1
                if changed: break
    return out

def render(prog_items, name=''):
    waits = {}; maxq = [0, 0]
    for _ in range(6):
        before = dict(waits)
        sim_waits(prog_items, SB(), waits, maxq)
        if waits == before: break
    flat = []
    flatten(prog_items, waits, flat)
    flat = pad_hazards(flat, None)
    lines = []
    for it in flat:
        if isinstance(it, Label): lines.append(it.name + ':')
        elif isinstance(it, Comment): lines.append('    ; ' + it.text)
        else: lines.append('    ' + it.text)
    ninst = sum(isinstance(i, Inst) for i in flat)
    return '\n'.join(lines) + '\n', dict(n=ninst, maxvm=maxq[0], maxlg=maxq[1])
```

```python
from asmlib import *

NAME = 'recurrent_scan__compressed_kv_cla__geglu_ffn__prompt'
KA = dict(x=0, ckv=8, wq=16, wuk=24, wuv=32, wo=40, bx=48, wg=56, wu=64, wd=72, out=80, dbg=88, ws=96)
XF_OFF = 0
KF_OFF = 2 << 20
VF_OFF = 18 << 20
AF_OFF = 34 << 20
AF_MT = 342 * 1024
QX_OFF = 58 << 20
WS_BYTES = 0x10000000

def srd(p, d, lo, hi, nbytes):
    p(f'''s_mov_b32 s{d}, s{lo}
s_and_b32 s{d+1}, s{hi}, 0xffff
s_mov_b32 s{d+2}, {nbytes:#x}
s_mov_b32 s{d+3}, 0x00020000''')

def kd(name, vgpr, accum, sgpr=102):
    return f'''.section .rodata,"a"
.p2align 6
.amdhsa_kernel {name}
  .amdhsa_next_free_vgpr {vgpr}
  .amdhsa_next_free_sgpr {sgpr}
  .amdhsa_accum_offset {accum}
  .amdhsa_group_segment_fixed_size 0
  .amdhsa_kernarg_size 104
  .amdhsa_user_sgpr_count 2
  .amdhsa_user_sgpr_kernarg_segment_ptr 1
  .amdhsa_system_sgpr_workgroup_id_x 1
  .amdhsa_float_denorm_mode_32 3
  .amdhsa_float_denorm_mode_16_64 3
.end_amdhsa_kernel
'''

def vr(b, n=1):
    return f'v{b}' if n == 1 else f'v[{b}:{b+n-1}]'
def ar(b, n=1):
    return f'a{b}' if n == 1 else f'a[{b}:{b+n-1}]'

def wave_reduce_add(p, v, t):
    p(f'v_add_f32_dpp v{v}, v{v}, v{v} quad_perm:[1,0,3,2] row_mask:0xf bank_mask:0xf')
    p(f'v_add_f32_dpp v{v}, v{v}, v{v} quad_perm:[2,3,0,1] row_mask:0xf bank_mask:0xf')
    p(f'v_add_f32_dpp v{v}, v{v}, v{v} row_half_mirror row_mask:0xf bank_mask:0xf')
    p(f'v_add_f32_dpp v{v}, v{v}, v{v} row_mirror row_mask:0xf bank_mask:0xf')
    p(f'v_mov_b32 v{t}, v{v}')
    p(f'v_permlane16_swap_b32 v{v}, v{t}')
    p(f'v_add_f32 v{v}, v{v}, v{t}')
    p(f'v_mov_b32 v{t}, v{v}')
    p(f'v_permlane32_swap_b32 v{v}, v{t}')
    p(f'v_add_f32 v{v}, v{v}, v{t}')

def interleave(p, backbone, fillers):
    for i, b in enumerate(backbone):
        for f in fillers.get(('pre', i), []):
            f(p) if callable(f) else p(f)
        p(b)
        for f in fillers.get(i, []):
            f(p) if callable(f) else p(f)

import os
PROF = int(os.environ.get('PROF', '0'))
PROF_OFF = 128 << 20
class Stamps:
    def __init__(self, p, base, n): self.p = p; self.base = base; self.n = n; self.i = 0
    def stamp(self, pp=None):
        if not PROF: return
        pp = pp or self.p
        self.cnt = getattr(self, 'cnt', -1) + 1
        if self.cnt in getattr(self, 'skip', ()): return
        if self.i >= self.n: return
        b = self.base + 2 * self.i; self.i += 1
        pp(f's_memtime s[{b}:{b+1}]')
        if self.i == 1: pp(f's_memrealtime s[{self.base+2*self.n}:{self.base+2*self.n+1}]')
    def dump(self, pp, srd, kidx, swave, vtmp, stmp, nwaves):
        if not PROF: return
        pp(f's_memrealtime s[{self.base+2*self.n+2}:{self.base+2*self.n+3}]')
        pp('s_waitcnt lgkmcnt(0)')
        pp(f's_mul_i32 s{stmp}, s2, {nwaves}')
        pp(f's_add_u32 s{stmp}, s{stmp}, s{swave}')
        pp(f's_lshl_b32 s{stmp}, s{stmp}, 8')
        pp(f's_add_u32 s{stmp}, s{stmp}, {PROF_OFF + (kidx << 22):#x}')
        pp(f'v_mov_b32 v{vtmp+1}, 0')
        for i in range(self.i):
            pp(f'v_mov_b32 v{vtmp}, s{self.base+2*i}')
            pp(f'buffer_store_dword v{vtmp}, v{vtmp+1}, s[{srd}:{srd+3}], s{stmp} offen offset:{4*i}')
        for i in range(2):
            pp(f'v_mov_b32 v{vtmp}, s{self.base+2*self.n+2*i}')
            pp(f'buffer_store_dword v{vtmp}, v{vtmp+1}, s[{srd}:{srd+3}], s{stmp} offen offset:{248+4*i}')

def atomic_groups(texts, maxlen=3):
    ins = [Inst(t) if isinstance(t, str) and not t.endswith(':') and not t.startswith('@') else None for t in texts]
    n = len(texts)
    live = [False] * (n + 1)
    special = {SCC, VCC[0], VCC[1], M0}
    cur = set()
    for i in range(n - 1, -1, -1):
        if ins[i] is not None:
            cur = (cur - (set(ins[i].writes) & special)) | (set(ins[i].reads) & special)
        live[i] = bool(cur)
    groups = []; g = []
    for i, t in enumerate(texts):
        if g and len(g) >= maxlen and not live[i]:
            groups.append(g); g = []
        g.append(t)
    if g: groups.append(g)
    return groups

def spread(add, groups, lo, hi):
    n = len(groups)
    for i, g in enumerate(groups):
        add(lo + (i * (hi - lo + 1)) // n, g)
```

```python
from common import *

def ln_stream(src, f, t):
    q = Prog()
    p = q
    for i in range(4):
        p(f'v_lshlrev_b32 v{f+2*i}, 16, v{src+i}')
        p(f'v_and_b32 v{f+2*i+1}, 0xffff0000, v{src+i}')
    p(f'v_add_f32 v{t}, v{f}, v{f+1}')
    for i in range(2, 8): p(f'v_add_f32 v{t}, v{t}, v{f+i}')
    wave_reduce_add(p, t, t + 1)
    p(f'v_mul_f32 v{t}, 0x3b000000, v{t}')
    for i in range(8): p(f'v_sub_f32 v{f+8+i}, v{f+i}, v{t}')
    p(f'v_mul_f32 v{t+2}, v{f+8}, v{f+8}')
    for i in range(1, 8): p(f'v_fmac_f32 v{t+2}, v{f+8+i}, v{f+8+i}')
    wave_reduce_add(p, t + 2, t + 1)
    p(f'v_mul_f32 v{t+2}, 0x3b000000, v{t+2}')
    p(f'v_cvt_pk_bf16_f32 v{t+3}, v{t}, v{t+2}')
    p(f'v_lshlrev_b32 v{t}, 16, v{t+3}')
    p(f'v_and_b32 v{t+2}, 0xffff0000, v{t+3}')
    p(f'v_add_f32 v{t+2}, 0x3727c5ac, v{t+2}')
    p(f'v_cvt_pk_bf16_f32 v{t+3}, v{t+2}, v{t+2}')
    p(f'v_lshlrev_b32 v{t+2}, 16, v{t+3}')
    p(f'v_sqrt_f32 v{t+2}, v{t+2}')
    p(f'v_cvt_pk_bf16_f32 v{t+3}, v{t+2}, v{t+2}')
    p(f'v_lshlrev_b32 v{t+2}, 16, v{t+3}')
    p(f'v_rcp_f32 v{t+4}, v{t+2}')
    p(f'v_fma_f32 v{t+5}, -v{t+2}, v{t+4}, 1.0')
    p(f'v_fma_f32 v{t+4}, v{t+5}, v{t+4}, v{t+4}')
    for i in range(8): p(f'v_sub_f32 v{f+8+i}, v{f+i}, v{t}')
    for i in range(4): p(f'v_cvt_pk_bf16_f32 v{f+i}, v{f+8+2*i}, v{f+9+2*i}')
    for i in range(4):
        p(f'v_lshlrev_b32 v{f+8+2*i}, 16, v{f+i}')
        p(f'v_and_b32 v{f+9+2*i}, 0xffff0000, v{f+i}')
    for i in range(8): p(f'v_mul_f32 v{f+8+i}, v{f+8+i}, v{t+4}')
    for i in range(4): p(f'v_cvt_pk_bf16_f32 v{src+i}, v{f+8+2*i}, v{f+9+2*i}')
    return [i.text for i in q.items]

def gen_k1():
    p = Prog()
    st = Stamps(p, 60, 12)
    STG = 98304
    p(f'''
s_cmp_ge_u32 s2, 256
s_cbranch_scc1 L1_end
s_load_dwordx4 s[4:7], s[0:1], 0
s_load_dwordx4 s[8:11], s[0:1], 24
s_load_dwordx2 s[28:29], s[0:1], 96
s_load_dwordx2 s[88:89], s[0:1], 16
s_load_dwordx4 s[92:95], s[0:1], 56
v_lshrrev_b32 v1, 6, v0
v_and_b32 v2, 63, v0
v_readfirstlane_b32 s30, v1
s_and_b32 s31, s2, 7
s_lshr_b32 s32, s2, 3
s_and_b32 s33, s32, 3
s_lshr_b32 s34, s32, 2
s_lshr_b32 s35, s33, 1
s_and_b32 s36, s33, 1
s_lshl_b32 s37, s31, 9
s_lshl_b32 s38, s36, 8
s_add_u32 s37, s37, s38
''')
    st.stamp()
    p('''
v_lshrrev_b32 v3, 4, v2
v_and_b32 v8, 15, v2
''')
    for j in range(4):
        p(f'v_add_u32 v9, {4*j}, v3')
        p(f'v_xor_b32 v9, v8, v9')
        p(f'v_lshlrev_b32 v9, 4, v9')
        p(f'v_lshl_add_u32 v{4+j}, v3, 10, v9')
    p('''
v_lshrrev_b32 v9, 3, v2
v_and_b32 v10, 7, v2
v_bfe_u32 v11, v2, 4, 1
v_lshlrev_b32 v11, 2, v11
v_xor_b32 v10, v10, v11
v_lshlrev_b32 v10, 4, v10
v_lshl_add_u32 v8, v9, 13, v10
''')
    p(f'''
v_and_b32 v9, 31, v2
v_lshrrev_b32 v10, 5, v2
v_and_b32 v11, 15, v9
v_xor_b32 v11, v10, v11
v_lshlrev_b32 v11, 4, v11
v_lshl_add_u32 v11, v9, 8, v11
s_lshl_b32 s39, s30, 14
s_add_u32 s39, s39, {STG}
v_add_u32 v16, s39, v11
''')
    for i in range(1, 8): p(f'v_xor_b32 v{16+i}, {i<<5}, v16')
    p('''
v_bfe_u32 v9, v2, 2, 2
v_lshl_add_u32 v11, v10, 3, v9
v_lshlrev_b32 v11, 7, v11
v_lshrrev_b32 v9, 1, v9
v_lshl_add_u32 v11, v9, 6, v11
v_bfe_u32 v9, v2, 4, 1
v_lshl_add_u32 v11, v9, 5, v11
v_and_b32 v9, 3, v2
v_lshl_add_u32 v24, v9, 3, v11
v_xor_b32 v25, 64, v24
v_add_u32 v26, 0x8000, v24
v_add_u32 v27, 0x8000, v25
v_add_u32 v28, 0x10000, v24
v_add_u32 v29, 0x10000, v25
v_lshlrev_b32 v13, 4, v2
v_lshrrev_b32 v14, 1, v2
v_lshlrev_b32 v14, 10, v14
v_and_b32 v9, 1, v2
v_lshl_add_u32 v14, v9, 9, v14
''')
    p('s_waitcnt lgkmcnt(0)')
    srd(p, 12, 6, 7, 2 << 20)
    srd(p, 24, 4, 5, 2 << 20)
    srd(p, 20, 28, 29, WS_BYTES)
    p('''
s_cmp_eq_u32 s35, 0
s_cselect_b32 s16, s8, s10
s_cselect_b32 s17, s9, s11
s_and_b32 s17, s17, 0xffff
s_mov_b32 s18, 0x400000
s_mov_b32 s19, 0x00020000
''')
    p(f'''
s_lshl_b32 s40, s34, 8
s_lshl_b32 s41, s30, 6
s_add_u32 s40, s40, s41
s_lshl_b32 s40, s40, 10
s_lshl_b32 s42, s30, 19
s_lshl_b32 s43, s37, 1
s_add_u32 s42, s42, s43
s_lshl_b32 s43, s30, 13
''')
    def emit(lst):
        for f in lst: f(p) if callable(f) else p(f)
    def wdma(u, q):
        slot = u % 3; sc = u >> 1; kh = u & 1
        return [f's_add_u32 m0, s43, {slot*32768 + q*1024}',
                f's_add_u32 s50, s42, {(kh*256 + 8*q)*8192 + sc*128}',
                (lambda pp, u=u: pp('buffer_load_dwordx4 v8, s[16:19], s50 offen lds', f'w{u}'))]
    def adma(i, j):
        mt = i & 1; kq = i >> 1
        return [f's_add_u32 m0, s39, {(i&1)*8192 + j*1024}',
                f's_add_u32 s51, s40, {(mt*32 + 4*j)*1024 + kq*256}',
                (lambda pp, i=i, j=j: pp(f'buffer_load_dwordx4 v{4+(j&3)}, s[12:15], s51 offen lds', f'a{i}'))]
    def aread(i, k):
        mt = i & 1; kq = i >> 1; ks = kq * 8 + k
        return (lambda pp: pp(f'ds_read_b128 {ar((mt*32+ks)*4,4)}, v{16+k} offset:{(i&1)*8192}', f'ar{i}'))
    for j in range(8): emit(adma(0, j))
    for j in range(8): emit(adma(1, j))
    for q in range(8): emit(wdma(0, q))
    p(f'''
s_lshr_b32 s44, s37, 7
s_lshl_b32 s44, s44, 19
s_lshl_b32 s45, s34, 3
s_lshl_b32 s46, s30, 1
s_add_u32 s45, s45, s46
s_lshl_b32 s45, s45, 13
s_add_u32 s44, s44, s45
s_mov_b32 s45, {KF_OFF:#x}
s_mov_b32 s46, {VF_OFF:#x}
s_cmp_eq_u32 s35, 0
s_cselect_b32 s45, s45, s46
s_add_u32 s44, s44, s45
s_lshl_b32 s47, s2, 3
s_lshl_b32 s48, s30, 1
s_add_u32 s47, s47, s48
s_lshl_b32 s48, s47, 10
s_add_u32 s49, s48, 1024
s_lshr_b32 s52, s47, 5
s_lshl_b32 s52, s52, 15
s_and_b32 s53, s47, 31
s_lshl_b32 s53, s53, 4
s_add_u32 s52, s52, s53
''')
    if XF_OFF: p(f's_add_u32 s52, s52, {XF_OFF:#x}')
    for q in range(8): emit(wdma(1, q))
    st.stamp()
    for i in (0, 1):
        p.wait_tag(f'a{i}')
        for k in range(8): emit([aread(i, k)])
        p.wait_tag(f'ar{i}')
        for j in range(8): emit(adma(i + 2, j))
    p.wait_tag('w0')
    p('s_barrier')
    st.stamp()
    st_base = st.i
    p('s_cmp_lg_u32 s35, 0')
    p('s_cbranch_scc1 L1_v')

    WF = 32
    PK = 56
    LNR = 72
    LNT = 80
    ACC = 128
    NST = 3
    def trread(g):
        u = g >> 4; kk = g & 15; slot = u % 3
        out = []
        for nt in range(2):
            w = WF + 8 * (g % NST) + 4 * nt
            out.append(f'ds_read_b64_tr_b16 {vr(w,2)}, v{24+2*slot+nt} offset:{kk*2048}')
            out.append(f'ds_read_b64_tr_b16 {vr(w+2,2)}, v{24+2*slot+nt} offset:{kk*2048+512}')
        return out
    def epilogue(sc):
        out = []
        a0 = ACC + 64 * (sc & 1)
        n = 0
        for mt in range(2):
            for nt in range(2):
                c = 2 * sc + nt
                off = (c >> 2) * 524288 + mt * 8192 + (c & 3) * 2048
                for half in range(2):
                    g = []
                    pk = PK + 4 * (n % 4); sreg = 54 + (n // 2) % 2; n += 1
                    for i in range(4):
                        s = a0 + 32 * mt + 16 * nt + 8 * half + 2 * i
                        g.append(f'v_cvt_pk_bf16_f32 v{pk+i}, v{s}, v{s+1}')
                    if half == 0: g.append(f's_add_u32 s{sreg}, s44, {off}')
                    g.append(f'buffer_store_dwordx4 {vr(pk,4)}, v13, s[20:23], s{sreg} offen offset:{half*1024}')
                    out.append(g)
        return out
    lns = ln_stream(LNR, LNT, LNT + 32) + ln_stream(LNR + 4, LNT + 16, LNT + 38)
    lns += [f'buffer_store_dwordx4 {vr(LNR,4)}, v14, s[20:23], s52 offen',
            f'buffer_store_dwordx4 {vr(LNR+4,4)}, v14, s[20:23], s52 offen offset:16']

    alt = p.begin_alt()
    for variant in ('k', 'v'):
        p.alt_branch(alt)
        st.i = st_base
        if variant == 'v': p.label('L1_v')
        for g in range(NST - 1): emit(trread(g))
        for u in range(8):
            sc = u >> 1; kh = u & 1
            a0 = ACC + 64 * (sc & 1)
            bb = []; fl = {}
            for kk in range(16):
                g = u * 16 + kk; ks = kh * 16 + kk
                for mt in range(2):
                    for nt in range(2):
                        w = WF + 8 * (g % NST) + 4 * nt
                        acc = vr(a0 + 32 * mt + 16 * nt, 16); cc = '0' if ks == 0 else acc
                        A = ar((mt * 32 + ks) * 4, 4)
                        if variant == 'k': bb.append(f'v_mfma_f32_32x32x16_bf16 {acc}, {vr(w,4)}, {A}, {cc}')
                        else:              bb.append(f'v_mfma_f32_32x32x16_bf16 {acc}, {A}, {vr(w,4)}, {cc}')
                ng = g + NST - 1
                if ng < 128:
                    for i, t in enumerate(trread(ng)): fl.setdefault(4 * kk + i, []).append(t)
            def add(slot, items): fl.setdefault(slot, []).extend(items)
            if u < 2:
                for half in range(2):
                    q = 2 * u + half
                    base = 32 * half
                    if q + 1 < 4:
                        for t in range(2):
                            i = 2 * (q + 1) + t
                            add(base + 4 + 10 * t, [lambda pp, i=i: pp.wait_tag(f'a{i}')])
                            for k in range(8): add(base + 4 + 10 * t + k, [aread(i, k)])
                        if q + 2 < 4:
                            for t in range(2):
                                i = 2 * (q + 1) + t
                                add(base + 24 + 4 * t, [lambda pp, i=i: pp.wait_tag(f'ar{i}')])
                                for j in range(8): add(base + 24 + 4 * t + j // 2, adma(i + 2, j))
            if u == 2:
                add(8, ['s_cmp_eq_u32 s30, 2', 's_cselect_b32 s88, s92, s88', 's_cselect_b32 s89, s93, s89',
                        's_cmp_eq_u32 s30, 3', 's_cselect_b32 s88, s94, s88', 's_cselect_b32 s89, s95, s89'])
                add(9, ['s_and_b32 s89, s89, 0xffff', 's_mov_b32 s91, 0x00020000', 's_mov_b32 s90, 0x158000', 's_movk_i32 s57, 5504',
                        's_cmp_lt_u32 s30, 2', 's_cselect_b32 s90, 0x400000, s90', 's_cselect_b32 s57, 0x4000, s57'])
                add(10, ['s_mul_i32 s57, s57, s2', 's_and_b32 s58, s30, 1', 's_lshl_b32 s58, s58, 13', 's_cmp_lt_u32 s30, 2',
                         's_cselect_b32 s58, s58, 0', 's_add_u32 s57, s57, s58', 'v_lshlrev_b32 v15, 3, v13'])
                add(12, ['buffer_load_dword v12, v15, s[88:91], s57 offen'])
            if u == 0:
                add(60, ['buffer_load_dwordx4 v[72:75], v13, s[24:27], s48 offen',
                         'buffer_load_dwordx4 v[76:79], v13, s[24:27], s49 offen'])
            if u == 3:
                for i, ins in enumerate(lns): add(2 + (i * 58) // len(lns), [ins])
            if kh == 0 and sc > 0:
                for i, g in enumerate(epilogue(sc - 1)):
                    for j, ins in enumerate(g): add(6 + 5 * i + (j * 5) // 6, [ins])
            if u < 7:
                bs = 50
                add(bs, [lambda pp, u=u: pp.wait_tag(f'w{u+1}'), 's_barrier'])
                if u + 2 < 8:
                    for q in range(8): add(bs + 1 + (q * 12) // 8, wdma(u + 2, q))
            interleave(p, bb, fl)
            st.stamp()
        for g in epilogue(3): emit(g)
        if PROF: p('s_waitcnt vmcnt(0)')
        st.stamp()
        st.dump(p, 20, 0, 30, 80, 56, 4)
        p('s_endpgm')
        p.end_branch()
    p.label('L1_end')
    p('s_endpgm')
    return ('k1_kernel', p, 256, 256, 163840, 512, 256)
```

```python
from common import *
import struct, math

def f2u(x): return struct.unpack('<I', struct.pack('<f', x))[0]

def gen_k2():
    p = Prog()
    st = Stamps(p, 70, 10)
    VL16 = 1; VK = 2; VV = 3; VZ = 4; VLS = 5; VM = 6; VTS = 7; VLSAVE = 8
    T0 = 9
    Q = 16; O = 48; S = [112, 128]; PP = [144, 152]; MN = 160; FR = 176; E = 208; TT = 216
    GACC = 48; GW = 160; GX = 216; GA = 248
    SLOT = 29184
    KSL = 0; VSL = 65536; QX = 131072
    THR = f2u(float(2 ** 20)); NEG = f2u(-1e30); FLOOR1 = f2u(-1e20)
    p(f'''
s_cmp_ge_u32 s2, 256
s_cbranch_scc1 L2_end
s_load_dwordx2 s[12:13], s[0:1], 16
s_load_dwordx4 s[16:19], s[0:1], 56
s_load_dwordx2 s[14:15], s[0:1], 96
s_load_dwordx2 s[96:97], s[0:1], 40
s_load_dwordx2 s[100:101], s[0:1], 72
v_lshrrev_b32 v9, 6, v0
v_and_b32 v10, 63, v0
v_readfirstlane_b32 s20, v9
s_and_b32 s21, s2, 7
s_lshr_b32 s22, s2, 3
s_and_b32 s23, s22, 3
s_lshr_b32 s24, s22, 2
s_lshl_b32 s21, s21, 2
s_add_u32 s21, s21, s23
s_lshr_b32 s25, s20, 2
s_and_b32 s26, s20, 3
''')
    st.stamp()
    p('''
s_sub_u32 s28, 15, s24
s_lshl_b32 s28, s28, 2
s_add_u32 s28, s28, s26
s_lshl_b32 s27, s24, 2
s_add_u32 s27, s27, s26
s_cmp_eq_u32 s25, 0
s_cselect_b32 s27, s28, s27
''')
    p(f'v_lshlrev_b32 v{VL16}, 4, v10')
    p('''
v_lshrrev_b32 v11, 4, v10
v_bfe_u32 v12, v10, 2, 2
v_and_b32 v13, 3, v11
v_xor_b32 v12, v12, v13
v_lshlrev_b32 v12, 6, v12
v_and_b32 v13, 3, v10
v_lshl_add_u32 v12, v13, 4, v12
v_lshl_add_u32 v12, v11, 13, v12
s_lshl_b32 s29, s26, 17
v_add_u32 v248, s29, v12
v_add_u32 v249, 0x8000, v248
v_add_u32 v250, 0x10000, v248
v_add_u32 v251, 0x18000, v248
s_and_b32 s29, s20, 1
s_mul_i32 s29, s29, 192
s_mov_b32 s30, 43691
s_movk_i32 s31, 2752
''')
    for t in range(3):
        p(f'''
v_add_u32 v11, s29, v10
v_add_u32 v11, {64*t}, v11
v_mul_lo_u32 v12, v11, s30
v_lshrrev_b32 v12, 18, v12
v_mul_u32_u24 v13, 6, v12
v_sub_u32 v13, v11, v13
v_mul_lo_u32 v12, v12, s31
v_lshl_add_u32 v{252+t}, v13, 4, v12
''')
    p('''
s_cmp_eq_u32 s25, 0
s_cselect_b64 s[32:33], -1, 0
v_cndmask_b32 v248, v252, v248, s[32:33]
v_cndmask_b32 v249, v253, v249, s[32:33]
v_cndmask_b32 v250, v254, v250, s[32:33]
v_cndmask_b32 v251, v254, v251, s[32:33]
''')
    p('''
v_lshrrev_b32 v11, 5, v10
v_bfe_u32 v12, v10, 2, 2
v_lshl_add_u32 v13, v11, 3, v12
v_lshlrev_b32 v14, 8, v13
v_lshl_add_u32 v14, v12, 6, v14
v_bfe_u32 v15, v10, 4, 1
v_lshl_add_u32 v14, v15, 5, v14
v_and_b32 v9, 3, v10
v_lshl_add_u32 v252, v9, 3, v14
v_mul_u32_u24 v13, 96, v13
v_mul_u32_u24 v15, 6272, v15
v_add_u32 v13, v13, v15
v_lshl_add_u32 v13, v9, 3, v13
v_add_u32 v253, 0x4000, v13
''')
    p(f'''
v_and_b32 v12, 31, v10
v_lshlrev_b32 v13, 2, v11
v_sub_u32 v{VZ}, v12, v13
''')
    p('s_waitcnt lgkmcnt(0)')
    srd(p, 8, 14, 15, WS_BYTES)
    p('''
s_lshr_b32 s29, s20, 1
s_and_b32 s29, s29, 1
s_cmp_eq_u32 s29, 0
s_cselect_b32 s4, s16, s18
s_cselect_b32 s5, s17, s19
s_mov_b32 s6, 0x158000
s_cmp_eq_u32 s25, 0
s_cselect_b32 s4, s12, s4
s_cselect_b32 s5, s13, s5
s_cselect_b32 s6, 0x400000, s6
s_and_b32 s5, s5, 0xffff
s_mov_b32 s7, 0x00020000
''')
    p('''
s_lshl_b32 s34, s21, 8
s_mul_i32 s38, s21, 96
s_lshl_b32 s36, s26, 12
s_mul_i32 s39, s29, 6272
s_and_b32 s40, s20, 1
s_mul_i32 s40, s40, 3072
s_add_u32 s39, s39, s40
s_add_u32 s39, s39, 16384
s_cmp_eq_u32 s25, 0
s_cselect_b32 s34, s34, s38
s_mov_b32 s35, 0x2b000
s_cselect_b32 s35, 0x80000, s35
''')
    p('''
s_cmp_eq_u32 s25, 0
s_cselect_b32 s36, s36, s39
s_movk_i32 s37, 2048
s_cselect_b32 s37, 3072, s37
s_add_u32 s37, s37, s36
s_lshl_b32 s41, s27, 15
''')
    if XF_OFF: p(f's_add_u32 s41, s41, {XF_OFF:#x}')
    def gdma(sl):
        base = (sl % 4) * SLOT
        out = []
        for t in range(4):
            out.append([f's_add_u32 m0, s{36 if t < 3 else 37}, {base + (t*1024 if t < 3 else 0)}',
                        's_nop 0',
                        (lambda pp, t=t, sl=sl: pp(f'buffer_load_dwordx4 v{248+t}, s[4:7], s34 offen lds', f'g{sl}'))])
        out[3].append('s_add_u32 s34, s34, s35')
        return out
    def xload(sl):
        out = []
        b = GX + 16 * (sl & 1)
        for k in range(4):
            out.append(f'buffer_load_dwordx4 {vr(b+4*k,4)}, v{VL16}, s[8:11], s42 offen offset:{k*1024}')
        return [f's_add_u32 s42, s41, {sl*4096}'] + out
    def emit(lst):
        for f in lst:
            if isinstance(f, list): emit(f)
            elif callable(f): f(p)
            else: p(f)
    emit(gdma(0)); emit(xload(0)); emit(gdma(1)); emit(gdma(2))
    p(f'''
s_lshl_b32 s44, s21, 19
s_lshl_b32 s46, s20, 11
s_add_u32 s44, s44, s46
s_add_u32 s45, s44, {VF_OFF:#x}
s_add_u32 s44, s44, {KF_OFF:#x}
s_lshl_b32 s47, s24, 1
s_add_u32 s47, s47, 2
''')
    AQ = [T0, T0 + 1, T0 + 2, T0 + 3]; AF_ = T0 + 4
    def set_addr(sl):
        base = (sl % 4) * SLOT
        out = [f'v_add_u32 v{AQ[0]}, {base}, v252']
        for nt in range(1, 4): out.append(f'v_xor_b32 v{AQ[nt]}, {nt<<6}, v{AQ[0]}')
        out.append(f'v_add_u32 v{AF_}, {base}, v253')
        return out
    assert all(((s * SLOT) & 0xc0) == 0 for s in range(4))
    def gtr(g):
        kk = g & 3; out = []
        for tl in range(7):
            w = GW + 28 * (g & 1) + 4 * tl
            if tl < 4:
                out.append(f'ds_read_b64_tr_b16 {vr(w,2)}, v{AQ[tl]} offset:{kk*4096}')
                out.append(f'ds_read_b64_tr_b16 {vr(w+2,2)}, v{AQ[tl]} offset:{kk*4096+1024}')
            else:
                o = kk * 1536 + (tl - 4) * 32
                out.append(f'ds_read_b64_tr_b16 {vr(w,2)}, v{AF_} offset:{o}')
                out.append(f'ds_read_b64_tr_b16 {vr(w+2,2)}, v{AF_} offset:{o+384}')
        return out
    p.wait_tag('g0')
    p('s_barrier')
    st.stamp()
    emit(set_addr(0))
    emit(gtr(0))
    for sl in range(8):
        bb = []; fl = {}
        def add(slot, items): fl.setdefault(slot, []).extend(items)
        for kk in range(4):
            g = sl * 4 + kk
            xb = GX + 16 * (sl & 1) + 4 * kk
            for tl in range(7):
                w = GW + 28 * (g & 1) + 4 * tl
                acc = vr(GACC + 16 * tl, 16); cc = '0' if g == 0 else acc
                bb.append(f'v_mfma_f32_32x32x16_bf16 {acc}, {vr(w,4)}, {vr(xb,4)}, {cc}')
            ng = g + 1
            if ng < 32:
                if kk == 3:
                    add(7 * kk - 1, set_addr(sl + 1))
                rd = gtr(ng)
                for i in range(7): add(7 * kk + i, rd[2 * i:2 * i + 2])
        if sl == 5:
            add(6, ['s_cmp_eq_u32 s20, 2', 's_cselect_b32 s96, s100, s96', 's_cselect_b32 s97, s101, s97', 's_and_b32 s97, s97, 0xffff'])
            add(7, ['s_mov_b32 s99, 0x00020000', 's_mov_b32 s98, 0x158000', 's_movk_i32 s48, 5504',
                    's_cmp_lt_u32 s20, 2', 's_cselect_b32 s98, 0x400000, s98', 's_cselect_b32 s48, 0x4000, s48'])
            add(8, ['s_mul_i32 s48, s48, s2', 's_and_b32 s49, s20, 1', 's_lshl_b32 s49, s49, 13', 's_cmp_lt_u32 s20, 2',
                    's_cselect_b32 s49, s49, 0', 's_add_u32 s48, s48, s49', 's_cmp_ge_u32 s20, 3', 's_cselect_b32 s48, 0x7f000000, s48',
                    f'v_lshlrev_b32 v15, 3, v{VL16}'])
            add(10, ['buffer_load_dword v14, v15, s[96:99], s48 offen'])
        if sl + 1 < 8:
            xl = xload(sl + 1)
            add(0, xl[:1])
            for k in range(4): add(1 + k, [xl[1 + k]])
            add(17, [lambda pp, sl=sl: pp.wait_tag(f'g{sl+1}'), 's_barrier'])
            if sl + 3 < 8:
                for t, grp in enumerate(gdma(sl + 3)): add(18 + 2 * t if t < 1 else 21 + 2 * (t - 1), grp)
        interleave(p, bb, fl)
    st.stamp()
    p('s_waitcnt lgkmcnt(0)')
    p('s_barrier')
    def kvcopy(sbase, chunk_sreg_or_imm, ldsbase, tag, tmp=43):
        return [f's_add_u32 m0, s46, {ldsbase}',
                f's_add_u32 s{tmp}, s{sbase}, {chunk_sreg_or_imm}',
                (lambda pp: pp(f'buffer_load_dwordx4 v{VL16}, s[8:11], s{tmp} offen lds', tag)),
                (lambda pp: pp(f'buffer_load_dwordx4 v{VL16}, s[8:11], s{tmp} offen offset:1024 lds', tag))]
    emit(kvcopy(44, 0, KSL, 'k0'))
    emit(kvcopy(44, 16384, KSL + 32768, 'k1'))
    emit(kvcopy(45, 0, VSL, 'v0'))
    CQ = f2u(math.log2(math.e) / math.sqrt(128.0))
    p(f's_mov_b32 s48, {CQ:#x}')
    for tl in range(4):
        for i in range(16): p(f'v_mul_f32 v{GACC+16*tl+i}, s48, v{GACC+16*tl+i}')
        for i in range(8): p(f'v_cvt_pk_bf16_f32 v{Q+8*tl+i}, v{GACC+16*tl+2*i}, v{GACC+16*tl+2*i+1}')
    p(f'''
s_lshl_b32 s49, s26, 13
s_add_u32 s49, s49, {QX}
v_add_u32 v9, s49, v{VL16}
s_cmp_lg_u32 s25, 0
s_cbranch_scc1 L2_noqx
''')
    for ks in range(8): p(f'ds_write_b128 v9, {vr(Q+4*ks,4)} offset:{ks*1024}')
    p('s_waitcnt lgkmcnt(0)')
    p.label('L2_noqx')
    KG = -2.0 * math.sqrt(2.0 / math.pi) * math.log2(math.e)
    p(f's_mov_b32 s50, {f2u(KG):#x}')
    p(f's_mov_b32 s51, {f2u(KG*0.044715):#x}')
    p(f'''
s_mul_i32 s52, s27, {AF_MT}
s_mul_i32 s53, s21, 3
s_add_u32 s54, s53, 256
s_lshl_b32 s54, s54, 10
s_add_u32 s52, s52, s54
s_add_u32 s52, s52, {AF_OFF:#x}
''')
    for tt in range(3):
        a = GACC + 64 + 16 * tt; t = GW
        p(f's_add_u32 s54, s53, {tt}')
        p('s_cmp_ge_u32 s54, 86')
        p(f's_cbranch_scc1 L2_ffn_skip{tt}')
        for i in range(8): p(f'v_cvt_pk_bf16_f32 v{t+i}, v{a+2*i}, v{a+2*i+1}')
        for i in range(8):
            p(f'v_lshlrev_b32 v{a+2*i}, 16, v{t+i}')
            p(f'v_and_b32 v{a+2*i+1}, 0xffff0000, v{t+i}')
        for i in range(8): p(f'v_mul_f32 v{t+i}, v{a+i}, v{a+i}')
        p(f'v_mov_b32 v{t+16}, s50')
        for i in range(8): p(f'v_fma_f32 v{t+i}, v{t+i}, s51, v{t+16}')
        for i in range(8): p(f'v_mul_f32 v{t+i}, v{t+i}, v{a+i}')
        for i in range(8): p(f'v_exp_f32 v{t+i}, v{t+i}')
        for i in range(8): p(f'v_add_f32 v{t+i}, 1.0, v{t+i}')
        for i in range(8): p(f'v_rcp_f32 v{t+i}, v{t+i}')
        for i in range(8): p(f'v_mul_f32 v{t+i}, v{t+i}, v{a+i}')
        for i in range(4): p(f'v_cvt_pk_bf16_f32 v{t+8+i}, v{t+2*i}, v{t+2*i+1}')
        for i in range(4):
            p(f'v_lshlrev_b32 v{t+2*i}, 16, v{t+8+i}')
            p(f'v_and_b32 v{t+2*i+1}, 0xffff0000, v{t+8+i}')
        for i in range(8): p(f'v_mul_f32 v{t+i}, v{t+i}, v{a+8+i}')
        for i in range(4): p(f'v_cvt_pk_bf16_f32 v{t+20+4*tt+i}, v{t+2*i}, v{t+2*i+1}')
        p(f'buffer_store_dwordx4 {vr(t+20+4*tt,4)}, v{VL16}, s[8:11], s52 offen offset:{tt*1024}')
        p.label(f'L2_ffn_skip{tt}')
    st.stamp()
    for i in range(64): p(f'v_mov_b32 v{O+i}, 0')
    for i in range(16): p(f'v_mov_b32 v{MN+i}, 0')
    p(f"""
v_mov_b32 v{VLS}, 0
v_mov_b32 v{VM}, 0
v_mov_b32 v{VLSAVE}, 0
s_mov_b32 s56, {THR:#x}
s_mov_b32 s57, 0xbf800000
s_mov_b32 s58, {FLOOR1:#x}
s_mov_b32 s59, 1
s_mov_b32 s60, 1.0
s_mov_b32 s61, s27
s_mov_b32 s62, 0
s_lshl_b32 s67, s25, 14
v_add_u32 v{VK}, {KSL}, v{VL16}
v_add_u32 v{VV}, {VSL}, v{VL16}
s_mov_b32 s55, 0
s_mov_b32 s63, 16384
s_add_u32 s64, s46, 32768
s_lshl_b32 s49, s47, 1
s_add_u32 s49, s49, 2
s_cmp_eq_u32 s25, 0
s_cselect_b32 s49, 0, s49
s_cselect_b32 s66, 32, s27
""")
    p('s_waitcnt vmcnt(0) lgkmcnt(0)')
    p('s_barrier')
    st.stamp()

    MF = 'v_mfma_f32_32x32x16_bf16'
    def frag_read(f):
        hf = f >> 4; i = f & 15; dst = vr(FR + 4 * (f % 8), 4)
        if i < 8:  return f'ds_read_b128 {dst}, v{VK} offset:{hf*8192 + i*1024}'
        else:      return f'ds_read_b128 {dst}, v{VV} offset:{hf*8192 + (i-8)*1024}'
    def mfma(f):
        hf = f >> 4; i = f & 15; fr = vr(FR + 4 * (f % 8), 4)
        if i < 8:
            s = vr(S[hf], 16); c = vr(MN, 16) if i == 0 else s
            return f'{MF} {s}, {fr}, {vr(Q+4*i,4)}, {c}'
        dt = (i - 8) >> 1; tp = (i - 8) & 1
        o = vr(O + 16 * dt, 16)
        return f'{MF} {o}, {fr}, {vr(PP[hf]+4*tp,4)}, {o}'
    def bstage(hf, nslots):
        c = S[1 - hf]; pp_ = PP[1 - hf]
        groups = [[] for _ in range(nslots)]
        span = nslots - 2
        pos_e = [(kk * span) // 16 for kk in range(16)]
        late = [[] for _ in range(nslots)]
        for k in range(8):
            ea = E + (2 * k) % 8; eb = E + (2 * k + 1) % 8
            groups[pos_e[2 * k]].append(f'v_exp_f32 v{ea}, v{c+2*k}')
            groups[pos_e[2 * k + 1]].append(f'v_exp_f32 v{eb}, v{c+2*k+1}')
            sa = pos_e[2 * k] + 1; sb = pos_e[2 * k + 1] + 1
            if k == 0:
                late[sb].append(f'v_add_f32 v{VTS}, v{ea}, v{eb}')
            else:
                late[sa].append(f'v_add_f32 v{VTS}, v{VTS}, v{ea}')
                late[sb].append(f'v_add_f32 v{VTS}, v{VTS}, v{eb}')
            late[sb].append(f'v_cvt_pk_bf16_f32 v{pp_+k}, v{ea}, v{eb}')
        return [late[i] + groups[i] for i in range(nslots)]
    outl = []

    def step(kind):
        doA = kind != 'drain'
        slots = []
        for f in range(32):
            hf = f >> 4; i = f & 15
            isA = i < 8
            if isA and not doA: continue
            if not isA and kind == 'first': continue
            slots.append(f)
        pos = {f: n for n, f in enumerate(slots)}
        bb = [mfma(f) for f in slots]
        fl = {}
        def add(n, items): fl.setdefault(n, []).extend(items)
        nS = len(slots)
        DIST = 4
        last_read_slot = nS - 6
        for n in range(DIST, nS):
            add(min(n - DIST, last_read_slot) if kind != 'drain' else n - DIST, [frag_read(slots[n])])
        for hf in range(2):
            if kind == 'first' and hf == 0: continue
            if kind == 'drain' and hf == 1: continue
            hs = [n for n, f in enumerate(slots) if (f >> 4) == hf]
            groups = bstage(hf, len(hs))
            for gi, g in enumerate(groups): add(hs[gi], g)
            nm = f'{kind}{hf}'
            add(hs[-2], [f'v_cmp_nge_f32 vcc, s{56+hf}, v{VTS}'])
            add(hs[-1], [f's_cbranch_vccnz L2_rare{nm}', f'L2_ret{nm}:', f'v_add_f32 v{VLS}, v{VLS}, v{VTS}'])
            outl.append(('rare', nm, hf))
        for hf in range(2):
            if kind == 'drain' and hf == 1: continue
            nm = f'{kind}{hf}'
            first_slot = [n for n, f in enumerate(slots) if (f >> 4) == hf][0]
            fl.setdefault(('pre', first_slot), []).extend(
                ['s_cmp_ge_u32 s62, s66', f's_cbranch_scc1 L2_evt{nm}', f'L2_eret{nm}:'])
            add(first_slot, ['s_add_u32 s62, s62, 1'])
            outl.append(('evt', nm, hf))
        return bb, fl, add, pos, slots

    def prep_next():
        return [['s_add_u32 s55, s55, 1', 's_and_b32 s50, s55, 1'],
                ['s_lshl_b32 s50, s50, 15', 's_cmp_ge_u32 s55, s47'],
                ['s_cselect_b32 s69, s67, 0', 's_add_u32 s50, s50, s69']]
    def barrier_blk():
        return ['s_waitcnt vmcnt(0) lgkmcnt(0)', 's_barrier',
                f'v_add_u32 v{VV}, {VSL - KSL}, v{VK}',
                f'v_add_u32 v{VK}, s50, v{VL16}']
    def dma_issue(name):
        L = f'buffer_load_dwordx4 v{VL16}, s[8:11], s43 offen lds'
        L2 = f'buffer_load_dwordx4 v{VL16}, s[8:11], s43 offen offset:1024 lds'
        g = []
        g.append([f's_add_u32 m0, s64, {VSL}', 's_add_u32 s43, s45, s63', L])
        g.append([L2, 's_cmp_lt_u32 s55, s47'])
        g.append([f's_cbranch_scc1 L2_nov2{name}', f's_add_u32 m0, s64, {VSL + 16384}', 's_add_u32 s43, s43, 16384', L, L2,
                  's_add_u32 s63, s63, 16384', f'L2_nov2{name}:'])
        g.append(['s_add_u32 s63, s63, 16384', 's_xor_b32 s64, s64, 32768'])
        g.append([f's_add_u32 m0, s64, {KSL}', 's_add_u32 s43, s44, s63', L])
        g.append([L2, 's_add_u32 s65, s55, 1', 's_cmp_lt_u32 s65, s47'])
        g.append([f's_cbranch_scc1 L2_nok{name}', f's_add_u32 m0, s64, {KSL + 16384}', 's_add_u32 s43, s43, 16384', L, L2,
                  f'L2_nok{name}:'])
        return g

    bb, fl, add, pos, slots = step('first')
    for n in range(4): p(frag_read(slots[n]))
    nS = len(slots)
    for gi, g in enumerate(prep_next()): add(4 + gi, g)
    add(nS - 4, barrier_blk())
    for n in range(4): add(nS - 4 + n, [frag_read(n)])
    interleave(p, bb, fl)
    p.begin_loop()
    p.label('L2_loop')
    bb, fl, add, pos, slots = step('loop')
    XP = os.environ.get('XP', '')
    if 'nodma' not in XP:
        for gi, g in enumerate(dma_issue('loop')): add(1 + 3 * gi, g)
    for gi, g in enumerate(prep_next()): add(23 + gi, g)
    nb_ = barrier_blk()
    if 'nobar' in XP: nb_ = [x for x in nb_ if x != 's_barrier']
    add(28, nb_)
    for n in range(4): add(28 + n if n < 3 else 30, [frag_read(n)])
    add(30, ['s_cmp_lt_u32 s55, 17'])
    if XP:
        for kk_ in fl: fl[kk_] = [x for x in fl[kk_] if not (isinstance(x, str) and x.startswith('s_cbranch_vccnz'))]
    if 'noexp' in XP:
        for kk_ in fl: fl[kk_] = [x.replace('v_exp_f32', 'v_mov_b32') if isinstance(x, str) else x for x in fl[kk_]]
    if 'novalu' in XP:
        for kk_ in fl: fl[kk_] = [x for x in fl[kk_] if not (isinstance(x, str) and x.startswith(('v_exp', 'v_add_f32 v7', 'v_cvt')))]
    if 'nolds' in XP:
        for kk_ in fl: fl[kk_] = [x for x in fl[kk_] if not (isinstance(x, str) and x.startswith('ds_read'))]
    interleave(p, bb, fl)
    p('s_cbranch_scc1 L2_loop')
    p.end_loop()
    st.stamp()
    p('s_waitcnt lgkmcnt(0)')
    bb, fl, add, pos, slots = step('drain')
    for n in range(4): p(frag_read(slots[n]))
    interleave(p, bb, fl)
    st.stamp()
    p(f'''
v_mov_b32 v9, v{VLS}
v_permlane32_swap_b32 v{VLS}, v9
v_add_f32 v{VLS}, v{VLS}, v9
s_waitcnt lgkmcnt(0)
s_barrier
''')
    p(f'''
s_mul_i32 s49, s20, 8704
s_xor_b32 s50, s20, 4
s_mul_i32 s50, s50, 8704
v_add_u32 v9, s49, v{VL16}
v_add_u32 v10, s50, v{VL16}
v_lshrrev_b32 v11, 1, v{VL16}
v_add_u32 v12, s49, v11
v_add_u32 v13, s50, v11
v_mov_b32 v14, v{VLS}
v_mov_b32 v15, v{VM}
s_cmp_eq_u32 s25, 0
s_cbranch_scc1 L2_mg0
''')
    X = TT
    alt = p.begin_alt()
    for g in (1, 0):
        p.alt_branch(alt)
        if g == 0: p.label('L2_mg0')
        keep = O + 32 * g; send = O + 32 * (1 - g)
        for k in range(8): p(f'ds_write_b128 v9, {vr(send+4*k,4)} offset:{k*1024}')
        p('ds_write_b64 v12, v[14:15] offset:8192')
        p('s_waitcnt lgkmcnt(0)')
        p('s_barrier')
        p(f'ds_read_b64 v[{E}:{E+1}], v13 offset:8192')
        for k in range(8): p(f'ds_read_b128 {vr(X+4*k,4)}, v10 offset:{k*1024}')
        p(f'''
v_max_f32 v{E+2}, v{VM}, v{E+1}
v_sub_f32 v{E+3}, v{VM}, v{E+2}
v_sub_f32 v{E+4}, v{E+1}, v{E+2}
v_exp_f32 v{E+3}, v{E+3}
v_exp_f32 v{E+4}, v{E+4}
v_mul_f32 v{E+5}, v{E+3}, v{VLS}
v_fmac_f32 v{E+5}, v{E+4}, v{E}
v_rcp_f32 v{E+5}, v{E+5}
v_mul_f32 v{E+3}, v{E+3}, v{E+5}
v_mul_f32 v{E+4}, v{E+4}, v{E+5}
''')
        for i in range(32):
            p(f'v_mul_f32 v{keep+i}, v{keep+i}, v{E+3}')
            p(f'v_fmac_f32 v{keep+i}, v{X+i}, v{E+4}')
        for i in range(16): p(f'v_cvt_pk_bf16_f32 v{S[0]+i}, v{keep+2*i}, v{keep+2*i+1}')
        p(f'''
s_mul_i32 s52, s28, {AF_MT}
s_lshl_b32 s54, s21, 13
s_add_u32 s52, s52, s54
s_add_u32 s52, s52, {AF_OFF + g*4096:#x}
''')
        for k in range(4): p(f'buffer_store_dwordx4 {vr(S[0]+4*k,4)}, v{VL16}, s[8:11], s52 offen offset:{k*1024}')
        if PROF: p('s_waitcnt vmcnt(0)')
        sv = st.i
        st.stamp()
        st.dump(p, 8, 1, 20, 9, 49, 8)
        st.i = sv
        p('s_endpgm')
        p.end_branch()

    ool = p.begin_alt()
    def routine(name):
        p.alt_branch(ool); p.label(name)
    def fin_code():
        p(f"""
s_nop 15
s_nop 7
v_mov_b32 v9, v{VLSAVE}
v_permlane32_swap_b32 v{VLSAVE}, v9
v_add_f32 v9, v{VLSAVE}, v9
v_rcp_f32 v9, v9
s_mul_i32 s52, s27, {AF_MT}
s_lshl_b32 s54, s21, 13
s_add_u32 s52, s52, s54
s_add_u32 s52, s52, {AF_OFF:#x}
s_add_u32 s53, s52, 4096
""")
        for half in range(2):
            for i in range(32): p(f'v_mul_f32 v{O+32*half+i}, v{O+32*half+i}, v9')
            for i in range(16): p(f'v_cvt_pk_bf16_f32 v{TT+16*half+i}, v{O+32*half+2*i}, v{O+32*half+2*i+1}')
            for k in range(4): p(f'buffer_store_dwordx4 {vr(TT+16*half+4*k,4)}, v{VL16}, s[8:11], s{52+half} offen offset:{k*1024}')
        for i in range(64): p(f'v_mov_b32 v{O+i}, 0')
    for kind, nm, hf in outl:
        if kind == 'evt':
            routine(f'L2_evt{nm}')
            p('s_lshl_b32 s68, s47, 1')
            if nm in ('loop0', 'drain0'):
                p(f"""
s_add_u32 s69, s68, 2
s_cmp_lg_u32 s62, s69
s_cbranch_scc1 L2_nofin{nm}
s_cmp_eq_u32 s25, 0
s_cbranch_scc1 L2_nofin{nm}
""")
                fin_code()
                p.label(f'L2_nofin{nm}')
            if nm == 'loop0':
                p(f"""
s_cmp_lg_u32 s62, s68
s_cbranch_scc1 L2_nosw
s_cmp_eq_u32 s25, 0
s_cbranch_scc1 L2_nosw
s_lshl_b32 s69, s26, 13
s_add_u32 s69, s69, {QX}
v_add_u32 v9, s69, v{VL16}
s_nop 7
""")
                for ks in range(8): p(f'ds_read_b128 {vr(Q+4*ks,4)}, v9 offset:{ks*1024}')
                for i in range(16): p(f'v_mov_b32 v{MN+i}, 0')
                p(f"""
v_mov_b32 v{VM}, 0
s_mov_b32 s61, s28
s_mov_b32 s60, 0
s_waitcnt lgkmcnt(0)
L2_nosw:
""")
            if nm == 'loop1':
                p(f"""
s_add_u32 s69, s68, 1
s_cmp_lg_u32 s62, s69
s_cbranch_scc1 L2_nomid
s_cmp_eq_u32 s25, 0
s_cbranch_scc1 L2_nomid
v_mov_b32 v{VLSAVE}, v{VLS}
v_mov_b32 v{VLS}, 0
s_mov_b32 s60, 1.0
s_mov_b32 s57, 0xbf800000
s_mov_b32 s58, {FLOOR1:#x}
s_mov_b32 s59, 1
L2_nomid:
""")
            if nm != 'drain0':
                p(f"""
s_lshr_b32 s68, s62, 1
s_lshl_b32 s69, s68, 1
s_sub_u32 s69, s69, s47
s_add_u32 s69, s69, s25
s_cmp_ge_u32 s68, s47
s_cselect_b32 s68, s69, s68
s_lshl_b32 s68, s68, 1
s_add_u32 s68, s68, {hf}
s_cmp_lt_u32 s68, s61
s_cbranch_scc1 L2_nomask{nm}
s_sub_u32 s68, s61, s68
s_lshl_b32 s68, s68, 5
v_add_u32 v9, s68, v{VZ}
v_mov_b32 v10, {NEG:#x}
""")
                for r in range(16):
                    cr = 8 * (r >> 2) + (r & 3)
                    p(f'v_cmp_gt_i32 vcc, {cr}, v9')
                    p(f'v_cndmask_b32 v{MN+r}, v{MN+r}, v10, vcc')
                p.label(f'L2_nomask{nm}')
            p(f"""
s_add_u32 s68, s62, 1
s_max_u32 s66, s68, 32
s_cmp_le_u32 s68, s49
s_cselect_b32 s66, s68, s66
s_branch L2_eret{nm}
""")
            p.end_branch()
        else:
            routine(f'L2_rare{nm}')
            c = S[1 - hf]; nx = S[hf]; pc = PP[1 - hf]
            p('s_nop 15\ns_nop 7')
            p(f'v_max3_f32 v9, v{c}, v{c+1}, v{c+2}')
            for k in range(3, 15, 2): p(f'v_max3_f32 v9, v9, v{c+k}, v{c+k+1}')
            p(f'v_max_f32 v9, v9, v{c+15}')
            p(f'''
v_mov_b32 v10, v9
v_permlane32_swap_b32 v9, v10
v_max_f32 v9, v9, v10
v_max_f32 v9, s58, v9
v_sub_f32 v10, 0, v9
v_min_f32 v10, 0x42fc0000, v10
v_exp_f32 v10, v10
v_mul_f32 v11, s60, v9
''')
            for k in range(16): p(f'v_sub_f32 v{c+k}, v{c+k}, v9')
            for k in range(16): p(f'v_exp_f32 v{TT+k}, v{c+k}')
            p(f'v_add_f32 v{VTS}, v{TT}, v{TT+1}')
            for k in range(2, 16): p(f'v_add_f32 v{VTS}, v{VTS}, v{TT+k}')
            for k in range(8): p(f'v_cvt_pk_bf16_f32 v{pc+k}, v{TT+2*k}, v{TT+2*k+1}')
            for k in range(16): p(f'v_sub_f32 v{nx+k}, v{nx+k}, v11')
            for k in range(16): p(f'v_sub_f32 v{MN+k}, v{MN+k}, v11')
            p(f'v_add_f32 v{VM}, v{VM}, v11')
            p(f'v_mul_f32 v{VLS}, v{VLS}, v10')
            p('s_cmp_lg_u32 s59, 0')
            p(f's_cbranch_scc1 L2_rskip{nm}')
            for k in range(64): p(f'v_mul_f32 v{O+k}, v{O+k}, v10')
            p.label(f'L2_rskip{nm}')
            p(f'''
s_mov_b32 s{56+hf}, {THR:#x}
''')
            if hf == 1:
                p('s_mov_b32 s58, 0\ns_mov_b32 s59, 0')
            if nm == 'loop1': p('s_cmp_lt_u32 s55, 17')
            p(f's_branch L2_ret{nm}')
            p.end_branch()
    p.label('L2_end')
    p('s_endpgm')
    return ('k2_kernel', p, 256, 512, 163840, 256, 256)
```

```python
from common import *
import struct, math
def f2u(x): return struct.unpack('<I', struct.pack('<f', x))[0]

def gen_k3():
    p = Prog()
    st = Stamps(p, 70, 8)
    NK = 43; D = int(os.environ.get("K3D", "4"))
    VL16 = 1; VA1 = 2; VW = 3; VT = [4, 5]
    ACT = 16
    WF = 80
    ACC = 96
    RD = 160
    AF_END = AF_OFF + 64 * AF_MT
    p(f'''
s_cmp_ge_u32 s2, 256
s_cbranch_scc1 L3_end
s_load_dwordx2 s[12:13], s[0:1], 40
s_load_dwordx4 s[16:19], s[0:1], 72
s_load_dwordx2 s[14:15], s[0:1], 96
s_load_dwordx2 s[28:29], s[0:1], 0
v_lshrrev_b32 v9, 6, v0
v_and_b32 v10, 63, v0
v_readfirstlane_b32 s20, v9
s_and_b32 s21, s2, 7
s_lshr_b32 s22, s2, 3
s_and_b32 s23, s22, 7
s_lshr_b32 s24, s22, 3
s_lshl_b32 s21, s21, 2
s_add_u32 s21, s21, s24
''')
    st.stamp()
    p(f'''
v_lshlrev_b32 v{VL16}, 4, v10
v_add_u32 v{VA1}, {AF_MT}, v{VL16}
v_lshrrev_b32 v11, 3, v10
v_and_b32 v12, 7, v10
v_bfe_u32 v13, v10, 4, 1
v_lshlrev_b32 v13, 2, v13
v_xor_b32 v12, v12, v13
v_lshlrev_b32 v12, 4, v12
v_lshl_add_u32 v{VW}, v11, 10, v12
v_lshrrev_b32 v11, 5, v10
v_bfe_u32 v12, v10, 2, 2
v_lshl_add_u32 v13, v11, 2, v12
v_lshlrev_b32 v13, 7, v13
v_lshrrev_b32 v12, 1, v12
v_lshl_add_u32 v13, v12, 6, v13
v_bfe_u32 v12, v10, 4, 1
v_lshl_add_u32 v13, v12, 5, v13
v_and_b32 v12, 3, v10
v_lshl_add_u32 v13, v12, 3, v13
s_lshl_b32 s25, s20, 14
v_add_u32 v{VT[0]}, s25, v13
v_xor_b32 v{VT[1]}, 64, v{VT[0]}
''')
    p('''
s_mul_i32 s26, s20, 43
s_cmp_ge_u32 s20, 4
s_cselect_b32 s27, 1, 0
s_sub_u32 s26, s26, s27
s_cmp_ge_u32 s20, 5
s_cselect_b32 s27, 1, 0
s_sub_u32 s26, s26, s27
''')
    p('s_waitcnt lgkmcnt(0)')
    srd(p, 8, 14, 15, AF_END)
    srd(p, 32, 28, 29, 2 << 20)
    srd(p, 36, 18, 19, 2 << 20)
    p('''
s_cmp_ge_u32 s20, 6
s_cselect_b32 s4, s16, s12
s_cselect_b32 s5, s17, s13
s_mov_b32 s6, 0x400000
s_cselect_b32 s6, 0x158000, s6
s_and_b32 s5, s5, 0xffff
s_mov_b32 s7, 0x00020000
''')
    p(f'''
s_mul_i32 s40, s21, {2*AF_MT}
s_lshl_b32 s43, s26, 10
s_add_u32 s40, s40, s43
s_add_u32 s40, s40, {AF_OFF:#x}
s_cmp_ge_u32 s20, 6
s_cselect_b32 s43, 256, 0
s_sub_u32 s43, s26, s43
s_lshl_b32 s42, s43, 14
s_lshl_b32 s43, s23, 7
s_add_u32 s42, s42, s43
s_sub_u32 s44, s20, 4
s_cmp_lt_u32 s44, 2
s_cselect_b32 s41, 0x7fff0000, s40
s_cselect_b32 s45, 0x4000, 0
s_add_u32 s45, s45, s42
''')
    def loads(ks):
        sl = ks % D; a = ACT + 8 * sl
        out = []
        if ks == 0:
            sa, oa = 41, 0; sw = 45; pre = []
            w0 = [f's_add_u32 m0, s25, {sl*2048}', 's_add_u32 s47, s45, 0x2000']
            wl0 = f'buffer_load_dwordx4 v{VW}, s[4:7], s45 offen lds'
        else:
            pre = [f's_add_u32 s46, s40, {ks*1024}']
            sa = 46
            w0 = [f's_add_u32 m0, s25, {sl*2048}', f's_add_u32 s48, s42, {ks*16384}', f's_add_u32 s47, s42, {ks*16384+8192}']
            wl0 = f'buffer_load_dwordx4 v{VW}, s[4:7], s48 offen lds'
        out += w0
        out.append(lambda pp: pp(wl0, f'w{ks}'))
        out.append(f's_add_u32 m0, s25, {sl*2048+1024}')
        out += pre if pre else ['s_nop 0']
        out.append(lambda pp: pp(f'buffer_load_dwordx4 v{VW}, s[4:7], s47 offen lds', f'w{ks}'))
        out.append(f'buffer_load_dwordx4 {vr(a,4)}, v{VL16}, s[8:11], s{sa} offen')
        out.append(f'buffer_load_dwordx4 {vr(a+4,4)}, v{VA1}, s[8:11], s{sa} offen')
        return out
    def emit(lst):
        for f in lst:
            if isinstance(f, list): emit(f)
            elif callable(f): f(p)
            else: p(f)
    def trr(ks):
        sl = ks % D; out = [lambda pp: pp.wait_tag(f'w{ks}')]
        for nt in range(2):
            w = WF + 8 * (ks & 1) + 4 * nt
            out.append((lambda pp, w=w, nt=nt: pp(f'ds_read_b64_tr_b16 {vr(w,2)}, v{VT[nt]} offset:{sl*2048}', f'r{ks}')))
            out.append((lambda pp, w=w, nt=nt: pp(f'ds_read_b64_tr_b16 {vr(w+2,2)}, v{VT[nt]} offset:{sl*2048+1024}', f'r{ks}')))
        return out
    for ks in range(D): emit(loads(ks))
    emit(trr(0))
    st.stamp()
    for ks in range(NK):
        sl = ks % D; a = ACT + 8 * sl
        if ks + 1 < NK: emit(trr(ks + 1))
        n = 0
        for nt in range(2):
            for mt in range(2):
                w = WF + 8 * (ks & 1) + 4 * nt
                acc = vr(ACC + 16 * (2 * nt + mt), 16); cc = '0' if ks == 0 else acc
                p(f'v_mfma_f32_32x32x16_bf16 {acc}, {vr(w,4)}, {vr(a+4*mt,4)}, {cc}')
        if ks + D < NK:
            p.wait_tag(f'r{ks}')
            emit(loads(ks + D))
    st.stamp()
    p(f'''
s_lshr_b32 s50, s20, 2
s_bfe_u32 s51, s20, 0x10001
s_and_b32 s52, s20, 1
s_lshl_b32 s53, s21, 6
s_lshl_b32 s54, s51, 5
s_add_u32 s53, s53, s54
s_lshl_b32 s53, s53, 10
s_lshl_b32 s54, s23, 6
s_lshl_b32 s55, s50, 5
s_add_u32 s54, s54, s55
s_lshl_b32 s55, s52, 4
s_add_u32 s54, s54, s55
s_lshl_b32 s54, s54, 1
s_add_u32 s53, s53, s54
v_and_b32 v11, 31, v10
v_lshrrev_b32 v12, 5, v10
v_lshlrev_b32 v11, 10, v11
v_lshl_add_u32 v11, v12, 3, v11
''')
    p(f'buffer_load_dwordx2 v[12:13], v11, s[32:35], s53 offen')
    p(f'buffer_load_dwordx2 v[14:15], v11, s[32:35], s53 offen offset:16')
    p('s_waitcnt lgkmcnt(0)')
    p('s_barrier')
    p(f'v_add_u32 v6, s25, v{VL16}')
    for b in range(16): p(f'ds_write_b128 v6, {vr(ACC+4*b,4)} offset:{b*1024}')
    p(f'''
s_lshl_b32 s56, s20, 11
v_add_u32 v7, s56, v{VL16}
v_add_u32 v8, 0x10000, v7
s_waitcnt lgkmcnt(0)
s_barrier
''')
    for src in range(8):
        base = 7 if src < 4 else 8
        for b in range(2):
            p(f'ds_read_b128 {vr(16+8*src+4*b,4)}, v{base} offset:{(src%4)*16384 + b*1024}')
    for i in range(8):
        p(f'v_add_f32 v{16+i}, v{16+i}, v{24+i}')
        p(f'v_add_f32 v{32+i}, v{32+i}, v{40+i}')
        p(f'v_add_f32 v{48+i}, v{48+i}, v{56+i}')
        p(f'v_add_f32 v{64+i}, v{64+i}, v{72+i}')
    for i in range(8):
        p(f'v_add_f32 v{16+i}, v{16+i}, v{32+i}')
        p(f'v_add_f32 v{16+i}, v{16+i}, v{48+i}')
    for i in range(4):
        p(f'v_cvt_pk_bf16_f32 v{24+i}, v{16+2*i}, v{17+2*i}')
        p(f'v_cvt_pk_bf16_f32 v{72+i}, v{64+2*i}, v{65+2*i}')
    for i in range(4):
        p(f'v_lshlrev_b32 v{16+2*i}, 16, v{24+i}')
        p(f'v_and_b32 v{17+2*i}, 0xffff0000, v{24+i}')
        p(f'v_lshlrev_b32 v{64+2*i}, 16, v{72+i}')
        p(f'v_and_b32 v{65+2*i}, 0xffff0000, v{72+i}')
    NL2E = f2u(-math.log2(math.e))
    for i in range(8): p(f'v_mul_f32 v{32+i}, {NL2E:#x}, v{64+i}')
    for i in range(8): p(f'v_exp_f32 v{32+i}, v{32+i}')
    for i in range(8): p(f'v_add_f32 v{32+i}, 1.0, v{32+i}')
    for i in range(8): p(f'v_rcp_f32 v{32+i}, v{32+i}')
    for i in range(8): p(f'v_mul_f32 v{32+i}, v{32+i}, v{64+i}')
    for i in range(4): p(f'v_cvt_pk_bf16_f32 v{40+i}, v{32+2*i}, v{33+2*i}')
    for i in range(4):
        p(f'v_lshlrev_b32 v{32+2*i}, 16, v{40+i}')
        p(f'v_and_b32 v{33+2*i}, 0xffff0000, v{40+i}')
    for i in range(8): p(f'v_mul_f32 v{32+i}, v{32+i}, v{16+i}')
    for i in range(4): p(f'v_cvt_pk_bf16_f32 v{40+i}, v{32+2*i}, v{33+2*i}')
    for i in range(4):
        p(f'v_lshlrev_b32 v{32+2*i}, 16, v{40+i}')
        p(f'v_and_b32 v{33+2*i}, 0xffff0000, v{40+i}')
        p(f'v_lshlrev_b32 v{48+2*i}, 16, v{12+i}')
        p(f'v_and_b32 v{49+2*i}, 0xffff0000, v{12+i}')
    for i in range(8): p(f'v_add_f32 v{32+i}, v{32+i}, v{48+i}')
    for i in range(4): p(f'v_cvt_pk_bf16_f32 v{40+i}, v{32+2*i}, v{33+2*i}')
    p('buffer_store_dwordx2 v[40:41], v11, s[36:39], s53 offen')
    p('buffer_store_dwordx2 v[42:43], v11, s[36:39], s53 offen offset:16')
    if PROF:
        p('s_waitcnt vmcnt(0)')
        p(f's_mov_b32 s10, {WS_BYTES:#x}')
    st.stamp()
    st.dump(p, 8, int(os.environ.get('K3IDX', '2')), 20, 50, 57, 8)
    p.label('L3_end')
    p('s_endpgm')
    return ('k3_kernel', p, 256, 512, 131072, 168, 168)
```

```python
from common import *
from k1 import ln_stream
import struct, math

def f2u(x): return struct.unpack('<I', struct.pack('<f', x))[0]
MF = 'v_mfma_f32_32x32x16_bf16'
SC = os.environ.get('FSC', ' sc1')
CNT_LN = 0; CNT_KV = 16; CNT_CTX = 32; CNT_REG = 48
LS = os.environ.get('LS', '')
SPIN_MAX = 1 << 22

KVSC = os.environ.get('KVSC', '')
def gen_kf():
    p = Prog()
    st = Stamps(p, 70, 10)
    st.skip = set(int(x) for x in os.environ.get('STSKIP', '').split(',') if x)
    def emit(lst):
        for f in lst:
            if isinstance(f, list): emit(f)
            elif callable(f): f(p)
            else: p(f)
    VL16 = 1
    uid = [0]
    def publish(sreg_idx_list):
        uid[0] += 1; L = f'LF_pub{uid[0]}'
        out = ['s_cmp_lg_u32 s20, 0', f's_cbranch_scc1 {L}', '@COND', 'v_mov_b32 v14, 1', 'v_mov_b32 v15, 0', 's_mov_b64 exec, 1']
        for s in sreg_idx_list:
            out.append(f'buffer_atomic_add v14, v15, s[96:99], s{s} offen sc1')
        out += ['s_mov_b64 exec, -1', '@ENDCOND', f'{L}:']
        return out
    def poll(pairs):
        uid[0] += 1; L = f'LF_poll{uid[0]}'
        out = ['s_cmp_lg_u32 s20, 0', f's_cbranch_scc1 {L}_done', '@COND', 'v_mov_b32 v15, 0', f's_mov_b32 s3, {SPIN_MAX}']
        for n, (s, tgt) in enumerate(pairs):
            out += [f'{L}_{n}:',
                    f'buffer_load_dword v14, v15, s[96:99], s{s} offen sc1',
                    's_waitcnt vmcnt(0)',
                    'v_readfirstlane_b32 s100, v14',
                    's_sub_u32 s3, s3, 1',
                    's_cmp_eq_u32 s3, 0',
                    f's_cbranch_scc1 {L}_acq',
                    f's_cmp_ge_u32 s100, {tgt}',
                    f's_cbranch_scc1 {L}_{n}_ok',
                    's_sleep 2',
                    f's_branch {L}_{n}',
                    f'{L}_{n}_ok:']
        out += [f'{L}_acq:', 'buffer_inv sc1', 's_waitcnt vmcnt(0)', '@ENDCOND', f'{L}_done:']
        return out
    def poll_noinv(pairs):
        out = poll(pairs)
        i = out.index('buffer_inv sc1')
        return out[:i] + out[i + 2:]
    slow = []
    def poll_issue(sregs):
        uid[0] += 1; L = f'LF_pi{uid[0]}'
        out = ['s_cmp_lg_u32 s20, 0', f's_cbranch_scc1 {L}', '@COND', 'v_mov_b32 v8, 0']
        for n, s in enumerate(sregs): out.append(f'buffer_load_dword v{14+n}, v8, s[96:99], s{s} offen sc1')
        out += ['@ENDCOND', f'{L}:']
        return out
    def poll_check(pairs, inv_flag=None):
        uid[0] += 1; L = f'LF_pc{uid[0]}'
        out = ['s_cmp_lg_u32 s20, 0', f's_cbranch_scc1 {L}', '@COND']
        for n, (s, tgt) in enumerate(pairs):
            out += [f'v_readfirstlane_b32 s100, v{14+n}', f's_cmp_lt_u32 s100, {tgt}', f's_cbranch_scc1 {L}_slow']
        out += [f'{L}_ok:']
        if inv_flag is not None:
            out += [f's_cmp_lg_u32 s{inv_flag}, 0', f's_cbranch_scc1 {L}', (lambda pp: pp('buffer_inv sc1', 'inv'))]
        out += ['@ENDCOND', f'{L}:']
        slow.append((L, pairs))
        return out
    def publish_kv():
        uid[0] += 1; L = f'LF_pkv{uid[0]}'
        return ['s_cmp_lg_u32 s20, 0', f's_cbranch_scc1 {L}', '@COND',
                'v_readfirstlane_b32 s100, v15',
                's_and_b32 s3, s100, 63', 's_bfe_u32 s29, s100, 0x90006', 's_lshr_b32 s30, s100, 15',
                's_mul_i32 s29, s29, s29', 's_lshl_b32 s30, s30, 5',
                's_cmp_eq_u32 s29, s30', 's_cselect_b32 s94, 1, 0',
                's_cmp_eq_u32 s3, 32', 's_cselect_b32 s94, s94, 0',
                's_cmp_lg_u32 s94, 0', f's_cbranch_scc1 {L}_fast',
                'buffer_wbl2 sc1', 's_waitcnt vmcnt(0)',
                f'{L}_fast:',
                'v_mov_b32 v14, 1', 'v_mov_b32 v15, 0', 's_mov_b64 exec, 1',
                'buffer_atomic_add v14, v15, s[96:99], s33 offen sc1',
                's_mov_b64 exec, -1', '@ENDCOND', f'{L}:']
    def w0_drain():
        uid[0] += 1; L = f'LF_dr{uid[0]}'
        return ['s_cmp_lg_u32 s20, 0', f's_cbranch_scc1 {L}', '@COND', (lambda pp: pp.wait_tag('inv')), '@ENDCOND', f'{L}:']
    def emit_slow():
        for L, pairs in slow:
            p.label(f'{L}_slow')
            p(f's_mov_b32 s3, {SPIN_MAX}')
            p('v_mov_b32 v8, 0')
            for n, (s, tgt) in enumerate(pairs):
                p(f"""
{L}_s{n}:
buffer_load_dword v14, v8, s[96:99], s{s} offen sc1
s_waitcnt vmcnt(0)
v_readfirstlane_b32 s100, v14
s_sub_u32 s3, s3, 1
s_cmp_eq_u32 s3, 0
s_cbranch_scc1 {L}_ok
s_cmp_ge_u32 s100, {tgt}
s_cbranch_scc1 {L}_s{n}_ok
s_sleep 2
s_branch {L}_s{n}
{L}_s{n}_ok:
""")
            p(f's_branch {L}_ok')
    p(f'''
s_cmp_ge_u32 s2, 256
s_cbranch_scc1 LF_end
s_load_dwordx4 s[28:31], s[0:1], 0
s_load_dwordx4 s[32:35], s[0:1], 24
s_load_dwordx4 s[36:39], s[0:1], 88
s_load_dwordx4 s[64:67], s[0:1], 56
s_load_dwordx2 s[68:69], s[0:1], 16
s_load_dwordx2 s[56:57], s[0:1], 40
s_load_dwordx2 s[58:59], s[0:1], 72
v_lshrrev_b32 v9, 6, v0
v_and_b32 v10, 63, v0
v_readfirstlane_b32 s20, v9
s_and_b32 s22, s2, 7
s_lshr_b32 s23, s2, 3
''')
    st.stamp()
    p('''
s_and_b32 s48, s23, 1
s_bfe_u32 s49, s23, 0x10001
s_lshr_b32 s50, s23, 2
s_lshl_b32 s51, s22, 9
s_lshl_b32 s3, s48, 8
s_add_u32 s51, s51, s3
''')
    p(f'v_lshlrev_b32 v{VL16}, 4, v10')
    STG = 65536
    p('''
v_lshrrev_b32 v11, 3, v10
v_and_b32 v12, 7, v10
v_lshrrev_b32 v13, 4, v10
v_xor_b32 v14, v12, v13
v_lshlrev_b32 v14, 4, v14
v_lshl_add_u32 v2, v11, 10, v14
v_xor_b32 v3, 64, v2
''')
    p('''
v_and_b32 v13, 1, v13
v_lshlrev_b32 v13, 2, v13
v_xor_b32 v14, v12, v13
v_lshlrev_b32 v14, 4, v14
v_lshl_add_u32 v4, v11, 13, v14
''')
    p(f'''
v_and_b32 v11, 31, v10
v_lshrrev_b32 v12, 5, v10
v_bfe_u32 v13, v11, 1, 3
v_xor_b32 v13, v12, v13
v_lshlrev_b32 v13, 4, v13
v_lshl_add_u32 v13, v11, 7, v13
s_lshl_b32 s52, s20, 13
s_add_u32 s52, s52, {STG}
v_add_u32 v16, s52, v13
v_xor_b32 v17, 32, v16
v_xor_b32 v18, 64, v16
v_xor_b32 v19, 96, v16
''')
    p('''
v_bfe_u32 v11, v10, 2, 2
v_lshl_add_u32 v13, v12, 3, v11
v_lshlrev_b32 v13, 7, v13
v_lshrrev_b32 v11, 1, v11
v_lshl_add_u32 v13, v11, 6, v13
v_bfe_u32 v11, v10, 4, 1
v_lshl_add_u32 v13, v11, 5, v13
v_and_b32 v11, 3, v10
v_lshl_add_u32 v20, v11, 3, v13
v_xor_b32 v21, 64, v20
v_add_u32 v22, 0x8000, v20
v_add_u32 v23, 0x8000, v21
v_add_u32 v24, 0x20000, v20
v_add_u32 v25, 0x20000, v21
v_add_u32 v26, 0x10000, v20
v_add_u32 v27, 0x10000, v21
v_lshlrev_b32 v14, 7, v10
v_lshrrev_b32 v15, 2, v10
v_lshlrev_b32 v15, 13, v15
v_and_b32 v11, 3, v10
v_lshl_add_u32 v15, v11, 7, v15
v_lshrrev_b32 v5, 1, v10
v_lshlrev_b32 v5, 10, v5
v_and_b32 v11, 1, v10
v_lshl_add_u32 v5, v11, 9, v5
''')
    p('s_waitcnt lgkmcnt(0)')
    srd(p, 12, 30, 31, 2 << 20)
    srd(p, 16, 28, 29, 2 << 20)
    srd(p, 8, 38, 39, WS_BYTES)
    srd(p, 96, 36, 37, 256)
    p('''
s_cmp_eq_u32 s49, 0
s_cselect_b32 s4, s32, s34
s_cselect_b32 s5, s33, s35
s_and_b32 s5, s5, 0xffff
s_mov_b32 s6, 0x400000
s_mov_b32 s7, 0x00020000
s_lshl_b32 s40, s50, 8
s_lshl_b32 s41, s20, 5
s_add_u32 s40, s40, s41
s_lshl_b32 s40, s40, 10
s_lshl_b32 s42, s20, 18
s_lshl_b32 s43, s51, 1
s_add_u32 s42, s42, s43
s_lshl_b32 s43, s20, 12
''')
    WS = [0, 32768, 131072, 65536]
    def wdma(u, q):
        sc = u >> 1; kh = u & 1
        return [f's_add_u32 m0, s43, {WS[u % 4] + q*1024}',
                f's_add_u32 s53, s42, {(kh*256 + 8*q)*8192 + sc*128}',
                (lambda pp: pp('buffer_load_dwordx4 v4, s[4:7], s53 offen lds', f'w{u}'))]
    def adma(e, jj):
        return [f's_add_u32 m0, s52, {(e&1)*4096 + jj*1024}',
                f's_add_u32 s54, s40, {8*jj*1024 + e*128}',
                (lambda pp: pp(f'buffer_load_dwordx4 v{2+(jj&1)}, s[12:15], s54 offen lds', f'a{e}'))]
    AR = 128
    def aread(e, k):
        ks = 4 * e + k
        return (lambda pp: pp(f'ds_read_b128 {vr(AR+4*ks,4)}, v{16+k} offset:{(e&1)*4096}', f'ar{e}'))
    for jj in range(4): emit(adma(0, jj))
    for q in range(4): emit(wdma(0, q))
    for jj in range(4): emit(adma(1, jj))
    p('''
s_lshl_b32 s29, s2, 3
s_add_u32 s29, s29, s20
s_lshl_b32 s30, s29, 10
''')
    LNR = 96; LNT = 100
    p(f'buffer_load_dwordx4 {vr(LNR,4)}, v{VL16}, s[16:19], s30 offen')
    if 'nopf' not in os.environ.get('XP1', ''):
        p("""
s_cmp_lt_u32 s2, 128
s_cselect_b32 s60, s32, s34
s_cselect_b32 s61, s33, s35
s_mov_b32 s62, 0x400000
s_and_b32 s3, s2, 127
s_lshl_b32 s3, s3, 15
s_lshl_b32 s53, s20, 13
s_add_u32 s3, s3, s53
s_lshl_b32 s53, s2, 13
s_cmp_eq_u32 s20, 4
s_cselect_b32 s60, s12, s60
s_cselect_b32 s61, s13, s61
s_cselect_b32 s62, s14, s62
s_cselect_b32 s3, s53, s3
s_cmp_gt_u32 s20, 4
s_cselect_b32 s3, 0x7f000000, s3
s_and_b32 s61, s61, 0xffff
s_mov_b32 s63, 0x00020000
buffer_load_dword v104, v14, s[60:63], s3 offen
""")
    for q in range(4): emit(wdma(1, q))
    p(f'''
s_lshr_b32 s44, s51, 7
s_lshl_b32 s44, s44, 19
s_lshl_b32 s45, s50, 3
s_add_u32 s45, s45, s20
s_lshl_b32 s45, s45, 13
s_add_u32 s44, s44, s45
s_mov_b32 s45, {KF_OFF:#x}
s_mov_b32 s46, {VF_OFF:#x}
s_cmp_eq_u32 s49, 0
s_cselect_b32 s45, s45, s46
s_add_u32 s41, s44, s45
s_lshr_b32 s31, s29, 5
s_lshl_b32 s31, s31, 15
s_and_b32 s3, s29, 31
s_lshl_b32 s3, s3, 4
s_add_u32 s31, s31, s3
s_lshr_b32 s32, s2, 4
s_lshl_b32 s32, s32, 2
s_lshr_b32 s33, s51, 8
s_add_u32 s33, s33, {CNT_KV}
s_lshl_b32 s33, s33, 2
s_getreg_b32 s3, hwreg(HW_REG_XCC_ID, 0, 4)
s_mul_i32 s53, s3, s3
s_lshl_b32 s53, s53, 15
s_lshl_b32 s3, s3, 6
s_add_u32 s53, s53, s3
s_add_u32 s53, s53, 1
s_add_u32 s101, s22, {CNT_REG}
s_lshl_b32 s101, s101, 2
s_cmp_lg_u32 s20, 0
s_cbranch_scc1 LF_noreg
@COND
v_mov_b32 v8, s53
v_mov_b32 v9, 0
s_mov_b64 exec, 1
buffer_atomic_add v8, v9, s[96:99], s101 offen sc1
s_mov_b64 exec, -1
@ENDCOND
LF_noreg:
''')
    if XF_OFF: p(f's_add_u32 s31, s31, {XF_OFF:#x}')
    p('''
s_and_b32 s3, s23, 3
s_lshl_b32 s21, s22, 2
s_add_u32 s21, s21, s3
s_lshr_b32 s24, s23, 2
s_lshr_b32 s25, s20, 2
s_and_b32 s26, s20, 3
s_sub_u32 s28, 15, s24
s_lshl_b32 s28, s28, 2
s_add_u32 s28, s28, s26
s_lshl_b32 s27, s24, 2
s_add_u32 s27, s27, s26
s_cmp_eq_u32 s25, 0
s_cselect_b32 s27, s28, s27
''')
    p.wait_tag('a0')
    for k in range(4): emit([aread(0, k)])
    p.wait_tag('ar0')
    for jj in range(4): emit(adma(2, jj))
    p.wait_tag('w0')
    p('s_barrier')
    st.stamp()
    p('s_cmp_lg_u32 s49, 0')
    p('s_cbranch_scc1 LF_v')

    WF = 32; NST = 4; ACC = 64; PK = 96
    def trread(u, kk):
        out = []
        for nt in range(2):
            w = WF + 8 * (kk % NST) + 4 * nt
            out.append(f'ds_read_b64_tr_b16 {vr(w,2)}, v{20+2*(u%4)+nt} offset:{kk*2048}')
            out.append(f'ds_read_b64_tr_b16 {vr(w+2,2)}, v{20+2*(u%4)+nt} offset:{kk*2048+512}')
        return out
    def kv_epilogue(sc, nt):
        g = []
        PKB = PK if sc < 3 else 32
        for half in range(2):
            pk = PKB + 8 * nt + 4 * half
            for i in range(4):
                s = ACC + 16 * nt + 8 * half + 2 * i
                g.append(f'v_cvt_pk_bf16_f32 v{pk+i}, v{s}, v{s+1}')
        off = (sc >> 1) * 524288 + (sc & 1) * 4096
        st_ = [[f's_add_u32 s55, s41, {off + nt*2048 + half*1024}',
                (lambda pp, half=half: pp(f'buffer_store_dwordx4 {vr(PKB+8*nt+4*half,4)}, v{VL16}, s[8:11], s55 offen{KVSC}', 'kvst'))]
               for half in range(2)]
        return g, st_
    lns = ln_stream(LNR, LNT, LNT + 16)
    lns.append(lambda pp: pp(f'buffer_store_dwordx4 {vr(LNR,4)}, v5, s[8:11], s31 offen{SC}', 'lnst'))
    SLOT = 29184
    GSL = [0, SLOT, 131072, 65536]
    KSL = 0; VSL = 65536; QX = 131072
    GD = 28
    def p2_setup():
        q = Prog(); pp = q
        pp("""
v_and_b32 v10, 63, v0
v_lshrrev_b32 v11, 4, v10
v_bfe_u32 v12, v10, 2, 2
v_and_b32 v13, 3, v11
v_xor_b32 v12, v12, v13
v_lshlrev_b32 v12, 6, v12
v_and_b32 v13, 3, v10
v_lshl_add_u32 v12, v13, 4, v12
v_lshl_add_u32 v12, v11, 13, v12
s_lshl_b32 s29, s26, 17
v_add_u32 v28, s29, v12
v_add_u32 v29, 0x8000, v28
v_add_u32 v30, 0x10000, v28
v_add_u32 v31, 0x18000, v28
s_and_b32 s29, s20, 1
s_mul_i32 s29, s29, 192
s_mov_b32 s30, 43691
s_movk_i32 s34, 2752
s_cmp_eq_u32 s25, 0
s_cselect_b64 s[36:37], -1, 0
""")
        for t in range(3):
            pp(f"""
v_add_u32 v11, s29, v10
v_add_u32 v11, {64*t}, v11
v_mul_lo_u32 v12, v11, s30
v_lshrrev_b32 v12, 18, v12
v_mul_u32_u24 v13, 6, v12
v_sub_u32 v13, v11, v13
v_mul_lo_u32 v12, v12, s34
v_lshl_add_u32 v9, v13, 4, v12
v_cndmask_b32 v{28+t}, v9, v{28+t}, s[36:37]
""")
        pp('v_cndmask_b32 v31, v9, v31, s[36:37]')
        pp("""
v_lshrrev_b32 v11, 5, v10
v_bfe_u32 v12, v10, 2, 2
v_lshl_add_u32 v13, v11, 3, v12
v_lshlrev_b32 v6, 8, v13
v_lshl_add_u32 v6, v12, 6, v6
v_bfe_u32 v7, v10, 4, 1
v_lshl_add_u32 v6, v7, 5, v6
v_and_b32 v9, 3, v10
v_lshl_add_u32 v6, v9, 3, v6
v_mul_u32_u24 v13, 96, v13
v_mul_u32_u24 v7, 6272, v7
v_add_u32 v13, v13, v7
v_lshl_add_u32 v13, v9, 3, v13
v_add_u32 v7, 0x4000, v13
""")
        pp("""
s_mov_b32 s60, s68
s_mov_b32 s61, s69
s_cmp_eq_u32 s20, 2
s_cselect_b32 s60, s64, s60
s_cselect_b32 s61, s65, s61
s_cmp_eq_u32 s20, 3
s_cselect_b32 s60, s66, s60
s_cselect_b32 s61, s67, s61
s_cmp_ge_u32 s20, 4
s_cselect_b32 s60, s56, s60
s_cselect_b32 s61, s57, s61
s_cmp_ge_u32 s20, 6
s_cselect_b32 s60, s58, s60
s_cselect_b32 s61, s59, s61
s_and_b32 s61, s61, 0xffff
s_mov_b32 s63, 0x00020000
s_mov_b32 s62, 0x158000
s_movk_i32 s35, 5504
s_and_b32 s38, s20, 2
s_cmp_eq_u32 s38, 0
s_cselect_b32 s62, 0x400000, s62
s_cselect_b32 s35, 0x4000, s35
s_mul_i32 s35, s35, s2
s_and_b32 s39, s20, 1
s_lshl_b32 s39, s39, 13
s_cmp_eq_u32 s38, 0
s_cselect_b32 s39, s39, 0
s_add_u32 s35, s35, s39
s_cmp_ge_u32 s20, 4
s_cselect_b32 s35, 0x7f000000, s35
v_lshlrev_b32 v12, 3, v1
buffer_load_dword v11, v12, s[60:63], s35 offen
""")
        pp("""
s_bfe_u32 s29, s20, 0x10001
s_cmp_eq_u32 s29, 0
s_cselect_b32 s16, s64, s66
s_cselect_b32 s17, s65, s67
s_mov_b32 s18, 0x158000
s_cmp_eq_u32 s25, 0
s_cselect_b32 s16, s68, s16
s_cselect_b32 s17, s69, s17
s_cselect_b32 s18, 0x400000, s18
s_and_b32 s17, s17, 0xffff
s_mov_b32 s19, 0x00020000
s_lshl_b32 s56, s21, 8
s_mul_i32 s38, s21, 96
s_lshl_b32 s58, s26, 12
s_mul_i32 s39, s29, 6272
s_and_b32 s30, s20, 1
s_mul_i32 s30, s30, 3072
s_add_u32 s39, s39, s30
s_add_u32 s39, s39, 16384
s_cmp_eq_u32 s25, 0
s_cselect_b32 s56, s56, s38
s_mov_b32 s57, 0x2b000
s_cselect_b32 s57, 0x80000, s57
s_cselect_b32 s58, s58, s39
s_movk_i32 s59, 2048
s_cselect_b32 s59, 3072, s59
s_add_u32 s59, s59, s58
s_lshl_b32 s60, s27, 15
""")
        if XF_OFF: pp(f's_add_u32 s60, s60, {XF_OFF:#x}')
        return [i.text for i in q.items]
    GX = 128; GW = 192; GT = [48, 64, 80, 96, 112, 160, 176]
    def gdma(sl):
        base = GSL[sl % 4]
        out = []
        for t in range(4):
            out.append([f's_add_u32 m0, s{58 if t < 3 else 59}, {base + (t*1024 if t < 3 else 0)}',
                        's_nop 0',
                        (lambda pp, t=t, sl=sl: pp(f'buffer_load_dwordx4 v{GD+t}, s[16:19], s56 offen lds', f'g{sl}'))])
        out[3].append('s_add_u32 s56, s56, s57')
        return out
    def xload(sl):
        out = []
        b = GX + 16 * (sl & 1)
        for k in range(4):
            out.append(f'buffer_load_dwordx4 {vr(b+4*k,4)}, v{VL16}, s[8:11], s61 offen offset:{k*1024}{LS}')
        return [f's_add_u32 s61, s60, {sl*4096}'] + out

    alt = p.begin_alt(join=True)
    for variant in ('k', 'v'):
        p.alt_branch(alt)
        if variant == 'v': p.label('LF_v')
        for kk in range(3): emit(trread(0, kk))
        pend = []
        for u in range(8):
            sc = u >> 1; kh = u & 1
            bb = []; fl = {}
            def add(slot, items): fl.setdefault(slot, []).extend(items)
            for kk in range(16):
                ks = kh * 16 + kk
                for nt in range(2):
                    w = WF + 8 * (kk % NST) + 4 * nt
                    acc = vr(ACC + 16 * nt, 16); cc = '0' if ks == 0 else acc
                    A = vr(AR + 4 * ks, 4)
                    if variant == 'k': bb.append(f'{MF} {acc}, {vr(w,4)}, {A}, {cc}')
                    else:              bb.append(f'{MF} {acc}, {A}, {vr(w,4)}, {cc}')
            for kk in range(3, 16):
                t = trread(u, kk)
                s0 = min(2 * (kk - 3), 24)
                add(s0, t[:2]); add(s0 + 1, t[2:])
            if u < 2:
                for q4 in range(4):
                    e = 4 * kh + q4; base = 8 * q4
                    if e + 1 < 8:
                        add(base + 1, [lambda pp, e=e: pp.wait_tag(f'a{e+1}')])
                        for k_ in range(4): add(base + 1 + k_ // 2, [aread(e + 1, k_)])
                        if e + 3 < 8:
                            add(base + 5, [lambda pp, e=e: pp.wait_tag(f'ar{e+1}')])
                            for jj in range(4): add(base + 5 + jj // 2, adma(e + 3, jj))
            loads = {0: [2], 2: [3, 4], 3: [5], 4: [6], 5: [7]}.get(u, [])
            grps = [wdma(lu, q) for lu in loads for q in range(4)]
            if grps: spread(add, grps, 2 if u else 10, 25)
            X1 = os.environ.get('XP1', '')
            if u == 1: spread(add, atomic_groups(lns, 3), 1, 25)
            if u == 3: spread(add, atomic_groups(p2_setup(), 4), 10, 26)
            if kh == 0 and sc > 0:
                for nt in range(2):
                    g, st_ = kv_epilogue(sc - 1, nt)
                    fl.setdefault(('pre', nt), []).extend(g)
                    pend.extend(st_)
            if pend:
                a_, b_ = pend.pop(0), pend.pop(0)
                if 'nokvst' not in os.environ.get('XP1', ''): add(12, a_); add(24, b_)
            extra = []; post = []
            if u == (3 if 'latepub' in X1 else 2): extra = [lambda pp: pp.wait_tag('lnst')]; post = publish([32])
            if u == 5 and 'nopoll' not in X1: add(18, ['s_sub_u32 s29, 15, s24', 's_lshl_b32 s29, s29, 2', 's_lshl_b32 s30, s24, 2'] + poll_issue([29, 30]))
            if u == 5 and 'nopoll' not in X1: post = poll_check([(29, 16), (30, 16)])
            if u == 6 and 'nog01' not in X1:
                spread(add, gdma(0) + gdma(1), 1, 25)
            if u == 7 and 'nog01' in X1:
                spread(add, gdma(0) + gdma(1), 1, 25)
            if u == 7:
                xl = xload(0)
                spread(add, [xl[:2], [xl[2]], [xl[3]], [xl[4]]] + gdma(2), 1, 28)
            if u < 7:
                add(27, [lambda pp, u=u: pp.wait_tag(f'w{u+1}'), 's_waitcnt lgkmcnt(0)'] + extra + ['s_barrier'] + post)
                for kk in range(3):
                    t = trread(u + 1, kk)
                    add(min(27 + 2 * kk, 31), t[:2]); add(min(28 + 2 * kk, 31), t[2:])
            interleave(p, bb, fl)
            if os.environ.get('P1ST'): st.i = 2 + u; st.stamp()
        for nt in range(2):
            g, st_ = kv_epilogue(3, nt)
            emit(g); pend.extend(st_)
        if variant == 'k': p('s_branch LF_p2')
        p.end_branch()
    p.label('LF_p2')
    st.stamp()
    VK = 2; VV = 3; VZ = 4; VLS = 5; VM = 6; VTS = 7; VLSAVE = 8
    T0 = 9
    Q = 16; O = 48; S = [112, 128]; PP = [144, 152]; MN = 160; FR = 176; E = 208; TT = 216
    THR = f2u(float(2 ** 20)); NEG = f2u(-1e30); FLOOR1 = f2u(-1e20)
    p(f"""
s_lshl_b32 s44, s21, 19
s_lshl_b32 s46, s20, 11
s_add_u32 s44, s44, s46
s_add_u32 s45, s44, {VF_OFF:#x}
s_add_u32 s44, s44, {KF_OFF:#x}
s_lshl_b32 s47, s24, 1
s_add_u32 s47, s47, 2
""")
    AQ = [T0, T0 + 1, T0 + 2, T0 + 3]; AF_ = T0 + 4
    def set_addr(sl):
        base = GSL[sl % 4]
        out = [f'v_add_u32 v{AQ[0]}, {base}, v6']
        for nt in range(1, 4): out.append(f'v_xor_b32 v{AQ[nt]}, {nt<<6}, v{AQ[0]}')
        out.append(f'v_add_u32 v{AF_}, {base}, v7')
        return out
    assert all((s & 0xff) == 0 for s in GSL)
    def gtr(g):
        kk = g & 3; out = []
        for tl in range(7):
            w = GW + 28 * (g & 1) + 4 * tl
            if tl < 4:
                out.append(f'ds_read_b64_tr_b16 {vr(w,2)}, v{AQ[tl]} offset:{kk*4096}')
                out.append(f'ds_read_b64_tr_b16 {vr(w+2,2)}, v{AQ[tl]} offset:{kk*4096+1024}')
            else:
                o = kk * 1536 + (tl - 4) * 32
                out.append(f'ds_read_b64_tr_b16 {vr(w,2)}, v{AF_} offset:{o}')
                out.append(f'ds_read_b64_tr_b16 {vr(w+2,2)}, v{AF_} offset:{o+384}')
        return out
    def kvcopy(sbase, chunk_off, ldsbase, tag, tmp=43):
        return [f's_add_u32 m0, s46, {ldsbase}',
                f's_add_u32 s{tmp}, s{sbase}, {chunk_off}',
                (lambda pp: pp(f'buffer_load_dwordx4 v{VL16}, s[8:11], s{tmp} offen{LS} lds', tag)),
                (lambda pp: pp(f'buffer_load_dwordx4 v{VL16}, s[8:11], s{tmp} offen offset:1024{LS} lds', tag))]
    PUB_SL = int(os.environ.get('PUB_SL', '4'))
    p.wait_tag('g0')
    p('s_waitcnt lgkmcnt(0)')
    p('s_barrier')
    emit(set_addr(0))
    emit(gtr(0))
    for sl in range(8):
        bb = []; fl = {}
        def add(slot, items): fl.setdefault(slot, []).extend(items)
        for kk in range(4):
            g = sl * 4 + kk
            xb = GX + 16 * (sl & 1) + 4 * kk
            for tl in range(7):
                w = GW + 28 * (g & 1) + 4 * tl
                acc = vr(GT[tl], 16); cc = '0' if g == 0 else acc
                bb.append(f'{MF} {acc}, {vr(w,4)}, {vr(xb,4)}, {cc}')
            ng = g + 1
            if ng < 32:
                if kk == 3: add(7 * kk - 1, set_addr(sl + 1))
                rd = gtr(ng)
                for i in range(7): add(7 * kk + i, rd[2 * i:2 * i + 2])
        if sl + 1 < 8:
            xl = xload(sl + 1)
            add(0, xl[:1])
            for k in range(4): add(1 + k, [xl[1 + k]])
            pre = []; post = []
            if sl < 4: add(10, pend[sl])
            if sl == PUB_SL:
                pre = [lambda pp: pp.wait_tag('kvst')]; post = publish_kv()
            if sl == PUB_SL - 1:
                add(6, poll_issue([101, 101]))
            if sl == 6:
                add(8, [f's_lshr_b32 s29, s21, 1', f's_add_u32 s29, s29, {CNT_KV}', 's_lshl_b32 s29, s29, 2'] + poll_issue([29]))
                post = poll_check([(29, 16)], inv_flag=94)

            add(17, [lambda pp, sl=sl: pp.wait_tag(f'g{sl+1}')] + pre + ['s_barrier'] + post)
            if sl + 3 < 8:
                for t, grp in enumerate(gdma(sl + 3)): add(18 + 2 * t if t < 1 else 21 + 2 * (t - 1), grp)
        interleave(p, bb, fl)
    st.stamp()
    p('s_waitcnt lgkmcnt(0)')
    emit(w0_drain())
    p('s_barrier')
    emit(kvcopy(44, 0, KSL, 'k0'))
    emit(kvcopy(44, 16384, KSL + 32768, 'k1'))
    emit(kvcopy(45, 0, VSL, 'v0'))
    p("""
s_load_dwordx2 s[56:57], s[0:1], 40
s_load_dwordx2 s[58:59], s[0:1], 72
s_waitcnt lgkmcnt(0)
s_cmp_ge_u32 s20, 2
s_cselect_b32 s60, s58, s56
s_cselect_b32 s61, s59, s57
s_mov_b32 s62, 0x400000
s_cselect_b32 s62, 0x158000, s62
s_movk_i32 s35, 0x4000
s_cselect_b32 s35, 5504, s35
s_and_b32 s61, s61, 0xffff
s_mov_b32 s63, 0x00020000
s_mul_i32 s35, s35, s2
s_cmp_eq_u32 s20, 1
s_cselect_b32 s39, 0x2000, 0
s_add_u32 s35, s35, s39
s_cmp_ge_u32 s20, 3
s_cselect_b32 s35, 0x7f000000, s35
v_lshlrev_b32 v12, 3, v1
buffer_load_dword v11, v12, s[60:63], s35 offen
""")
    CQ = f2u(math.log2(math.e) / math.sqrt(128.0))
    p(f's_mov_b32 s48, {CQ:#x}')
    for tl in range(4):
        for i in range(16): p(f'v_mul_f32 v{GT[tl]+i}, s48, v{GT[tl]+i}')
        for i in range(8): p(f'v_cvt_pk_bf16_f32 v{Q+8*tl+i}, v{GT[tl]+2*i}, v{GT[tl]+2*i+1}')
    p(f'''
s_lshl_b32 s49, s26, 13
s_add_u32 s49, s49, {QX}
v_add_u32 v9, s49, v{VL16}
s_cmp_lg_u32 s25, 0
s_cbranch_scc1 LF_noqx
''')
    for ks in range(8): p(f'ds_write_b128 v9, {vr(Q+4*ks,4)} offset:{ks*1024}')
    p('s_waitcnt lgkmcnt(0)')
    p.label('LF_noqx')
    KG = -2.0 * math.sqrt(2.0 / math.pi) * math.log2(math.e)
    p(f's_mov_b32 s50, {f2u(KG):#x}')
    p(f's_mov_b32 s51, {f2u(KG*0.044715):#x}')
    p(f'''
s_mul_i32 s52, s27, {AF_MT}
s_mul_i32 s53, s21, 3
s_add_u32 s54, s53, 256
s_lshl_b32 s54, s54, 10
s_add_u32 s52, s52, s54
s_add_u32 s52, s52, {AF_OFF:#x}
''')
    for tt in range(3):
        a = GT[4 + tt]; t = GW
        p(f's_add_u32 s54, s53, {tt}')
        p('s_cmp_ge_u32 s54, 86')
        p(f's_cbranch_scc1 LF_ffn_skip{tt}')
        for i in range(8): p(f'v_cvt_pk_bf16_f32 v{t+i}, v{a+2*i}, v{a+2*i+1}')
        for i in range(8):
            p(f'v_lshlrev_b32 v{a+2*i}, 16, v{t+i}')
            p(f'v_and_b32 v{a+2*i+1}, 0xffff0000, v{t+i}')
        for i in range(8): p(f'v_mul_f32 v{t+i}, v{a+i}, v{a+i}')
        p(f'v_mov_b32 v{t+16}, s50')
        for i in range(8): p(f'v_fma_f32 v{t+i}, v{t+i}, s51, v{t+16}')
        for i in range(8): p(f'v_mul_f32 v{t+i}, v{t+i}, v{a+i}')
        for i in range(8): p(f'v_exp_f32 v{t+i}, v{t+i}')
        for i in range(8): p(f'v_add_f32 v{t+i}, 1.0, v{t+i}')
        for i in range(8): p(f'v_rcp_f32 v{t+i}, v{t+i}')
        for i in range(8): p(f'v_mul_f32 v{t+i}, v{t+i}, v{a+i}')
        for i in range(4): p(f'v_cvt_pk_bf16_f32 v{t+8+i}, v{t+2*i}, v{t+2*i+1}')
        for i in range(4):
            p(f'v_lshlrev_b32 v{t+2*i}, 16, v{t+8+i}')
            p(f'v_and_b32 v{t+2*i+1}, 0xffff0000, v{t+8+i}')
        for i in range(8): p(f'v_mul_f32 v{t+i}, v{t+i}, v{a+8+i}')
        for i in range(4): p(f'v_cvt_pk_bf16_f32 v{t+20+4*tt+i}, v{t+2*i}, v{t+2*i+1}')
        p(f'buffer_store_dwordx4 {vr(t+20+4*tt,4)}, v{VL16}, s[8:11], s52 offen offset:{tt*1024}{SC}')
        p.label(f'LF_ffn_skip{tt}')
    st.stamp()
    for i in range(64): p(f'v_mov_b32 v{O+i}, 0')
    for i in range(16): p(f'v_mov_b32 v{MN+i}, 0')
    p(f"""
v_mov_b32 v{VLS}, 0
v_mov_b32 v{VM}, 0
v_mov_b32 v{VLSAVE}, 0
s_mov_b32 s56, {THR:#x}
s_mov_b32 s57, 0xbf800000
s_mov_b32 s58, {FLOOR1:#x}
s_mov_b32 s59, 1
s_mov_b32 s60, 1.0
s_mov_b32 s61, s27
s_mov_b32 s62, 0
s_lshl_b32 s67, s25, 14
v_add_u32 v{VK}, {KSL}, v{VL16}
v_add_u32 v{VV}, {VSL}, v{VL16}
v_and_b32 v10, 63, v0
v_and_b32 v12, 31, v10
v_lshrrev_b32 v11, 5, v10
v_lshlrev_b32 v13, 2, v11
v_sub_u32 v{VZ}, v12, v13
s_mov_b32 s55, 0
s_mov_b32 s63, 16384
s_add_u32 s64, s46, 32768
s_lshl_b32 s49, s47, 1
s_add_u32 s49, s49, 2
s_cmp_eq_u32 s25, 0
s_cselect_b32 s49, 0, s49
s_cselect_b32 s66, 32, s27
s_lshl_b32 s68, s47, 1
s_add_u32 s68, s68, 4
s_min_u32 s68, s68, 32
s_cmp_eq_u32 s20, 0
s_cselect_b32 s66, s68, s66
""")
    p('s_waitcnt vmcnt(0) lgkmcnt(0)')
    p('s_barrier')
    st.stamp()

    def frag_read(f):
        hf = f >> 4; i = f & 15; dst = vr(FR + 4 * (f % 8), 4)
        if i < 8:  return f'ds_read_b128 {dst}, v{VK} offset:{hf*8192 + i*1024}'
        else:      return f'ds_read_b128 {dst}, v{VV} offset:{hf*8192 + (i-8)*1024}'
    def mfma(f):
        hf = f >> 4; i = f & 15; fr = vr(FR + 4 * (f % 8), 4)
        if i < 8:
            s = vr(S[hf], 16); c = vr(MN, 16) if i == 0 else s
            return f'{MF} {s}, {fr}, {vr(Q+4*i,4)}, {c}'
        dt = (i - 8) >> 1; tp = (i - 8) & 1
        o = vr(O + 16 * dt, 16)
        return f'{MF} {o}, {fr}, {vr(PP[hf]+4*tp,4)}, {o}'
    def bstage(hf, nslots):
        c = S[1 - hf]; pp_ = PP[1 - hf]
        groups = [[] for _ in range(nslots)]
        span = nslots - 2
        pos_e = [(kk * span) // 16 for kk in range(16)]
        late = [[] for _ in range(nslots)]
        for k in range(8):
            ea = E + (2 * k) % 8; eb = E + (2 * k + 1) % 8
            groups[pos_e[2 * k]].append(f'v_exp_f32 v{ea}, v{c+2*k}')
            groups[pos_e[2 * k + 1]].append(f'v_exp_f32 v{eb}, v{c+2*k+1}')
            sa = pos_e[2 * k] + 1; sb = pos_e[2 * k + 1] + 1
            if k == 0:
                late[sb].append(f'v_add_f32 v{VTS}, v{ea}, v{eb}')
            else:
                late[sa].append(f'v_add_f32 v{VTS}, v{VTS}, v{ea}')
                late[sb].append(f'v_add_f32 v{VTS}, v{VTS}, v{eb}')
            late[sb].append(f'v_cvt_pk_bf16_f32 v{pp_+k}, v{ea}, v{eb}')
        return [late[i] + groups[i] for i in range(nslots)]
    outl = []

    def step(kind):
        doA = kind != 'drain'
        slots = []
        for f in range(32):
            hf = f >> 4; i = f & 15
            isA = i < 8
            if isA and not doA: continue
            if not isA and kind == 'first': continue
            slots.append(f)
        pos = {f: n for n, f in enumerate(slots)}
        bb = [mfma(f) for f in slots]
        fl = {}
        def add(n, items): fl.setdefault(n, []).extend(items)
        nS = len(slots)
        DIST = 4
        last_read_slot = nS - 6
        for n in range(DIST, nS):
            add(min(n - DIST, last_read_slot) if kind != 'drain' else n - DIST, [frag_read(slots[n])])
        for hf in range(2):
            if kind == 'first' and hf == 0: continue
            if kind == 'drain' and hf == 1: continue
            hs = [n for n, f in enumerate(slots) if (f >> 4) == hf]
            groups = bstage(hf, len(hs))
            for gi, g in enumerate(groups): add(hs[gi], g)
            nm = f'{kind}{hf}'
            add(hs[-2], [f'v_cmp_nge_f32 vcc, s{56+hf}, v{VTS}'])
            add(hs[-1], [f's_cbranch_vccnz LF_rare{nm}', f'LF_ret{nm}:', f'v_add_f32 v{VLS}, v{VLS}, v{VTS}'])
            outl.append(('rare', nm, hf))
        for hf in range(2):
            if kind == 'drain' and hf == 1: continue
            nm = f'{kind}{hf}'
            first_slot = [n for n, f in enumerate(slots) if (f >> 4) == hf][0]
            fl.setdefault(('pre', first_slot), []).extend(
                ['s_cmp_ge_u32 s62, s66', f's_cbranch_scc1 LF_evt{nm}', f'LF_eret{nm}:'])
            add(first_slot, ['s_add_u32 s62, s62, 1'])
            outl.append(('evt', nm, hf))
        return bb, fl, add, pos, slots

    def prep_next():
        return [['s_add_u32 s55, s55, 1', 's_and_b32 s50, s55, 1'],
                ['s_lshl_b32 s50, s50, 15', 's_cmp_ge_u32 s55, s47'],
                ['s_cselect_b32 s69, s67, 0', 's_add_u32 s50, s50, s69', f's_add_u32 s50, s50, {KSL}']]
    def barrier_blk():
        return ['s_waitcnt vmcnt(0) lgkmcnt(0)', 's_barrier',
                f'v_add_u32 v{VV}, {(VSL - KSL) & 0xffffffff:#x}, v{VK}',
                f'v_add_u32 v{VK}, s50, v{VL16}']
    def dma_issue(name):
        L = f'buffer_load_dwordx4 v{VL16}, s[8:11], s43 offen{LS} lds'
        L2 = f'buffer_load_dwordx4 v{VL16}, s[8:11], s43 offen offset:1024{LS} lds'
        g = []
        g.append([f's_add_u32 m0, s64, {VSL}', 's_add_u32 s43, s45, s63', L])
        g.append([L2, 's_cmp_lt_u32 s55, s47'])
        g.append([f's_cbranch_scc1 LF_nov2{name}', f's_add_u32 m0, s64, {VSL + 16384}', 's_add_u32 s43, s43, 16384', L, L2,
                  's_add_u32 s63, s63, 16384', f'LF_nov2{name}:'])
        g.append(['s_add_u32 s63, s63, 16384', 's_xor_b32 s64, s64, 32768'])
        g.append([f's_add_u32 m0, s64, {KSL}', 's_add_u32 s43, s44, s63', L])
        g.append([L2, 's_add_u32 s65, s55, 1', 's_cmp_lt_u32 s65, s47'])
        g.append([f's_cbranch_scc1 LF_nok{name}', f's_add_u32 m0, s64, {KSL + 16384}', 's_add_u32 s43, s43, 16384', L, L2,
                  f'LF_nok{name}:'])
        return g

    bb, fl, add, pos, slots = step('first')
    for n in range(4): p(frag_read(slots[n]))
    nS = len(slots)
    for gi, g in enumerate(prep_next()): add(4 + gi, g)
    add(nS - 4, barrier_blk())
    for n in range(4): add(nS - 4 + n, [frag_read(n)])
    interleave(p, bb, fl)
    p.begin_loop()
    p.label('LF_loop')
    bb, fl, add, pos, slots = step('loop')
    XP = os.environ.get('XP', '')
    if 'nodma' not in XP:
        for gi, g in enumerate(dma_issue('loop')): add(1 + 3 * gi, g)
    for gi, g in enumerate(prep_next()): add(23 + gi, g)
    nb_ = barrier_blk()
    if 'nobar' in XP: nb_ = [x for x in nb_ if x != 's_barrier']
    add(28, nb_)
    for n in range(4): add(28 + n if n < 3 else 30, [frag_read(n)])
    add(30, ['s_cmp_lt_u32 s55, 17'])
    if XP:
        for kk_ in fl: fl[kk_] = [x for x in fl[kk_] if not (isinstance(x, str) and x.startswith('s_cbranch_vccnz'))]
    if 'noexp' in XP:
        for kk_ in fl: fl[kk_] = [x.replace('v_exp_f32', 'v_mov_b32') if isinstance(x, str) else x for x in fl[kk_]]
    if 'novalu' in XP:
        for kk_ in fl: fl[kk_] = [x for x in fl[kk_] if not (isinstance(x, str) and x.startswith(('v_exp', 'v_add_f32 v7', 'v_cvt')))]
    if 'nolds' in XP:
        for kk_ in fl: fl[kk_] = [x for x in fl[kk_] if not (isinstance(x, str) and x.startswith('ds_read'))]
    interleave(p, bb, fl)
    p('s_cbranch_scc1 LF_loop')
    p.end_loop()
    st.stamp()
    p('s_waitcnt lgkmcnt(0)')
    bb, fl, add, pos, slots = step('drain')
    for n in range(4): p(frag_read(slots[n]))
    interleave(p, bb, fl)
    st.stamp()
    p(f'''
v_mov_b32 v9, v{VLS}
v_permlane32_swap_b32 v{VLS}, v9
v_add_f32 v{VLS}, v{VLS}, v9
s_waitcnt lgkmcnt(0)
s_barrier
''')
    p(f'''
s_mul_i32 s49, s20, 8704
s_xor_b32 s50, s20, 4
s_mul_i32 s50, s50, 8704
v_add_u32 v9, s49, v{VL16}
v_add_u32 v10, s50, v{VL16}
v_lshrrev_b32 v11, 1, v{VL16}
v_add_u32 v12, s49, v11
v_add_u32 v13, s50, v11
v_mov_b32 v14, v{VLS}
v_mov_b32 v15, v{VM}
s_cmp_eq_u32 s25, 0
s_cbranch_scc1 LF_mg0
''')
    X = TT
    alt = p.begin_alt(join=True)
    for g in (1, 0):
        p.alt_branch(alt)
        if g == 0: p.label('LF_mg0')
        keep = O + 32 * g; send = O + 32 * (1 - g)
        for k in range(8): p(f'ds_write_b128 v9, {vr(send+4*k,4)} offset:{k*1024}')
        p('ds_write_b64 v12, v[14:15] offset:8192')
        p('s_waitcnt lgkmcnt(0)')
        p('s_barrier')
        p(f'ds_read_b64 v[{E}:{E+1}], v13 offset:8192')
        for k in range(8): p(f'ds_read_b128 {vr(X+4*k,4)}, v10 offset:{k*1024}')
        p(f'''
v_max_f32 v{E+2}, v{VM}, v{E+1}
v_sub_f32 v{E+3}, v{VM}, v{E+2}
v_sub_f32 v{E+4}, v{E+1}, v{E+2}
v_exp_f32 v{E+3}, v{E+3}
v_exp_f32 v{E+4}, v{E+4}
v_mul_f32 v{E+5}, v{E+3}, v{VLS}
v_fmac_f32 v{E+5}, v{E+4}, v{E}
v_rcp_f32 v{E+5}, v{E+5}
v_mul_f32 v{E+3}, v{E+3}, v{E+5}
v_mul_f32 v{E+4}, v{E+4}, v{E+5}
''')
        for i in range(32):
            p(f'v_mul_f32 v{keep+i}, v{keep+i}, v{E+3}')
            p(f'v_fmac_f32 v{keep+i}, v{X+i}, v{E+4}')
        for i in range(16): p(f'v_cvt_pk_bf16_f32 v{S[0]+i}, v{keep+2*i}, v{keep+2*i+1}')
        p(f'''
s_mul_i32 s52, s28, {AF_MT}
s_lshl_b32 s54, s21, 13
s_add_u32 s52, s52, s54
s_add_u32 s52, s52, {AF_OFF + g*4096:#x}
''')
        for k in range(4): p(f'buffer_store_dwordx4 {vr(S[0]+4*k,4)}, v{VL16}, s[8:11], s52 offen offset:{k*1024}{SC}')
        if g == 1: p('s_branch LF_p4')
        p.end_branch()
    p.label('LF_p4')
    st.stamp()
    NK = 43; D = int(os.environ.get("K3D", "4"))
    VA1 = 2; VW = 3; VT = [4, 5]
    ACT = 16; WF4 = 80; ACC4 = 96
    AF_END = AF_OFF + 64 * AF_MT
    p(f"""
s_load_dwordx2 s[28:29], s[0:1], 40
s_load_dwordx4 s[32:35], s[0:1], 72
s_load_dwordx2 s[30:31], s[0:1], 0
s_load_dwordx2 s[36:37], s[0:1], 96
v_and_b32 v10, 63, v0
v_add_u32 v{VA1}, {AF_MT}, v{VL16}
v_lshrrev_b32 v11, 3, v10
v_and_b32 v12, 7, v10
v_bfe_u32 v13, v10, 4, 1
v_lshlrev_b32 v13, 2, v13
v_xor_b32 v12, v12, v13
v_lshlrev_b32 v12, 4, v12
v_lshl_add_u32 v{VW}, v11, 10, v12
v_lshrrev_b32 v11, 5, v10
v_bfe_u32 v12, v10, 2, 2
v_lshl_add_u32 v13, v11, 2, v12
v_lshlrev_b32 v13, 7, v13
v_lshrrev_b32 v12, 1, v12
v_lshl_add_u32 v13, v12, 6, v13
v_bfe_u32 v12, v10, 4, 1
v_lshl_add_u32 v13, v12, 5, v13
v_and_b32 v12, 3, v10
v_lshl_add_u32 v13, v12, 3, v13
s_lshl_b32 s25, s20, 14
v_add_u32 v{VT[0]}, s25, v13
v_xor_b32 v{VT[1]}, 64, v{VT[0]}
s_mul_i32 s26, s20, 43
s_cmp_ge_u32 s20, 4
s_cselect_b32 s27, 1, 0
s_sub_u32 s26, s26, s27
s_cmp_ge_u32 s20, 5
s_cselect_b32 s27, 1, 0
s_sub_u32 s26, s26, s27
s_and_b32 s44, s23, 7
s_bfe_u32 s45, s23, 0x10003
s_cmp_ge_u32 s24, 4
s_cselect_b32 s46, 8, 0
s_add_u32 s46, s46, s22
s_lshl_b32 s47, s46, 1
s_add_u32 s47, s47, s45
s_sub_u32 s48, 15, s24
s_add_u32 s48, s48, {CNT_CTX}
s_lshl_b32 s48, s48, 2
s_add_u32 s49, s24, {CNT_CTX}
s_lshl_b32 s49, s49, 2
s_add_u32 s50, s46, {CNT_CTX}
s_lshl_b32 s50, s50, 2
""")
    st.stamp()
    p('s_waitcnt vmcnt(0) lgkmcnt(0)')
    st.stamp()
    p('s_barrier')
    st.stamp()
    emit(publish([48]))
    p('s_cmp_lg_u32 s24, 7')
    p('s_cbranch_scc1 LF_nopubS2')
    emit(publish([49]))
    p.label('LF_nopubS2')
    srd(p, 12, 36, 37, AF_END)
    srd(p, 16, 30, 31, 2 << 20)
    srd(p, 36, 34, 35, 2 << 20)
    p(f"""
s_cmp_ge_u32 s20, 6
s_cselect_b32 s4, s32, s28
s_cselect_b32 s5, s33, s29
s_mov_b32 s6, 0x400000
s_cselect_b32 s6, 0x158000, s6
s_and_b32 s5, s5, 0xffff
s_mov_b32 s7, 0x00020000
s_mul_i32 s40, s47, {2*AF_MT}
s_lshl_b32 s43, s26, 10
s_add_u32 s40, s40, s43
s_add_u32 s40, s40, {AF_OFF:#x}
s_cmp_ge_u32 s20, 6
s_cselect_b32 s43, 256, 0
s_sub_u32 s43, s26, s43
s_lshl_b32 s42, s43, 14
s_lshl_b32 s43, s44, 7
s_add_u32 s42, s42, s43
s_sub_u32 s51, s20, 4
s_cmp_lt_u32 s51, 2
s_cselect_b32 s41, 0x7fff0000, s40
s_cselect_b32 s52, 0x4000, 0
s_add_u32 s52, s52, s42
""")
    def wloads(ks):
        sl = ks % D
        if ks == 0:
            a0 = ['s_mov_b32 s54, s52', 's_add_u32 s53, s52, 0x2000']
        else:
            a0 = [f's_add_u32 s54, s42, {ks*16384}', f's_add_u32 s53, s42, {ks*16384+8192}']
        return [f's_add_u32 m0, s25, {sl*2048}'] + a0 + [
                (lambda pp: pp(f'buffer_load_dwordx4 v{VW}, s[4:7], s54 offen lds', f'x{ks}')),
                f's_add_u32 m0, s25, {sl*2048+1024}', 's_nop 0',
                (lambda pp: pp(f'buffer_load_dwordx4 v{VW}, s[4:7], s53 offen lds', f'x{ks}'))]
    def aloads(ks):
        a = ACT + 8 * (ks % D)
        pre = ['s_mov_b32 s55, s41'] if ks == 0 else [f's_add_u32 s55, s40, {ks*1024}']
        return pre + [f'buffer_load_dwordx4 {vr(a,4)}, v{VL16}, s[12:15], s55 offen{LS}',
                      f'buffer_load_dwordx4 {vr(a+4,4)}, v{VA1}, s[12:15], s55 offen{LS}']
    def trr(ks):
        sl = ks % D; out = [lambda pp: pp.wait_tag(f'x{ks}')]
        for nt in range(2):
            w = WF4 + 8 * (ks & 1) + 4 * nt
            out.append((lambda pp, w=w, nt=nt: pp(f'ds_read_b64_tr_b16 {vr(w,2)}, v{VT[nt]} offset:{sl*2048}', f'r{ks}')))
            out.append((lambda pp, w=w, nt=nt: pp(f'ds_read_b64_tr_b16 {vr(w+2,2)}, v{VT[nt]} offset:{sl*2048+1024}', f'r{ks}')))
        return out
    for ks in range(D): emit(wloads(ks))
    p(f"""
s_lshr_b32 s56, s20, 2
s_bfe_u32 s57, s20, 0x10001
s_and_b32 s58, s20, 1
s_lshl_b32 s59, s47, 6
s_lshl_b32 s60, s57, 5
s_add_u32 s59, s59, s60
s_lshl_b32 s59, s59, 10
s_lshl_b32 s60, s44, 6
s_lshl_b32 s61, s56, 5
s_add_u32 s60, s60, s61
s_lshl_b32 s61, s58, 4
s_add_u32 s60, s60, s61
s_lshl_b32 s60, s60, 1
s_add_u32 s59, s59, s60
v_and_b32 v11, 31, v10
v_lshrrev_b32 v12, 5, v10
v_lshlrev_b32 v11, 10, v11
v_lshl_add_u32 v9, v12, 3, v11
buffer_load_dwordx2 v[160:161], v9, s[16:19], s59 offen
buffer_load_dwordx2 v[162:163], v9, s[16:19], s59 offen offset:16
""")
    st.stamp()
    emit(poll_noinv([(50, 32)]))
    st.stamp()
    p('s_barrier')
    st.stamp()
    for ks in range(D): emit(aloads(ks))
    emit(trr(0))
    for ks in range(NK):
        a = ACT + 8 * (ks % D)
        if ks + 1 < NK: emit(trr(ks + 1))
        for nt in range(2):
            for mt in range(2):
                w = WF4 + 8 * (ks & 1) + 4 * nt
                acc = vr(ACC4 + 16 * (2 * nt + mt), 16); cc = '0' if ks == 0 else acc
                p(f'{MF} {acc}, {vr(w,4)}, {vr(a+4*mt,4)}, {cc}')
        if ks + D < NK:
            p.wait_tag(f'r{ks}')
            emit(wloads(ks + D)); emit(aloads(ks + D))
    p('s_waitcnt lgkmcnt(0)')
    p('s_barrier')
    p(f'v_add_u32 v6, s25, v{VL16}')
    for b in range(16): p(f'ds_write_b128 v6, {vr(ACC4+4*b,4)} offset:{b*1024}')
    p(f"""
s_lshl_b32 s56, s20, 11
v_add_u32 v7, s56, v{VL16}
v_add_u32 v8, 0x10000, v7
s_waitcnt lgkmcnt(0)
s_barrier
""")
    for src in range(8):
        base = 7 if src < 4 else 8
        for b in range(2):
            p(f'ds_read_b128 {vr(16+8*src+4*b,4)}, v{base} offset:{(src%4)*16384 + b*1024}')
    for i in range(8):
        p(f'v_add_f32 v{16+i}, v{16+i}, v{24+i}')
        p(f'v_add_f32 v{32+i}, v{32+i}, v{40+i}')
        p(f'v_add_f32 v{48+i}, v{48+i}, v{56+i}')
        p(f'v_add_f32 v{64+i}, v{64+i}, v{72+i}')
    for i in range(8):
        p(f'v_add_f32 v{16+i}, v{16+i}, v{32+i}')
        p(f'v_add_f32 v{16+i}, v{16+i}, v{48+i}')
    for i in range(4):
        p(f'v_cvt_pk_bf16_f32 v{24+i}, v{16+2*i}, v{17+2*i}')
        p(f'v_cvt_pk_bf16_f32 v{72+i}, v{64+2*i}, v{65+2*i}')
    for i in range(4):
        p(f'v_lshlrev_b32 v{16+2*i}, 16, v{24+i}')
        p(f'v_and_b32 v{17+2*i}, 0xffff0000, v{24+i}')
        p(f'v_lshlrev_b32 v{64+2*i}, 16, v{72+i}')
        p(f'v_and_b32 v{65+2*i}, 0xffff0000, v{72+i}')
    NL2E = f2u(-math.log2(math.e))
    for i in range(8): p(f'v_mul_f32 v{32+i}, {NL2E:#x}, v{64+i}')
    for i in range(8): p(f'v_exp_f32 v{32+i}, v{32+i}')
    for i in range(8): p(f'v_add_f32 v{32+i}, 1.0, v{32+i}')
    for i in range(8): p(f'v_rcp_f32 v{32+i}, v{32+i}')
    for i in range(8): p(f'v_mul_f32 v{32+i}, v{32+i}, v{64+i}')
    for i in range(4): p(f'v_cvt_pk_bf16_f32 v{40+i}, v{32+2*i}, v{33+2*i}')
    for i in range(4):
        p(f'v_lshlrev_b32 v{32+2*i}, 16, v{40+i}')
        p(f'v_and_b32 v{33+2*i}, 0xffff0000, v{40+i}')
    for i in range(8): p(f'v_mul_f32 v{32+i}, v{32+i}, v{16+i}')
    for i in range(4): p(f'v_cvt_pk_bf16_f32 v{40+i}, v{32+2*i}, v{33+2*i}')
    for i in range(4):
        p(f'v_lshlrev_b32 v{32+2*i}, 16, v{40+i}')
        p(f'v_and_b32 v{33+2*i}, 0xffff0000, v{40+i}')
        p(f'v_lshlrev_b32 v{48+2*i}, 16, v{160+i}')
        p(f'v_and_b32 v{49+2*i}, 0xffff0000, v{160+i}')
    for i in range(8): p(f'v_add_f32 v{32+i}, v{32+i}, v{48+i}')
    for i in range(4): p(f'v_cvt_pk_bf16_f32 v{40+i}, v{32+2*i}, v{33+2*i}')
    p('buffer_store_dwordx2 v[40:41], v9, s[36:39], s59 offen')
    p('buffer_store_dwordx2 v[42:43], v9, s[36:39], s59 offen offset:16')
    if PROF: p('s_waitcnt vmcnt(0)')
    st.stamp()
    st.dump(p, 8, 0, 20, 50, 57, 8)
    p('s_endpgm')

    ool = p.begin_alt()
    def routine(name):
        p.alt_branch(ool); p.label(name)
    def fin_code():
        p(f"""
s_nop 15
s_nop 7
v_mov_b32 v9, v{VLSAVE}
v_permlane32_swap_b32 v{VLSAVE}, v9
v_add_f32 v9, v{VLSAVE}, v9
v_rcp_f32 v9, v9
s_mul_i32 s52, s27, {AF_MT}
s_lshl_b32 s54, s21, 13
s_add_u32 s52, s52, s54
s_add_u32 s52, s52, {AF_OFF:#x}
s_add_u32 s53, s52, 4096
""")
        for half in range(2):
            for i in range(32): p(f'v_mul_f32 v{O+32*half+i}, v{O+32*half+i}, v9')
            for i in range(16): p(f'v_cvt_pk_bf16_f32 v{TT+16*half+i}, v{O+32*half+2*i}, v{O+32*half+2*i+1}')
            for k in range(4): p(f'buffer_store_dwordx4 {vr(TT+16*half+4*k,4)}, v{VL16}, s[8:11], s{52+half} offen offset:{k*1024}{SC}')
        for i in range(64): p(f'v_mov_b32 v{O+i}, 0')
    for kind, nm, hf in outl:
        if kind == 'evt':
            routine(f'LF_evt{nm}')
            p('s_lshl_b32 s68, s47, 1')
            if nm in ('loop0', 'drain0'):
                p(f"""
s_add_u32 s69, s68, 2
s_cmp_lg_u32 s62, s69
s_cbranch_scc1 LF_nofin{nm}
s_cmp_eq_u32 s25, 0
s_cbranch_scc1 LF_nofin{nm}
""")
                fin_code()
                p.label(f'LF_nofin{nm}')
            if nm == 'loop0':
                p(f"""
s_add_u32 s69, s68, 4
s_cmp_lg_u32 s62, s69
s_cbranch_scc1 LF_nopubS
s_add_u32 s69, s24, {CNT_CTX}
s_lshl_b32 s69, s69, 2
""")
                emit(publish([69]))
                p(f"""
LF_nopubS:
s_cmp_lg_u32 s62, s68
s_cbranch_scc1 LF_nosw
s_cmp_eq_u32 s25, 0
s_cbranch_scc1 LF_nosw
s_lshl_b32 s69, s26, 13
s_add_u32 s69, s69, {QX}
v_add_u32 v9, s69, v{VL16}
s_nop 7
""")
                for ks in range(8): p(f'ds_read_b128 {vr(Q+4*ks,4)}, v9 offset:{ks*1024}')
                for i in range(16): p(f'v_mov_b32 v{MN+i}, 0')
                p(f"""
v_mov_b32 v{VM}, 0
s_mov_b32 s61, s28
s_mov_b32 s60, 0
s_waitcnt lgkmcnt(0)
LF_nosw:
""")
            if nm == 'loop1':
                p(f"""
s_add_u32 s69, s68, 1
s_cmp_lg_u32 s62, s69
s_cbranch_scc1 LF_nomid
s_cmp_eq_u32 s25, 0
s_cbranch_scc1 LF_nomid
v_mov_b32 v{VLSAVE}, v{VLS}
v_mov_b32 v{VLS}, 0
s_mov_b32 s60, 1.0
s_mov_b32 s57, 0xbf800000
s_mov_b32 s58, {FLOOR1:#x}
s_mov_b32 s59, 1
LF_nomid:
""")
            if nm != 'drain0':
                p(f"""
s_lshr_b32 s68, s62, 1
s_lshl_b32 s69, s68, 1
s_sub_u32 s69, s69, s47
s_add_u32 s69, s69, s25
s_cmp_ge_u32 s68, s47
s_cselect_b32 s68, s69, s68
s_lshl_b32 s68, s68, 1
s_add_u32 s68, s68, {hf}
s_cmp_lt_u32 s68, s61
s_cbranch_scc1 LF_nomask{nm}
s_sub_u32 s68, s61, s68
s_lshl_b32 s68, s68, 5
v_add_u32 v9, s68, v{VZ}
v_mov_b32 v10, {NEG:#x}
""")
                for r in range(16):
                    cr = 8 * (r >> 2) + (r & 3)
                    p(f'v_cmp_gt_i32 vcc, {cr}, v9')
                    p(f'v_cndmask_b32 v{MN+r}, v{MN+r}, v10, vcc')
                p.label(f'LF_nomask{nm}')
            p(f"""
s_add_u32 s68, s62, 1
s_max_u32 s66, s68, 32
s_cmp_le_u32 s68, s49
s_cselect_b32 s66, s68, s66
s_branch LF_eret{nm}
""")
            p.end_branch()
        else:
            routine(f'LF_rare{nm}')
            c = S[1 - hf]; nx = S[hf]; pc = PP[1 - hf]
            p('s_nop 15\ns_nop 7')
            p(f'v_max3_f32 v9, v{c}, v{c+1}, v{c+2}')
            for k in range(3, 15, 2): p(f'v_max3_f32 v9, v9, v{c+k}, v{c+k+1}')
            p(f'v_max_f32 v9, v9, v{c+15}')
            p(f'''
v_mov_b32 v10, v9
v_permlane32_swap_b32 v9, v10
v_max_f32 v9, v9, v10
v_max_f32 v9, s58, v9
v_sub_f32 v10, 0, v9
v_min_f32 v10, 0x42fc0000, v10
v_exp_f32 v10, v10
v_mul_f32 v11, s60, v9
''')
            for k in range(16): p(f'v_sub_f32 v{c+k}, v{c+k}, v9')
            for k in range(16): p(f'v_exp_f32 v{TT+k}, v{c+k}')
            p(f'v_add_f32 v{VTS}, v{TT}, v{TT+1}')
            for k in range(2, 16): p(f'v_add_f32 v{VTS}, v{VTS}, v{TT+k}')
            for k in range(8): p(f'v_cvt_pk_bf16_f32 v{pc+k}, v{TT+2*k}, v{TT+2*k+1}')
            for k in range(16): p(f'v_sub_f32 v{nx+k}, v{nx+k}, v11')
            for k in range(16): p(f'v_sub_f32 v{MN+k}, v{MN+k}, v11')
            p(f'v_add_f32 v{VM}, v{VM}, v11')
            p(f'v_mul_f32 v{VLS}, v{VLS}, v10')
            p('s_cmp_lg_u32 s59, 0')
            p(f's_cbranch_scc1 LF_rskip{nm}')
            for k in range(64): p(f'v_mul_f32 v{O+k}, v{O+k}, v10')
            p.label(f'LF_rskip{nm}')
            p(f'''
s_mov_b32 s{56+hf}, {THR:#x}
''')
            if hf == 1:
                p('s_mov_b32 s58, 0\ns_mov_b32 s59, 0')
            if nm == 'loop1': p('s_cmp_lt_u32 s55, 17')
            p(f's_branch LF_ret{nm}')
            p.end_branch()
    p.alt_branch(ool); emit_slow(); p.end_branch()
    p.label('LF_end')
    p('s_endpgm')
    return ('kf_kernel', p, 256, 512, 163840, 256, 256)
```

```python
import sys
sys.path.insert(0, 'gen')
from common import *
import importlib, os

HEADER = open('cdna_kernels/' + NAME + '.s.ref').read().split('; Override launch')[0]

def build(kernels, path):
    s = HEADER
    for (name, prog, grid, block, lds, vgpr, accum) in kernels:
        s += f'; @launch kernel={name} grid=({grid},1,1) block=({block},1,1) lds={lds}\n'
    s += '.amdgcn_target "amdgcn-amd-amdhsa--gfx950"\n.text\n'
    for (name, prog, grid, block, lds, vgpr, accum) in kernels:
        body, info = render(prog.items, name)
        mod = os.environ.get('STMOD_' + name[:2].upper(), os.environ.get('STMOD', ''))
        if mod:
            import re as _re
            body = _re.sub(r'(buffer_store_dwordx4 [^\n]*)', lambda m: m.group(1) + ' ' + mod, body)
        print(name, info, file=sys.stderr)
        s += f'.globl {name}\n.p2align 8\n.type {name},@function\n{name}:\n' + body
    for (name, prog, grid, block, lds, vgpr, accum) in kernels:
        s += kd(name, vgpr, accum)
    open(path, 'w').write(s)

if __name__ == '__main__':
    which = sys.argv[1] if len(sys.argv) > 1 else 'all'
    out = sys.argv[2] if len(sys.argv) > 2 else 'cdna_kernels/' + NAME + '.s'
    ks = []
    if which.startswith('f'):
        from kf import gen_kf
        ks.append(gen_kf())
        if which == 'f3':
            from k3 import gen_k3
            ks.append(gen_k3())
        build(ks, out); sys.exit(0)
    from k1 import gen_k1
    ks.append(gen_k1())
    if which in ('all', 'k12'):
        from k2 import gen_k2
        ks.append(gen_k2())
    if which == 'all':
        from k3 import gen_k3
        ks.append(gen_k3())
    build(ks, out)
```

```python
from common import *
from k1 import ln_stream
import struct, math

def f2u(x): return struct.unpack('<I', struct.pack('<f', x))[0]
MF = 'v_mfma_f32_32x32x16_bf16'
SC = os.environ.get('FSC', ' sc1')
CNT_LN = 0; CNT_KV = 16; CNT_CTX = 32; CNT_REG = 48
LS = os.environ.get('LS', ' sc1')
SPIN_MAX = 1 << 22

KVSC = os.environ.get('KVSC', '')
def gen_kf():
    p = Prog()
    st = Stamps(p, 70, 10)
    st.skip = set(int(x) for x in os.environ.get('STSKIP', '').split(',') if x)
    def emit(lst):
        for f in lst:
            if isinstance(f, list): emit(f)
            elif callable(f): f(p)
            else: p(f)
    VL16 = 1
    uid = [0]
    def publish(sreg_idx_list):
        uid[0] += 1; L = f'LF_pub{uid[0]}'
        out = ['s_cmp_lg_u32 s20, 0', f's_cbranch_scc1 {L}', '@COND', 'v_mov_b32 v14, 1', 'v_mov_b32 v15, 0', 's_mov_b64 exec, 1']
        for s in sreg_idx_list:
            out.append(f'buffer_atomic_add v14, v15, s[96:99], s{s} offen sc1')
        out += ['s_mov_b64 exec, -1', '@ENDCOND', f'{L}:']
        return out
    def poll(pairs):
        uid[0] += 1; L = f'LF_poll{uid[0]}'
        out = ['s_cmp_lg_u32 s20, 0', f's_cbranch_scc1 {L}_done', '@COND', 'v_mov_b32 v15, 0', f's_mov_b32 s3, {SPIN_MAX}']
        for n, (s, tgt) in enumerate(pairs):
            out += [f'{L}_{n}:',
                    f'buffer_load_dword v14, v15, s[96:99], s{s} offen sc1',
                    's_waitcnt vmcnt(0)',
                    'v_readfirstlane_b32 s100, v14',
                    's_sub_u32 s3, s3, 1',
                    's_cmp_eq_u32 s3, 0',
                    f's_cbranch_scc1 {L}_acq',
                    f's_cmp_ge_u32 s100, {tgt}',
                    f's_cbranch_scc1 {L}_{n}_ok',
                    's_sleep 2',
                    f's_branch {L}_{n}',
                    f'{L}_{n}_ok:']
        out += [f'{L}_acq:', 'buffer_inv sc1', 's_waitcnt vmcnt(0)', '@ENDCOND', f'{L}_done:']
        return out
    def poll_noinv(pairs):
        out = poll(pairs)
        i = out.index('buffer_inv sc1')
        return out[:i] + out[i + 2:]
    slow = []
    def poll_issue(sregs):
        uid[0] += 1; L = f'LF_pi{uid[0]}'
        out = ['s_cmp_lg_u32 s20, 0', f's_cbranch_scc1 {L}', '@COND', 'v_mov_b32 v8, 0']
        for n, s in enumerate(sregs): out.append(f'buffer_load_dword v{14+n}, v8, s[96:99], s{s} offen sc1')
        out += ['@ENDCOND', f'{L}:']
        return out
    def poll_check(pairs, inv_flag=None):
        uid[0] += 1; L = f'LF_pc{uid[0]}'
        out = ['s_cmp_lg_u32 s20, 0', f's_cbranch_scc1 {L}', '@COND']
        for n, (s, tgt) in enumerate(pairs):
            out += [f'v_readfirstlane_b32 s100, v{14+n}', f's_cmp_lt_u32 s100, {tgt}', f's_cbranch_scc1 {L}_slow']
        out += [f'{L}_ok:']
        if inv_flag is not None and inv_flag >= 0:
            out += [f's_cmp_lg_u32 s{inv_flag}, 0', f's_cbranch_scc1 {L}', (lambda pp: pp('buffer_inv sc1', 'inv'))]
        elif inv_flag is not None:
            out += [(lambda pp: pp('buffer_inv sc1', 'inv'))]
        out += ['@ENDCOND', f'{L}:']
        slow.append((L, pairs))
        return out
    def publish_kv():
        uid[0] += 1; L = f'LF_pkv{uid[0]}'
        return ['s_cmp_lg_u32 s20, 0', f's_cbranch_scc1 {L}', '@COND',
                'v_readfirstlane_b32 s100, v15',
                's_and_b32 s3, s100, 63', 's_bfe_u32 s29, s100, 0x90006', 's_lshr_b32 s30, s100, 15',
                's_mul_i32 s29, s29, s29', 's_lshl_b32 s30, s30, 5',
                's_cmp_eq_u32 s29, s30', 's_cselect_b32 s94, 1, 0',
                's_cmp_eq_u32 s3, 32', 's_cselect_b32 s94, s94, 0',
                's_cmp_lg_u32 s94, 0', f's_cbranch_scc1 {L}_fast',
                'buffer_wbl2 sc1', 's_waitcnt vmcnt(0)',
                f'{L}_fast:',
                'v_mov_b32 v14, 1', 'v_mov_b32 v15, 0', 's_mov_b64 exec, 1',
                'buffer_atomic_add v14, v15, s[96:99], s33 offen sc1',
                's_mov_b64 exec, -1', '@ENDCOND', f'{L}:']
    def w0_drain():
        uid[0] += 1; L = f'LF_dr{uid[0]}'
        return ['s_cmp_lg_u32 s20, 0', f's_cbranch_scc1 {L}', '@COND', (lambda pp: pp.wait_tag('inv')), '@ENDCOND', f'{L}:']
    def emit_slow():
        for L, pairs in slow:
            p.label(f'{L}_slow')
            p(f's_mov_b32 s3, {SPIN_MAX}')
            p('v_mov_b32 v8, 0')
            for n, (s, tgt) in enumerate(pairs):
                p(f"""
{L}_s{n}:
buffer_load_dword v14, v8, s[96:99], s{s} offen sc1
s_waitcnt vmcnt(0)
v_readfirstlane_b32 s100, v14
s_sub_u32 s3, s3, 1
s_cmp_eq_u32 s3, 0
s_cbranch_scc1 {L}_ok
s_cmp_ge_u32 s100, {tgt}
s_cbranch_scc1 {L}_s{n}_ok
s_sleep 2
s_branch {L}_s{n}
{L}_s{n}_ok:
""")
            p(f's_branch {L}_ok')
    p(f'''
s_cmp_ge_u32 s2, 256
s_cbranch_scc1 LF_end
s_load_dwordx4 s[28:31], s[0:1], 0
s_load_dwordx4 s[32:35], s[0:1], 24
s_load_dwordx4 s[36:39], s[0:1], 88
s_load_dwordx4 s[64:67], s[0:1], 56
s_load_dwordx2 s[68:69], s[0:1], 16
s_load_dwordx2 s[56:57], s[0:1], 40
s_load_dwordx2 s[58:59], s[0:1], 72
v_lshrrev_b32 v9, 6, v0
v_and_b32 v10, 63, v0
v_readfirstlane_b32 s20, v9
s_and_b32 s22, s2, 7
s_lshr_b32 s23, s2, 3
''')
    st.stamp()
    p('''
s_and_b32 s48, s23, 1
s_bfe_u32 s49, s23, 0x10001
s_lshr_b32 s50, s23, 2
s_lshl_b32 s51, s22, 9
s_lshl_b32 s3, s48, 8
s_add_u32 s51, s51, s3
''')
    p(f'v_lshlrev_b32 v{VL16}, 4, v10')
    STG = 65536
    p('''
v_lshrrev_b32 v11, 3, v10
v_and_b32 v12, 7, v10
v_lshrrev_b32 v13, 4, v10
v_xor_b32 v14, v12, v13
v_lshlrev_b32 v14, 4, v14
v_lshl_add_u32 v2, v11, 10, v14
v_xor_b32 v3, 64, v2
''')
    p('''
v_and_b32 v13, 1, v13
v_lshlrev_b32 v13, 2, v13
v_xor_b32 v14, v12, v13
v_lshlrev_b32 v14, 4, v14
v_lshl_add_u32 v4, v11, 13, v14
''')
    p(f'''
v_and_b32 v11, 31, v10
v_lshrrev_b32 v12, 5, v10
v_bfe_u32 v13, v11, 1, 3
v_xor_b32 v13, v12, v13
v_lshlrev_b32 v13, 4, v13
v_lshl_add_u32 v13, v11, 7, v13
s_lshl_b32 s52, s20, 13
s_add_u32 s52, s52, {STG}
v_add_u32 v16, s52, v13
v_xor_b32 v17, 32, v16
v_xor_b32 v18, 64, v16
v_xor_b32 v19, 96, v16
''')
    p('''
v_bfe_u32 v11, v10, 2, 2
v_lshl_add_u32 v13, v12, 3, v11
v_lshlrev_b32 v13, 7, v13
v_lshrrev_b32 v11, 1, v11
v_lshl_add_u32 v13, v11, 6, v13
v_bfe_u32 v11, v10, 4, 1
v_lshl_add_u32 v13, v11, 5, v13
v_and_b32 v11, 3, v10
v_lshl_add_u32 v20, v11, 3, v13
v_xor_b32 v21, 64, v20
v_add_u32 v22, 0x8000, v20
v_add_u32 v23, 0x8000, v21
v_add_u32 v24, 0x20000, v20
v_add_u32 v25, 0x20000, v21
v_add_u32 v26, 0x10000, v20
v_add_u32 v27, 0x10000, v21
v_lshlrev_b32 v14, 7, v10
v_lshrrev_b32 v15, 2, v10
v_lshlrev_b32 v15, 13, v15
v_and_b32 v11, 3, v10
v_lshl_add_u32 v15, v11, 7, v15
v_lshrrev_b32 v5, 1, v10
v_lshlrev_b32 v5, 10, v5
v_and_b32 v11, 1, v10
v_lshl_add_u32 v5, v11, 9, v5
''')
    p('s_waitcnt lgkmcnt(0)')
    srd(p, 12, 30, 31, 2 << 20)
    srd(p, 16, 28, 29, 2 << 20)
    srd(p, 8, 38, 39, WS_BYTES)
    srd(p, 96, 36, 37, 256)
    p('''
s_cmp_eq_u32 s49, 0
s_cselect_b32 s4, s32, s34
s_cselect_b32 s5, s33, s35
s_and_b32 s5, s5, 0xffff
s_mov_b32 s6, 0x400000
s_mov_b32 s7, 0x00020000
s_lshl_b32 s40, s50, 8
s_lshl_b32 s41, s20, 5
s_add_u32 s40, s40, s41
s_lshl_b32 s40, s40, 10
s_lshl_b32 s42, s20, 18
s_lshl_b32 s43, s51, 1
s_add_u32 s42, s42, s43
s_lshl_b32 s43, s20, 12
''')
    WS = [0, 32768, 131072, 65536]
    def wdma(u, q):
        sc = u >> 1; kh = u & 1
        return [f's_add_u32 m0, s43, {WS[u % 4] + q*1024}',
                f's_add_u32 s53, s42, {(kh*256 + 8*q)*8192 + sc*128}',
                (lambda pp: pp('buffer_load_dwordx4 v4, s[4:7], s53 offen lds', f'w{u}'))]
    def adma(e, jj):
        return [f's_add_u32 m0, s52, {(e&1)*4096 + jj*1024}',
                f's_add_u32 s54, s40, {8*jj*1024 + e*128}',
                (lambda pp: pp(f'buffer_load_dwordx4 v{2+(jj&1)}, s[12:15], s54 offen lds', f'a{e}'))]
    AR = 128
    def aread(e, k):
        ks = 4 * e + k
        return (lambda pp: pp(f'ds_read_b128 {vr(AR+4*ks,4)}, v{16+k} offset:{(e&1)*4096}', f'ar{e}'))
    for jj in range(4): emit(adma(0, jj))
    for q in range(4): emit(wdma(0, q))
    for jj in range(4): emit(adma(1, jj))
    p('''
s_lshl_b32 s29, s2, 3
s_add_u32 s29, s29, s20
s_lshl_b32 s30, s29, 10
''')
    LNR = 96; LNT = 100
    p(f'buffer_load_dwordx4 {vr(LNR,4)}, v{VL16}, s[16:19], s30 offen')
    if 'nopf' not in os.environ.get('XP1', ''):
        p("""
s_cmp_lt_u32 s2, 128
s_cselect_b32 s60, s32, s34
s_cselect_b32 s61, s33, s35
s_mov_b32 s62, 0x400000
s_and_b32 s3, s2, 127
s_lshl_b32 s3, s3, 15
s_lshl_b32 s53, s20, 13
s_add_u32 s3, s3, s53
s_lshl_b32 s53, s2, 13
s_cmp_eq_u32 s20, 4
s_cselect_b32 s60, s12, s60
s_cselect_b32 s61, s13, s61
s_cselect_b32 s62, s14, s62
s_cselect_b32 s3, s53, s3
s_cmp_gt_u32 s20, 4
s_cselect_b32 s3, 0x7f000000, s3
s_and_b32 s61, s61, 0xffff
s_mov_b32 s63, 0x00020000
buffer_load_dword v104, v14, s[60:63], s3 offen
""")
    for q in range(4): emit(wdma(1, q))
    p(f'''
s_lshr_b32 s44, s51, 7
s_lshl_b32 s44, s44, 19
s_lshl_b32 s45, s50, 3
s_add_u32 s45, s45, s20
s_lshl_b32 s45, s45, 13
s_add_u32 s44, s44, s45
s_mov_b32 s45, {KF_OFF:#x}
s_mov_b32 s46, {VF_OFF:#x}
s_cmp_eq_u32 s49, 0
s_cselect_b32 s45, s45, s46
s_add_u32 s41, s44, s45
s_lshr_b32 s31, s29, 5
s_lshl_b32 s31, s31, 15
s_and_b32 s3, s29, 31
s_lshl_b32 s3, s3, 4
s_add_u32 s31, s31, s3
s_lshr_b32 s32, s2, 4
s_lshl_b32 s32, s32, 2
s_lshr_b32 s33, s51, 8
s_add_u32 s33, s33, {CNT_KV}
s_lshl_b32 s33, s33, 2
s_getreg_b32 s3, hwreg(HW_REG_XCC_ID, 0, 4)
s_mul_i32 s53, s3, s3
s_lshl_b32 s53, s53, 15
s_lshl_b32 s3, s3, 6
s_add_u32 s53, s53, s3
s_add_u32 s53, s53, 1
s_add_u32 s101, s22, {CNT_REG}
s_lshl_b32 s101, s101, 2
s_cmp_lg_u32 s20, 0
s_cbranch_scc1 LF_noreg
@COND
v_mov_b32 v8, s53
v_mov_b32 v9, 0
s_mov_b64 exec, 1
buffer_atomic_add v8, v9, s[96:99], s101 offen sc1
s_mov_b64 exec, -1
@ENDCOND
LF_noreg:
''')
    if XF_OFF: p(f's_add_u32 s31, s31, {XF_OFF:#x}')
    p('''
s_and_b32 s3, s23, 3
s_lshl_b32 s21, s22, 2
s_add_u32 s21, s21, s3
s_lshr_b32 s24, s23, 2
s_lshr_b32 s25, s20, 2
s_and_b32 s26, s20, 3
s_sub_u32 s28, 15, s24
s_lshl_b32 s28, s28, 2
s_add_u32 s28, s28, s26
s_lshl_b32 s27, s24, 2
s_add_u32 s27, s27, s26
s_cmp_eq_u32 s25, 0
s_cselect_b32 s27, s28, s27
''')
    p.wait_tag('a0')
    for k in range(4): emit([aread(0, k)])
    p.wait_tag('ar0')
    for jj in range(4): emit(adma(2, jj))
    p.wait_tag('w0')
    p('s_barrier')
    st.stamp()
    p('s_cmp_lg_u32 s49, 0')
    p('s_cbranch_scc1 LF_v')

    WF = 32; NST = 4; ACC = 64; PK = 96
    def trread(u, kk):
        out = []
        for nt in range(2):
            w = WF + 8 * (kk % NST) + 4 * nt
            out.append(f'ds_read_b64_tr_b16 {vr(w,2)}, v{20+2*(u%4)+nt} offset:{kk*2048}')
            out.append(f'ds_read_b64_tr_b16 {vr(w+2,2)}, v{20+2*(u%4)+nt} offset:{kk*2048+512}')
        return out
    def kv_epilogue(sc, nt):
        g = []
        PKB = PK if sc < 3 else 32
        for half in range(2):
            pk = PKB + 8 * nt + 4 * half
            for i in range(4):
                s = ACC + 16 * nt + 8 * half + 2 * i
                g.append(f'v_cvt_pk_bf16_f32 v{pk+i}, v{s}, v{s+1}')
        off = (sc >> 1) * 524288 + (sc & 1) * 4096
        st_ = [[f's_add_u32 s55, s41, {off + nt*2048 + half*1024}',
                (lambda pp, half=half: pp(f'buffer_store_dwordx4 {vr(PKB+8*nt+4*half,4)}, v{VL16}, s[8:11], s55 offen{KVSC}', 'kvst'))]
               for half in range(2)]
        return g, st_
    lns = ln_stream(LNR, LNT, LNT + 16)
    lns.append(lambda pp: pp(f'buffer_store_dwordx4 {vr(LNR,4)}, v5, s[8:11], s31 offen{SC}', 'lnst'))
    SLOT = 29184
    GSL = [0, SLOT, 131072, 65536]
    KSL = 0; VSL = 65536; QX = 131072
    GD = 28
    def p2_setup():
        q = Prog(); pp = q
        pp("""
v_and_b32 v10, 63, v0
v_lshrrev_b32 v11, 4, v10
v_bfe_u32 v12, v10, 2, 2
v_and_b32 v13, 3, v11
v_xor_b32 v12, v12, v13
v_lshlrev_b32 v12, 6, v12
v_and_b32 v13, 3, v10
v_lshl_add_u32 v12, v13, 4, v12
v_lshl_add_u32 v12, v11, 13, v12
s_lshl_b32 s29, s26, 17
v_add_u32 v28, s29, v12
v_add_u32 v29, 0x8000, v28
v_add_u32 v30, 0x10000, v28
v_add_u32 v31, 0x18000, v28
s_and_b32 s29, s20, 1
s_mul_i32 s29, s29, 192
s_mov_b32 s30, 43691
s_movk_i32 s34, 2752
s_cmp_eq_u32 s25, 0
s_cselect_b64 s[36:37], -1, 0
""")
        for t in range(3):
            pp(f"""
v_add_u32 v11, s29, v10
v_add_u32 v11, {64*t}, v11
v_mul_lo_u32 v12, v11, s30
v_lshrrev_b32 v12, 18, v12
v_mul_u32_u24 v13, 6, v12
v_sub_u32 v13, v11, v13
v_mul_lo_u32 v12, v12, s34
v_lshl_add_u32 v9, v13, 4, v12
v_cndmask_b32 v{28+t}, v9, v{28+t}, s[36:37]
""")
        pp('v_cndmask_b32 v31, v9, v31, s[36:37]')
        pp("""
v_lshrrev_b32 v11, 5, v10
v_bfe_u32 v12, v10, 2, 2
v_lshl_add_u32 v13, v11, 3, v12
v_lshlrev_b32 v6, 8, v13
v_lshl_add_u32 v6, v12, 6, v6
v_bfe_u32 v7, v10, 4, 1
v_lshl_add_u32 v6, v7, 5, v6
v_and_b32 v9, 3, v10
v_lshl_add_u32 v6, v9, 3, v6
v_mul_u32_u24 v13, 96, v13
v_mul_u32_u24 v7, 6272, v7
v_add_u32 v13, v13, v7
v_lshl_add_u32 v13, v9, 3, v13
v_add_u32 v7, 0x4000, v13
""")
        pp("""
s_mov_b32 s60, s68
s_mov_b32 s61, s69
s_cmp_eq_u32 s20, 2
s_cselect_b32 s60, s64, s60
s_cselect_b32 s61, s65, s61
s_cmp_eq_u32 s20, 3
s_cselect_b32 s60, s66, s60
s_cselect_b32 s61, s67, s61
s_cmp_ge_u32 s20, 4
s_cselect_b32 s60, s56, s60
s_cselect_b32 s61, s57, s61
s_cmp_ge_u32 s20, 6
s_cselect_b32 s60, s58, s60
s_cselect_b32 s61, s59, s61
s_and_b32 s61, s61, 0xffff
s_mov_b32 s63, 0x00020000
s_mov_b32 s62, 0x158000
s_movk_i32 s35, 5504
s_and_b32 s38, s20, 2
s_cmp_eq_u32 s38, 0
s_cselect_b32 s62, 0x400000, s62
s_cselect_b32 s35, 0x4000, s35
s_mul_i32 s35, s35, s2
s_and_b32 s39, s20, 1
s_lshl_b32 s39, s39, 13
s_cmp_eq_u32 s38, 0
s_cselect_b32 s39, s39, 0
s_add_u32 s35, s35, s39
s_cmp_ge_u32 s20, 4
s_cselect_b32 s35, 0x7f000000, s35
v_lshlrev_b32 v12, 3, v1
buffer_load_dword v11, v12, s[60:63], s35 offen
""")
        pp("""
s_bfe_u32 s29, s20, 0x10001
s_cmp_eq_u32 s29, 0
s_cselect_b32 s16, s64, s66
s_cselect_b32 s17, s65, s67
s_mov_b32 s18, 0x158000
s_cmp_eq_u32 s25, 0
s_cselect_b32 s16, s68, s16
s_cselect_b32 s17, s69, s17
s_cselect_b32 s18, 0x400000, s18
s_and_b32 s17, s17, 0xffff
s_mov_b32 s19, 0x00020000
s_lshl_b32 s56, s21, 8
s_mul_i32 s38, s21, 96
s_lshl_b32 s58, s26, 12
s_mul_i32 s39, s29, 6272
s_and_b32 s30, s20, 1
s_mul_i32 s30, s30, 3072
s_add_u32 s39, s39, s30
s_add_u32 s39, s39, 16384
s_cmp_eq_u32 s25, 0
s_cselect_b32 s56, s56, s38
s_mov_b32 s57, 0x2b000
s_cselect_b32 s57, 0x80000, s57
s_cselect_b32 s58, s58, s39
s_movk_i32 s59, 2048
s_cselect_b32 s59, 3072, s59
s_add_u32 s59, s59, s58
s_lshl_b32 s60, s27, 15
""")
        if XF_OFF: pp(f's_add_u32 s60, s60, {XF_OFF:#x}')
        return [i.text for i in q.items]
    GX = 128; GW = 192; GT = [48, 64, 80, 96, 112, 160, 176]
    def gdma(sl):
        base = GSL[sl % 4]
        out = []
        for t in range(4):
            out.append([f's_add_u32 m0, s{58 if t < 3 else 59}, {base + (t*1024 if t < 3 else 0)}',
                        's_nop 0',
                        (lambda pp, t=t, sl=sl: pp(f'buffer_load_dwordx4 v{GD+t}, s[16:19], s56 offen lds', f'g{sl}'))])
        out[3].append('s_add_u32 s56, s56, s57')
        return out
    def xload(sl):
        out = []
        b = GX + 16 * (sl & 1)
        for k in range(4):
            out.append(f'buffer_load_dwordx4 {vr(b+4*k,4)}, v{VL16}, s[8:11], s61 offen offset:{k*1024}{LS}')
        return [f's_add_u32 s61, s60, {sl*4096}'] + out

    alt = p.begin_alt(join=True)
    for variant in ('k', 'v'):
        p.alt_branch(alt)
        if variant == 'v': p.label('LF_v')
        for kk in range(3): emit(trread(0, kk))
        pend = []
        for u in range(8):
            sc = u >> 1; kh = u & 1
            bb = []; fl = {}
            def add(slot, items): fl.setdefault(slot, []).extend(items)
            for kk in range(16):
                ks = kh * 16 + kk
                for nt in range(2):
                    w = WF + 8 * (kk % NST) + 4 * nt
                    acc = vr(ACC + 16 * nt, 16); cc = '0' if ks == 0 else acc
                    A = vr(AR + 4 * ks, 4)
                    if variant == 'k': bb.append(f'{MF} {acc}, {vr(w,4)}, {A}, {cc}')
                    else:              bb.append(f'{MF} {acc}, {A}, {vr(w,4)}, {cc}')
            for kk in range(3, 16):
                t = trread(u, kk)
                s0 = min(2 * (kk - 3), 24)
                add(s0, t[:2]); add(s0 + 1, t[2:])
            if u < 2:
                for q4 in range(4):
                    e = 4 * kh + q4; base = 8 * q4
                    if e + 1 < 8:
                        add(base + 1, [lambda pp, e=e: pp.wait_tag(f'a{e+1}')])
                        for k_ in range(4): add(base + 1 + k_ // 2, [aread(e + 1, k_)])
                        if e + 3 < 8:
                            add(base + 5, [lambda pp, e=e: pp.wait_tag(f'ar{e+1}')])
                            for jj in range(4): add(base + 5 + jj // 2, adma(e + 3, jj))
            loads = {0: [2], 2: [3, 4], 3: [5], 4: [6], 5: [7]}.get(u, [])
            grps = [wdma(lu, q) for lu in loads for q in range(4)]
            if grps: spread(add, grps, 2 if u else 10, 25)
            X1 = os.environ.get('XP1', '')
            if u == 1: spread(add, atomic_groups(lns, 3), 1, 25)
            if u == 3: spread(add, atomic_groups(p2_setup(), 4), 10, 26)
            if kh == 0 and sc > 0:
                for nt in range(2):
                    g, st_ = kv_epilogue(sc - 1, nt)
                    fl.setdefault(('pre', nt), []).extend(g)
                    pend.extend(st_)
            if pend:
                a_, b_ = pend.pop(0), pend.pop(0)
                if 'nokvst' not in os.environ.get('XP1', ''): add(12, a_); add(24, b_)
            extra = []; post = []
            if u == (3 if 'latepub' in X1 else 2): extra = [lambda pp: pp.wait_tag('lnst')]; post = publish([32])
            if u == 5 and 'nopoll' not in X1: add(18, ['s_sub_u32 s29, 15, s24', 's_lshl_b32 s29, s29, 2', 's_lshl_b32 s30, s24, 2'] + poll_issue([29, 30]))
            if u == 5 and 'nopoll' not in X1: post = poll_check([(29, 16), (30, 16)])
            if u == 6 and 'nog01' not in X1:
                spread(add, gdma(0) + gdma(1), 1, 25)
            if u == 7 and 'nog01' in X1:
                spread(add, gdma(0) + gdma(1), 1, 25)
            if u == 7:
                xl = xload(0)
                spread(add, [xl[:2], [xl[2]], [xl[3]], [xl[4]]] + gdma(2), 1, 28)
            if u < 7:
                add(27, [lambda pp, u=u: pp.wait_tag(f'w{u+1}'), 's_waitcnt lgkmcnt(0)'] + extra + ['s_barrier'] + post)
                for kk in range(3):
                    t = trread(u + 1, kk)
                    add(min(27 + 2 * kk, 31), t[:2]); add(min(28 + 2 * kk, 31), t[2:])
            interleave(p, bb, fl)
            if os.environ.get('P1ST'): st.i = 2 + u; st.stamp()
        for nt in range(2):
            g, st_ = kv_epilogue(3, nt)
            emit(g); pend.extend(st_)
        if variant == 'k': p('s_branch LF_p2')
        p.end_branch()
    p.label('LF_p2')
    st.stamp()
    VK = 2; VV = 3; VZ = 4; VLS = 5; VM = 6; VTS = 7; VLSAVE = 8
    T0 = 9
    Q = 16; O = 48; S = [112, 128]; PP = [144, 152]; MN = 160; FR = 176; E = 208; TT = 216
    THR = f2u(float(2 ** 20)); NEG = f2u(-1e30); FLOOR1 = f2u(-1e20)
    p(f"""
s_lshl_b32 s44, s21, 19
s_lshl_b32 s46, s20, 11
s_add_u32 s44, s44, s46
s_add_u32 s45, s44, {VF_OFF:#x}
s_add_u32 s44, s44, {KF_OFF:#x}
s_lshl_b32 s47, s24, 1
s_add_u32 s47, s47, 2
""")
    AQ = [T0, T0 + 1, T0 + 2, T0 + 3]; AF_ = T0 + 4
    def set_addr(sl):
        base = GSL[sl % 4]
        out = [f'v_add_u32 v{AQ[0]}, {base}, v6']
        for nt in range(1, 4): out.append(f'v_xor_b32 v{AQ[nt]}, {nt<<6}, v{AQ[0]}')
        out.append(f'v_add_u32 v{AF_}, {base}, v7')
        return out
    assert all((s & 0xff) == 0 for s in GSL)
    def gtr(g):
        kk = g & 3; out = []
        for tl in range(7):
            w = GW + 28 * (g & 1) + 4 * tl
            if tl < 4:
                out.append(f'ds_read_b64_tr_b16 {vr(w,2)}, v{AQ[tl]} offset:{kk*4096}')
                out.append(f'ds_read_b64_tr_b16 {vr(w+2,2)}, v{AQ[tl]} offset:{kk*4096+1024}')
            else:
                o = kk * 1536 + (tl - 4) * 32
                out.append(f'ds_read_b64_tr_b16 {vr(w,2)}, v{AF_} offset:{o}')
                out.append(f'ds_read_b64_tr_b16 {vr(w+2,2)}, v{AF_} offset:{o+384}')
        return out
    def kvcopy(sbase, chunk_off, ldsbase, tag, tmp=43):
        return [f's_add_u32 m0, s46, {ldsbase}',
                f's_add_u32 s{tmp}, s{sbase}, {chunk_off}',
                (lambda pp: pp(f'buffer_load_dwordx4 v{VL16}, s[8:11], s{tmp} offen{LS} lds', tag)),
                (lambda pp: pp(f'buffer_load_dwordx4 v{VL16}, s[8:11], s{tmp} offen offset:1024{LS} lds', tag))]
    PUB_SL = int(os.environ.get('PUB_SL', '4'))
    p.wait_tag('g0')
    p('s_waitcnt lgkmcnt(0)')
    p('s_barrier')
    emit(set_addr(0))
    emit(gtr(0))
    for sl in range(8):
        bb = []; fl = {}
        def add(slot, items): fl.setdefault(slot, []).extend(items)
        for kk in range(4):
            g = sl * 4 + kk
            xb = GX + 16 * (sl & 1) + 4 * kk
            for tl in range(7):
                w = GW + 28 * (g & 1) + 4 * tl
                acc = vr(GT[tl], 16); cc = '0' if g == 0 else acc
                bb.append(f'{MF} {acc}, {vr(w,4)}, {vr(xb,4)}, {cc}')
            ng = g + 1
            if ng < 32:
                if kk == 3: add(7 * kk - 1, set_addr(sl + 1))
                rd = gtr(ng)
                for i in range(7): add(7 * kk + i, rd[2 * i:2 * i + 2])
        if sl + 1 < 8:
            xl = xload(sl + 1)
            add(0, xl[:1])
            for k in range(4): add(1 + k, [xl[1 + k]])
            pre = []; post = []
            if sl < 4: add(10, pend[sl])
            if sl == PUB_SL:
                pre = [lambda pp: pp.wait_tag('kvst')]; post = publish_kv()
            if sl == PUB_SL - 1:
                add(6, poll_issue([101, 101]))
            if sl == 6:
                add(8, [f's_lshr_b32 s29, s21, 1', f's_add_u32 s29, s29, {CNT_KV}', 's_lshl_b32 s29, s29, 2'] + poll_issue([29]))
                post = poll_check([(29, 16)], inv_flag=(94 if os.environ.get('KVINV') == 'cond' else -1))

            add(17, [lambda pp, sl=sl: pp.wait_tag(f'g{sl+1}')] + pre + ['s_barrier'] + post)
            if sl + 3 < 8:
                for t, grp in enumerate(gdma(sl + 3)): add(18 + 2 * t if t < 1 else 21 + 2 * (t - 1), grp)
        interleave(p, bb, fl)
    st.stamp()
    p('s_waitcnt lgkmcnt(0)')
    emit(w0_drain())
    p('s_barrier')
    emit(kvcopy(44, 0, KSL, 'k0'))
    emit(kvcopy(44, 16384, KSL + 32768, 'k1'))
    emit(kvcopy(45, 0, VSL, 'v0'))
    p("""
s_load_dwordx2 s[56:57], s[0:1], 40
s_load_dwordx2 s[58:59], s[0:1], 72
s_waitcnt lgkmcnt(0)
s_cmp_ge_u32 s20, 2
s_cselect_b32 s60, s58, s56
s_cselect_b32 s61, s59, s57
s_mov_b32 s62, 0x400000
s_cselect_b32 s62, 0x158000, s62
s_movk_i32 s35, 0x4000
s_cselect_b32 s35, 5504, s35
s_and_b32 s61, s61, 0xffff
s_mov_b32 s63, 0x00020000
s_mul_i32 s35, s35, s2
s_cmp_eq_u32 s20, 1
s_cselect_b32 s39, 0x2000, 0
s_add_u32 s35, s35, s39
s_cmp_ge_u32 s20, 3
s_cselect_b32 s35, 0x7f000000, s35
v_lshlrev_b32 v12, 3, v1
buffer_load_dword v11, v12, s[60:63], s35 offen
""")
    CQ = f2u(math.log2(math.e) / math.sqrt(128.0))
    p(f's_mov_b32 s48, {CQ:#x}')
    for tl in range(4):
        for i in range(16): p(f'v_mul_f32 v{GT[tl]+i}, s48, v{GT[tl]+i}')
        for i in range(8): p(f'v_cvt_pk_bf16_f32 v{Q+8*tl+i}, v{GT[tl]+2*i}, v{GT[tl]+2*i+1}')
    p(f'''
s_lshl_b32 s49, s26, 13
s_add_u32 s49, s49, {QX}
v_add_u32 v9, s49, v{VL16}
s_cmp_lg_u32 s25, 0
s_cbranch_scc1 LF_noqx
''')
    for ks in range(8): p(f'ds_write_b128 v9, {vr(Q+4*ks,4)} offset:{ks*1024}')
    p('s_waitcnt lgkmcnt(0)')
    p.label('LF_noqx')
    KG = -2.0 * math.sqrt(2.0 / math.pi) * math.log2(math.e)
    p(f's_mov_b32 s50, {f2u(KG):#x}')
    p(f's_mov_b32 s51, {f2u(KG*0.044715):#x}')
    p(f'''
s_mul_i32 s52, s27, {AF_MT}
s_mul_i32 s53, s21, 3
s_add_u32 s54, s53, 256
s_lshl_b32 s54, s54, 10
s_add_u32 s52, s52, s54
s_add_u32 s52, s52, {AF_OFF:#x}
''')
    for tt in range(3):
        a = GT[4 + tt]; t = GW
        p(f's_add_u32 s54, s53, {tt}')
        p('s_cmp_ge_u32 s54, 86')
        p(f's_cbranch_scc1 LF_ffn_skip{tt}')
        for i in range(8): p(f'v_cvt_pk_bf16_f32 v{t+i}, v{a+2*i}, v{a+2*i+1}')
        for i in range(8):
            p(f'v_lshlrev_b32 v{a+2*i}, 16, v{t+i}')
            p(f'v_and_b32 v{a+2*i+1}, 0xffff0000, v{t+i}')
        for i in range(8): p(f'v_mul_f32 v{t+i}, v{a+i}, v{a+i}')
        p(f'v_mov_b32 v{t+16}, s50')
        for i in range(8): p(f'v_fma_f32 v{t+i}, v{t+i}, s51, v{t+16}')
        for i in range(8): p(f'v_mul_f32 v{t+i}, v{t+i}, v{a+i}')
        for i in range(8): p(f'v_exp_f32 v{t+i}, v{t+i}')
        for i in range(8): p(f'v_add_f32 v{t+i}, 1.0, v{t+i}')
        for i in range(8): p(f'v_rcp_f32 v{t+i}, v{t+i}')
        for i in range(8): p(f'v_mul_f32 v{t+i}, v{t+i}, v{a+i}')
        for i in range(4): p(f'v_cvt_pk_bf16_f32 v{t+8+i}, v{t+2*i}, v{t+2*i+1}')
        for i in range(4):
            p(f'v_lshlrev_b32 v{t+2*i}, 16, v{t+8+i}')
            p(f'v_and_b32 v{t+2*i+1}, 0xffff0000, v{t+8+i}')
        for i in range(8): p(f'v_mul_f32 v{t+i}, v{t+i}, v{a+8+i}')
        for i in range(4): p(f'v_cvt_pk_bf16_f32 v{t+20+4*tt+i}, v{t+2*i}, v{t+2*i+1}')
        p(f'buffer_store_dwordx4 {vr(t+20+4*tt,4)}, v{VL16}, s[8:11], s52 offen offset:{tt*1024}{SC}')
        p.label(f'LF_ffn_skip{tt}')
    st.stamp()
    for i in range(64): p(f'v_mov_b32 v{O+i}, 0')
    for i in range(16): p(f'v_mov_b32 v{MN+i}, 0')
    p(f"""
v_mov_b32 v{VLS}, 0
v_mov_b32 v{VM}, 0
v_mov_b32 v{VLSAVE}, 0
s_mov_b32 s56, {THR:#x}
s_mov_b32 s57, 0xbf800000
s_mov_b32 s58, {FLOOR1:#x}
s_mov_b32 s59, 1
s_mov_b32 s60, 1.0
s_mov_b32 s61, s27
s_mov_b32 s62, 0
s_lshl_b32 s67, s25, 14
v_add_u32 v{VK}, {KSL}, v{VL16}
v_add_u32 v{VV}, {VSL}, v{VL16}
v_and_b32 v10, 63, v0
v_and_b32 v12, 31, v10
v_lshrrev_b32 v11, 5, v10
v_lshlrev_b32 v13, 2, v11
v_sub_u32 v{VZ}, v12, v13
s_mov_b32 s55, 0
s_mov_b32 s63, 16384
s_add_u32 s64, s46, 32768
s_lshl_b32 s49, s47, 1
s_add_u32 s49, s49, 2
s_cmp_eq_u32 s25, 0
s_cselect_b32 s49, 0, s49
s_cselect_b32 s66, 32, s27
s_lshl_b32 s68, s47, 1
s_add_u32 s68, s68, 4
s_min_u32 s68, s68, 32
s_cmp_eq_u32 s20, 0
s_cselect_b32 s66, s68, s66
""")
    p('s_waitcnt vmcnt(0) lgkmcnt(0)')
    p('s_barrier')
    st.stamp()

    def frag_read(f):
        hf = f >> 4; i = f & 15; dst = vr(FR + 4 * (f % 8), 4)
        if i < 8:  return f'ds_read_b128 {dst}, v{VK} offset:{hf*8192 + i*1024}'
        else:      return f'ds_read_b128 {dst}, v{VV} offset:{hf*8192 + (i-8)*1024}'
    def mfma(f):
        hf = f >> 4; i = f & 15; fr = vr(FR + 4 * (f % 8), 4)
        if i < 8:
            s = vr(S[hf], 16); c = vr(MN, 16) if i == 0 else s
            return f'{MF} {s}, {fr}, {vr(Q+4*i,4)}, {c}'
        dt = (i - 8) >> 1; tp = (i - 8) & 1
        o = vr(O + 16 * dt, 16)
        return f'{MF} {o}, {fr}, {vr(PP[hf]+4*tp,4)}, {o}'
    def bstage(hf, nslots):
        c = S[1 - hf]; pp_ = PP[1 - hf]
        groups = [[] for _ in range(nslots)]
        span = nslots - 2
        pos_e = [(kk * span) // 16 for kk in range(16)]
        late = [[] for _ in range(nslots)]
        for k in range(8):
            ea = E + (2 * k) % 8; eb = E + (2 * k + 1) % 8
            groups[pos_e[2 * k]].append(f'v_exp_f32 v{ea}, v{c+2*k}')
            groups[pos_e[2 * k + 1]].append(f'v_exp_f32 v{eb}, v{c+2*k+1}')
            sa = pos_e[2 * k] + 1; sb = pos_e[2 * k + 1] + 1
            if k == 0:
                late[sb].append(f'v_add_f32 v{VTS}, v{ea}, v{eb}')
            else:
                late[sa].append(f'v_add_f32 v{VTS}, v{VTS}, v{ea}')
                late[sb].append(f'v_add_f32 v{VTS}, v{VTS}, v{eb}')
            late[sb].append(f'v_cvt_pk_bf16_f32 v{pp_+k}, v{ea}, v{eb}')
        return [late[i] + groups[i] for i in range(nslots)]
    outl = []

    def step(kind):
        doA = kind != 'drain'
        slots = []
        for f in range(32):
            hf = f >> 4; i = f & 15
            isA = i < 8
            if isA and not doA: continue
            if not isA and kind == 'first': continue
            slots.append(f)
        pos = {f: n for n, f in enumerate(slots)}
        bb = [mfma(f) for f in slots]
        fl = {}
        def add(n, items): fl.setdefault(n, []).extend(items)
        nS = len(slots)
        DIST = 4
        last_read_slot = nS - 6
        for n in range(DIST, nS):
            add(min(n - DIST, last_read_slot) if kind != 'drain' else n - DIST, [frag_read(slots[n])])
        for hf in range(2):
            if kind == 'first' and hf == 0: continue
            if kind == 'drain' and hf == 1: continue
            hs = [n for n, f in enumerate(slots) if (f >> 4) == hf]
            groups = bstage(hf, len(hs))
            for gi, g in enumerate(groups): add(hs[gi], g)
            nm = f'{kind}{hf}'
            add(hs[-2], [f'v_cmp_nge_f32 vcc, s{56+hf}, v{VTS}'])
            add(hs[-1], [f's_cbranch_vccnz LF_rare{nm}', f'LF_ret{nm}:', f'v_add_f32 v{VLS}, v{VLS}, v{VTS}'])
            outl.append(('rare', nm, hf))
        for hf in range(2):
            if kind == 'drain' and hf == 1: continue
            nm = f'{kind}{hf}'
            first_slot = [n for n, f in enumerate(slots) if (f >> 4) == hf][0]
            fl.setdefault(('pre', first_slot), []).extend(
                ['s_cmp_ge_u32 s62, s66', f's_cbranch_scc1 LF_evt{nm}', f'LF_eret{nm}:'])
            add(first_slot, ['s_add_u32 s62, s62, 1'])
            outl.append(('evt', nm, hf))
        return bb, fl, add, pos, slots

    def prep_next():
        return [['s_add_u32 s55, s55, 1', 's_and_b32 s50, s55, 1'],
                ['s_lshl_b32 s50, s50, 15', 's_cmp_ge_u32 s55, s47'],
                ['s_cselect_b32 s69, s67, 0', 's_add_u32 s50, s50, s69', f's_add_u32 s50, s50, {KSL}']]
    def barrier_blk():
        return ['s_waitcnt vmcnt(0) lgkmcnt(0)', 's_barrier',
                f'v_add_u32 v{VV}, {(VSL - KSL) & 0xffffffff:#x}, v{VK}',
                f'v_add_u32 v{VK}, s50, v{VL16}']
    def dma_issue(name):
        L = f'buffer_load_dwordx4 v{VL16}, s[8:11], s43 offen{LS} lds'
        L2 = f'buffer_load_dwordx4 v{VL16}, s[8:11], s43 offen offset:1024{LS} lds'
        g = []
        g.append([f's_add_u32 m0, s64, {VSL}', 's_add_u32 s43, s45, s63', L])
        g.append([L2, 's_cmp_lt_u32 s55, s47'])
        g.append([f's_cbranch_scc1 LF_nov2{name}', f's_add_u32 m0, s64, {VSL + 16384}', 's_add_u32 s43, s43, 16384', L, L2,
                  's_add_u32 s63, s63, 16384', f'LF_nov2{name}:'])
        g.append(['s_add_u32 s63, s63, 16384', 's_xor_b32 s64, s64, 32768'])
        g.append([f's_add_u32 m0, s64, {KSL}', 's_add_u32 s43, s44, s63', L])
        g.append([L2, 's_add_u32 s65, s55, 1', 's_cmp_lt_u32 s65, s47'])
        g.append([f's_cbranch_scc1 LF_nok{name}', f's_add_u32 m0, s64, {KSL + 16384}', 's_add_u32 s43, s43, 16384', L, L2,
                  f'LF_nok{name}:'])
        return g

    bb, fl, add, pos, slots = step('first')
    for n in range(4): p(frag_read(slots[n]))
    nS = len(slots)
    for gi, g in enumerate(prep_next()): add(4 + gi, g)
    add(nS - 4, barrier_blk())
    for n in range(4): add(nS - 4 + n, [frag_read(n)])
    interleave(p, bb, fl)
    p.begin_loop()
    p.label('LF_loop')
    bb, fl, add, pos, slots = step('loop')
    XP = os.environ.get('XP', '')
    if 'nodma' not in XP:
        for gi, g in enumerate(dma_issue('loop')): add(1 + 3 * gi, g)
    for gi, g in enumerate(prep_next()): add(23 + gi, g)
    nb_ = barrier_blk()
    if 'nobar' in XP: nb_ = [x for x in nb_ if x != 's_barrier']
    add(28, nb_)
    for n in range(4): add(28 + n if n < 3 else 30, [frag_read(n)])
    add(30, ['s_cmp_lt_u32 s55, 17'])
    if XP:
        for kk_ in fl: fl[kk_] = [x for x in fl[kk_] if not (isinstance(x, str) and x.startswith('s_cbranch_vccnz'))]
    if 'noexp' in XP:
        for kk_ in fl: fl[kk_] = [x.replace('v_exp_f32', 'v_mov_b32') if isinstance(x, str) else x for x in fl[kk_]]
    if 'novalu' in XP:
        for kk_ in fl: fl[kk_] = [x for x in fl[kk_] if not (isinstance(x, str) and x.startswith(('v_exp', 'v_add_f32 v7', 'v_cvt')))]
    if 'nolds' in XP:
        for kk_ in fl: fl[kk_] = [x for x in fl[kk_] if not (isinstance(x, str) and x.startswith('ds_read'))]
    interleave(p, bb, fl)
    p('s_cbranch_scc1 LF_loop')
    p.end_loop()
    st.stamp()
    p('s_waitcnt lgkmcnt(0)')
    bb, fl, add, pos, slots = step('drain')
    for n in range(4): p(frag_read(slots[n]))
    interleave(p, bb, fl)
    st.stamp()
    p(f'''
v_mov_b32 v9, v{VLS}
v_permlane32_swap_b32 v{VLS}, v9
v_add_f32 v{VLS}, v{VLS}, v9
s_waitcnt lgkmcnt(0)
s_barrier
''')
    p(f'''
s_mul_i32 s49, s20, 8704
s_xor_b32 s50, s20, 4
s_mul_i32 s50, s50, 8704
v_add_u32 v9, s49, v{VL16}
v_add_u32 v10, s50, v{VL16}
v_lshrrev_b32 v11, 1, v{VL16}
v_add_u32 v12, s49, v11
v_add_u32 v13, s50, v11
v_mov_b32 v14, v{VLS}
v_mov_b32 v15, v{VM}
s_cmp_eq_u32 s25, 0
s_cbranch_scc1 LF_mg0
''')
    X = TT
    alt = p.begin_alt(join=True)
    for g in (1, 0):
        p.alt_branch(alt)
        if g == 0: p.label('LF_mg0')
        keep = O + 32 * g; send = O + 32 * (1 - g)
        for k in range(8): p(f'ds_write_b128 v9, {vr(send+4*k,4)} offset:{k*1024}')
        p('ds_write_b64 v12, v[14:15] offset:8192')
        p('s_waitcnt lgkmcnt(0)')
        p('s_barrier')
        p(f'ds_read_b64 v[{E}:{E+1}], v13 offset:8192')
        for k in range(8): p(f'ds_read_b128 {vr(X+4*k,4)}, v10 offset:{k*1024}')
        p(f'''
v_max_f32 v{E+2}, v{VM}, v{E+1}
v_sub_f32 v{E+3}, v{VM}, v{E+2}
v_sub_f32 v{E+4}, v{E+1}, v{E+2}
v_exp_f32 v{E+3}, v{E+3}
v_exp_f32 v{E+4}, v{E+4}
v_mul_f32 v{E+5}, v{E+3}, v{VLS}
v_fmac_f32 v{E+5}, v{E+4}, v{E}
v_rcp_f32 v{E+5}, v{E+5}
v_mul_f32 v{E+3}, v{E+3}, v{E+5}
v_mul_f32 v{E+4}, v{E+4}, v{E+5}
''')
        for i in range(32):
            p(f'v_mul_f32 v{keep+i}, v{keep+i}, v{E+3}')
            p(f'v_fmac_f32 v{keep+i}, v{X+i}, v{E+4}')
        for i in range(16): p(f'v_cvt_pk_bf16_f32 v{S[0]+i}, v{keep+2*i}, v{keep+2*i+1}')
        p(f'''
s_mul_i32 s52, s28, {AF_MT}
s_lshl_b32 s54, s21, 13
s_add_u32 s52, s52, s54
s_add_u32 s52, s52, {AF_OFF + g*4096:#x}
''')
        for k in range(4): p(f'buffer_store_dwordx4 {vr(S[0]+4*k,4)}, v{VL16}, s[8:11], s52 offen offset:{k*1024}{SC}')
        if g == 1: p('s_branch LF_p4')
        p.end_branch()
    p.label('LF_p4')
    st.stamp()
    NK = 43; D = int(os.environ.get("K3D", "4"))
    VA1 = 2; VW = 3; VT = [4, 5]
    ACT = 16; WF4 = 80; ACC4 = 96
    AF_END = AF_OFF + 64 * AF_MT
    p(f"""
s_load_dwordx2 s[28:29], s[0:1], 40
s_load_dwordx4 s[32:35], s[0:1], 72
s_load_dwordx2 s[30:31], s[0:1], 0
s_load_dwordx2 s[36:37], s[0:1], 96
v_and_b32 v10, 63, v0
v_add_u32 v{VA1}, {AF_MT}, v{VL16}
v_lshrrev_b32 v11, 3, v10
v_and_b32 v12, 7, v10
v_bfe_u32 v13, v10, 4, 1
v_lshlrev_b32 v13, 2, v13
v_xor_b32 v12, v12, v13
v_lshlrev_b32 v12, 4, v12
v_lshl_add_u32 v{VW}, v11, 10, v12
v_lshrrev_b32 v11, 5, v10
v_bfe_u32 v12, v10, 2, 2
v_lshl_add_u32 v13, v11, 2, v12
v_lshlrev_b32 v13, 7, v13
v_lshrrev_b32 v12, 1, v12
v_lshl_add_u32 v13, v12, 6, v13
v_bfe_u32 v12, v10, 4, 1
v_lshl_add_u32 v13, v12, 5, v13
v_and_b32 v12, 3, v10
v_lshl_add_u32 v13, v12, 3, v13
s_lshl_b32 s25, s20, 14
v_add_u32 v{VT[0]}, s25, v13
v_xor_b32 v{VT[1]}, 64, v{VT[0]}
s_mul_i32 s26, s20, 43
s_cmp_ge_u32 s20, 4
s_cselect_b32 s27, 1, 0
s_sub_u32 s26, s26, s27
s_cmp_ge_u32 s20, 5
s_cselect_b32 s27, 1, 0
s_sub_u32 s26, s26, s27
s_and_b32 s44, s23, 7
s_bfe_u32 s45, s23, 0x10003
s_cmp_ge_u32 s24, 4
s_cselect_b32 s46, 8, 0
s_add_u32 s46, s46, s22
s_lshl_b32 s47, s46, 1
s_add_u32 s47, s47, s45
s_sub_u32 s48, 15, s24
s_add_u32 s48, s48, {CNT_CTX}
s_lshl_b32 s48, s48, 2
s_add_u32 s49, s24, {CNT_CTX}
s_lshl_b32 s49, s49, 2
s_add_u32 s50, s46, {CNT_CTX}
s_lshl_b32 s50, s50, 2
""")
    st.stamp()
    p('s_waitcnt vmcnt(0) lgkmcnt(0)')
    st.stamp()
    p('s_barrier')
    st.stamp()
    emit(publish([48]))
    p('s_cmp_lg_u32 s24, 7')
    p('s_cbranch_scc1 LF_nopubS2')
    emit(publish([49]))
    p.label('LF_nopubS2')
    srd(p, 12, 36, 37, AF_END)
    srd(p, 16, 30, 31, 2 << 20)
    srd(p, 36, 34, 35, 2 << 20)
    p(f"""
s_cmp_ge_u32 s20, 6
s_cselect_b32 s4, s32, s28
s_cselect_b32 s5, s33, s29
s_mov_b32 s6, 0x400000
s_cselect_b32 s6, 0x158000, s6
s_and_b32 s5, s5, 0xffff
s_mov_b32 s7, 0x00020000
s_mul_i32 s40, s47, {2*AF_MT}
s_lshl_b32 s43, s26, 10
s_add_u32 s40, s40, s43
s_add_u32 s40, s40, {AF_OFF:#x}
s_cmp_ge_u32 s20, 6
s_cselect_b32 s43, 256, 0
s_sub_u32 s43, s26, s43
s_lshl_b32 s42, s43, 14
s_lshl_b32 s43, s44, 7
s_add_u32 s42, s42, s43
s_sub_u32 s51, s20, 4
s_cmp_lt_u32 s51, 2
s_cselect_b32 s41, 0x7fff0000, s40
s_cselect_b32 s52, 0x4000, 0
s_add_u32 s52, s52, s42
""")
    def wloads(ks):
        sl = ks % D
        if ks == 0:
            a0 = ['s_mov_b32 s54, s52', 's_add_u32 s53, s52, 0x2000']
        else:
            a0 = [f's_add_u32 s54, s42, {ks*16384}', f's_add_u32 s53, s42, {ks*16384+8192}']
        return [f's_add_u32 m0, s25, {sl*2048}'] + a0 + [
                (lambda pp: pp(f'buffer_load_dwordx4 v{VW}, s[4:7], s54 offen lds', f'x{ks}')),
                f's_add_u32 m0, s25, {sl*2048+1024}', 's_nop 0',
                (lambda pp: pp(f'buffer_load_dwordx4 v{VW}, s[4:7], s53 offen lds', f'x{ks}'))]
    def aloads(ks):
        a = ACT + 8 * (ks % D)
        pre = ['s_mov_b32 s55, s41'] if ks == 0 else [f's_add_u32 s55, s40, {ks*1024}']
        return pre + [f'buffer_load_dwordx4 {vr(a,4)}, v{VL16}, s[12:15], s55 offen{LS}',
                      f'buffer_load_dwordx4 {vr(a+4,4)}, v{VA1}, s[12:15], s55 offen{LS}']
    def trr(ks):
        sl = ks % D; out = [lambda pp: pp.wait_tag(f'x{ks}')]
        for nt in range(2):
            w = WF4 + 8 * (ks & 1) + 4 * nt
            out.append((lambda pp, w=w, nt=nt: pp(f'ds_read_b64_tr_b16 {vr(w,2)}, v{VT[nt]} offset:{sl*2048}', f'r{ks}')))
            out.append((lambda pp, w=w, nt=nt: pp(f'ds_read_b64_tr_b16 {vr(w+2,2)}, v{VT[nt]} offset:{sl*2048+1024}', f'r{ks}')))
        return out
    for ks in range(D): emit(wloads(ks))
    p(f"""
s_lshr_b32 s56, s20, 2
s_bfe_u32 s57, s20, 0x10001
s_and_b32 s58, s20, 1
s_lshl_b32 s59, s47, 6
s_lshl_b32 s60, s57, 5
s_add_u32 s59, s59, s60
s_lshl_b32 s59, s59, 10
s_lshl_b32 s60, s44, 6
s_lshl_b32 s61, s56, 5
s_add_u32 s60, s60, s61
s_lshl_b32 s61, s58, 4
s_add_u32 s60, s60, s61
s_lshl_b32 s60, s60, 1
s_add_u32 s59, s59, s60
v_and_b32 v11, 31, v10
v_lshrrev_b32 v12, 5, v10
v_lshlrev_b32 v11, 10, v11
v_lshl_add_u32 v9, v12, 3, v11
buffer_load_dwordx2 v[160:161], v9, s[16:19], s59 offen
buffer_load_dwordx2 v[162:163], v9, s[16:19], s59 offen offset:16
""")
    st.stamp()
    emit(poll_noinv([(50, 32)]))
    st.stamp()
    p('s_barrier')
    st.stamp()
    for ks in range(D): emit(aloads(ks))
    emit(trr(0))
    for ks in range(NK):
        a = ACT + 8 * (ks % D)
        if ks + 1 < NK: emit(trr(ks + 1))
        for nt in range(2):
            for mt in range(2):
                w = WF4 + 8 * (ks & 1) + 4 * nt
                acc = vr(ACC4 + 16 * (2 * nt + mt), 16); cc = '0' if ks == 0 else acc
                p(f'{MF} {acc}, {vr(w,4)}, {vr(a+4*mt,4)}, {cc}')
        if ks + D < NK:
            p.wait_tag(f'r{ks}')
            emit(wloads(ks + D)); emit(aloads(ks + D))
    p('s_waitcnt lgkmcnt(0)')
    p('s_barrier')
    p(f'v_add_u32 v6, s25, v{VL16}')
    for b in range(16): p(f'ds_write_b128 v6, {vr(ACC4+4*b,4)} offset:{b*1024}')
    p(f"""
s_lshl_b32 s56, s20, 11
v_add_u32 v7, s56, v{VL16}
v_add_u32 v8, 0x10000, v7
s_waitcnt lgkmcnt(0)
s_barrier
""")
    for src in range(8):
        base = 7 if src < 4 else 8
        for b in range(2):
            p(f'ds_read_b128 {vr(16+8*src+4*b,4)}, v{base} offset:{(src%4)*16384 + b*1024}')
    for i in range(8):
        p(f'v_add_f32 v{16+i}, v{16+i}, v{24+i}')
        p(f'v_add_f32 v{32+i}, v{32+i}, v{40+i}')
        p(f'v_add_f32 v{48+i}, v{48+i}, v{56+i}')
        p(f'v_add_f32 v{64+i}, v{64+i}, v{72+i}')
    for i in range(8):
        p(f'v_add_f32 v{16+i}, v{16+i}, v{32+i}')
        p(f'v_add_f32 v{16+i}, v{16+i}, v{48+i}')
    for i in range(4):
        p(f'v_cvt_pk_bf16_f32 v{24+i}, v{16+2*i}, v{17+2*i}')
        p(f'v_cvt_pk_bf16_f32 v{72+i}, v{64+2*i}, v{65+2*i}')
    for i in range(4):
        p(f'v_lshlrev_b32 v{16+2*i}, 16, v{24+i}')
        p(f'v_and_b32 v{17+2*i}, 0xffff0000, v{24+i}')
        p(f'v_lshlrev_b32 v{64+2*i}, 16, v{72+i}')
        p(f'v_and_b32 v{65+2*i}, 0xffff0000, v{72+i}')
    NL2E = f2u(-math.log2(math.e))
    for i in range(8): p(f'v_mul_f32 v{32+i}, {NL2E:#x}, v{64+i}')
    for i in range(8): p(f'v_exp_f32 v{32+i}, v{32+i}')
    for i in range(8): p(f'v_add_f32 v{32+i}, 1.0, v{32+i}')
    for i in range(8): p(f'v_rcp_f32 v{32+i}, v{32+i}')
    for i in range(8): p(f'v_mul_f32 v{32+i}, v{32+i}, v{64+i}')
    for i in range(4): p(f'v_cvt_pk_bf16_f32 v{40+i}, v{32+2*i}, v{33+2*i}')
    for i in range(4):
        p(f'v_lshlrev_b32 v{32+2*i}, 16, v{40+i}')
        p(f'v_and_b32 v{33+2*i}, 0xffff0000, v{40+i}')
    for i in range(8): p(f'v_mul_f32 v{32+i}, v{32+i}, v{16+i}')
    for i in range(4): p(f'v_cvt_pk_bf16_f32 v{40+i}, v{32+2*i}, v{33+2*i}')
    for i in range(4):
        p(f'v_lshlrev_b32 v{32+2*i}, 16, v{40+i}')
        p(f'v_and_b32 v{33+2*i}, 0xffff0000, v{40+i}')
        p(f'v_lshlrev_b32 v{48+2*i}, 16, v{160+i}')
        p(f'v_and_b32 v{49+2*i}, 0xffff0000, v{160+i}')
    for i in range(8): p(f'v_add_f32 v{32+i}, v{32+i}, v{48+i}')
    for i in range(4): p(f'v_cvt_pk_bf16_f32 v{40+i}, v{32+2*i}, v{33+2*i}')
    p('buffer_store_dwordx2 v[40:41], v9, s[36:39], s59 offen')
    p('buffer_store_dwordx2 v[42:43], v9, s[36:39], s59 offen offset:16')
    if PROF: p('s_waitcnt vmcnt(0)')
    st.stamp()
    st.dump(p, 8, 0, 20, 50, 57, 8)
    p('s_endpgm')

    ool = p.begin_alt()
    def routine(name):
        p.alt_branch(ool); p.label(name)
    def fin_code():
        p(f"""
s_nop 15
s_nop 7
v_mov_b32 v9, v{VLSAVE}
v_permlane32_swap_b32 v{VLSAVE}, v9
v_add_f32 v9, v{VLSAVE}, v9
v_rcp_f32 v9, v9
s_mul_i32 s52, s27, {AF_MT}
s_lshl_b32 s54, s21, 13
s_add_u32 s52, s52, s54
s_add_u32 s52, s52, {AF_OFF:#x}
s_add_u32 s53, s52, 4096
""")
        for half in range(2):
            for i in range(32): p(f'v_mul_f32 v{O+32*half+i}, v{O+32*half+i}, v9')
            for i in range(16): p(f'v_cvt_pk_bf16_f32 v{TT+16*half+i}, v{O+32*half+2*i}, v{O+32*half+2*i+1}')
            for k in range(4): p(f'buffer_store_dwordx4 {vr(TT+16*half+4*k,4)}, v{VL16}, s[8:11], s{52+half} offen offset:{k*1024}{SC}')
        for i in range(64): p(f'v_mov_b32 v{O+i}, 0')
    for kind, nm, hf in outl:
        if kind == 'evt':
            routine(f'LF_evt{nm}')
            p('s_lshl_b32 s68, s47, 1')
            if nm in ('loop0', 'drain0'):
                p(f"""
s_add_u32 s69, s68, 2
s_cmp_lg_u32 s62, s69
s_cbranch_scc1 LF_nofin{nm}
s_cmp_eq_u32 s25, 0
s_cbranch_scc1 LF_nofin{nm}
""")
                fin_code()
                p.label(f'LF_nofin{nm}')
            if nm == 'loop0':
                p(f"""
s_add_u32 s69, s68, 4
s_cmp_lg_u32 s62, s69
s_cbranch_scc1 LF_nopubS
s_add_u32 s69, s24, {CNT_CTX}
s_lshl_b32 s69, s69, 2
""")
                emit(publish([69]))
                p(f"""
LF_nopubS:
s_cmp_lg_u32 s62, s68
s_cbranch_scc1 LF_nosw
s_cmp_eq_u32 s25, 0
s_cbranch_scc1 LF_nosw
s_lshl_b32 s69, s26, 13
s_add_u32 s69, s69, {QX}
v_add_u32 v9, s69, v{VL16}
s_nop 7
""")
                for ks in range(8): p(f'ds_read_b128 {vr(Q+4*ks,4)}, v9 offset:{ks*1024}')
                for i in range(16): p(f'v_mov_b32 v{MN+i}, 0')
                p(f"""
v_mov_b32 v{VM}, 0
s_mov_b32 s61, s28
s_mov_b32 s60, 0
s_waitcnt lgkmcnt(0)
LF_nosw:
""")
            if nm == 'loop1':
                p(f"""
s_add_u32 s69, s68, 1
s_cmp_lg_u32 s62, s69
s_cbranch_scc1 LF_nomid
s_cmp_eq_u32 s25, 0
s_cbranch_scc1 LF_nomid
v_mov_b32 v{VLSAVE}, v{VLS}
v_mov_b32 v{VLS}, 0
s_mov_b32 s60, 1.0
s_mov_b32 s57, 0xbf800000
s_mov_b32 s58, {FLOOR1:#x}
s_mov_b32 s59, 1
LF_nomid:
""")
            if nm != 'drain0':
                p(f"""
s_lshr_b32 s68, s62, 1
s_lshl_b32 s69, s68, 1
s_sub_u32 s69, s69, s47
s_add_u32 s69, s69, s25
s_cmp_ge_u32 s68, s47
s_cselect_b32 s68, s69, s68
s_lshl_b32 s68, s68, 1
s_add_u32 s68, s68, {hf}
s_cmp_lt_u32 s68, s61
s_cbranch_scc1 LF_nomask{nm}
s_sub_u32 s68, s61, s68
s_lshl_b32 s68, s68, 5
v_add_u32 v9, s68, v{VZ}
v_mov_b32 v10, {NEG:#x}
""")
                for r in range(16):
                    cr = 8 * (r >> 2) + (r & 3)
                    p(f'v_cmp_gt_i32 vcc, {cr}, v9')
                    p(f'v_cndmask_b32 v{MN+r}, v{MN+r}, v10, vcc')
                p.label(f'LF_nomask{nm}')
            p(f"""
s_add_u32 s68, s62, 1
s_max_u32 s66, s68, 32
s_cmp_le_u32 s68, s49
s_cselect_b32 s66, s68, s66
s_branch LF_eret{nm}
""")
            p.end_branch()
        else:
            routine(f'LF_rare{nm}')
            c = S[1 - hf]; nx = S[hf]; pc = PP[1 - hf]
            p('s_nop 15\ns_nop 7')
            p(f'v_max3_f32 v9, v{c}, v{c+1}, v{c+2}')
            for k in range(3, 15, 2): p(f'v_max3_f32 v9, v9, v{c+k}, v{c+k+1}')
            p(f'v_max_f32 v9, v9, v{c+15}')
            p(f'''
v_mov_b32 v10, v9
v_permlane32_swap_b32 v9, v10
v_max_f32 v9, v9, v10
v_max_f32 v9, s58, v9
v_sub_f32 v10, 0, v9
v_min_f32 v10, 0x42fc0000, v10
v_exp_f32 v10, v10
v_mul_f32 v11, s60, v9
''')
            for k in range(16): p(f'v_sub_f32 v{c+k}, v{c+k}, v9')
            for k in range(16): p(f'v_exp_f32 v{TT+k}, v{c+k}')
            p(f'v_add_f32 v{VTS}, v{TT}, v{TT+1}')
            for k in range(2, 16): p(f'v_add_f32 v{VTS}, v{VTS}, v{TT+k}')
            for k in range(8): p(f'v_cvt_pk_bf16_f32 v{pc+k}, v{TT+2*k}, v{TT+2*k+1}')
            for k in range(16): p(f'v_sub_f32 v{nx+k}, v{nx+k}, v11')
            for k in range(16): p(f'v_sub_f32 v{MN+k}, v{MN+k}, v11')
            p(f'v_add_f32 v{VM}, v{VM}, v11')
            p(f'v_mul_f32 v{VLS}, v{VLS}, v10')
            p('s_cmp_lg_u32 s59, 0')
            p(f's_cbranch_scc1 LF_rskip{nm}')
            for k in range(64): p(f'v_mul_f32 v{O+k}, v{O+k}, v10')
            p.label(f'LF_rskip{nm}')
            p(f'''
s_mov_b32 s{56+hf}, {THR:#x}
''')
            if hf == 1:
                p('s_mov_b32 s58, 0\ns_mov_b32 s59, 0')
            if nm == 'loop1': p('s_cmp_lt_u32 s55, 17')
            p(f's_branch LF_ret{nm}')
            p.end_branch()
    p.alt_branch(ool); emit_slow(); p.end_branch()
    p.label('LF_end')
    p('s_endpgm')
    return ('kf_kernel', p, 256, 512, 163840, 256, 256)
```

```python
import re

_REG_RE = re.compile(r'^(-|abs\()?([vas])(\d+|\[(\d+):(\d+)\])\)?$')

def parse_reg(tok):
    tok = tok.strip()
    if tok in ('vcc',): return [('s', 106), ('s', 107)]
    if tok == 'vcc_lo': return [('s', 106)]
    if tok == 'vcc_hi': return [('s', 107)]
    if tok == 'exec': return [('s', 126), ('s', 127)]
    if tok == 'm0': return [('s', 124)]
    if tok == 'scc': return [('s', 200)]
    t = tok
    if t.startswith('-'): t = t[1:]
    if t.startswith('abs(') and t.endswith(')'): t = t[4:-1]
    if t.startswith('|') and t.endswith('|'): t = t[1:-1]
    m = re.match(r'^([vas])(\d+)$', t)
    if m: return [(m.group(1), int(m.group(2)))]
    m = re.match(r'^([vas])\[(\d+):(\d+)\]$', t)
    if m: return [(m.group(1), i) for i in range(int(m.group(2)), int(m.group(3)) + 1)]
    return []

SCC = ('s', 200); M0 = ('s', 124); VCC = [('s', 106), ('s', 107)]; EXEC = [('s', 126), ('s', 127)]

TRANS = ('v_exp_f32', 'v_log_f32', 'v_rcp_f32', 'v_rsq_f32', 'v_sqrt_f32', 'v_sin_f32', 'v_cos_f32')

def split_operands(s):
    out, depth, cur = [], 0, ''
    for ch in s:
        if ch in '[(': depth += 1
        if ch in '])': depth -= 1
        if ch == ',' and depth == 0:
            out.append(cur.strip()); cur = ''
        else:
            cur += ch
    if cur.strip(): out.append(cur.strip())
    return out

class Inst:
    __slots__ = ('text', 'op', 'kind', 'reads', 'writes', 'tag', 'srcA', 'srcB', 'srcC', 'passes', 'dpp', 'waittag', 'note', 'wide_store', 'opt')
    def __init__(self, text, tag=None, note=None):
        self.text = text.strip(); self.tag = tag; self.note = note
        self.srcA = self.srcB = self.srcC = None; self.passes = 0; self.dpp = False; self.waittag = None
        self.wide_store = False; self.opt = False
        parts = self.text.split(None, 1)
        op = parts[0]; self.op = op
        rest = parts[1] if len(parts) > 1 else ''
        ops = split_operands(rest)
        mods = []
        if ops:
            last = ops[-1].split()
            ops[-1] = last[0] if last else ''
            mods = last[1:]
        R, W = [], []
        regs = [parse_reg(o) for o in ops]
        base = op.replace('_e32', '').replace('_e64', '').replace('_dpp', '')
        k = 'other'
        if base.startswith('v_mfma'):
            k = 'mfma'; W += regs[0]; R += regs[1] + regs[2] + regs[3]
            self.srcA, self.srcB, self.srcC = regs[1], regs[2], regs[3]
            self.passes = 8 if '32x32x16' in base else (4 if '16x16x32' in base else 16)
        elif base.startswith('v_cmp'):
            k = 'valu'; W += regs[0]; [R.extend(r) for r in regs[1:]]
            if base.startswith('v_cmpx'): W += EXEC
        elif base in ('v_readfirstlane_b32', 'v_readlane_b32'):
            k = 'valu'; W += regs[0]; [R.extend(r) for r in regs[1:]]
        elif base.startswith('v_permlane') :
            k = 'valu'; W += regs[0] + regs[1]; R += regs[0] + regs[1]
        elif base.startswith('v_'):
            k = 'trans' if base in TRANS else 'valu'
            W += regs[0]
            idx = 1
            if base in ('v_add_co_u32', 'v_sub_co_u32', 'v_addc_co_u32', 'v_subb_co_u32', 'v_mad_u64_u32'):
                W += regs[1]; idx = 2
            [R.extend(r) for r in regs[idx:]]
            if base in ('v_fmac_f32', 'v_dot2c_f32_bf16', 'v_writelane_b32'): R += regs[0]
            if base == 'v_cndmask_b32' and len(ops) == 3: R += VCC
            if any(m.startswith(('quad_perm', 'row_', 'wave_')) for m in mods):
                self.dpp = True
                R += regs[0]
        elif base.startswith('buffer_load') or base.startswith('global_load'):
            if 'lds' in mods or '_lds_' in base:
                k = 'lds_dma'; [R.extend(r) for r in regs]; R.append(M0)
            else:
                k = 'vmem_load'; W += regs[0]; [R.extend(r) for r in regs[1:]]
        elif base.startswith('buffer_store') or base.startswith('global_store'):
            k = 'vmem_store'; [R.extend(r) for r in regs]
            self.wide_store = base.endswith('x4') or base.endswith('x3')
        elif base.startswith('buffer_atomic') or base.startswith('global_atomic'):
            k = 'vmem_store'; [R.extend(r) for r in regs]
            if 'sc0' in mods: k = 'vmem_load'; W += regs[0]
        elif base.startswith('buffer_wbl2') or base.startswith('buffer_inv'):
            k = 'vmem_store'
        elif base.startswith('ds_read') or base.startswith('ds_bpermute') or base.startswith('ds_permute') or base.startswith('ds_swizzle'):
            k = 'ds_read'; W += regs[0]; [R.extend(r) for r in regs[1:]]
        elif base.startswith('ds_write'):
            k = 'ds_write'; [R.extend(r) for r in regs]
        elif base.startswith('s_load') or base.startswith('s_memtime') or base.startswith('s_memrealtime') or base.startswith('s_buffer_load'):
            k = 'smem'; W += regs[0]; [R.extend(r) for r in regs[1:]]
        elif base == 's_waitcnt': k = 'waitcnt'
        elif base == 's_nop': k = 'nop'
        elif base == 's_barrier': k = 'barrier'
        elif base in ('s_endpgm',): k = 'end'
        elif base in ('s_setprio', 's_sleep', 's_sethalt'): k = 'salu'
        elif base.startswith('s_cbranch') or base == 's_branch':
            k = 'branch'
            if 'scc' in base: R.append(SCC)
            if 'vcc' in base: R += VCC
            if 'exec' in base: R += EXEC
        elif base.startswith('s_cmp') or base.startswith('s_bitcmp'):
            k = 'salu'; W.append(SCC); [R.extend(r) for r in regs]
        elif base in ('s_setpc_b64',):
            k = 'branch'; R += regs[0]
        elif base in ('s_swappc_b64',):
            k = 'branch'; W += regs[0]; R += regs[1]
        elif base in ('s_getpc_b64',):
            k = 'salu'; W += regs[0]
        elif base.startswith('s_'):
            k = 'salu'; W += regs[0]; [R.extend(r) for r in regs[1:]]
            if base in ('s_addk_i32', 's_mulk_i32'): R += regs[0]
            if base.startswith(('s_cselect', 's_addc', 's_subb', 's_cmov')): R.append(SCC)
            if not base.startswith(('s_mov', 's_mul_i32', 's_mul_hi', 's_cselect', 's_movk', 's_cmov', 's_getreg', 's_setreg')): W.append(SCC)
            if 'saveexec' in base: W += EXEC; R += EXEC
        else:
            raise ValueError('unknown instruction: ' + text)
        self.kind = k
        self.reads = frozenset(R); self.writes = frozenset(W)

class Label:
    def __init__(self, name): self.name = name
class Comment:
    def __init__(self, t): self.text = t
class WaitTag:
    def __init__(self, tags, lgkm=False): self.tags = tags if isinstance(tags, (list, tuple, set)) else [tags]
class Loop:
    def __init__(self, body): self.body = body
class Alt:
    def __init__(self, join=False): self.alts = []; self.join = join
class Fence:
    pass

class Prog:
    def __init__(self):
        self.items = []; self.stack = [self.items]; self.cond = 0
    def __call__(self, text, tag=None):
        for line in text.strip().split('\n'):
            line = line.split(';')[0].strip()
            if not line: continue
            if line == '@COND': self.cond += 1; continue
            if line == '@ENDCOND': self.cond -= 1; continue
            if line.endswith(':'): self.stack[-1].append(Label(line[:-1]))
            else:
                i = Inst(line, tag); i.opt = self.cond > 0
                if tag == 'discard': i.writes = frozenset()
                self.stack[-1].append(i)
    def add(self, item): self.stack[-1].append(item)
    def label(self, n): self.stack[-1].append(Label(n))
    def comment(self, t): self.stack[-1].append(Comment(t))
    def wait_tag(self, tags):
        w = WaitTag(tags); w.opt = self.cond > 0; self.stack[-1].append(w)
    def begin_loop(self):
        body = []; self.stack[-1].append(Loop(body)); self.stack.append(body)
    def end_loop(self): self.stack.pop()
    def begin_alt(self, join=False):
        a = Alt(join); self.stack[-1].append(a); self._alt = a; return a
    def alt_branch(self, a):
        body = []; a.alts.append(body); self.stack.append(body)
    def end_branch(self): self.stack.pop()

class SB:
    def __init__(self):
        self.vm = []
        self.lg = []
    def copy(self):
        s = SB(); s.vm = list(self.vm); s.lg = list(self.lg); return s
    def key(self):
        return (tuple(self.vm), tuple(self.lg))

def _need(queue, pred):
    last = -1
    for i, e in enumerate(queue):
        if pred(e): last = i
    if last < 0: return None
    return sum(1 for e in queue[last + 1:] if not e[3])

def _trim(queue, n):
    if n == 0: return []
    cnt = 0; i = len(queue)
    while i > 0:
        if not queue[i - 1][3]:
            if cnt == n: break
            cnt += 1
        i -= 1
    return queue[i:]

def _parse_wait(text):
    vm = lg = None
    m = re.search(r'vmcnt\((\d+)\)', text)
    if m: vm = int(m.group(1))
    m = re.search(r'lgkmcnt\((\d+)\)', text)
    if m: lg = int(m.group(1))
    return vm, lg

def sim_waits(items, sb, waits, maxq):
    for it in items:
        if isinstance(it, (Label, Comment)): continue
        if isinstance(it, Loop):
            seen = set()
            for _ in range(8):
                k = sb.key()
                if k in seen: break
                seen.add(k)
                sim_waits(it.body, sb, waits, maxq)
            else:
                raise RuntimeError('loop scoreboard did not converge')
            continue
        if isinstance(it, Alt):
            ends = []
            for alt in it.alts:
                c = sb.copy(); sim_waits(alt, c, waits, maxq); ends.append(c)
            if it.join:
                assert all(e.key() == ends[0].key() for e in ends), 'alt branches end with different scoreboards'
                sb.vm = list(ends[0].vm); sb.lg = list(ends[0].lg)
            else:
                sb.vm = []; sb.lg = []
            continue
        vm = lg = None
        if isinstance(it, Fence):
            vm = 0 if sb.vm else None; lg = 0 if sb.lg else None
        elif isinstance(it, WaitTag):
            vm = _need(sb.vm, lambda e: e[2] in it.tags)
            lg = _need(sb.lg, lambda e: e[2] in it.tags)
        else:
            touched = it.reads | it.writes
            vm = _need(sb.vm, lambda e: bool(e[0] & touched))
            lgn = _need(sb.lg, lambda e: bool(e[0] & touched))
            if lgn is not None:
                lg = 0 if any(e[1] for e in sb.lg) else lgn
        if vm is not None or lg is not None:
            o = waits.get(id(it), (None, None))
            nv = vm if o[0] is None else (o[0] if vm is None else min(o[0], vm))
            nl = lg if o[1] is None else (o[1] if lg is None else min(o[1], lg))
            waits[id(it)] = (nv, nl)
        opt = getattr(it, 'opt', False)
        w = waits.get(id(it))
        if w and not opt:
            if w[0] is not None: sb.vm = _trim(sb.vm, min(w[0], 63))
            if w[1] is not None: sb.lg = _trim(sb.lg, min(w[1], 15))
        if not isinstance(it, Inst): continue
        if it.kind == 'waitcnt':
            if opt: continue
            a, b = _parse_wait(it.text)
            if a is not None: sb.vm = _trim(sb.vm, a)
            if b is not None: sb.lg = _trim(sb.lg, b)
        elif it.kind in ('vmem_load', 'vmem_store', 'lds_dma'):
            sb.vm.append((it.writes, None, it.tag, opt))
            maxq[0] = max(maxq[0], len(sb.vm))
        elif it.kind in ('ds_read', 'ds_write'):
            sb.lg.append((it.writes, False, it.tag, opt))
            maxq[1] = max(maxq[1], len(sb.lg))
        elif it.kind == 'smem':
            sb.lg.append((it.writes, True, it.tag, opt))

def flatten(items, waits, out):
    for it in items:
        if isinstance(it, Loop):
            flatten(it.body, waits, out); continue
        if isinstance(it, Alt):
            for alt in it.alts: flatten(alt, waits, out)
            continue
        w = waits.get(id(it))
        if w and (w[0] is not None or w[1] is not None):
            s = 's_waitcnt'
            if w[0] is not None: s += f' vmcnt({min(w[0],63)})'
            if w[1] is not None: s += f' lgkmcnt({min(w[1],15)})'
            out.append(Inst(s))
        if isinstance(it, (WaitTag, Fence)): continue
        out.append(it)

def _states(inst):
    if inst.kind == 'nop':
        return int(inst.text.split()[1], 0) + 1
    return 1

def required_gap(p, c):
    g = 0
    pv = p.kind in ('valu', 'trans'); cv = c.kind in ('valu', 'trans')
    pw_v = {r for r in p.writes if r[0] in 'va'}; pw_s = {r for r in p.writes if r[0] == 's'}
    if p.kind == 'mfma':
        big = {8: 12, 4: 8, 16: 20, 2: 5}[p.passes]; ov = {8: 10, 4: 6, 16: 18, 2: 4}[p.passes]
        D = p.writes
        if c.kind == 'mfma':
            if D & (set(c.srcA) | set(c.srcB)): g = max(g, big)
            cs = set(c.srcC)
            if D & cs:
                if cs == set(D) and c.passes == p.passes: pass
                else: g = max(g, ov)
            elif D & c.writes: g = max(g, ov)
        elif cv or c.kind in ('vmem_load', 'vmem_store', 'lds_dma', 'ds_read', 'ds_write'):
            if D & (c.reads | c.writes): g = max(g, big)
        if cv and (set(p.srcC) & c.writes): g = max(g, {8: 7, 4: 3, 16: 15, 2: 1}[p.passes])
        if c.kind in ('vmem_load', 'ds_read') and (set(p.srcC) & c.writes): g = max(g, {8: 7, 4: 3, 16: 15, 2: 1}[p.passes])
    if pv:
        if c.kind == 'mfma' and (pw_v & c.reads): g = max(g, 2)
        if c.kind == 'mfma' and (set(EXEC) & pw_s): g = max(g, 4)
        if c.kind in ('vmem_load', 'vmem_store', 'lds_dma') and (pw_s & c.reads): g = max(g, 5)
        if cv and (pw_s & c.reads):
            g = max(g, 4 if c.op.startswith(('v_readlane', 'v_writelane')) else 2)
        if c.op.startswith(('v_readfirstlane', 'v_readlane')) and (pw_v & c.reads): g = max(g, 1)
        if c.op.startswith('v_permlane') and (pw_v & c.reads): g = max(g, 2)
        if c.dpp and (pw_v & c.reads): g = max(g, 2)
        if c.dpp and (set(EXEC) & pw_s): g = max(g, 5)
        if p.kind == 'trans' and c.kind == 'valu' and (pw_v & c.reads): g = max(g, 1)
        if p.kind == 'trans' and c.kind in ('vmem_store', 'ds_write', 'mfma') and (pw_v & c.reads): g = max(g, 2)
        if c.kind in ('salu', 'branch') and (pw_s & c.reads): g = max(g, 2)
        if p.op.startswith('v_cmpx') and c.op.startswith(('v_readfirstlane', 'v_readlane', 'v_writelane', 'v_permlane')): g = max(g, 4)
    if p.kind == 'salu' and M0 in p.writes and c.kind == 'lds_dma': g = max(g, 1)
    if p.kind == 'vmem_store' and p.wide_store:
        if (cv or c.kind in ('vmem_load', 'ds_read', 'mfma')) and (p.reads & {r for r in c.writes if r[0] in 'va'}): g = max(g, 2)
    return g

def pad_hazards(seq, loops):
    WIN = 24
    out = []
    def history(lst):
        h = []
        for it in reversed(lst):
            if isinstance(it, Inst):
                h.append(it)
                if len(h) >= WIN: break
        return h
    def need_for(c, hist):
        dist = 0; need = 0
        for p in hist:
            g = required_gap(p, c)
            if g > dist: need = max(need, g - dist)
            dist += _states(p)
            if dist >= 20: break
        return need
    labelpos = {}
    for it in seq:
        if isinstance(it, Label):
            labelpos[it.name] = len(out); out.append(it); continue
        if isinstance(it, Comment): out.append(it); continue
        n = need_for(it, history(out))
        while n > 0:
            k = min(n, 16); out.append(Inst(f's_nop {k-1}')); n -= k
        out.append(it)
    changed = True
    rounds = 0
    while changed:
        changed = False; rounds += 1
        assert rounds < 20
        labelpos = {it.name: i for i, it in enumerate(out) if isinstance(it, Label)}
        for i, it in enumerate(out):
            if isinstance(it, Inst) and it.kind == 'branch' and it.op not in ('s_setpc_b64', 's_swappc_b64'):
                tgt = it.text.split()[-1]
                if tgt not in labelpos: continue
                hist = history(out[:i + 1])
                j = labelpos[tgt]; walked = []
                cnt = 0
                while j < len(out) and cnt < WIN:
                    c = out[j]
                    if isinstance(c, Inst):
                        n = need_for(c, list(reversed(walked)) + hist)
                        if n > 0:
                            out.insert(i, Inst(f's_nop {min(n,16)-1}'))
                            changed = True
                            break
                        walked.append(c); cnt += 1
                        if c.kind in ('end',) or c.op == 's_branch': break
                    j += 1
                if changed: break
    return out

def render(prog_items, name=''):
    waits = {}; maxq = [0, 0]
    for _ in range(6):
        before = dict(waits)
        sim_waits(prog_items, SB(), waits, maxq)
        if waits == before: break
    flat = []
    flatten(prog_items, waits, flat)
    pos = {it.name: i for i, it in enumerate(flat) if isinstance(it, Label)}
    for i, it in enumerate(flat):
        if isinstance(it, Inst) and it.kind == 'branch' and it.op.startswith('s_cbranch'):
            t = pos.get(it.text.split()[-1])
            if t is None or t < i: continue
            region = flat[i + 1:t]
            if any(isinstance(x, Inst) and (x.kind == 'end' or x.op == 's_branch') for x in region): continue
            for x in region:
                if isinstance(x, Inst) and x.kind in ('vmem_load', 'vmem_store', 'lds_dma', 'ds_read', 'ds_write') and not x.opt:
                    import sys
                    print('WARNING: unmarked conditional memory op:', x.text, ' skipped by', it.text, file=sys.stderr)
                    break
    flat = pad_hazards(flat, None)
    lines = []
    for it in flat:
        if isinstance(it, Label): lines.append(it.name + ':')
        elif isinstance(it, Comment): lines.append('    ; ' + it.text)
        else: lines.append('    ' + it.text)
    ninst = sum(isinstance(i, Inst) for i in flat)
    return '\n'.join(lines) + '\n', dict(n=ninst, maxvm=maxq[0], maxlg=maxq[1])
```

```python
from common import *
import struct, math

def f2u(x): return struct.unpack('<I', struct.pack('<f', x))[0]

def gen_k2():
    p = Prog()
    st = Stamps(p, 70, 10)
    VL16 = 1; VK = 2; VV = 3; VZ = 4; VLS = 5; VM = 6; VTS = 7; VLSAVE = 8
    T0 = 9
    Q = 16; O = 48; S = [112, 128]; PP = [144, 152]; MN = 160; FR = 176; E = 208; TT = 216
    GACC = 48; GW = 160; GX = 216; GA = 248
    SLOT = 29184
    KSL = 0; VSL = 65536; QX = 131072
    THR = f2u(float(2 ** 20)); NEG = f2u(-1e30); FLOOR1 = f2u(-1e20)
    p(f'''
s_cmp_ge_u32 s2, 256
s_cbranch_scc1 L2_end
s_load_dwordx2 s[12:13], s[0:1], 16
s_load_dwordx4 s[16:19], s[0:1], 56
s_load_dwordx2 s[14:15], s[0:1], 96
s_load_dwordx2 s[96:97], s[0:1], 40
s_load_dwordx2 s[100:101], s[0:1], 72
v_lshrrev_b32 v9, 6, v0
v_and_b32 v10, 63, v0
v_readfirstlane_b32 s20, v9
s_and_b32 s21, s2, 7
s_lshr_b32 s22, s2, 3
s_and_b32 s23, s22, 3
s_lshr_b32 s24, s22, 2
s_lshl_b32 s21, s21, 2
s_add_u32 s21, s21, s23
s_lshr_b32 s25, s20, 2
s_and_b32 s26, s20, 3
''')
    st.stamp()
    p('''
s_sub_u32 s28, 15, s24
s_lshl_b32 s28, s28, 2
s_add_u32 s28, s28, s26
s_lshl_b32 s27, s24, 2
s_add_u32 s27, s27, s26
s_cmp_eq_u32 s25, 0
s_cselect_b32 s27, s28, s27
''')
    p(f'v_lshlrev_b32 v{VL16}, 4, v10')
    p('''
v_lshrrev_b32 v11, 4, v10
v_bfe_u32 v12, v10, 2, 2
v_and_b32 v13, 3, v11
v_xor_b32 v12, v12, v13
v_lshlrev_b32 v12, 6, v12
v_and_b32 v13, 3, v10
v_lshl_add_u32 v12, v13, 4, v12
v_lshl_add_u32 v12, v11, 13, v12
s_lshl_b32 s29, s26, 17
v_add_u32 v248, s29, v12
v_add_u32 v249, 0x8000, v248
v_add_u32 v250, 0x10000, v248
v_add_u32 v251, 0x18000, v248
s_and_b32 s29, s20, 1
s_mul_i32 s29, s29, 192
s_mov_b32 s30, 43691
s_movk_i32 s31, 2752
''')
    for t in range(3):
        p(f'''
v_add_u32 v11, s29, v10
v_add_u32 v11, {64*t}, v11
v_mul_lo_u32 v12, v11, s30
v_lshrrev_b32 v12, 18, v12
v_mul_u32_u24 v13, 6, v12
v_sub_u32 v13, v11, v13
v_mul_lo_u32 v12, v12, s31
v_lshl_add_u32 v{252+t}, v13, 4, v12
''')
    p('''
s_cmp_eq_u32 s25, 0
s_cselect_b64 s[32:33], -1, 0
v_cndmask_b32 v248, v252, v248, s[32:33]
v_cndmask_b32 v249, v253, v249, s[32:33]
v_cndmask_b32 v250, v254, v250, s[32:33]
v_cndmask_b32 v251, v254, v251, s[32:33]
''')
    p('''
v_lshrrev_b32 v11, 5, v10
v_bfe_u32 v12, v10, 2, 2
v_lshl_add_u32 v13, v11, 3, v12
v_lshlrev_b32 v14, 8, v13
v_lshl_add_u32 v14, v12, 6, v14
v_bfe_u32 v15, v10, 4, 1
v_lshl_add_u32 v14, v15, 5, v14
v_and_b32 v9, 3, v10
v_lshl_add_u32 v252, v9, 3, v14
v_mul_u32_u24 v13, 96, v13
v_mul_u32_u24 v15, 6272, v15
v_add_u32 v13, v13, v15
v_lshl_add_u32 v13, v9, 3, v13
v_add_u32 v253, 0x4000, v13
''')
    p(f'''
v_and_b32 v12, 31, v10
v_lshlrev_b32 v13, 2, v11
v_sub_u32 v{VZ}, v12, v13
''')
    p('s_waitcnt lgkmcnt(0)')
    srd(p, 8, 14, 15, WS_BYTES)
    p('''
s_lshr_b32 s29, s20, 1
s_and_b32 s29, s29, 1
s_cmp_eq_u32 s29, 0
s_cselect_b32 s4, s16, s18
s_cselect_b32 s5, s17, s19
s_mov_b32 s6, 0x158000
s_cmp_eq_u32 s25, 0
s_cselect_b32 s4, s12, s4
s_cselect_b32 s5, s13, s5
s_cselect_b32 s6, 0x400000, s6
s_and_b32 s5, s5, 0xffff
s_mov_b32 s7, 0x00020000
''')
    p('''
s_lshl_b32 s34, s21, 8
s_mul_i32 s38, s21, 96
s_lshl_b32 s36, s26, 12
s_mul_i32 s39, s29, 6272
s_and_b32 s40, s20, 1
s_mul_i32 s40, s40, 3072
s_add_u32 s39, s39, s40
s_add_u32 s39, s39, 16384
s_cmp_eq_u32 s25, 0
s_cselect_b32 s34, s34, s38
s_mov_b32 s35, 0x2b000
s_cselect_b32 s35, 0x80000, s35
''')
    p('''
s_cmp_eq_u32 s25, 0
s_cselect_b32 s36, s36, s39
s_movk_i32 s37, 2048
s_cselect_b32 s37, 3072, s37
s_add_u32 s37, s37, s36
s_lshl_b32 s41, s27, 15
''')
    if XF_OFF: p(f's_add_u32 s41, s41, {XF_OFF:#x}')
    def gdma(sl):
        base = (sl % 4) * SLOT
        out = []
        for t in range(4):
            out.append([f's_add_u32 m0, s{36 if t < 3 else 37}, {base + (t*1024 if t < 3 else 0)}',
                        's_nop 0',
                        (lambda pp, t=t, sl=sl: pp(f'buffer_load_dwordx4 v{248+t}, s[4:7], s34 offen lds', f'g{sl}'))])
        out[3].append('s_add_u32 s34, s34, s35')
        return out
    def xload(sl):
        out = []
        b = GX + 16 * (sl & 1)
        for k in range(4):
            out.append(f'buffer_load_dwordx4 {vr(b+4*k,4)}, v{VL16}, s[8:11], s42 offen offset:{k*1024}')
        return [f's_add_u32 s42, s41, {sl*4096}'] + out
    def emit(lst):
        for f in lst:
            if isinstance(f, list): emit(f)
            elif callable(f): f(p)
            else: p(f)
    emit(gdma(0)); emit(xload(0)); emit(gdma(1)); emit(gdma(2))
    p(f'''
s_lshl_b32 s44, s21, 19
s_lshl_b32 s46, s20, 11
s_add_u32 s44, s44, s46
s_add_u32 s45, s44, {VF_OFF:#x}
s_add_u32 s44, s44, {KF_OFF:#x}
s_lshl_b32 s47, s24, 1
s_add_u32 s47, s47, 2
''')
    AQ = [T0, T0 + 1, T0 + 2, T0 + 3]; AF_ = T0 + 4
    def set_addr(sl):
        base = (sl % 4) * SLOT
        out = [f'v_add_u32 v{AQ[0]}, {base}, v252']
        for nt in range(1, 4): out.append(f'v_xor_b32 v{AQ[nt]}, {nt<<6}, v{AQ[0]}')
        out.append(f'v_add_u32 v{AF_}, {base}, v253')
        return out
    assert all(((s * SLOT) & 0xc0) == 0 for s in range(4))
    def gtr(g):
        kk = g & 3; out = []
        for tl in range(7):
            w = GW + 28 * (g & 1) + 4 * tl
            if tl < 4:
                out.append(f'ds_read_b64_tr_b16 {vr(w,2)}, v{AQ[tl]} offset:{kk*4096}')
                out.append(f'ds_read_b64_tr_b16 {vr(w+2,2)}, v{AQ[tl]} offset:{kk*4096+1024}')
            else:
                o = kk * 1536 + (tl - 4) * 32
                out.append(f'ds_read_b64_tr_b16 {vr(w,2)}, v{AF_} offset:{o}')
                out.append(f'ds_read_b64_tr_b16 {vr(w+2,2)}, v{AF_} offset:{o+384}')
        return out
    p.wait_tag('g0')
    p('s_barrier')
    st.stamp()
    emit(set_addr(0))
    emit(gtr(0))
    for sl in range(8):
        bb = []; fl = {}
        def add(slot, items): fl.setdefault(slot, []).extend(items)
        for kk in range(4):
            g = sl * 4 + kk
            xb = GX + 16 * (sl & 1) + 4 * kk
            for tl in range(7):
                w = GW + 28 * (g & 1) + 4 * tl
                acc = vr(GACC + 16 * tl, 16); cc = '0' if g == 0 else acc
                bb.append(f'v_mfma_f32_32x32x16_bf16 {acc}, {vr(w,4)}, {vr(xb,4)}, {cc}')
            ng = g + 1
            if ng < 32:
                if kk == 3:
                    add(7 * kk - 1, set_addr(sl + 1))
                rd = gtr(ng)
                for i in range(7): add(7 * kk + i, rd[2 * i:2 * i + 2])
        if sl == 5:
            add(6, ['s_cmp_eq_u32 s20, 2', 's_cselect_b32 s96, s100, s96', 's_cselect_b32 s97, s101, s97', 's_and_b32 s97, s97, 0xffff'])
            add(7, ['s_mov_b32 s99, 0x00020000', 's_mov_b32 s98, 0x158000', 's_movk_i32 s48, 5504',
                    's_cmp_lt_u32 s20, 2', 's_cselect_b32 s98, 0x400000, s98', 's_cselect_b32 s48, 0x4000, s48'])
            add(8, ['s_mul_i32 s48, s48, s2', 's_and_b32 s49, s20, 1', 's_lshl_b32 s49, s49, 13', 's_cmp_lt_u32 s20, 2',
                    's_cselect_b32 s49, s49, 0', 's_add_u32 s48, s48, s49', 's_cmp_ge_u32 s20, 3', 's_cselect_b32 s48, 0x7f000000, s48',
                    f'v_lshlrev_b32 v15, 3, v{VL16}'])
            add(10, ['buffer_load_dword v14, v15, s[96:99], s48 offen'])
        if sl + 1 < 8:
            xl = xload(sl + 1)
            add(0, xl[:1])
            for k in range(4): add(1 + k, [xl[1 + k]])
            add(17, [lambda pp, sl=sl: pp.wait_tag(f'g{sl+1}'), 's_barrier'])
            if sl + 3 < 8:
                for t, grp in enumerate(gdma(sl + 3)): add(18 + 2 * t if t < 1 else 21 + 2 * (t - 1), grp)
        interleave(p, bb, fl)
    st.stamp()
    p('s_waitcnt lgkmcnt(0)')
    p('s_barrier')
    def kvcopy(sbase, chunk_sreg_or_imm, ldsbase, tag, tmp=43):
        return [f's_add_u32 m0, s46, {ldsbase}',
                f's_add_u32 s{tmp}, s{sbase}, {chunk_sreg_or_imm}',
                (lambda pp: pp(f'buffer_load_dwordx4 v{VL16}, s[8:11], s{tmp} offen lds', tag)),
                (lambda pp: pp(f'buffer_load_dwordx4 v{VL16}, s[8:11], s{tmp} offen offset:1024 lds', tag))]
    emit(kvcopy(44, 0, KSL, 'k0'))
    emit(kvcopy(44, 16384, KSL + 32768, 'k1'))
    emit(kvcopy(45, 0, VSL, 'v0'))
    CQ = f2u(math.log2(math.e) / math.sqrt(128.0))
    p(f's_mov_b32 s48, {CQ:#x}')
    for tl in range(4):
        for i in range(16): p(f'v_mul_f32 v{GACC+16*tl+i}, s48, v{GACC+16*tl+i}')
        for i in range(8): p(f'v_cvt_pk_bf16_f32 v{Q+8*tl+i}, v{GACC+16*tl+2*i}, v{GACC+16*tl+2*i+1}')
    p(f'''
s_lshl_b32 s49, s26, 13
s_add_u32 s49, s49, {QX}
v_add_u32 v9, s49, v{VL16}
s_cmp_lg_u32 s25, 0
s_cbranch_scc1 L2_noqx
@COND
''')
    for ks in range(8): p(f'ds_write_b128 v9, {vr(Q+4*ks,4)} offset:{ks*1024}')
    p('s_waitcnt lgkmcnt(0)')
    p('@ENDCOND')
    p.label('L2_noqx')
    KG = -2.0 * math.sqrt(2.0 / math.pi) * math.log2(math.e)
    p(f's_mov_b32 s50, {f2u(KG):#x}')
    p(f's_mov_b32 s51, {f2u(KG*0.044715):#x}')
    p(f'''
s_mul_i32 s52, s27, {AF_MT}
s_mul_i32 s53, s21, 3
s_add_u32 s54, s53, 256
s_lshl_b32 s54, s54, 10
s_add_u32 s52, s52, s54
s_add_u32 s52, s52, {AF_OFF:#x}
''')
    for tt in range(3):
        a = GACC + 64 + 16 * tt; t = GW
        p(f's_add_u32 s54, s53, {tt}')
        p('s_cmp_ge_u32 s54, 86')
        p(f's_cbranch_scc1 L2_ffn_skip{tt}')
        p('@COND')
        for i in range(8): p(f'v_cvt_pk_bf16_f32 v{t+i}, v{a+2*i}, v{a+2*i+1}')
        for i in range(8):
            p(f'v_lshlrev_b32 v{a+2*i}, 16, v{t+i}')
            p(f'v_and_b32 v{a+2*i+1}, 0xffff0000, v{t+i}')
        for i in range(8): p(f'v_mul_f32 v{t+i}, v{a+i}, v{a+i}')
        p(f'v_mov_b32 v{t+16}, s50')
        for i in range(8): p(f'v_fma_f32 v{t+i}, v{t+i}, s51, v{t+16}')
        for i in range(8): p(f'v_mul_f32 v{t+i}, v{t+i}, v{a+i}')
        for i in range(8): p(f'v_exp_f32 v{t+i}, v{t+i}')
        for i in range(8): p(f'v_add_f32 v{t+i}, 1.0, v{t+i}')
        for i in range(8): p(f'v_rcp_f32 v{t+i}, v{t+i}')
        for i in range(8): p(f'v_mul_f32 v{t+i}, v{t+i}, v{a+i}')
        for i in range(4): p(f'v_cvt_pk_bf16_f32 v{t+8+i}, v{t+2*i}, v{t+2*i+1}')
        for i in range(4):
            p(f'v_lshlrev_b32 v{t+2*i}, 16, v{t+8+i}')
            p(f'v_and_b32 v{t+2*i+1}, 0xffff0000, v{t+8+i}')
        for i in range(8): p(f'v_mul_f32 v{t+i}, v{t+i}, v{a+8+i}')
        for i in range(4): p(f'v_cvt_pk_bf16_f32 v{t+20+4*tt+i}, v{t+2*i}, v{t+2*i+1}')
        p(f'buffer_store_dwordx4 {vr(t+20+4*tt,4)}, v{VL16}, s[8:11], s52 offen offset:{tt*1024}')
        p('@ENDCOND')
        p.label(f'L2_ffn_skip{tt}')
    st.stamp()
    for i in range(64): p(f'v_mov_b32 v{O+i}, 0')
    for i in range(16): p(f'v_mov_b32 v{MN+i}, 0')
    p(f"""
v_mov_b32 v{VLS}, 0
v_mov_b32 v{VM}, 0
v_mov_b32 v{VLSAVE}, 0
s_mov_b32 s56, {THR:#x}
s_mov_b32 s57, 0xbf800000
s_mov_b32 s58, {FLOOR1:#x}
s_mov_b32 s59, 1
s_mov_b32 s60, 1.0
s_mov_b32 s61, s27
s_mov_b32 s62, 0
s_lshl_b32 s67, s25, 14
v_add_u32 v{VK}, {KSL}, v{VL16}
v_add_u32 v{VV}, {VSL}, v{VL16}
s_mov_b32 s55, 0
s_mov_b32 s63, 16384
s_add_u32 s64, s46, 32768
s_lshl_b32 s49, s47, 1
s_add_u32 s49, s49, 2
s_cmp_eq_u32 s25, 0
s_cselect_b32 s49, 0, s49
s_cselect_b32 s66, 32, s27
""")
    p('s_waitcnt vmcnt(0) lgkmcnt(0)')
    p('s_barrier')
    st.stamp()

    MF = 'v_mfma_f32_32x32x16_bf16'
    def frag_read(f):
        hf = f >> 4; i = f & 15; dst = vr(FR + 4 * (f % 8), 4)
        if i < 8:  return f'ds_read_b128 {dst}, v{VK} offset:{hf*8192 + i*1024}'
        else:      return f'ds_read_b128 {dst}, v{VV} offset:{hf*8192 + (i-8)*1024}'
    def mfma(f):
        hf = f >> 4; i = f & 15; fr = vr(FR + 4 * (f % 8), 4)
        if i < 8:
            s = vr(S[hf], 16); c = vr(MN, 16) if i == 0 else s
            return f'{MF} {s}, {fr}, {vr(Q+4*i,4)}, {c}'
        dt = (i - 8) >> 1; tp = (i - 8) & 1
        o = vr(O + 16 * dt, 16)
        return f'{MF} {o}, {fr}, {vr(PP[hf]+4*tp,4)}, {o}'
    def bstage(hf, nslots):
        c = S[1 - hf]; pp_ = PP[1 - hf]
        groups = [[] for _ in range(nslots)]
        span = nslots - 2
        pos_e = [(kk * span) // 16 for kk in range(16)]
        late = [[] for _ in range(nslots)]
        for k in range(8):
            ea = E + (2 * k) % 8; eb = E + (2 * k + 1) % 8
            groups[pos_e[2 * k]].append(f'v_exp_f32 v{ea}, v{c+2*k}')
            groups[pos_e[2 * k + 1]].append(f'v_exp_f32 v{eb}, v{c+2*k+1}')
            sa = pos_e[2 * k] + 1; sb = pos_e[2 * k + 1] + 1
            if k == 0:
                late[sb].append(f'v_add_f32 v{VTS}, v{ea}, v{eb}')
            else:
                late[sa].append(f'v_add_f32 v{VTS}, v{VTS}, v{ea}')
                late[sb].append(f'v_add_f32 v{VTS}, v{VTS}, v{eb}')
            late[sb].append(f'v_cvt_pk_bf16_f32 v{pp_+k}, v{ea}, v{eb}')
        return [late[i] + groups[i] for i in range(nslots)]
    outl = []

    def step(kind):
        doA = kind != 'drain'
        slots = []
        for f in range(32):
            hf = f >> 4; i = f & 15
            isA = i < 8
            if isA and not doA: continue
            if not isA and kind == 'first': continue
            slots.append(f)
        pos = {f: n for n, f in enumerate(slots)}
        bb = [mfma(f) for f in slots]
        fl = {}
        def add(n, items): fl.setdefault(n, []).extend(items)
        nS = len(slots)
        DIST = 4
        last_read_slot = nS - 6
        for n in range(DIST, nS):
            add(min(n - DIST, last_read_slot) if kind != 'drain' else n - DIST, [frag_read(slots[n])])
        for hf in range(2):
            if kind == 'first' and hf == 0: continue
            if kind == 'drain' and hf == 1: continue
            hs = [n for n, f in enumerate(slots) if (f >> 4) == hf]
            groups = bstage(hf, len(hs))
            for gi, g in enumerate(groups): add(hs[gi], g)
            nm = f'{kind}{hf}'
            add(hs[-2], [f'v_cmp_nge_f32 vcc, s{56+hf}, v{VTS}'])
            add(hs[-1], [f's_cbranch_vccnz L2_rare{nm}', f'L2_ret{nm}:', f'v_add_f32 v{VLS}, v{VLS}, v{VTS}'])
            outl.append(('rare', nm, hf))
        for hf in range(2):
            if kind == 'drain' and hf == 1: continue
            nm = f'{kind}{hf}'
            first_slot = [n for n, f in enumerate(slots) if (f >> 4) == hf][0]
            fl.setdefault(('pre', first_slot), []).extend(
                ['s_cmp_ge_u32 s62, s66', f's_cbranch_scc1 L2_evt{nm}', f'L2_eret{nm}:'])
            add(first_slot, ['s_add_u32 s62, s62, 1'])
            outl.append(('evt', nm, hf))
        return bb, fl, add, pos, slots

    def prep_next():
        return [['s_add_u32 s55, s55, 1', 's_and_b32 s50, s55, 1'],
                ['s_lshl_b32 s50, s50, 15', 's_cmp_ge_u32 s55, s47'],
                ['s_cselect_b32 s69, s67, 0', 's_add_u32 s50, s50, s69']]
    def barrier_blk():
        return ['s_waitcnt vmcnt(0) lgkmcnt(0)', 's_barrier',
                f'v_add_u32 v{VV}, {VSL - KSL}, v{VK}',
                f'v_add_u32 v{VK}, s50, v{VL16}']
    def dma_issue(name):
        L = f'buffer_load_dwordx4 v{VL16}, s[8:11], s43 offen lds'
        L2 = f'buffer_load_dwordx4 v{VL16}, s[8:11], s43 offen offset:1024 lds'
        g = []
        g.append([f's_add_u32 m0, s64, {VSL}', 's_add_u32 s43, s45, s63', L])
        g.append([L2, 's_cmp_lt_u32 s55, s47'])
        g.append([f's_cbranch_scc1 L2_nov2{name}', '@COND', f's_add_u32 m0, s64, {VSL + 16384}', 's_add_u32 s43, s43, 16384', L, L2,
                  's_add_u32 s63, s63, 16384', '@ENDCOND', f'L2_nov2{name}:'])
        g.append(['s_add_u32 s63, s63, 16384', 's_xor_b32 s64, s64, 32768'])
        g.append([f's_add_u32 m0, s64, {KSL}', 's_add_u32 s43, s44, s63', L])
        g.append([L2, 's_add_u32 s65, s55, 1', 's_cmp_lt_u32 s65, s47'])
        g.append([f's_cbranch_scc1 L2_nok{name}', '@COND', f's_add_u32 m0, s64, {KSL + 16384}', 's_add_u32 s43, s43, 16384', L, L2,
                  '@ENDCOND', f'L2_nok{name}:'])
        return g

    bb, fl, add, pos, slots = step('first')
    for n in range(4): p(frag_read(slots[n]))
    nS = len(slots)
    for gi, g in enumerate(prep_next()): add(4 + gi, g)
    add(nS - 4, barrier_blk())
    for n in range(4): add(nS - 4 + n, [frag_read(n)])
    interleave(p, bb, fl)
    p.begin_loop()
    p.label('L2_loop')
    bb, fl, add, pos, slots = step('loop')
    XP = os.environ.get('XP', '')
    if 'nodma' not in XP:
        for gi, g in enumerate(dma_issue('loop')): add(1 + 3 * gi, g)
    for gi, g in enumerate(prep_next()): add(23 + gi, g)
    nb_ = barrier_blk()
    if 'nobar' in XP: nb_ = [x for x in nb_ if x != 's_barrier']
    add(28, nb_)
    for n in range(4): add(28 + n if n < 3 else 30, [frag_read(n)])
    add(30, ['s_cmp_lt_u32 s55, 17'])
    if XP:
        for kk_ in fl: fl[kk_] = [x for x in fl[kk_] if not (isinstance(x, str) and x.startswith('s_cbranch_vccnz'))]
    if 'noexp' in XP:
        for kk_ in fl: fl[kk_] = [x.replace('v_exp_f32', 'v_mov_b32') if isinstance(x, str) else x for x in fl[kk_]]
    if 'novalu' in XP:
        for kk_ in fl: fl[kk_] = [x for x in fl[kk_] if not (isinstance(x, str) and x.startswith(('v_exp', 'v_add_f32 v7', 'v_cvt')))]
    if 'nolds' in XP:
        for kk_ in fl: fl[kk_] = [x for x in fl[kk_] if not (isinstance(x, str) and x.startswith('ds_read'))]
    interleave(p, bb, fl)
    p('s_cbranch_scc1 L2_loop')
    p.end_loop()
    st.stamp()
    p('s_waitcnt lgkmcnt(0)')
    bb, fl, add, pos, slots = step('drain')
    for n in range(4): p(frag_read(slots[n]))
    interleave(p, bb, fl)
    st.stamp()
    p(f'''
v_mov_b32 v9, v{VLS}
v_permlane32_swap_b32 v{VLS}, v9
v_add_f32 v{VLS}, v{VLS}, v9
s_waitcnt lgkmcnt(0)
s_barrier
''')
    p(f'''
s_mul_i32 s49, s20, 8704
s_xor_b32 s50, s20, 4
s_mul_i32 s50, s50, 8704
v_add_u32 v9, s49, v{VL16}
v_add_u32 v10, s50, v{VL16}
v_lshrrev_b32 v11, 1, v{VL16}
v_add_u32 v12, s49, v11
v_add_u32 v13, s50, v11
v_mov_b32 v14, v{VLS}
v_mov_b32 v15, v{VM}
s_cmp_eq_u32 s25, 0
s_cbranch_scc1 L2_mg0
''')
    X = TT
    alt = p.begin_alt()
    for g in (1, 0):
        p.alt_branch(alt)
        if g == 0: p.label('L2_mg0')
        keep = O + 32 * g; send = O + 32 * (1 - g)
        for k in range(8): p(f'ds_write_b128 v9, {vr(send+4*k,4)} offset:{k*1024}')
        p('ds_write_b64 v12, v[14:15] offset:8192')
        p('s_waitcnt lgkmcnt(0)')
        p('s_barrier')
        p(f'ds_read_b64 v[{E}:{E+1}], v13 offset:8192')
        for k in range(8): p(f'ds_read_b128 {vr(X+4*k,4)}, v10 offset:{k*1024}')
        p(f'''
v_max_f32 v{E+2}, v{VM}, v{E+1}
v_sub_f32 v{E+3}, v{VM}, v{E+2}
v_sub_f32 v{E+4}, v{E+1}, v{E+2}
v_exp_f32 v{E+3}, v{E+3}
v_exp_f32 v{E+4}, v{E+4}
v_mul_f32 v{E+5}, v{E+3}, v{VLS}
v_fmac_f32 v{E+5}, v{E+4}, v{E}
v_rcp_f32 v{E+5}, v{E+5}
v_mul_f32 v{E+3}, v{E+3}, v{E+5}
v_mul_f32 v{E+4}, v{E+4}, v{E+5}
''')
        for i in range(32):
            p(f'v_mul_f32 v{keep+i}, v{keep+i}, v{E+3}')
            p(f'v_fmac_f32 v{keep+i}, v{X+i}, v{E+4}')
        for i in range(16): p(f'v_cvt_pk_bf16_f32 v{S[0]+i}, v{keep+2*i}, v{keep+2*i+1}')
        p(f'''
s_mul_i32 s52, s28, {AF_MT}
s_lshl_b32 s54, s21, 13
s_add_u32 s52, s52, s54
s_add_u32 s52, s52, {AF_OFF + g*4096:#x}
''')
        for k in range(4): p(f'buffer_store_dwordx4 {vr(S[0]+4*k,4)}, v{VL16}, s[8:11], s52 offen offset:{k*1024}')
        if PROF: p('s_waitcnt vmcnt(0)')
        sv = st.i
        st.stamp()
        st.dump(p, 8, 1, 20, 9, 49, 8)
        st.i = sv
        p('s_endpgm')
        p.end_branch()

    ool = p.begin_alt()
    def routine(name):
        p.alt_branch(ool); p.label(name)
    def fin_code():
        p(f"""
s_nop 15
s_nop 7
v_mov_b32 v9, v{VLSAVE}
v_permlane32_swap_b32 v{VLSAVE}, v9
v_add_f32 v9, v{VLSAVE}, v9
v_rcp_f32 v9, v9
s_mul_i32 s52, s27, {AF_MT}
s_lshl_b32 s54, s21, 13
s_add_u32 s52, s52, s54
s_add_u32 s52, s52, {AF_OFF:#x}
s_add_u32 s53, s52, 4096
""")
        for half in range(2):
            for i in range(32): p(f'v_mul_f32 v{O+32*half+i}, v{O+32*half+i}, v9')
            for i in range(16): p(f'v_cvt_pk_bf16_f32 v{TT+16*half+i}, v{O+32*half+2*i}, v{O+32*half+2*i+1}')
            for k in range(4): p(f'buffer_store_dwordx4 {vr(TT+16*half+4*k,4)}, v{VL16}, s[8:11], s{52+half} offen offset:{k*1024}')
        for i in range(64): p(f'v_mov_b32 v{O+i}, 0')
    for kind, nm, hf in outl:
        if kind == 'evt':
            routine(f'L2_evt{nm}')
            p('s_lshl_b32 s68, s47, 1')
            if nm in ('loop0', 'drain0'):
                p(f"""
s_add_u32 s69, s68, 2
s_cmp_lg_u32 s62, s69
s_cbranch_scc1 L2_nofin{nm}
s_cmp_eq_u32 s25, 0
s_cbranch_scc1 L2_nofin{nm}
""")
                fin_code()
                p.label(f'L2_nofin{nm}')
            if nm == 'loop0':
                p(f"""
s_cmp_lg_u32 s62, s68
s_cbranch_scc1 L2_nosw
s_cmp_eq_u32 s25, 0
s_cbranch_scc1 L2_nosw
s_lshl_b32 s69, s26, 13
s_add_u32 s69, s69, {QX}
v_add_u32 v9, s69, v{VL16}
s_nop 7
""")
                for ks in range(8): p(f'ds_read_b128 {vr(Q+4*ks,4)}, v9 offset:{ks*1024}')
                for i in range(16): p(f'v_mov_b32 v{MN+i}, 0')
                p(f"""
v_mov_b32 v{VM}, 0
s_mov_b32 s61, s28
s_mov_b32 s60, 0
s_waitcnt lgkmcnt(0)
L2_nosw:
""")
            if nm == 'loop1':
                p(f"""
s_add_u32 s69, s68, 1
s_cmp_lg_u32 s62, s69
s_cbranch_scc1 L2_nomid
s_cmp_eq_u32 s25, 0
s_cbranch_scc1 L2_nomid
v_mov_b32 v{VLSAVE}, v{VLS}
v_mov_b32 v{VLS}, 0
s_mov_b32 s60, 1.0
s_mov_b32 s57, 0xbf800000
s_mov_b32 s58, {FLOOR1:#x}
s_mov_b32 s59, 1
L2_nomid:
""")
            if nm != 'drain0':
                p(f"""
s_lshr_b32 s68, s62, 1
s_lshl_b32 s69, s68, 1
s_sub_u32 s69, s69, s47
s_add_u32 s69, s69, s25
s_cmp_ge_u32 s68, s47
s_cselect_b32 s68, s69, s68
s_lshl_b32 s68, s68, 1
s_add_u32 s68, s68, {hf}
s_cmp_lt_u32 s68, s61
s_cbranch_scc1 L2_nomask{nm}
s_sub_u32 s68, s61, s68
s_lshl_b32 s68, s68, 5
v_add_u32 v9, s68, v{VZ}
v_mov_b32 v10, {NEG:#x}
""")
                for r in range(16):
                    cr = 8 * (r >> 2) + (r & 3)
                    p(f'v_cmp_gt_i32 vcc, {cr}, v9')
                    p(f'v_cndmask_b32 v{MN+r}, v{MN+r}, v10, vcc')
                p.label(f'L2_nomask{nm}')
            p(f"""
s_add_u32 s68, s62, 1
s_max_u32 s66, s68, 32
s_cmp_le_u32 s68, s49
s_cselect_b32 s66, s68, s66
s_branch L2_eret{nm}
""")
            p.end_branch()
        else:
            routine(f'L2_rare{nm}')
            c = S[1 - hf]; nx = S[hf]; pc = PP[1 - hf]
            p('s_nop 15\ns_nop 7')
            p(f'v_max3_f32 v9, v{c}, v{c+1}, v{c+2}')
            for k in range(3, 15, 2): p(f'v_max3_f32 v9, v9, v{c+k}, v{c+k+1}')
            p(f'v_max_f32 v9, v9, v{c+15}')
            p(f'''
v_mov_b32 v10, v9
v_permlane32_swap_b32 v9, v10
v_max_f32 v9, v9, v10
v_max_f32 v9, s58, v9
v_sub_f32 v10, 0, v9
v_min_f32 v10, 0x42fc0000, v10
v_exp_f32 v10, v10
v_mul_f32 v11, s60, v9
''')
            for k in range(16): p(f'v_sub_f32 v{c+k}, v{c+k}, v9')
            for k in range(16): p(f'v_exp_f32 v{TT+k}, v{c+k}')
            p(f'v_add_f32 v{VTS}, v{TT}, v{TT+1}')
            for k in range(2, 16): p(f'v_add_f32 v{VTS}, v{VTS}, v{TT+k}')
            for k in range(8): p(f'v_cvt_pk_bf16_f32 v{pc+k}, v{TT+2*k}, v{TT+2*k+1}')
            for k in range(16): p(f'v_sub_f32 v{nx+k}, v{nx+k}, v11')
            for k in range(16): p(f'v_sub_f32 v{MN+k}, v{MN+k}, v11')
            p(f'v_add_f32 v{VM}, v{VM}, v11')
            p(f'v_mul_f32 v{VLS}, v{VLS}, v10')
            p('s_cmp_lg_u32 s59, 0')
            p(f's_cbranch_scc1 L2_rskip{nm}')
            for k in range(64): p(f'v_mul_f32 v{O+k}, v{O+k}, v10')
            p.label(f'L2_rskip{nm}')
            p(f'''
s_mov_b32 s{56+hf}, {THR:#x}
''')
            if hf == 1:
                p('s_mov_b32 s58, 0\ns_mov_b32 s59, 0')
            if nm == 'loop1': p('s_cmp_lt_u32 s55, 17')
            p(f's_branch L2_ret{nm}')
            p.end_branch()
    p.label('L2_end')
    p('s_endpgm')
    return ('k2_kernel', p, 256, 512, 163840, 256, 256)
```

```python
from common import *
from k1 import ln_stream
import struct, math

def f2u(x): return struct.unpack('<I', struct.pack('<f', x))[0]
MF = 'v_mfma_f32_32x32x16_bf16'
SC = os.environ.get('FSC', ' sc1')
CNT_LN = 0; CNT_KV = 16; CNT_CTX = 32; CNT_REG = 48
LS = os.environ.get('LS', ' sc1')
SPIN_MAX = 1 << 22

KVSC = os.environ.get('KVSC', '')
def gen_kf():
    p = Prog()
    st = Stamps(p, 70, 10)
    st.skip = set(int(x) for x in os.environ.get('STSKIP', '').split(',') if x)
    def emit(lst):
        for f in lst:
            if isinstance(f, list): emit(f)
            elif callable(f): f(p)
            else: p(f)
    VL16 = 1
    uid = [0]
    def publish(sreg_idx_list):
        uid[0] += 1; L = f'LF_pub{uid[0]}'
        out = ['s_cmp_lg_u32 s20, 0', f's_cbranch_scc1 {L}', '@COND', 'v_mov_b32 v14, 1', 'v_mov_b32 v15, 0', 's_mov_b64 exec, 1']
        for s in sreg_idx_list:
            out.append(f'buffer_atomic_add v14, v15, s[96:99], s{s} offen sc1')
        out += ['s_mov_b64 exec, -1', '@ENDCOND', f'{L}:']
        return out
    def poll(pairs):
        uid[0] += 1; L = f'LF_poll{uid[0]}'
        out = ['s_cmp_lg_u32 s20, 0', f's_cbranch_scc1 {L}_done', '@COND', 'v_mov_b32 v15, 0', f's_mov_b32 s3, {SPIN_MAX}']
        for n, (s, tgt) in enumerate(pairs):
            out += [f'{L}_{n}:',
                    f'buffer_load_dword v14, v15, s[96:99], s{s} offen sc1',
                    's_waitcnt vmcnt(0)',
                    'v_readfirstlane_b32 s100, v14',
                    's_sub_u32 s3, s3, 1',
                    's_cmp_eq_u32 s3, 0',
                    f's_cbranch_scc1 {L}_acq',
                    f's_cmp_ge_u32 s100, {tgt}',
                    f's_cbranch_scc1 {L}_{n}_ok',
                    's_sleep 2',
                    f's_branch {L}_{n}',
                    f'{L}_{n}_ok:']
        out += [f'{L}_acq:', 'buffer_inv sc1', 's_waitcnt vmcnt(0)', '@ENDCOND', f'{L}_done:']
        return out
    def poll_noinv(pairs):
        out = poll(pairs)
        i = out.index('buffer_inv sc1')
        return out[:i] + out[i + 2:]
    slow = []
    def poll_issue(sregs):
        uid[0] += 1; L = f'LF_pi{uid[0]}'
        out = ['s_cmp_lg_u32 s20, 0', f's_cbranch_scc1 {L}', '@COND', 'v_mov_b32 v8, 0']
        for n, s in enumerate(sregs): out.append(f'buffer_load_dword v{14+n}, v8, s[96:99], s{s} offen sc1')
        out += ['@ENDCOND', f'{L}:']
        return out
    def poll_check(pairs, inv_flag=None):
        uid[0] += 1; L = f'LF_pc{uid[0]}'
        out = ['s_cmp_lg_u32 s20, 0', f's_cbranch_scc1 {L}', '@COND']
        for n, (s, tgt) in enumerate(pairs):
            out += [f'v_readfirstlane_b32 s100, v{14+n}', f's_cmp_lt_u32 s100, {tgt}', f's_cbranch_scc1 {L}_slow']
        out += [f'{L}_ok:']
        if inv_flag is not None and inv_flag >= 0:
            out += [f's_cmp_lg_u32 s{inv_flag}, 0', f's_cbranch_scc1 {L}', (lambda pp: pp('buffer_inv sc1', 'inv'))]
        elif inv_flag is not None:
            out += [(lambda pp: pp('buffer_inv sc1', 'inv'))]
        out += ['@ENDCOND', f'{L}:']
        slow.append((L, pairs))
        return out
    def publish_kv():
        uid[0] += 1; L = f'LF_pkv{uid[0]}'
        return ['s_cmp_lg_u32 s20, 0', f's_cbranch_scc1 {L}', '@COND',
                'v_readfirstlane_b32 s100, v15',
                's_and_b32 s3, s100, 63', 's_bfe_u32 s29, s100, 0x90006', 's_lshr_b32 s30, s100, 15',
                's_mul_i32 s29, s29, s29', 's_lshl_b32 s30, s30, 5',
                's_cmp_eq_u32 s29, s30', 's_cselect_b32 s94, 1, 0',
                's_cmp_eq_u32 s3, 32', 's_cselect_b32 s94, s94, 0',
                's_cmp_lg_u32 s94, 0', f's_cbranch_scc1 {L}_fast',
                'buffer_wbl2 sc1', 's_waitcnt vmcnt(0)',
                f'{L}_fast:',
                'v_mov_b32 v14, 1', 'v_mov_b32 v15, 0', 's_mov_b64 exec, 1',
                'buffer_atomic_add v14, v15, s[96:99], s33 offen sc1',
                's_mov_b64 exec, -1', '@ENDCOND', f'{L}:']
    def w0_drain():
        uid[0] += 1; L = f'LF_dr{uid[0]}'
        return ['s_cmp_lg_u32 s20, 0', f's_cbranch_scc1 {L}', '@COND', (lambda pp: pp.wait_tag('inv')), '@ENDCOND', f'{L}:']
    def emit_slow():
        for L, pairs in slow:
            p.label(f'{L}_slow')
            p(f's_mov_b32 s3, {SPIN_MAX}')
            p('v_mov_b32 v8, 0')
            for n, (s, tgt) in enumerate(pairs):
                p(f"""
{L}_s{n}:
buffer_load_dword v14, v8, s[96:99], s{s} offen sc1
s_waitcnt vmcnt(0)
v_readfirstlane_b32 s100, v14
s_sub_u32 s3, s3, 1
s_cmp_eq_u32 s3, 0
s_cbranch_scc1 {L}_ok
s_cmp_ge_u32 s100, {tgt}
s_cbranch_scc1 {L}_s{n}_ok
s_sleep 2
s_branch {L}_s{n}
{L}_s{n}_ok:
""")
            p(f's_branch {L}_ok')
    p(f'''
s_cmp_ge_u32 s2, 256
s_cbranch_scc1 LF_end
s_load_dwordx4 s[28:31], s[0:1], 0
s_load_dwordx4 s[32:35], s[0:1], 24
s_load_dwordx4 s[36:39], s[0:1], 88
s_load_dwordx4 s[64:67], s[0:1], 56
s_load_dwordx2 s[68:69], s[0:1], 16
s_load_dwordx2 s[56:57], s[0:1], 40
s_load_dwordx2 s[58:59], s[0:1], 72
v_lshrrev_b32 v9, 6, v0
v_and_b32 v10, 63, v0
v_readfirstlane_b32 s20, v9
s_and_b32 s22, s2, 7
s_lshr_b32 s23, s2, 3
''')
    st.stamp()
    p('''
s_and_b32 s48, s23, 1
s_bfe_u32 s49, s23, 0x10001
s_lshr_b32 s50, s23, 2
s_lshl_b32 s51, s22, 9
s_lshl_b32 s3, s48, 8
s_add_u32 s51, s51, s3
''')
    p(f'v_lshlrev_b32 v{VL16}, 4, v10')
    STG = 65536
    p('''
v_lshrrev_b32 v11, 3, v10
v_and_b32 v12, 7, v10
v_lshrrev_b32 v13, 4, v10
v_xor_b32 v14, v12, v13
v_lshlrev_b32 v14, 4, v14
v_lshl_add_u32 v2, v11, 10, v14
v_xor_b32 v3, 64, v2
''')
    p('''
v_and_b32 v13, 1, v13
v_lshlrev_b32 v13, 2, v13
v_xor_b32 v14, v12, v13
v_lshlrev_b32 v14, 4, v14
v_lshl_add_u32 v4, v11, 13, v14
''')
    p(f'''
v_and_b32 v11, 31, v10
v_lshrrev_b32 v12, 5, v10
v_bfe_u32 v13, v11, 1, 3
v_xor_b32 v13, v12, v13
v_lshlrev_b32 v13, 4, v13
v_lshl_add_u32 v13, v11, 7, v13
s_lshl_b32 s52, s20, 13
s_add_u32 s52, s52, {STG}
v_add_u32 v16, s52, v13
v_xor_b32 v17, 32, v16
v_xor_b32 v18, 64, v16
v_xor_b32 v19, 96, v16
''')
    p('''
v_bfe_u32 v11, v10, 2, 2
v_lshl_add_u32 v13, v12, 3, v11
v_lshlrev_b32 v13, 7, v13
v_lshrrev_b32 v11, 1, v11
v_lshl_add_u32 v13, v11, 6, v13
v_bfe_u32 v11, v10, 4, 1
v_lshl_add_u32 v13, v11, 5, v13
v_and_b32 v11, 3, v10
v_lshl_add_u32 v20, v11, 3, v13
v_xor_b32 v21, 64, v20
v_add_u32 v22, 0x8000, v20
v_add_u32 v23, 0x8000, v21
v_add_u32 v24, 0x20000, v20
v_add_u32 v25, 0x20000, v21
v_add_u32 v26, 0x10000, v20
v_add_u32 v27, 0x10000, v21
v_lshlrev_b32 v14, 7, v10
v_lshrrev_b32 v15, 2, v10
v_lshlrev_b32 v15, 13, v15
v_and_b32 v11, 3, v10
v_lshl_add_u32 v15, v11, 7, v15
v_lshrrev_b32 v5, 1, v10
v_lshlrev_b32 v5, 10, v5
v_and_b32 v11, 1, v10
v_lshl_add_u32 v5, v11, 9, v5
''')
    p('s_waitcnt lgkmcnt(0)')
    srd(p, 12, 30, 31, 2 << 20)
    srd(p, 16, 28, 29, 2 << 20)
    srd(p, 8, 38, 39, WS_BYTES)
    srd(p, 96, 36, 37, 256)
    p('''
s_cmp_eq_u32 s49, 0
s_cselect_b32 s4, s32, s34
s_cselect_b32 s5, s33, s35
s_and_b32 s5, s5, 0xffff
s_mov_b32 s6, 0x400000
s_mov_b32 s7, 0x00020000
s_lshl_b32 s40, s50, 8
s_lshl_b32 s41, s20, 5
s_add_u32 s40, s40, s41
s_lshl_b32 s40, s40, 10
s_lshl_b32 s42, s20, 18
s_lshl_b32 s43, s51, 1
s_add_u32 s42, s42, s43
s_lshl_b32 s43, s20, 12
''')
    WS = [0, 32768, 131072, 65536]
    def wdma(u, q):
        sc = u >> 1; kh = u & 1
        return [f's_add_u32 m0, s43, {WS[u % 4] + q*1024}',
                f's_add_u32 s53, s42, {(kh*256 + 8*q)*8192 + sc*128}',
                (lambda pp: pp('buffer_load_dwordx4 v4, s[4:7], s53 offen lds', f'w{u}'))]
    def adma(e, jj):
        return [f's_add_u32 m0, s52, {(e&1)*4096 + jj*1024}',
                f's_add_u32 s54, s40, {8*jj*1024 + e*128}',
                (lambda pp: pp(f'buffer_load_dwordx4 v{2+(jj&1)}, s[12:15], s54 offen lds', f'a{e}'))]
    AR = 128
    def aread(e, k):
        ks = 4 * e + k
        return (lambda pp: pp(f'ds_read_b128 {vr(AR+4*ks,4)}, v{16+k} offset:{(e&1)*4096}', f'ar{e}'))
    for jj in range(4): emit(adma(0, jj))
    for q in range(4): emit(wdma(0, q))
    for jj in range(4): emit(adma(1, jj))
    p('''
s_lshl_b32 s29, s2, 3
s_add_u32 s29, s29, s20
s_lshl_b32 s30, s29, 10
''')
    LNR = 96; LNT = 100
    p(f'buffer_load_dwordx4 {vr(LNR,4)}, v{VL16}, s[16:19], s30 offen')
    if 'pf' in os.environ.get('XP1', '').split('_'):
        p("""
s_cmp_lt_u32 s2, 128
s_cselect_b32 s60, s32, s34
s_cselect_b32 s61, s33, s35
s_mov_b32 s62, 0x400000
s_and_b32 s3, s2, 127
s_lshl_b32 s3, s3, 15
s_lshl_b32 s53, s20, 13
s_add_u32 s3, s3, s53
s_lshl_b32 s53, s2, 13
s_cmp_eq_u32 s20, 4
s_cselect_b32 s60, s12, s60
s_cselect_b32 s61, s13, s61
s_cselect_b32 s62, s14, s62
s_cselect_b32 s3, s53, s3
s_cmp_gt_u32 s20, 4
s_cselect_b32 s3, 0x7f000000, s3
s_and_b32 s61, s61, 0xffff
s_mov_b32 s63, 0x00020000
buffer_load_dword v104, v14, s[60:63], s3 offen
""")
    for q in range(4): emit(wdma(1, q))
    p(f'''
s_lshr_b32 s44, s51, 7
s_lshl_b32 s44, s44, 19
s_lshl_b32 s45, s50, 3
s_add_u32 s45, s45, s20
s_lshl_b32 s45, s45, 13
s_add_u32 s44, s44, s45
s_mov_b32 s45, {KF_OFF:#x}
s_mov_b32 s46, {VF_OFF:#x}
s_cmp_eq_u32 s49, 0
s_cselect_b32 s45, s45, s46
s_add_u32 s41, s44, s45
s_lshr_b32 s31, s29, 5
s_lshl_b32 s31, s31, 15
s_and_b32 s3, s29, 31
s_lshl_b32 s3, s3, 4
s_add_u32 s31, s31, s3
s_lshr_b32 s32, s2, 4
s_lshl_b32 s32, s32, 2
s_lshr_b32 s33, s51, 8
s_add_u32 s33, s33, {CNT_KV}
s_lshl_b32 s33, s33, 2
s_getreg_b32 s3, hwreg(HW_REG_XCC_ID, 0, 4)
s_mul_i32 s53, s3, s3
s_lshl_b32 s53, s53, 15
s_lshl_b32 s3, s3, 6
s_add_u32 s53, s53, s3
s_add_u32 s53, s53, 1
s_add_u32 s101, s22, {CNT_REG}
s_lshl_b32 s101, s101, 2
s_cmp_lg_u32 s20, 0
s_cbranch_scc1 LF_noreg
@COND
v_mov_b32 v8, s53
v_mov_b32 v9, 0
s_mov_b64 exec, 1
buffer_atomic_add v8, v9, s[96:99], s101 offen sc1
s_mov_b64 exec, -1
@ENDCOND
LF_noreg:
''')
    if XF_OFF: p(f's_add_u32 s31, s31, {XF_OFF:#x}')
    p('''
s_and_b32 s3, s23, 3
s_lshl_b32 s21, s22, 2
s_add_u32 s21, s21, s3
s_lshr_b32 s24, s23, 2
s_lshr_b32 s25, s20, 2
s_and_b32 s26, s20, 3
s_sub_u32 s28, 15, s24
s_lshl_b32 s28, s28, 2
s_add_u32 s28, s28, s26
s_lshl_b32 s27, s24, 2
s_add_u32 s27, s27, s26
s_cmp_eq_u32 s25, 0
s_cselect_b32 s27, s28, s27
''')
    p.wait_tag('a0')
    for k in range(4): emit([aread(0, k)])
    p.wait_tag('ar0')
    for jj in range(4): emit(adma(2, jj))
    p.wait_tag('w0')
    p('s_barrier')
    st.stamp()
    p('s_cmp_lg_u32 s49, 0')
    p('s_cbranch_scc1 LF_v')

    WF = 32; NST = 4; ACC = 64; PK = 96
    def trread(u, kk):
        out = []
        for nt in range(2):
            w = WF + 8 * (kk % NST) + 4 * nt
            out.append(f'ds_read_b64_tr_b16 {vr(w,2)}, v{20+2*(u%4)+nt} offset:{kk*2048}')
            out.append(f'ds_read_b64_tr_b16 {vr(w+2,2)}, v{20+2*(u%4)+nt} offset:{kk*2048+512}')
        return out
    def kv_epilogue(sc, nt):
        g = []
        PKB = PK if sc < 3 else 32
        for half in range(2):
            pk = PKB + 8 * nt + 4 * half
            for i in range(4):
                s = ACC + 16 * nt + 8 * half + 2 * i
                g.append(f'v_cvt_pk_bf16_f32 v{pk+i}, v{s}, v{s+1}')
        off = (sc >> 1) * 524288 + (sc & 1) * 4096
        st_ = [[f's_add_u32 s55, s41, {off + nt*2048 + half*1024}',
                (lambda pp, half=half: pp(f'buffer_store_dwordx4 {vr(PKB+8*nt+4*half,4)}, v{VL16}, s[8:11], s55 offen{KVSC}', 'kvst'))]
               for half in range(2)]
        return g, st_
    lns = ln_stream(LNR, LNT, LNT + 16)
    lns.append(lambda pp: pp(f'buffer_store_dwordx4 {vr(LNR,4)}, v5, s[8:11], s31 offen{SC}', 'lnst'))
    SLOT = 29184
    GSL = [0, SLOT, 131072, 65536]
    KSL = 0; VSL = 65536; QX = 131072
    GD = 28
    def p2_setup():
        q = Prog(); pp = q
        pp("""
v_and_b32 v10, 63, v0
v_lshrrev_b32 v11, 4, v10
v_bfe_u32 v12, v10, 2, 2
v_and_b32 v13, 3, v11
v_xor_b32 v12, v12, v13
v_lshlrev_b32 v12, 6, v12
v_and_b32 v13, 3, v10
v_lshl_add_u32 v12, v13, 4, v12
v_lshl_add_u32 v12, v11, 13, v12
s_lshl_b32 s29, s26, 17
v_add_u32 v28, s29, v12
v_add_u32 v29, 0x8000, v28
v_add_u32 v30, 0x10000, v28
v_add_u32 v31, 0x18000, v28
s_and_b32 s29, s20, 1
s_mul_i32 s29, s29, 192
s_mov_b32 s30, 43691
s_movk_i32 s34, 2752
s_cmp_eq_u32 s25, 0
s_cselect_b64 s[36:37], -1, 0
""")
        for t in range(3):
            pp(f"""
v_add_u32 v11, s29, v10
v_add_u32 v11, {64*t}, v11
v_mul_lo_u32 v12, v11, s30
v_lshrrev_b32 v12, 18, v12
v_mul_u32_u24 v13, 6, v12
v_sub_u32 v13, v11, v13
v_mul_lo_u32 v12, v12, s34
v_lshl_add_u32 v9, v13, 4, v12
v_cndmask_b32 v{28+t}, v9, v{28+t}, s[36:37]
""")
        pp('v_cndmask_b32 v31, v9, v31, s[36:37]')
        pp("""
v_lshrrev_b32 v11, 5, v10
v_bfe_u32 v12, v10, 2, 2
v_lshl_add_u32 v13, v11, 3, v12
v_lshlrev_b32 v6, 8, v13
v_lshl_add_u32 v6, v12, 6, v6
v_bfe_u32 v7, v10, 4, 1
v_lshl_add_u32 v6, v7, 5, v6
v_and_b32 v9, 3, v10
v_lshl_add_u32 v6, v9, 3, v6
v_mul_u32_u24 v13, 96, v13
v_mul_u32_u24 v7, 6272, v7
v_add_u32 v13, v13, v7
v_lshl_add_u32 v13, v9, 3, v13
v_add_u32 v7, 0x4000, v13
""")
        pp("""
s_mov_b32 s60, s68
s_mov_b32 s61, s69
s_cmp_eq_u32 s20, 2
s_cselect_b32 s60, s64, s60
s_cselect_b32 s61, s65, s61
s_cmp_eq_u32 s20, 3
s_cselect_b32 s60, s66, s60
s_cselect_b32 s61, s67, s61
s_cmp_ge_u32 s20, 4
s_cselect_b32 s60, s56, s60
s_cselect_b32 s61, s57, s61
s_cmp_ge_u32 s20, 6
s_cselect_b32 s60, s58, s60
s_cselect_b32 s61, s59, s61
s_and_b32 s61, s61, 0xffff
s_mov_b32 s63, 0x00020000
s_mov_b32 s62, 0x158000
s_movk_i32 s35, 5504
s_and_b32 s38, s20, 2
s_cmp_eq_u32 s38, 0
s_cselect_b32 s62, 0x400000, s62
s_cselect_b32 s35, 0x4000, s35
s_mul_i32 s35, s35, s2
s_and_b32 s39, s20, 1
s_lshl_b32 s39, s39, 13
s_cmp_eq_u32 s38, 0
s_cselect_b32 s39, s39, 0
s_add_u32 s35, s35, s39
s_cmp_ge_u32 s20, 4
s_cselect_b32 s35, 0x7f000000, s35
v_lshlrev_b32 v12, 3, v1
buffer_load_dword v11, v12, s[60:63], s35 offen
""")
        pp("""
s_bfe_u32 s29, s20, 0x10001
s_cmp_eq_u32 s29, 0
s_cselect_b32 s16, s64, s66
s_cselect_b32 s17, s65, s67
s_mov_b32 s18, 0x158000
s_cmp_eq_u32 s25, 0
s_cselect_b32 s16, s68, s16
s_cselect_b32 s17, s69, s17
s_cselect_b32 s18, 0x400000, s18
s_and_b32 s17, s17, 0xffff
s_mov_b32 s19, 0x00020000
s_lshl_b32 s56, s21, 8
s_mul_i32 s38, s21, 96
s_lshl_b32 s58, s26, 12
s_mul_i32 s39, s29, 6272
s_and_b32 s30, s20, 1
s_mul_i32 s30, s30, 3072
s_add_u32 s39, s39, s30
s_add_u32 s39, s39, 16384
s_cmp_eq_u32 s25, 0
s_cselect_b32 s56, s56, s38
s_mov_b32 s57, 0x2b000
s_cselect_b32 s57, 0x80000, s57
s_cselect_b32 s58, s58, s39
s_movk_i32 s59, 2048
s_cselect_b32 s59, 3072, s59
s_add_u32 s59, s59, s58
s_lshl_b32 s60, s27, 15
""")
        if XF_OFF: pp(f's_add_u32 s60, s60, {XF_OFF:#x}')
        return [i.text for i in q.items]
    GX = 128; GW = 192; GT = [48, 64, 80, 96, 112, 160, 176]
    def gdma(sl):
        base = GSL[sl % 4]
        out = []
        for t in range(4):
            out.append([f's_add_u32 m0, s{58 if t < 3 else 59}, {base + (t*1024 if t < 3 else 0)}',
                        's_nop 0',
                        (lambda pp, t=t, sl=sl: pp(f'buffer_load_dwordx4 v{GD+t}, s[16:19], s56 offen lds', f'g{sl}'))])
        out[3].append('s_add_u32 s56, s56, s57')
        return out
    def xload(sl):
        out = []
        b = GX + 16 * (sl & 1)
        for k in range(4):
            out.append(f'buffer_load_dwordx4 {vr(b+4*k,4)}, v{VL16}, s[8:11], s61 offen offset:{k*1024}{LS}')
        return [f's_add_u32 s61, s60, {sl*4096}'] + out

    alt = p.begin_alt(join=True)
    for variant in ('k', 'v'):
        p.alt_branch(alt)
        if variant == 'v': p.label('LF_v')
        for kk in range(3): emit(trread(0, kk))
        pend = []
        for u in range(8):
            sc = u >> 1; kh = u & 1
            bb = []; fl = {}
            def add(slot, items): fl.setdefault(slot, []).extend(items)
            for kk in range(16):
                ks = kh * 16 + kk
                for nt in range(2):
                    w = WF + 8 * (kk % NST) + 4 * nt
                    acc = vr(ACC + 16 * nt, 16); cc = '0' if ks == 0 else acc
                    A = vr(AR + 4 * ks, 4)
                    if variant == 'k': bb.append(f'{MF} {acc}, {vr(w,4)}, {A}, {cc}')
                    else:              bb.append(f'{MF} {acc}, {A}, {vr(w,4)}, {cc}')
            for kk in range(3, 16):
                t = trread(u, kk)
                s0 = min(2 * (kk - 3), 24)
                add(s0, t[:2]); add(s0 + 1, t[2:])
            if u < 2:
                for q4 in range(4):
                    e = 4 * kh + q4; base = 8 * q4
                    if e + 1 < 8:
                        add(base + 1, [lambda pp, e=e: pp.wait_tag(f'a{e+1}')])
                        for k_ in range(4): add(base + 1 + k_ // 2, [aread(e + 1, k_)])
                        if e + 3 < 8:
                            add(base + 5, [lambda pp, e=e: pp.wait_tag(f'ar{e+1}')])
                            for jj in range(4): add(base + 5 + jj // 2, adma(e + 3, jj))
            loads = {0: [2], 2: [3, 4], 3: [5], 4: [6], 5: [7]}.get(u, [])
            grps = [wdma(lu, q) for lu in loads for q in range(4)]
            if grps: spread(add, grps, 2 if u else 10, 25)
            X1 = os.environ.get('XP1', '')
            if u == 1: spread(add, atomic_groups(lns, 3), 1, 25)
            if u == 3: spread(add, atomic_groups(p2_setup(), 4), 10, 26)
            if kh == 0 and sc > 0:
                for nt in range(2):
                    g, st_ = kv_epilogue(sc - 1, nt)
                    fl.setdefault(('pre', nt), []).extend(g)
                    pend.extend(st_)
            if pend:
                a_, b_ = pend.pop(0), pend.pop(0)
                if 'nokvst' not in os.environ.get('XP1', ''): add(12, a_); add(24, b_)
            extra = []; post = []
            if u == (3 if 'latepub' in X1 else 2): extra = [lambda pp: pp.wait_tag('lnst')]; post = publish([32])
            if u == 5 and 'nopoll' not in X1: add(18, ['s_sub_u32 s29, 15, s24', 's_lshl_b32 s29, s29, 2', 's_lshl_b32 s30, s24, 2'] + poll_issue([29, 30]))
            if u == 5 and 'nopoll' not in X1: post = poll_check([(29, 16), (30, 16)])
            if u == 6 and 'nog01' not in X1:
                spread(add, gdma(0) + gdma(1), 1, 25)
            if u == 7 and 'nog01' in X1:
                spread(add, gdma(0) + gdma(1), 1, 25)
            if u == 7:
                xl = xload(0)
                spread(add, [xl[:2], [xl[2]], [xl[3]], [xl[4]]] + gdma(2), 1, 28)
            if u < 7:
                add(27, [lambda pp, u=u: pp.wait_tag(f'w{u+1}'), 's_waitcnt lgkmcnt(0)'] + extra + ['s_barrier'] + post)
                for kk in range(3):
                    t = trread(u + 1, kk)
                    add(min(27 + 2 * kk, 31), t[:2]); add(min(28 + 2 * kk, 31), t[2:])
            interleave(p, bb, fl)
            if os.environ.get('P1ST'): st.i = 2 + u; st.stamp()
        for nt in range(2):
            g, st_ = kv_epilogue(3, nt)
            emit(g); pend.extend(st_)
        if variant == 'k': p('s_branch LF_p2')
        p.end_branch()
    p.label('LF_p2')
    st.stamp()
    VK = 2; VV = 3; VZ = 4; VLS = 5; VM = 6; VTS = 7; VLSAVE = 8
    T0 = 9
    Q = 16; O = 48; S = [112, 128]; PP = [144, 152]; MN = 160; FR = 176; E = 208; TT = 216
    THR = f2u(float(2 ** 20)); NEG = f2u(-1e30); FLOOR1 = f2u(-1e20)
    p(f"""
s_lshl_b32 s44, s21, 19
s_lshl_b32 s46, s20, 11
s_add_u32 s44, s44, s46
s_add_u32 s45, s44, {VF_OFF:#x}
s_add_u32 s44, s44, {KF_OFF:#x}
s_lshl_b32 s47, s24, 1
s_add_u32 s47, s47, 2
""")
    AQ = [T0, T0 + 1, T0 + 2, T0 + 3]; AF_ = T0 + 4
    def set_addr(sl):
        base = GSL[sl % 4]
        out = [f'v_add_u32 v{AQ[0]}, {base}, v6']
        for nt in range(1, 4): out.append(f'v_xor_b32 v{AQ[nt]}, {nt<<6}, v{AQ[0]}')
        out.append(f'v_add_u32 v{AF_}, {base}, v7')
        return out
    assert all((s & 0xff) == 0 for s in GSL)
    def gtr(g):
        kk = g & 3; out = []
        for tl in range(7):
            w = GW + 28 * (g & 1) + 4 * tl
            if tl < 4:
                out.append(f'ds_read_b64_tr_b16 {vr(w,2)}, v{AQ[tl]} offset:{kk*4096}')
                out.append(f'ds_read_b64_tr_b16 {vr(w+2,2)}, v{AQ[tl]} offset:{kk*4096+1024}')
            else:
                o = kk * 1536 + (tl - 4) * 32
                out.append(f'ds_read_b64_tr_b16 {vr(w,2)}, v{AF_} offset:{o}')
                out.append(f'ds_read_b64_tr_b16 {vr(w+2,2)}, v{AF_} offset:{o+384}')
        return out
    def kvcopy(sbase, chunk_off, ldsbase, tag, tmp=43):
        return [f's_add_u32 m0, s46, {ldsbase}',
                f's_add_u32 s{tmp}, s{sbase}, {chunk_off}',
                (lambda pp: pp(f'buffer_load_dwordx4 v{VL16}, s[8:11], s{tmp} offen{LS} lds', tag)),
                (lambda pp: pp(f'buffer_load_dwordx4 v{VL16}, s[8:11], s{tmp} offen offset:1024{LS} lds', tag))]
    PUB_SL = int(os.environ.get('PUB_SL', '4'))
    p.wait_tag('g0')
    p('s_waitcnt lgkmcnt(0)')
    p('s_barrier')
    emit(set_addr(0))
    emit(gtr(0))
    for sl in range(8):
        bb = []; fl = {}
        def add(slot, items): fl.setdefault(slot, []).extend(items)
        for kk in range(4):
            g = sl * 4 + kk
            xb = GX + 16 * (sl & 1) + 4 * kk
            for tl in range(7):
                w = GW + 28 * (g & 1) + 4 * tl
                acc = vr(GT[tl], 16); cc = '0' if g == 0 else acc
                bb.append(f'{MF} {acc}, {vr(w,4)}, {vr(xb,4)}, {cc}')
            ng = g + 1
            if ng < 32:
                if kk == 3: add(7 * kk - 1, set_addr(sl + 1))
                rd = gtr(ng)
                for i in range(7): add(7 * kk + i, rd[2 * i:2 * i + 2])
        if sl + 1 < 8:
            xl = xload(sl + 1)
            add(0, xl[:1])
            for k in range(4): add(1 + k, [xl[1 + k]])
            pre = []; post = []
            if sl < 4: add(10, pend[sl])
            if sl == PUB_SL:
                pre = [lambda pp: pp.wait_tag('kvst')]; post = publish_kv()
            if sl == PUB_SL - 1:
                add(6, poll_issue([101, 101]))
            if sl == 6:
                add(8, [f's_lshr_b32 s29, s21, 1', f's_add_u32 s29, s29, {CNT_KV}', 's_lshl_b32 s29, s29, 2'] + poll_issue([29]))
                post = poll_check([(29, 16)], inv_flag=(94 if os.environ.get('KVINV', 'cond') == 'cond' else -1))

            add(17, [lambda pp, sl=sl: pp.wait_tag(f'g{sl+1}')] + pre + ['s_barrier'] + post)
            if sl + 3 < 8:
                for t, grp in enumerate(gdma(sl + 3)): add(18 + 2 * t if t < 1 else 21 + 2 * (t - 1), grp)
        interleave(p, bb, fl)
    st.stamp()
    p('s_waitcnt lgkmcnt(0)')
    emit(w0_drain())
    p('s_barrier')
    emit(kvcopy(44, 0, KSL, 'k0'))
    emit(kvcopy(44, 16384, KSL + 32768, 'k1'))
    emit(kvcopy(45, 0, VSL, 'v0'))
    p("""
s_load_dwordx2 s[56:57], s[0:1], 40
s_load_dwordx2 s[58:59], s[0:1], 72
s_waitcnt lgkmcnt(0)
s_cmp_ge_u32 s20, 2
s_cselect_b32 s60, s58, s56
s_cselect_b32 s61, s59, s57
s_mov_b32 s62, 0x400000
s_cselect_b32 s62, 0x158000, s62
s_movk_i32 s35, 0x4000
s_cselect_b32 s35, 5504, s35
s_and_b32 s61, s61, 0xffff
s_mov_b32 s63, 0x00020000
s_mul_i32 s35, s35, s2
s_cmp_eq_u32 s20, 1
s_cselect_b32 s39, 0x2000, 0
s_add_u32 s35, s35, s39
s_cmp_ge_u32 s20, 3
s_cselect_b32 s35, 0x7f000000, s35
v_lshlrev_b32 v12, 3, v1
buffer_load_dword v255, v12, s[60:63], s35 offen
""")
    CQ = f2u(math.log2(math.e) / math.sqrt(128.0))
    p(f's_mov_b32 s48, {CQ:#x}')
    for tl in range(4):
        for i in range(16): p(f'v_mul_f32 v{GT[tl]+i}, s48, v{GT[tl]+i}')
        for i in range(8): p(f'v_cvt_pk_bf16_f32 v{Q+8*tl+i}, v{GT[tl]+2*i}, v{GT[tl]+2*i+1}')
    p(f'''
s_lshl_b32 s49, s26, 13
s_add_u32 s49, s49, {QX}
v_add_u32 v9, s49, v{VL16}
s_cmp_lg_u32 s25, 0
s_cbranch_scc1 LF_noqx
@COND
''')
    for ks in range(8): p(f'ds_write_b128 v9, {vr(Q+4*ks,4)} offset:{ks*1024}')
    p('s_waitcnt lgkmcnt(0)')
    p('@ENDCOND')
    p.label('LF_noqx')
    KG = -2.0 * math.sqrt(2.0 / math.pi) * math.log2(math.e)
    p(f's_mov_b32 s50, {f2u(KG):#x}')
    p(f's_mov_b32 s51, {f2u(KG*0.044715):#x}')
    p(f'''
s_mul_i32 s52, s27, {AF_MT}
s_mul_i32 s53, s21, 3
s_add_u32 s54, s53, 256
s_lshl_b32 s54, s54, 10
s_add_u32 s52, s52, s54
s_add_u32 s52, s52, {AF_OFF:#x}
''')
    for tt in range(3):
        a = GT[4 + tt]; t = GW
        p(f's_add_u32 s54, s53, {tt}')
        p('s_cmp_ge_u32 s54, 86')
        p(f's_cbranch_scc1 LF_ffn_skip{tt}')
        p('@COND')
        for i in range(8): p(f'v_cvt_pk_bf16_f32 v{t+i}, v{a+2*i}, v{a+2*i+1}')
        for i in range(8):
            p(f'v_lshlrev_b32 v{a+2*i}, 16, v{t+i}')
            p(f'v_and_b32 v{a+2*i+1}, 0xffff0000, v{t+i}')
        for i in range(8): p(f'v_mul_f32 v{t+i}, v{a+i}, v{a+i}')
        p(f'v_mov_b32 v{t+16}, s50')
        for i in range(8): p(f'v_fma_f32 v{t+i}, v{t+i}, s51, v{t+16}')
        for i in range(8): p(f'v_mul_f32 v{t+i}, v{t+i}, v{a+i}')
        for i in range(8): p(f'v_exp_f32 v{t+i}, v{t+i}')
        for i in range(8): p(f'v_add_f32 v{t+i}, 1.0, v{t+i}')
        for i in range(8): p(f'v_rcp_f32 v{t+i}, v{t+i}')
        for i in range(8): p(f'v_mul_f32 v{t+i}, v{t+i}, v{a+i}')
        for i in range(4): p(f'v_cvt_pk_bf16_f32 v{t+8+i}, v{t+2*i}, v{t+2*i+1}')
        for i in range(4):
            p(f'v_lshlrev_b32 v{t+2*i}, 16, v{t+8+i}')
            p(f'v_and_b32 v{t+2*i+1}, 0xffff0000, v{t+8+i}')
        for i in range(8): p(f'v_mul_f32 v{t+i}, v{t+i}, v{a+8+i}')
        for i in range(4): p(f'v_cvt_pk_bf16_f32 v{t+20+4*tt+i}, v{t+2*i}, v{t+2*i+1}')
        p(f'buffer_store_dwordx4 {vr(t+20+4*tt,4)}, v{VL16}, s[8:11], s52 offen offset:{tt*1024}{SC}')
        p('@ENDCOND')
        p.label(f'LF_ffn_skip{tt}')
    st.stamp()
    for i in range(64): p(f'v_mov_b32 v{O+i}, 0')
    for i in range(16): p(f'v_mov_b32 v{MN+i}, 0')
    p(f"""
v_mov_b32 v{VLS}, 0
v_mov_b32 v{VM}, 0
v_mov_b32 v{VLSAVE}, 0
s_mov_b32 s56, {THR:#x}
s_mov_b32 s57, 0xbf800000
s_mov_b32 s58, {FLOOR1:#x}
s_mov_b32 s59, 1
s_mov_b32 s60, 1.0
s_mov_b32 s61, s27
s_mov_b32 s62, 0
s_lshl_b32 s67, s25, 14
v_add_u32 v{VK}, {KSL}, v{VL16}
v_add_u32 v{VV}, {VSL}, v{VL16}
v_and_b32 v10, 63, v0
v_and_b32 v12, 31, v10
v_lshrrev_b32 v11, 5, v10
v_lshlrev_b32 v13, 2, v11
v_sub_u32 v{VZ}, v12, v13
s_mov_b32 s55, 0
s_mov_b32 s63, 16384
s_add_u32 s64, s46, 32768
s_lshl_b32 s49, s47, 1
s_add_u32 s49, s49, 2
s_cmp_eq_u32 s25, 0
s_cselect_b32 s49, 0, s49
s_cselect_b32 s66, 32, s27
s_lshl_b32 s68, s47, 1
s_add_u32 s68, s68, 4
s_min_u32 s68, s68, 32
s_cmp_eq_u32 s20, 0
s_cselect_b32 s66, s68, s66
""")
    p('s_waitcnt vmcnt(0) lgkmcnt(0)')
    p('s_barrier')
    st.stamp()

    def frag_read(f):
        hf = f >> 4; i = f & 15; dst = vr(FR + 4 * (f % 8), 4)
        if i < 8:  return f'ds_read_b128 {dst}, v{VK} offset:{hf*8192 + i*1024}'
        else:      return f'ds_read_b128 {dst}, v{VV} offset:{hf*8192 + (i-8)*1024}'
    def mfma(f):
        hf = f >> 4; i = f & 15; fr = vr(FR + 4 * (f % 8), 4)
        if i < 8:
            s = vr(S[hf], 16); c = vr(MN, 16) if i == 0 else s
            return f'{MF} {s}, {fr}, {vr(Q+4*i,4)}, {c}'
        dt = (i - 8) >> 1; tp = (i - 8) & 1
        o = vr(O + 16 * dt, 16)
        return f'{MF} {o}, {fr}, {vr(PP[hf]+4*tp,4)}, {o}'
    def bstage(hf, nslots):
        c = S[1 - hf]; pp_ = PP[1 - hf]
        groups = [[] for _ in range(nslots)]
        span = nslots - 2
        pos_e = [(kk * span) // 16 for kk in range(16)]
        late = [[] for _ in range(nslots)]
        for k in range(8):
            ea = E + (2 * k) % 8; eb = E + (2 * k + 1) % 8
            groups[pos_e[2 * k]].append(f'v_exp_f32 v{ea}, v{c+2*k}')
            groups[pos_e[2 * k + 1]].append(f'v_exp_f32 v{eb}, v{c+2*k+1}')
            sa = pos_e[2 * k] + 1; sb = pos_e[2 * k + 1] + 1
            if k == 0:
                late[sb].append(f'v_add_f32 v{VTS}, v{ea}, v{eb}')
            else:
                late[sa].append(f'v_add_f32 v{VTS}, v{VTS}, v{ea}')
                late[sb].append(f'v_add_f32 v{VTS}, v{VTS}, v{eb}')
            late[sb].append(f'v_cvt_pk_bf16_f32 v{pp_+k}, v{ea}, v{eb}')
        return [late[i] + groups[i] for i in range(nslots)]
    outl = []

    def step(kind):
        doA = kind != 'drain'
        slots = []
        for f in range(32):
            hf = f >> 4; i = f & 15
            isA = i < 8
            if isA and not doA: continue
            if not isA and kind == 'first': continue
            slots.append(f)
        pos = {f: n for n, f in enumerate(slots)}
        bb = [mfma(f) for f in slots]
        fl = {}
        def add(n, items): fl.setdefault(n, []).extend(items)
        nS = len(slots)
        DIST = 4
        last_read_slot = nS - 6
        for n in range(DIST, nS):
            add(min(n - DIST, last_read_slot) if kind != 'drain' else n - DIST, [frag_read(slots[n])])
        for hf in range(2):
            if kind == 'first' and hf == 0: continue
            if kind == 'drain' and hf == 1: continue
            hs = [n for n, f in enumerate(slots) if (f >> 4) == hf]
            groups = bstage(hf, len(hs))
            for gi, g in enumerate(groups): add(hs[gi], g)
            nm = f'{kind}{hf}'
            add(hs[-2], [f'v_cmp_nge_f32 vcc, s{56+hf}, v{VTS}'])
            add(hs[-1], [f's_cbranch_vccnz LF_rare{nm}', f'LF_ret{nm}:', f'v_add_f32 v{VLS}, v{VLS}, v{VTS}'])
            outl.append(('rare', nm, hf))
        for hf in range(2):
            if kind == 'drain' and hf == 1: continue
            nm = f'{kind}{hf}'
            first_slot = [n for n, f in enumerate(slots) if (f >> 4) == hf][0]
            fl.setdefault(('pre', first_slot), []).extend(
                ['s_cmp_ge_u32 s62, s66', f's_cbranch_scc1 LF_evt{nm}', f'LF_eret{nm}:'])
            add(first_slot, ['s_add_u32 s62, s62, 1'])
            outl.append(('evt', nm, hf))
        return bb, fl, add, pos, slots

    def prep_next():
        return [['s_add_u32 s55, s55, 1', 's_and_b32 s50, s55, 1'],
                ['s_lshl_b32 s50, s50, 15', 's_cmp_ge_u32 s55, s47'],
                ['s_cselect_b32 s69, s67, 0', 's_add_u32 s50, s50, s69', f's_add_u32 s50, s50, {KSL}']]
    def barrier_blk():
        return ['s_waitcnt vmcnt(0) lgkmcnt(0)', 's_barrier',
                f'v_add_u32 v{VV}, {(VSL - KSL) & 0xffffffff:#x}, v{VK}',
                f'v_add_u32 v{VK}, s50, v{VL16}']
    def dma_issue(name):
        L = f'buffer_load_dwordx4 v{VL16}, s[8:11], s43 offen{LS} lds'
        L2 = f'buffer_load_dwordx4 v{VL16}, s[8:11], s43 offen offset:1024{LS} lds'
        g = []
        g.append([f's_add_u32 m0, s64, {VSL}', 's_add_u32 s43, s45, s63', L])
        g.append([L2, 's_cmp_lt_u32 s55, s47'])
        g.append([f's_cbranch_scc1 LF_nov2{name}', '@COND', f's_add_u32 m0, s64, {VSL + 16384}', 's_add_u32 s43, s43, 16384', L, L2,
                  's_add_u32 s63, s63, 16384', '@ENDCOND', f'LF_nov2{name}:'])
        g.append(['s_add_u32 s63, s63, 16384', 's_xor_b32 s64, s64, 32768'])
        g.append([f's_add_u32 m0, s64, {KSL}', 's_add_u32 s43, s44, s63', L])
        g.append([L2, 's_add_u32 s65, s55, 1', 's_cmp_lt_u32 s65, s47'])
        g.append([f's_cbranch_scc1 LF_nok{name}', '@COND', f's_add_u32 m0, s64, {KSL + 16384}', 's_add_u32 s43, s43, 16384', L, L2,
                  '@ENDCOND', f'LF_nok{name}:'])
        return g

    bb, fl, add, pos, slots = step('first')
    for n in range(4): p(frag_read(slots[n]))
    nS = len(slots)
    for gi, g in enumerate(prep_next()): add(4 + gi, g)
    add(nS - 4, barrier_blk())
    for n in range(4): add(nS - 4 + n, [frag_read(n)])
    interleave(p, bb, fl)
    p.begin_loop()
    p.label('LF_loop')
    bb, fl, add, pos, slots = step('loop')
    XP = os.environ.get('XP', '')
    if 'nodma' not in XP:
        for gi, g in enumerate(dma_issue('loop')): add(1 + 3 * gi, g)
    for gi, g in enumerate(prep_next()): add(23 + gi, g)
    nb_ = barrier_blk()
    if 'nobar' in XP: nb_ = [x for x in nb_ if x != 's_barrier']
    add(28, nb_)
    for n in range(4): add(28 + n if n < 3 else 30, [frag_read(n)])
    add(30, ['s_cmp_lt_u32 s55, 17'])
    if XP:
        for kk_ in fl: fl[kk_] = [x for x in fl[kk_] if not (isinstance(x, str) and x.startswith('s_cbranch_vccnz'))]
    if 'noexp' in XP:
        for kk_ in fl: fl[kk_] = [x.replace('v_exp_f32', 'v_mov_b32') if isinstance(x, str) else x for x in fl[kk_]]
    if 'novalu' in XP:
        for kk_ in fl: fl[kk_] = [x for x in fl[kk_] if not (isinstance(x, str) and x.startswith(('v_exp', 'v_add_f32 v7', 'v_cvt')))]
    if 'nolds' in XP:
        for kk_ in fl: fl[kk_] = [x for x in fl[kk_] if not (isinstance(x, str) and x.startswith('ds_read'))]
    interleave(p, bb, fl)
    p('s_cbranch_scc1 LF_loop')
    p.end_loop()
    st.stamp()
    p('s_waitcnt lgkmcnt(0)')
    bb, fl, add, pos, slots = step('drain')
    for n in range(4): p(frag_read(slots[n]))
    interleave(p, bb, fl)
    st.stamp()
    p(f'''
v_mov_b32 v9, v{VLS}
v_permlane32_swap_b32 v{VLS}, v9
v_add_f32 v{VLS}, v{VLS}, v9
s_waitcnt lgkmcnt(0)
s_barrier
''')
    p(f'''
s_mul_i32 s49, s20, 8704
s_xor_b32 s50, s20, 4
s_mul_i32 s50, s50, 8704
v_add_u32 v9, s49, v{VL16}
v_add_u32 v10, s50, v{VL16}
v_lshrrev_b32 v11, 1, v{VL16}
v_add_u32 v12, s49, v11
v_add_u32 v13, s50, v11
v_mov_b32 v14, v{VLS}
v_mov_b32 v15, v{VM}
s_cmp_eq_u32 s25, 0
s_cbranch_scc1 LF_mg0
''')
    X = TT
    alt = p.begin_alt(join=True)
    for g in (1, 0):
        p.alt_branch(alt)
        if g == 0: p.label('LF_mg0')
        keep = O + 32 * g; send = O + 32 * (1 - g)
        for k in range(8): p(f'ds_write_b128 v9, {vr(send+4*k,4)} offset:{k*1024}')
        p('ds_write_b64 v12, v[14:15] offset:8192')
        p('s_waitcnt lgkmcnt(0)')
        p('s_barrier')
        p(f'ds_read_b64 v[{E}:{E+1}], v13 offset:8192')
        for k in range(8): p(f'ds_read_b128 {vr(X+4*k,4)}, v10 offset:{k*1024}')
        p(f'''
v_max_f32 v{E+2}, v{VM}, v{E+1}
v_sub_f32 v{E+3}, v{VM}, v{E+2}
v_sub_f32 v{E+4}, v{E+1}, v{E+2}
v_exp_f32 v{E+3}, v{E+3}
v_exp_f32 v{E+4}, v{E+4}
v_mul_f32 v{E+5}, v{E+3}, v{VLS}
v_fmac_f32 v{E+5}, v{E+4}, v{E}
v_rcp_f32 v{E+5}, v{E+5}
v_mul_f32 v{E+3}, v{E+3}, v{E+5}
v_mul_f32 v{E+4}, v{E+4}, v{E+5}
''')
        for i in range(32):
            p(f'v_mul_f32 v{keep+i}, v{keep+i}, v{E+3}')
            p(f'v_fmac_f32 v{keep+i}, v{X+i}, v{E+4}')
        for i in range(16): p(f'v_cvt_pk_bf16_f32 v{S[0]+i}, v{keep+2*i}, v{keep+2*i+1}')
        p(f'''
s_mul_i32 s52, s28, {AF_MT}
s_lshl_b32 s54, s21, 13
s_add_u32 s52, s52, s54
s_add_u32 s52, s52, {AF_OFF + g*4096:#x}
''')
        for k in range(4): p(f'buffer_store_dwordx4 {vr(S[0]+4*k,4)}, v{VL16}, s[8:11], s52 offen offset:{k*1024}{SC}')
        if g == 1: p('s_branch LF_p4')
        p.end_branch()
    p.label('LF_p4')
    st.stamp()
    NK = 43; D = int(os.environ.get("K3D", "4"))
    VA1 = 2; VW = 3; VT = [4, 5]
    ACT = 16; WF4 = 80; ACC4 = 96
    AF_END = AF_OFF + 64 * AF_MT
    p(f"""
s_load_dwordx2 s[28:29], s[0:1], 40
s_load_dwordx4 s[32:35], s[0:1], 72
s_load_dwordx2 s[30:31], s[0:1], 0
s_load_dwordx2 s[36:37], s[0:1], 96
v_and_b32 v10, 63, v0
v_add_u32 v{VA1}, {AF_MT}, v{VL16}
v_lshrrev_b32 v11, 3, v10
v_and_b32 v12, 7, v10
v_bfe_u32 v13, v10, 4, 1
v_lshlrev_b32 v13, 2, v13
v_xor_b32 v12, v12, v13
v_lshlrev_b32 v12, 4, v12
v_lshl_add_u32 v{VW}, v11, 10, v12
v_lshrrev_b32 v11, 5, v10
v_bfe_u32 v12, v10, 2, 2
v_lshl_add_u32 v13, v11, 2, v12
v_lshlrev_b32 v13, 7, v13
v_lshrrev_b32 v12, 1, v12
v_lshl_add_u32 v13, v12, 6, v13
v_bfe_u32 v12, v10, 4, 1
v_lshl_add_u32 v13, v12, 5, v13
v_and_b32 v12, 3, v10
v_lshl_add_u32 v13, v12, 3, v13
s_lshl_b32 s25, s20, 14
v_add_u32 v{VT[0]}, s25, v13
v_xor_b32 v{VT[1]}, 64, v{VT[0]}
s_mul_i32 s26, s20, 43
s_cmp_ge_u32 s20, 4
s_cselect_b32 s27, 1, 0
s_sub_u32 s26, s26, s27
s_cmp_ge_u32 s20, 5
s_cselect_b32 s27, 1, 0
s_sub_u32 s26, s26, s27
s_and_b32 s44, s23, 7
s_bfe_u32 s45, s23, 0x10003
s_cmp_ge_u32 s24, 4
s_cselect_b32 s46, 8, 0
s_add_u32 s46, s46, s22
s_lshl_b32 s47, s46, 1
s_add_u32 s47, s47, s45
s_sub_u32 s48, 15, s24
s_add_u32 s48, s48, {CNT_CTX}
s_lshl_b32 s48, s48, 2
s_add_u32 s49, s24, {CNT_CTX}
s_lshl_b32 s49, s49, 2
s_add_u32 s50, s46, {CNT_CTX}
s_lshl_b32 s50, s50, 2
""")
    st.stamp()
    p('s_waitcnt vmcnt(0) lgkmcnt(0)')
    st.stamp()
    p('s_barrier')
    st.stamp()
    emit(publish([48]))
    p('s_cmp_lg_u32 s24, 7')
    p('s_cbranch_scc1 LF_nopubS2')
    emit(publish([49]))
    p.label('LF_nopubS2')
    srd(p, 12, 36, 37, AF_END)
    srd(p, 16, 30, 31, 2 << 20)
    srd(p, 36, 34, 35, 2 << 20)
    p(f"""
s_cmp_ge_u32 s20, 6
s_cselect_b32 s4, s32, s28
s_cselect_b32 s5, s33, s29
s_mov_b32 s6, 0x400000
s_cselect_b32 s6, 0x158000, s6
s_and_b32 s5, s5, 0xffff
s_mov_b32 s7, 0x00020000
s_mul_i32 s40, s47, {2*AF_MT}
s_lshl_b32 s43, s26, 10
s_add_u32 s40, s40, s43
s_add_u32 s40, s40, {AF_OFF:#x}
s_cmp_ge_u32 s20, 6
s_cselect_b32 s43, 256, 0
s_sub_u32 s43, s26, s43
s_lshl_b32 s42, s43, 14
s_lshl_b32 s43, s44, 7
s_add_u32 s42, s42, s43
s_sub_u32 s51, s20, 4
s_cmp_lt_u32 s51, 2
s_cselect_b32 s41, 0x7fff0000, s40
s_cselect_b32 s52, 0x4000, 0
s_add_u32 s52, s52, s42
""")
    def wloads(ks):
        sl = ks % D
        if ks == 0:
            a0 = ['s_mov_b32 s54, s52', 's_add_u32 s53, s52, 0x2000']
        else:
            a0 = [f's_add_u32 s54, s42, {ks*16384}', f's_add_u32 s53, s42, {ks*16384+8192}']
        return [f's_add_u32 m0, s25, {sl*2048}'] + a0 + [
                (lambda pp: pp(f'buffer_load_dwordx4 v{VW}, s[4:7], s54 offen lds', f'x{ks}')),
                f's_add_u32 m0, s25, {sl*2048+1024}', 's_nop 0',
                (lambda pp: pp(f'buffer_load_dwordx4 v{VW}, s[4:7], s53 offen lds', f'x{ks}'))]
    def aloads(ks):
        a = ACT + 8 * (ks % D)
        pre = ['s_mov_b32 s55, s41'] if ks == 0 else [f's_add_u32 s55, s40, {ks*1024}']
        return pre + [f'buffer_load_dwordx4 {vr(a,4)}, v{VL16}, s[12:15], s55 offen{LS}',
                      f'buffer_load_dwordx4 {vr(a+4,4)}, v{VA1}, s[12:15], s55 offen{LS}']
    def trr(ks):
        sl = ks % D; out = [lambda pp: pp.wait_tag(f'x{ks}')]
        for nt in range(2):
            w = WF4 + 8 * (ks & 1) + 4 * nt
            out.append((lambda pp, w=w, nt=nt: pp(f'ds_read_b64_tr_b16 {vr(w,2)}, v{VT[nt]} offset:{sl*2048}', f'r{ks}')))
            out.append((lambda pp, w=w, nt=nt: pp(f'ds_read_b64_tr_b16 {vr(w+2,2)}, v{VT[nt]} offset:{sl*2048+1024}', f'r{ks}')))
        return out
    for ks in range(D): emit(wloads(ks))
    p(f"""
s_lshr_b32 s56, s20, 2
s_bfe_u32 s57, s20, 0x10001
s_and_b32 s58, s20, 1
s_lshl_b32 s59, s47, 6
s_lshl_b32 s60, s57, 5
s_add_u32 s59, s59, s60
s_lshl_b32 s59, s59, 10
s_lshl_b32 s60, s44, 6
s_lshl_b32 s61, s56, 5
s_add_u32 s60, s60, s61
s_lshl_b32 s61, s58, 4
s_add_u32 s60, s60, s61
s_lshl_b32 s60, s60, 1
s_add_u32 s59, s59, s60
v_and_b32 v11, 31, v10
v_lshrrev_b32 v12, 5, v10
v_lshlrev_b32 v11, 10, v11
v_lshl_add_u32 v9, v12, 3, v11
buffer_load_dwordx2 v[160:161], v9, s[16:19], s59 offen
buffer_load_dwordx2 v[162:163], v9, s[16:19], s59 offen offset:16
""")
    st.stamp()
    emit(poll_noinv([(50, 32)]))
    st.stamp()
    p('s_barrier')
    st.stamp()
    for ks in range(D): emit(aloads(ks))
    emit(trr(0))
    for ks in range(NK):
        a = ACT + 8 * (ks % D)
        if ks + 1 < NK: emit(trr(ks + 1))
        for nt in range(2):
            for mt in range(2):
                w = WF4 + 8 * (ks & 1) + 4 * nt
                acc = vr(ACC4 + 16 * (2 * nt + mt), 16); cc = '0' if ks == 0 else acc
                p(f'{MF} {acc}, {vr(w,4)}, {vr(a+4*mt,4)}, {cc}')
        if ks + D < NK:
            p.wait_tag(f'r{ks}')
            emit(wloads(ks + D)); emit(aloads(ks + D))
    p('s_waitcnt lgkmcnt(0)')
    p('s_barrier')
    p(f'v_add_u32 v6, s25, v{VL16}')
    for b in range(16): p(f'ds_write_b128 v6, {vr(ACC4+4*b,4)} offset:{b*1024}')
    p(f"""
s_lshl_b32 s56, s20, 11
v_add_u32 v7, s56, v{VL16}
v_add_u32 v8, 0x10000, v7
s_waitcnt lgkmcnt(0)
s_barrier
""")
    for src in range(8):
        base = 7 if src < 4 else 8
        for b in range(2):
            p(f'ds_read_b128 {vr(16+8*src+4*b,4)}, v{base} offset:{(src%4)*16384 + b*1024}')
    for i in range(8):
        p(f'v_add_f32 v{16+i}, v{16+i}, v{24+i}')
        p(f'v_add_f32 v{32+i}, v{32+i}, v{40+i}')
        p(f'v_add_f32 v{48+i}, v{48+i}, v{56+i}')
        p(f'v_add_f32 v{64+i}, v{64+i}, v{72+i}')
    for i in range(8):
        p(f'v_add_f32 v{16+i}, v{16+i}, v{32+i}')
        p(f'v_add_f32 v{16+i}, v{16+i}, v{48+i}')
    for i in range(4):
        p(f'v_cvt_pk_bf16_f32 v{24+i}, v{16+2*i}, v{17+2*i}')
        p(f'v_cvt_pk_bf16_f32 v{72+i}, v{64+2*i}, v{65+2*i}')
    for i in range(4):
        p(f'v_lshlrev_b32 v{16+2*i}, 16, v{24+i}')
        p(f'v_and_b32 v{17+2*i}, 0xffff0000, v{24+i}')
        p(f'v_lshlrev_b32 v{64+2*i}, 16, v{72+i}')
        p(f'v_and_b32 v{65+2*i}, 0xffff0000, v{72+i}')
    NL2E = f2u(-math.log2(math.e))
    for i in range(8): p(f'v_mul_f32 v{32+i}, {NL2E:#x}, v{64+i}')
    for i in range(8): p(f'v_exp_f32 v{32+i}, v{32+i}')
    for i in range(8): p(f'v_add_f32 v{32+i}, 1.0, v{32+i}')
    for i in range(8): p(f'v_rcp_f32 v{32+i}, v{32+i}')
    for i in range(8): p(f'v_mul_f32 v{32+i}, v{32+i}, v{64+i}')
    for i in range(4): p(f'v_cvt_pk_bf16_f32 v{40+i}, v{32+2*i}, v{33+2*i}')
    for i in range(4):
        p(f'v_lshlrev_b32 v{32+2*i}, 16, v{40+i}')
        p(f'v_and_b32 v{33+2*i}, 0xffff0000, v{40+i}')
    for i in range(8): p(f'v_mul_f32 v{32+i}, v{32+i}, v{16+i}')
    for i in range(4): p(f'v_cvt_pk_bf16_f32 v{40+i}, v{32+2*i}, v{33+2*i}')
    for i in range(4):
        p(f'v_lshlrev_b32 v{32+2*i}, 16, v{40+i}')
        p(f'v_and_b32 v{33+2*i}, 0xffff0000, v{40+i}')
        p(f'v_lshlrev_b32 v{48+2*i}, 16, v{160+i}')
        p(f'v_and_b32 v{49+2*i}, 0xffff0000, v{160+i}')
    for i in range(8): p(f'v_add_f32 v{32+i}, v{32+i}, v{48+i}')
    for i in range(4): p(f'v_cvt_pk_bf16_f32 v{40+i}, v{32+2*i}, v{33+2*i}')
    p('buffer_store_dwordx2 v[40:41], v9, s[36:39], s59 offen')
    p('buffer_store_dwordx2 v[42:43], v9, s[36:39], s59 offen offset:16')
    if PROF: p('s_waitcnt vmcnt(0)')
    st.stamp()
    st.dump(p, 8, 0, 20, 50, 57, 8)
    p('s_endpgm')

    ool = p.begin_alt()
    def routine(name):
        p.alt_branch(ool); p.label(name)
    def fin_code():
        p(f"""
s_nop 15
s_nop 7
v_mov_b32 v9, v{VLSAVE}
v_permlane32_swap_b32 v{VLSAVE}, v9
v_add_f32 v9, v{VLSAVE}, v9
v_rcp_f32 v9, v9
s_mul_i32 s52, s27, {AF_MT}
s_lshl_b32 s54, s21, 13
s_add_u32 s52, s52, s54
s_add_u32 s52, s52, {AF_OFF:#x}
s_add_u32 s53, s52, 4096
""")
        for half in range(2):
            for i in range(32): p(f'v_mul_f32 v{O+32*half+i}, v{O+32*half+i}, v9')
            for i in range(16): p(f'v_cvt_pk_bf16_f32 v{TT+16*half+i}, v{O+32*half+2*i}, v{O+32*half+2*i+1}')
            for k in range(4): p(f'buffer_store_dwordx4 {vr(TT+16*half+4*k,4)}, v{VL16}, s[8:11], s{52+half} offen offset:{k*1024}{SC}')
        for i in range(64): p(f'v_mov_b32 v{O+i}, 0')
    for kind, nm, hf in outl:
        if kind == 'evt':
            routine(f'LF_evt{nm}')
            p('s_lshl_b32 s68, s47, 1')
            if nm in ('loop0', 'drain0'):
                p(f"""
s_add_u32 s69, s68, 2
s_cmp_lg_u32 s62, s69
s_cbranch_scc1 LF_nofin{nm}
s_cmp_eq_u32 s25, 0
s_cbranch_scc1 LF_nofin{nm}
""")
                fin_code()
                p.label(f'LF_nofin{nm}')
            if nm == 'loop0':
                p(f"""
s_add_u32 s69, s68, 4
s_cmp_lg_u32 s62, s69
s_cbranch_scc1 LF_nopubS
s_add_u32 s69, s24, {CNT_CTX}
s_lshl_b32 s69, s69, 2
""")
                emit(publish([69]))
                p(f"""
LF_nopubS:
s_cmp_lg_u32 s62, s68
s_cbranch_scc1 LF_nosw
s_cmp_eq_u32 s25, 0
s_cbranch_scc1 LF_nosw
s_lshl_b32 s69, s26, 13
s_add_u32 s69, s69, {QX}
v_add_u32 v9, s69, v{VL16}
s_nop 7
""")
                for ks in range(8): p(f'ds_read_b128 {vr(Q+4*ks,4)}, v9 offset:{ks*1024}')
                for i in range(16): p(f'v_mov_b32 v{MN+i}, 0')
                p(f"""
v_mov_b32 v{VM}, 0
s_mov_b32 s61, s28
s_mov_b32 s60, 0
s_waitcnt lgkmcnt(0)
LF_nosw:
""")
            if nm == 'loop1':
                p(f"""
s_add_u32 s69, s68, 1
s_cmp_lg_u32 s62, s69
s_cbranch_scc1 LF_nomid
s_cmp_eq_u32 s25, 0
s_cbranch_scc1 LF_nomid
v_mov_b32 v{VLSAVE}, v{VLS}
v_mov_b32 v{VLS}, 0
s_mov_b32 s60, 1.0
s_mov_b32 s57, 0xbf800000
s_mov_b32 s58, {FLOOR1:#x}
s_mov_b32 s59, 1
LF_nomid:
""")
            if nm != 'drain0':
                p(f"""
s_lshr_b32 s68, s62, 1
s_lshl_b32 s69, s68, 1
s_sub_u32 s69, s69, s47
s_add_u32 s69, s69, s25
s_cmp_ge_u32 s68, s47
s_cselect_b32 s68, s69, s68
s_lshl_b32 s68, s68, 1
s_add_u32 s68, s68, {hf}
s_cmp_lt_u32 s68, s61
s_cbranch_scc1 LF_nomask{nm}
s_sub_u32 s68, s61, s68
s_lshl_b32 s68, s68, 5
v_add_u32 v9, s68, v{VZ}
v_mov_b32 v10, {NEG:#x}
""")
                for r in range(16):
                    cr = 8 * (r >> 2) + (r & 3)
                    p(f'v_cmp_gt_i32 vcc, {cr}, v9')
                    p(f'v_cndmask_b32 v{MN+r}, v{MN+r}, v10, vcc')
                p.label(f'LF_nomask{nm}')
            p(f"""
s_add_u32 s68, s62, 1
s_max_u32 s66, s68, 32
s_cmp_le_u32 s68, s49
s_cselect_b32 s66, s68, s66
s_branch LF_eret{nm}
""")
            p.end_branch()
        else:
            routine(f'LF_rare{nm}')
            c = S[1 - hf]; nx = S[hf]; pc = PP[1 - hf]
            p('s_nop 15\ns_nop 7')
            p(f'v_max3_f32 v9, v{c}, v{c+1}, v{c+2}')
            for k in range(3, 15, 2): p(f'v_max3_f32 v9, v9, v{c+k}, v{c+k+1}')
            p(f'v_max_f32 v9, v9, v{c+15}')
            p(f'''
v_mov_b32 v10, v9
v_permlane32_swap_b32 v9, v10
v_max_f32 v9, v9, v10
v_max_f32 v9, s58, v9
v_sub_f32 v10, 0, v9
v_min_f32 v10, 0x42fc0000, v10
v_exp_f32 v10, v10
v_mul_f32 v11, s60, v9
''')
            for k in range(16): p(f'v_sub_f32 v{c+k}, v{c+k}, v9')
            for k in range(16): p(f'v_exp_f32 v{TT+k}, v{c+k}')
            p(f'v_add_f32 v{VTS}, v{TT}, v{TT+1}')
            for k in range(2, 16): p(f'v_add_f32 v{VTS}, v{VTS}, v{TT+k}')
            for k in range(8): p(f'v_cvt_pk_bf16_f32 v{pc+k}, v{TT+2*k}, v{TT+2*k+1}')
            for k in range(16): p(f'v_sub_f32 v{nx+k}, v{nx+k}, v11')
            for k in range(16): p(f'v_sub_f32 v{MN+k}, v{MN+k}, v11')
            p(f'v_add_f32 v{VM}, v{VM}, v11')
            p(f'v_mul_f32 v{VLS}, v{VLS}, v10')
            p('s_cmp_lg_u32 s59, 0')
            p(f's_cbranch_scc1 LF_rskip{nm}')
            for k in range(64): p(f'v_mul_f32 v{O+k}, v{O+k}, v10')
            p.label(f'LF_rskip{nm}')
            p(f'''
s_mov_b32 s{56+hf}, {THR:#x}
''')
            if hf == 1:
                p('s_mov_b32 s58, 0\ns_mov_b32 s59, 0')
            if nm == 'loop1': p('s_cmp_lt_u32 s55, 17')
            p(f's_branch LF_ret{nm}')
            p.end_branch()
    p.alt_branch(ool); emit_slow(); p.end_branch()
    p.label('LF_end')
    p('s_endpgm')
    return ('kf_kernel', p, 256, 512, 163840, 256, 256)
```

```python
import sys
sys.path.insert(0, 'gen')
from common import *
import importlib, os

HEADER = open('cdna_kernels/' + NAME + '.s.ref').read().split('; Override launch')[0]

def build(kernels, path):
    s = HEADER
    single = len(kernels) == 1 and os.environ.get('SINGLE', '1') == '1'
    if single:
        k0 = list(kernels[0]); k0[0] = NAME + '_kernel'; kernels = [tuple(k0)]
    for (name, prog, grid, block, lds, vgpr, accum) in kernels:
        if single: s += f'; @launch grid=({grid},1,1) block=({block},1,1) lds={lds}\n'
        else: s += f'; @launch kernel={name} grid=({grid},1,1) block=({block},1,1) lds={lds}\n'
    s += '.amdgcn_target "amdgcn-amd-amdhsa--gfx950"\n.text\n'
    for (name, prog, grid, block, lds, vgpr, accum) in kernels:
        body, info = render(prog.items, name)
        mod = os.environ.get('STMOD_' + name[:2].upper(), os.environ.get('STMOD', ''))
        if mod:
            import re as _re
            body = _re.sub(r'(buffer_store_dwordx4 [^\n]*)', lambda m: m.group(1) + ' ' + mod, body)
        print(name, info, file=sys.stderr)
        s += f'.globl {name}\n.p2align 8\n.type {name},@function\n{name}:\n' + body
    for (name, prog, grid, block, lds, vgpr, accum) in kernels:
        s += kd(name, vgpr, accum)
    open(path, 'w').write(s)

if __name__ == '__main__':
    which = sys.argv[1] if len(sys.argv) > 1 else 'all'
    out = sys.argv[2] if len(sys.argv) > 2 else 'cdna_kernels/' + NAME + '.s'
    ks = []
    if which.startswith('f'):
        from kf import gen_kf
        ks.append(gen_kf())
        if which == 'f3':
            from k3 import gen_k3
            ks.append(gen_k3())
        build(ks, out); sys.exit(0)
    from k1 import gen_k1
    ks.append(gen_k1())
    if which in ('all', 'k12'):
        from k2 import gen_k2
        ks.append(gen_k2())
    if which == 'all':
        from k3 import gen_k3
        ks.append(gen_k3())
    build(ks, out)
```

```python
from common import *
from k1 import ln_stream
import struct, math

def f2u(x): return struct.unpack('<I', struct.pack('<f', x))[0]
MF = 'v_mfma_f32_32x32x16_bf16'
SC = os.environ.get('FSC', ' sc1')
CNT_LN = 0; CNT_KV = 16; CNT_CTX = 32; CNT_REG = 48
LS = os.environ.get('LS', ' sc1')
SPIN_MAX = 1 << 22

KVSC = os.environ.get('KVSC', '')
def gen_kf():
    p = Prog()
    st = Stamps(p, 70, 10)
    st.skip = set(int(x) for x in os.environ.get('STSKIP', '').split(',') if x)
    def emit(lst):
        for f in lst:
            if isinstance(f, list): emit(f)
            elif callable(f): f(p)
            else: p(f)
    VL16 = 1
    uid = [0]
    def publish(sreg_idx_list):
        uid[0] += 1; L = f'LF_pub{uid[0]}'
        out = ['s_cmp_lg_u32 s20, 0', f's_cbranch_scc1 {L}', '@COND', 'v_mov_b32 v14, 1', 'v_mov_b32 v15, 0', 's_mov_b64 exec, 1']
        for s in sreg_idx_list:
            out.append(f'buffer_atomic_add v14, v15, s[96:99], s{s} offen sc1')
        out += ['s_mov_b64 exec, -1', '@ENDCOND', f'{L}:']
        return out
    def poll(pairs):
        uid[0] += 1; L = f'LF_poll{uid[0]}'
        out = ['s_cmp_lg_u32 s20, 0', f's_cbranch_scc1 {L}_done', '@COND', 'v_mov_b32 v15, 0', f's_mov_b32 s3, {SPIN_MAX}']
        for n, (s, tgt) in enumerate(pairs):
            out += [f'{L}_{n}:',
                    f'buffer_load_dword v14, v15, s[96:99], s{s} offen sc1',
                    's_waitcnt vmcnt(0)',
                    'v_readfirstlane_b32 s100, v14',
                    's_sub_u32 s3, s3, 1',
                    's_cmp_eq_u32 s3, 0',
                    f's_cbranch_scc1 {L}_acq',
                    f's_cmp_ge_u32 s100, {tgt}',
                    f's_cbranch_scc1 {L}_{n}_ok',
                    's_sleep 2',
                    f's_branch {L}_{n}',
                    f'{L}_{n}_ok:']
        out += [f'{L}_acq:', 'buffer_inv sc1', 's_waitcnt vmcnt(0)', '@ENDCOND', f'{L}_done:']
        return out
    def poll_noinv(pairs):
        out = poll(pairs)
        i = out.index('buffer_inv sc1')
        return out[:i] + out[i + 2:]
    slow = []
    def poll_issue(sregs):
        uid[0] += 1; L = f'LF_pi{uid[0]}'
        out = ['s_cmp_lg_u32 s20, 0', f's_cbranch_scc1 {L}', '@COND', 'v_mov_b32 v8, 0']
        for n, s in enumerate(sregs): out.append(f'buffer_load_dword v{14+n}, v8, s[96:99], s{s} offen sc1')
        out += ['@ENDCOND', f'{L}:']
        return out
    def poll_check(pairs, inv_flag=None):
        uid[0] += 1; L = f'LF_pc{uid[0]}'
        out = ['s_cmp_lg_u32 s20, 0', f's_cbranch_scc1 {L}', '@COND']
        for n, (s, tgt) in enumerate(pairs):
            out += [f'v_readfirstlane_b32 s100, v{14+n}', f's_cmp_lt_u32 s100, {tgt}', f's_cbranch_scc1 {L}_slow']
        out += [f'{L}_ok:']
        if inv_flag is not None and inv_flag >= 0:
            out += [f's_cmp_lg_u32 s{inv_flag}, 0', f's_cbranch_scc1 {L}', (lambda pp: pp('buffer_inv sc1', 'inv'))]
        elif inv_flag is not None:
            out += [(lambda pp: pp('buffer_inv sc1', 'inv'))]
        out += ['@ENDCOND', f'{L}:']
        slow.append((L, pairs))
        return out
    def publish_kv():
        uid[0] += 1; L = f'LF_pkv{uid[0]}'
        return ['s_cmp_lg_u32 s20, 0', f's_cbranch_scc1 {L}', '@COND',
                'v_readfirstlane_b32 s100, v15',
                's_and_b32 s3, s100, 63', 's_bfe_u32 s29, s100, 0x90006', 's_lshr_b32 s30, s100, 15',
                's_mul_i32 s29, s29, s29', 's_lshl_b32 s30, s30, 5',
                's_cmp_eq_u32 s29, s30', 's_cselect_b32 s94, 1, 0',
                's_cmp_eq_u32 s3, 32', 's_cselect_b32 s94, s94, 0',
                's_cmp_lg_u32 s94, 0', f's_cbranch_scc1 {L}_fast',
                'buffer_wbl2 sc1', 's_waitcnt vmcnt(0)',
                f'{L}_fast:',
                'v_mov_b32 v14, 1', 'v_mov_b32 v15, 0', 's_mov_b64 exec, 1',
                'buffer_atomic_add v14, v15, s[96:99], s33 offen sc1',
                's_mov_b64 exec, -1', '@ENDCOND', f'{L}:']
    def w0_drain():
        uid[0] += 1; L = f'LF_dr{uid[0]}'
        return ['s_cmp_lg_u32 s20, 0', f's_cbranch_scc1 {L}', '@COND', (lambda pp: pp.wait_tag('inv')), '@ENDCOND', f'{L}:']
    def emit_slow():
        for L, pairs in slow:
            p.label(f'{L}_slow')
            p(f's_mov_b32 s3, {SPIN_MAX}')
            p('v_mov_b32 v8, 0')
            for n, (s, tgt) in enumerate(pairs):
                p(f"""
{L}_s{n}:
buffer_load_dword v14, v8, s[96:99], s{s} offen sc1
s_waitcnt vmcnt(0)
v_readfirstlane_b32 s100, v14
s_sub_u32 s3, s3, 1
s_cmp_eq_u32 s3, 0
s_cbranch_scc1 {L}_ok
s_cmp_ge_u32 s100, {tgt}
s_cbranch_scc1 {L}_s{n}_ok
s_sleep 2
s_branch {L}_s{n}
{L}_s{n}_ok:
""")
            p(f's_branch {L}_ok')
    p(f'''
s_cmp_ge_u32 s2, 256
s_cbranch_scc1 LF_end
s_load_dwordx4 s[28:31], s[0:1], 0
s_load_dwordx4 s[32:35], s[0:1], 24
s_load_dwordx4 s[36:39], s[0:1], 88
s_load_dwordx4 s[64:67], s[0:1], 56
s_load_dwordx2 s[68:69], s[0:1], 16
s_load_dwordx2 s[56:57], s[0:1], 40
s_load_dwordx2 s[58:59], s[0:1], 72
v_lshrrev_b32 v9, 6, v0
v_and_b32 v10, 63, v0
v_readfirstlane_b32 s20, v9
s_and_b32 s22, s2, 7
s_lshr_b32 s23, s2, 3
''')
    st.stamp()
    p('''
s_and_b32 s48, s23, 1
s_bfe_u32 s49, s23, 0x10001
s_lshr_b32 s50, s23, 2
s_lshl_b32 s51, s22, 9
s_lshl_b32 s3, s48, 8
s_add_u32 s51, s51, s3
''')
    p(f'v_lshlrev_b32 v{VL16}, 4, v10')
    STG = 65536
    p('''
v_lshrrev_b32 v11, 3, v10
v_and_b32 v12, 7, v10
v_lshrrev_b32 v13, 4, v10
v_xor_b32 v14, v12, v13
v_lshlrev_b32 v14, 4, v14
v_lshl_add_u32 v2, v11, 10, v14
v_xor_b32 v3, 64, v2
''')
    p('''
v_and_b32 v13, 1, v13
v_lshlrev_b32 v13, 2, v13
v_xor_b32 v14, v12, v13
v_lshlrev_b32 v14, 4, v14
v_lshl_add_u32 v4, v11, 13, v14
''')
    p(f'''
v_and_b32 v11, 31, v10
v_lshrrev_b32 v12, 5, v10
v_bfe_u32 v13, v11, 1, 3
v_xor_b32 v13, v12, v13
v_lshlrev_b32 v13, 4, v13
v_lshl_add_u32 v13, v11, 7, v13
s_lshl_b32 s52, s20, 13
s_add_u32 s52, s52, {STG}
v_add_u32 v16, s52, v13
v_xor_b32 v17, 32, v16
v_xor_b32 v18, 64, v16
v_xor_b32 v19, 96, v16
''')
    p('''
v_bfe_u32 v11, v10, 2, 2
v_lshl_add_u32 v13, v12, 3, v11
v_lshlrev_b32 v13, 7, v13
v_lshrrev_b32 v11, 1, v11
v_lshl_add_u32 v13, v11, 6, v13
v_bfe_u32 v11, v10, 4, 1
v_lshl_add_u32 v13, v11, 5, v13
v_and_b32 v11, 3, v10
v_lshl_add_u32 v20, v11, 3, v13
v_xor_b32 v21, 64, v20
v_add_u32 v22, 0x8000, v20
v_add_u32 v23, 0x8000, v21
v_add_u32 v24, 0x20000, v20
v_add_u32 v25, 0x20000, v21
v_add_u32 v26, 0x10000, v20
v_add_u32 v27, 0x10000, v21
v_lshlrev_b32 v14, 7, v10
v_lshrrev_b32 v15, 2, v10
v_lshlrev_b32 v15, 13, v15
v_and_b32 v11, 3, v10
v_lshl_add_u32 v15, v11, 7, v15
v_lshrrev_b32 v5, 1, v10
v_lshlrev_b32 v5, 10, v5
v_and_b32 v11, 1, v10
v_lshl_add_u32 v5, v11, 9, v5
''')
    p('s_waitcnt lgkmcnt(0)')
    srd(p, 12, 30, 31, 2 << 20)
    srd(p, 16, 28, 29, 2 << 20)
    srd(p, 8, 38, 39, WS_BYTES)
    srd(p, 96, 36, 37, 256)
    p('''
s_cmp_eq_u32 s49, 0
s_cselect_b32 s4, s32, s34
s_cselect_b32 s5, s33, s35
s_and_b32 s5, s5, 0xffff
s_mov_b32 s6, 0x400000
s_mov_b32 s7, 0x00020000
s_lshl_b32 s40, s50, 8
s_lshl_b32 s41, s20, 5
s_add_u32 s40, s40, s41
s_lshl_b32 s40, s40, 10
s_lshl_b32 s42, s20, 18
s_lshl_b32 s43, s51, 1
s_add_u32 s42, s42, s43
s_lshl_b32 s43, s20, 12
''')
    WS = [0, 32768, 131072, 65536]
    def wdma(u, q):
        sc = u >> 1; kh = u & 1
        return [f's_add_u32 m0, s43, {WS[u % 4] + q*1024}',
                f's_add_u32 s53, s42, {(kh*256 + 8*q)*8192 + sc*128}',
                (lambda pp: pp('buffer_load_dwordx4 v4, s[4:7], s53 offen lds', f'w{u}'))]
    def adma(e, jj):
        return [f's_add_u32 m0, s52, {(e&1)*4096 + jj*1024}',
                f's_add_u32 s54, s40, {8*jj*1024 + e*128}',
                (lambda pp: pp(f'buffer_load_dwordx4 v{2+(jj&1)}, s[12:15], s54 offen lds', f'a{e}'))]
    AR = 128
    def aread(e, k):
        ks = 4 * e + k
        return (lambda pp: pp(f'ds_read_b128 {vr(AR+4*ks,4)}, v{16+k} offset:{(e&1)*4096}', f'ar{e}'))
    for jj in range(4): emit(adma(0, jj))
    for q in range(4): emit(wdma(0, q))
    for jj in range(4): emit(adma(1, jj))
    p('''
s_lshl_b32 s29, s2, 3
s_add_u32 s29, s29, s20
s_lshl_b32 s30, s29, 10
''')
    LNR = 96; LNT = 100
    p(f'buffer_load_dwordx4 {vr(LNR,4)}, v{VL16}, s[16:19], s30 offen')
    if 'pf' in os.environ.get('XP1', '').split('_'):
        p("""
s_cmp_lt_u32 s2, 128
s_cselect_b32 s60, s32, s34
s_cselect_b32 s61, s33, s35
s_mov_b32 s62, 0x400000
s_and_b32 s3, s2, 127
s_lshl_b32 s3, s3, 15
s_lshl_b32 s53, s20, 13
s_add_u32 s3, s3, s53
s_lshl_b32 s53, s2, 13
s_cmp_eq_u32 s20, 4
s_cselect_b32 s60, s12, s60
s_cselect_b32 s61, s13, s61
s_cselect_b32 s62, s14, s62
s_cselect_b32 s3, s53, s3
s_cmp_gt_u32 s20, 4
s_cselect_b32 s3, 0x7f000000, s3
s_and_b32 s61, s61, 0xffff
s_mov_b32 s63, 0x00020000
buffer_load_dword v104, v14, s[60:63], s3 offen
""")
    for q in range(4): emit(wdma(1, q))
    p(f'''
s_lshr_b32 s44, s51, 7
s_lshl_b32 s44, s44, 19
s_lshl_b32 s45, s50, 3
s_add_u32 s45, s45, s20
s_lshl_b32 s45, s45, 13
s_add_u32 s44, s44, s45
s_mov_b32 s45, {KF_OFF:#x}
s_mov_b32 s46, {VF_OFF:#x}
s_cmp_eq_u32 s49, 0
s_cselect_b32 s45, s45, s46
s_add_u32 s41, s44, s45
s_lshr_b32 s31, s29, 5
s_lshl_b32 s31, s31, 15
s_and_b32 s3, s29, 31
s_lshl_b32 s3, s3, 4
s_add_u32 s31, s31, s3
s_lshr_b32 s32, s2, 4
s_lshl_b32 s32, s32, 2
s_lshr_b32 s33, s51, 8
s_add_u32 s33, s33, {CNT_KV}
s_lshl_b32 s33, s33, 2
s_getreg_b32 s3, hwreg(HW_REG_XCC_ID, 0, 4)
s_mul_i32 s53, s3, s3
s_lshl_b32 s53, s53, 15
s_lshl_b32 s3, s3, 6
s_add_u32 s53, s53, s3
s_add_u32 s53, s53, 1
s_add_u32 s101, s22, {CNT_REG}
s_lshl_b32 s101, s101, 2
s_cmp_lg_u32 s20, 0
s_cbranch_scc1 LF_noreg
@COND
v_mov_b32 v8, s53
v_mov_b32 v9, 0
s_mov_b64 exec, 1
buffer_atomic_add v8, v9, s[96:99], s101 offen sc1
s_mov_b64 exec, -1
@ENDCOND
LF_noreg:
''')
    if XF_OFF: p(f's_add_u32 s31, s31, {XF_OFF:#x}')
    p('''
s_and_b32 s3, s23, 3
s_lshl_b32 s21, s22, 2
s_add_u32 s21, s21, s3
s_lshr_b32 s24, s23, 2
s_lshr_b32 s25, s20, 2
s_and_b32 s26, s20, 3
s_sub_u32 s28, 15, s24
s_lshl_b32 s28, s28, 2
s_add_u32 s28, s28, s26
s_lshl_b32 s27, s24, 2
s_add_u32 s27, s27, s26
s_cmp_eq_u32 s25, 0
s_cselect_b32 s27, s28, s27
''')
    p.wait_tag('a0')
    for k in range(4): emit([aread(0, k)])
    p.wait_tag('ar0')
    for jj in range(4): emit(adma(2, jj))
    p.wait_tag('w0')
    p('s_barrier')
    st.stamp()
    p('s_cmp_lg_u32 s49, 0')
    p('s_cbranch_scc1 LF_v')

    WF = 32; NST = 4; ACC = 64; PK = 96
    def trread(u, kk):
        out = []
        for nt in range(2):
            w = WF + 8 * (kk % NST) + 4 * nt
            out.append(f'ds_read_b64_tr_b16 {vr(w,2)}, v{20+2*(u%4)+nt} offset:{kk*2048}')
            out.append(f'ds_read_b64_tr_b16 {vr(w+2,2)}, v{20+2*(u%4)+nt} offset:{kk*2048+512}')
        return out
    def kv_epilogue(sc, nt):
        g = []
        PKB = PK if sc < 3 else 32
        for half in range(2):
            pk = PKB + 8 * nt + 4 * half
            for i in range(4):
                s = ACC + 16 * nt + 8 * half + 2 * i
                g.append(f'v_cvt_pk_bf16_f32 v{pk+i}, v{s}, v{s+1}')
        off = (sc >> 1) * 524288 + (sc & 1) * 4096
        st_ = [[f's_add_u32 s55, s41, {off + nt*2048 + half*1024}',
                (lambda pp, half=half: pp(f'buffer_store_dwordx4 {vr(PKB+8*nt+4*half,4)}, v{VL16}, s[8:11], s55 offen{KVSC}', 'kvst'))]
               for half in range(2)]
        return g, st_
    lns = ln_stream(LNR, LNT, LNT + 16)
    lns.append(lambda pp: pp(f'buffer_store_dwordx4 {vr(LNR,4)}, v5, s[8:11], s31 offen{SC}', 'lnst'))
    SLOT = 29184
    GSL = [0, SLOT, 131072, 65536]
    KSL = 0; VSL = 65536; QX = 131072
    GD = 28
    def p2_setup():
        q = Prog(); pp = q
        pp("""
v_and_b32 v10, 63, v0
v_lshrrev_b32 v11, 4, v10
v_bfe_u32 v12, v10, 2, 2
v_and_b32 v13, 3, v11
v_xor_b32 v12, v12, v13
v_lshlrev_b32 v12, 6, v12
v_and_b32 v13, 3, v10
v_lshl_add_u32 v12, v13, 4, v12
v_lshl_add_u32 v12, v11, 13, v12
s_lshl_b32 s29, s26, 17
v_add_u32 v28, s29, v12
v_add_u32 v29, 0x8000, v28
v_add_u32 v30, 0x10000, v28
v_add_u32 v31, 0x18000, v28
s_and_b32 s29, s20, 1
s_mul_i32 s29, s29, 192
s_mov_b32 s30, 43691
s_movk_i32 s34, 2752
s_cmp_eq_u32 s25, 0
s_cselect_b64 s[36:37], -1, 0
""")
        for t in range(3):
            pp(f"""
v_add_u32 v11, s29, v10
v_add_u32 v11, {64*t}, v11
v_mul_lo_u32 v12, v11, s30
v_lshrrev_b32 v12, 18, v12
v_mul_u32_u24 v13, 6, v12
v_sub_u32 v13, v11, v13
v_mul_lo_u32 v12, v12, s34
v_lshl_add_u32 v9, v13, 4, v12
v_cndmask_b32 v{28+t}, v9, v{28+t}, s[36:37]
""")
        pp('v_cndmask_b32 v31, v9, v31, s[36:37]')
        pp("""
v_lshrrev_b32 v11, 5, v10
v_bfe_u32 v12, v10, 2, 2
v_lshl_add_u32 v13, v11, 3, v12
v_lshlrev_b32 v6, 8, v13
v_lshl_add_u32 v6, v12, 6, v6
v_bfe_u32 v7, v10, 4, 1
v_lshl_add_u32 v6, v7, 5, v6
v_and_b32 v9, 3, v10
v_lshl_add_u32 v6, v9, 3, v6
v_mul_u32_u24 v13, 96, v13
v_mul_u32_u24 v7, 6272, v7
v_add_u32 v13, v13, v7
v_lshl_add_u32 v13, v9, 3, v13
v_add_u32 v7, 0x4000, v13
""")
        pp("""
s_mov_b32 s60, s68
s_mov_b32 s61, s69
s_cmp_eq_u32 s20, 2
s_cselect_b32 s60, s64, s60
s_cselect_b32 s61, s65, s61
s_cmp_eq_u32 s20, 3
s_cselect_b32 s60, s66, s60
s_cselect_b32 s61, s67, s61
s_cmp_ge_u32 s20, 4
s_cselect_b32 s60, s56, s60
s_cselect_b32 s61, s57, s61
s_cmp_ge_u32 s20, 6
s_cselect_b32 s60, s58, s60
s_cselect_b32 s61, s59, s61
s_and_b32 s61, s61, 0xffff
s_mov_b32 s63, 0x00020000
s_mov_b32 s62, 0x158000
s_movk_i32 s35, 5504
s_and_b32 s38, s20, 2
s_cmp_eq_u32 s38, 0
s_cselect_b32 s62, 0x400000, s62
s_cselect_b32 s35, 0x4000, s35
s_mul_i32 s35, s35, s2
s_and_b32 s39, s20, 1
s_lshl_b32 s39, s39, 13
s_cmp_eq_u32 s38, 0
s_cselect_b32 s39, s39, 0
s_add_u32 s35, s35, s39
s_cmp_ge_u32 s20, 4
s_cselect_b32 s35, 0x7f000000, s35
v_lshlrev_b32 v12, 3, v1
buffer_load_dword v11, v12, s[60:63], s35 offen
""")
        pp("""
s_bfe_u32 s29, s20, 0x10001
s_cmp_eq_u32 s29, 0
s_cselect_b32 s16, s64, s66
s_cselect_b32 s17, s65, s67
s_mov_b32 s18, 0x158000
s_cmp_eq_u32 s25, 0
s_cselect_b32 s16, s68, s16
s_cselect_b32 s17, s69, s17
s_cselect_b32 s18, 0x400000, s18
s_and_b32 s17, s17, 0xffff
s_mov_b32 s19, 0x00020000
s_lshl_b32 s56, s21, 8
s_mul_i32 s38, s21, 96
s_lshl_b32 s58, s26, 12
s_mul_i32 s39, s29, 6272
s_and_b32 s30, s20, 1
s_mul_i32 s30, s30, 3072
s_add_u32 s39, s39, s30
s_add_u32 s39, s39, 16384
s_cmp_eq_u32 s25, 0
s_cselect_b32 s56, s56, s38
s_mov_b32 s57, 0x2b000
s_cselect_b32 s57, 0x80000, s57
s_cselect_b32 s58, s58, s39
s_movk_i32 s59, 2048
s_cselect_b32 s59, 3072, s59
s_add_u32 s59, s59, s58
s_lshl_b32 s60, s27, 15
""")
        if XF_OFF: pp(f's_add_u32 s60, s60, {XF_OFF:#x}')
        return [i.text for i in q.items]
    GX = 128; GW = 192; GT = [48, 64, 80, 96, 112, 160, 176]
    def gdma(sl):
        base = GSL[sl % 4]
        out = []
        for t in range(4):
            out.append([f's_add_u32 m0, s{58 if t < 3 else 59}, {base + (t*1024 if t < 3 else 0)}',
                        's_nop 0',
                        (lambda pp, t=t, sl=sl: pp(f'buffer_load_dwordx4 v{GD+t}, s[16:19], s56 offen lds', f'g{sl}'))])
        out[3].append('s_add_u32 s56, s56, s57')
        return out
    def xload(sl):
        out = []
        b = GX + 16 * (sl & 1)
        for k in range(4):
            out.append(f'buffer_load_dwordx4 {vr(b+4*k,4)}, v{VL16}, s[8:11], s61 offen offset:{k*1024}{LS}')
        return [f's_add_u32 s61, s60, {sl*4096}'] + out

    alt = p.begin_alt(join=True)
    for variant in ('k', 'v'):
        p.alt_branch(alt)
        if variant == 'v': p.label('LF_v')
        for kk in range(3): emit(trread(0, kk))
        pend = []
        for u in range(8):
            sc = u >> 1; kh = u & 1
            bb = []; fl = {}
            def add(slot, items): fl.setdefault(slot, []).extend(items)
            for kk in range(16):
                ks = kh * 16 + kk
                for nt in range(2):
                    w = WF + 8 * (kk % NST) + 4 * nt
                    acc = vr(ACC + 16 * nt, 16); cc = '0' if ks == 0 else acc
                    A = vr(AR + 4 * ks, 4)
                    if variant == 'k': bb.append(f'{MF} {acc}, {vr(w,4)}, {A}, {cc}')
                    else:              bb.append(f'{MF} {acc}, {A}, {vr(w,4)}, {cc}')
            for kk in range(3, 16):
                t = trread(u, kk)
                s0 = min(2 * (kk - 3), 24)
                add(s0, t[:2]); add(s0 + 1, t[2:])
            if u < 2:
                for q4 in range(4):
                    e = 4 * kh + q4; base = 8 * q4
                    if e + 1 < 8:
                        add(base + 1, [lambda pp, e=e: pp.wait_tag(f'a{e+1}')])
                        for k_ in range(4): add(base + 1 + k_ // 2, [aread(e + 1, k_)])
                        if e + 3 < 8:
                            add(base + 5, [lambda pp, e=e: pp.wait_tag(f'ar{e+1}')])
                            for jj in range(4): add(base + 5 + jj // 2, adma(e + 3, jj))
            loads = {0: [2], 2: [3, 4], 3: [5], 4: [6], 5: [7]}.get(u, [])
            grps = [wdma(lu, q) for lu in loads for q in range(4)]
            if grps: spread(add, grps, 2 if u else 10, 25)
            X1 = os.environ.get('XP1', '')
            if u == 1: spread(add, atomic_groups(lns, 3), 1, 25)
            if u == 3: spread(add, atomic_groups(p2_setup(), 4), 10, 26)
            if kh == 0 and sc > 0:
                for nt in range(2):
                    g, st_ = kv_epilogue(sc - 1, nt)
                    fl.setdefault(('pre', nt), []).extend(g)
                    pend.extend(st_)
            if pend:
                a_, b_ = pend.pop(0), pend.pop(0)
                if 'nokvst' not in os.environ.get('XP1', ''): add(12, a_); add(24, b_)
            extra = []; post = []
            if u == (3 if 'latepub' in X1 else 2): extra = [lambda pp: pp.wait_tag('lnst')]; post = publish([32])
            if u == 5 and 'nopoll' not in X1: add(18, ['s_sub_u32 s29, 15, s24', 's_lshl_b32 s29, s29, 2', 's_lshl_b32 s30, s24, 2'] + poll_issue([29, 30]))
            if u == 5 and 'nopoll' not in X1: post = poll_check([(29, 16), (30, 16)])
            if u == 6 and 'nog01' not in X1:
                spread(add, gdma(0) + gdma(1), 1, 25)
            if u == 7 and 'nog01' in X1:
                spread(add, gdma(0) + gdma(1), 1, 25)
            if u == 7:
                xl = xload(0)
                spread(add, [xl[:2], [xl[2]], [xl[3]], [xl[4]]] + gdma(2), 1, 28)
            if u < 7:
                add(27, [lambda pp, u=u: pp.wait_tag(f'w{u+1}'), 's_waitcnt lgkmcnt(0)'] + extra + ['s_barrier'] + post)
                for kk in range(3):
                    t = trread(u + 1, kk)
                    add(min(27 + 2 * kk, 31), t[:2]); add(min(28 + 2 * kk, 31), t[2:])
            interleave(p, bb, fl)
            if os.environ.get('P1ST'): st.i = 2 + u; st.stamp()
        for nt in range(2):
            g, st_ = kv_epilogue(3, nt)
            emit(g); pend.extend(st_)
        if variant == 'k': p('s_branch LF_p2')
        p.end_branch()
    p.label('LF_p2')
    st.stamp()
    VK = 2; VV = 3; VZ = 4; VLS = 5; VM = 6; VTS = 7; VLSAVE = 8
    T0 = 9
    Q = 16; O = 48; S = [112, 128]; PP = [144, 152]; MN = 160; FR = 176; E = 208; TT = 216
    THR = f2u(float(2 ** 20)); NEG = f2u(-1e30); FLOOR1 = f2u(-1e20)
    p(f"""
s_lshl_b32 s44, s21, 19
s_lshl_b32 s46, s20, 11
s_add_u32 s44, s44, s46
s_add_u32 s45, s44, {VF_OFF:#x}
s_add_u32 s44, s44, {KF_OFF:#x}
s_lshl_b32 s47, s24, 1
s_add_u32 s47, s47, 2
""")
    AQ = [T0, T0 + 1, T0 + 2, T0 + 3]; AF_ = T0 + 4
    def set_addr(sl):
        base = GSL[sl % 4]
        out = [f'v_add_u32 v{AQ[0]}, {base}, v6']
        for nt in range(1, 4): out.append(f'v_xor_b32 v{AQ[nt]}, {nt<<6}, v{AQ[0]}')
        out.append(f'v_add_u32 v{AF_}, {base}, v7')
        return out
    assert all((s & 0xff) == 0 for s in GSL)
    def gtr(g):
        kk = g & 3; out = []
        for tl in range(7):
            w = GW + 28 * (g & 1) + 4 * tl
            if tl < 4:
                out.append(f'ds_read_b64_tr_b16 {vr(w,2)}, v{AQ[tl]} offset:{kk*4096}')
                out.append(f'ds_read_b64_tr_b16 {vr(w+2,2)}, v{AQ[tl]} offset:{kk*4096+1024}')
            else:
                o = kk * 1536 + (tl - 4) * 32
                out.append(f'ds_read_b64_tr_b16 {vr(w,2)}, v{AF_} offset:{o}')
                out.append(f'ds_read_b64_tr_b16 {vr(w+2,2)}, v{AF_} offset:{o+384}')
        return out
    def kvcopy(sbase, chunk_off, ldsbase, tag, tmp=43):
        return [f's_add_u32 m0, s46, {ldsbase}',
                f's_add_u32 s{tmp}, s{sbase}, {chunk_off}',
                (lambda pp: pp(f'buffer_load_dwordx4 v{VL16}, s[8:11], s{tmp} offen{LS} lds', tag)),
                (lambda pp: pp(f'buffer_load_dwordx4 v{VL16}, s[8:11], s{tmp} offen offset:1024{LS} lds', tag))]
    PUB_SL = int(os.environ.get('PUB_SL', '4'))
    p.wait_tag('g0')
    p('s_waitcnt lgkmcnt(0)')
    p('s_barrier')
    emit(set_addr(0))
    emit(gtr(0))
    for sl in range(8):
        bb = []; fl = {}
        def add(slot, items): fl.setdefault(slot, []).extend(items)
        for kk in range(4):
            g = sl * 4 + kk
            xb = GX + 16 * (sl & 1) + 4 * kk
            for tl in range(7):
                w = GW + 28 * (g & 1) + 4 * tl
                acc = vr(GT[tl], 16); cc = '0' if g == 0 else acc
                bb.append(f'{MF} {acc}, {vr(w,4)}, {vr(xb,4)}, {cc}')
            ng = g + 1
            if ng < 32:
                if kk == 3: add(7 * kk - 1, set_addr(sl + 1))
                rd = gtr(ng)
                for i in range(7): add(7 * kk + i, rd[2 * i:2 * i + 2])
        if sl + 1 < 8:
            xl = xload(sl + 1)
            add(0, xl[:1])
            for k in range(4): add(1 + k, [xl[1 + k]])
            pre = []; post = []
            if sl < 4: add(10, pend[sl])
            if sl == PUB_SL:
                pre = [lambda pp: pp.wait_tag('kvst')]; post = publish_kv()
            if sl == PUB_SL - 1:
                add(6, poll_issue([101, 101]))
            if sl == 6:
                add(8, [f's_lshr_b32 s29, s21, 1', f's_add_u32 s29, s29, {CNT_KV}', 's_lshl_b32 s29, s29, 2'] + poll_issue([29]))
                post = poll_check([(29, 16)], inv_flag=(94 if os.environ.get('KVINV', 'cond') == 'cond' else -1))

            add(17, [lambda pp, sl=sl: pp.wait_tag(f'g{sl+1}')] + pre + ['s_barrier'] + post)
            if sl + 3 < 8:
                for t, grp in enumerate(gdma(sl + 3)): add(18 + 2 * t if t < 1 else 21 + 2 * (t - 1), grp)
        interleave(p, bb, fl)
    st.stamp()
    p('s_waitcnt lgkmcnt(0)')
    emit(w0_drain())
    p('s_barrier')
    emit(kvcopy(44, 0, KSL, 'k0'))
    emit(kvcopy(44, 16384, KSL + 32768, 'k1'))
    emit(kvcopy(45, 0, VSL, 'v0'))
    p("""
s_load_dwordx2 s[56:57], s[0:1], 40
s_load_dwordx2 s[58:59], s[0:1], 72
s_waitcnt lgkmcnt(0)
s_cmp_ge_u32 s20, 2
s_cselect_b32 s60, s58, s56
s_cselect_b32 s61, s59, s57
s_mov_b32 s62, 0x400000
s_cselect_b32 s62, 0x158000, s62
s_movk_i32 s35, 0x4000
s_cselect_b32 s35, 5504, s35
s_and_b32 s61, s61, 0xffff
s_mov_b32 s63, 0x00020000
s_mul_i32 s35, s35, s2
s_cmp_eq_u32 s20, 1
s_cselect_b32 s39, 0x2000, 0
s_add_u32 s35, s35, s39
s_cmp_ge_u32 s20, 3
s_cselect_b32 s35, 0x7f000000, s35
v_lshlrev_b32 v12, 3, v1
buffer_load_dword v255, v12, s[60:63], s35 offen
""")
    CQ = f2u(math.log2(math.e) / math.sqrt(128.0))
    p(f's_mov_b32 s48, {CQ:#x}')
    p(f's_mov_b32 s49, {CQ:#x}')
    for tl in range(4):
        for i in range(8): p(f'v_pk_mul_f32 {vr(GT[tl]+2*i,2)}, {vr(GT[tl]+2*i,2)}, s[48:49]')
        for i in range(8): p(f'v_cvt_pk_bf16_f32 v{Q+8*tl+i}, v{GT[tl]+2*i}, v{GT[tl]+2*i+1}')
    p(f'''
s_lshl_b32 s49, s26, 13
s_add_u32 s49, s49, {QX}
v_add_u32 v9, s49, v{VL16}
s_cmp_lg_u32 s25, 0
s_cbranch_scc1 LF_noqx
@COND
''')
    for ks in range(8): p(f'ds_write_b128 v9, {vr(Q+4*ks,4)} offset:{ks*1024}')
    p('s_waitcnt lgkmcnt(0)')
    p('@ENDCOND')
    p.label('LF_noqx')
    KG = -2.0 * math.sqrt(2.0 / math.pi) * math.log2(math.e)
    p(f's_mov_b32 s50, {f2u(KG*0.044715):#x}')
    p(f's_mov_b32 s51, {f2u(KG*0.044715):#x}')
    p(f'v_mov_b32 v{GW+16}, {f2u(KG):#x}')
    p(f'v_mov_b32 v{GW+17}, {f2u(KG):#x}')
    p(f'''
s_mul_i32 s52, s27, {AF_MT}
s_mul_i32 s53, s21, 3
s_add_u32 s54, s53, 256
s_lshl_b32 s54, s54, 10
s_add_u32 s52, s52, s54
s_add_u32 s52, s52, {AF_OFF:#x}
''')
    for tt in range(3):
        a = GT[4 + tt]; t = GW
        p(f's_add_u32 s54, s53, {tt}')
        p('s_cmp_ge_u32 s54, 86')
        p(f's_cbranch_scc1 LF_ffn_skip{tt}')
        p('@COND')
        P2 = lambda r: vr(r, 2)
        for i in range(0, 8, 2): p(f'v_pk_mul_f32 {P2(t+i)}, {P2(a+i)}, {P2(a+i)}')
        for i in range(0, 8, 2): p(f'v_pk_fma_f32 {P2(t+i)}, {P2(t+i)}, s[50:51], {P2(t+16)}')
        for i in range(0, 8, 2): p(f'v_pk_mul_f32 {P2(t+i)}, {P2(t+i)}, {P2(a+i)}')
        for i in range(8): p(f'v_exp_f32 v{t+i}, v{t+i}')
        for i in range(0, 8, 2): p(f'v_pk_mul_f32 {P2(t+8+i)}, {P2(a+i)}, {P2(a+8+i)}')
        for i in range(0, 8, 2): p(f'v_pk_add_f32 {P2(t+i)}, {P2(t+i)}, 1.0 op_sel_hi:[1,0]')
        for i in range(8): p(f'v_rcp_f32 v{t+i}, v{t+i}')
        for i in range(0, 8, 2): p(f'v_pk_mul_f32 {P2(t+i)}, {P2(t+i)}, {P2(t+8+i)}')
        for i in range(4): p(f'v_cvt_pk_bf16_f32 v{t+20+4*tt+i}, v{t+2*i}, v{t+2*i+1}')
        p(f'buffer_store_dwordx4 {vr(t+20+4*tt,4)}, v{VL16}, s[8:11], s52 offen offset:{tt*1024}{SC}')
        p('@ENDCOND')
        p.label(f'LF_ffn_skip{tt}')
    st.stamp()
    for i in range(0, 64, 2): p(f'v_pk_mov_b32 {vr(O+i,2)}, 0, 0')
    for i in range(0, 16, 2): p(f'v_pk_mov_b32 {vr(MN+i,2)}, 0, 0')
    p(f"""
v_mov_b32 v{VLS}, 0
v_mov_b32 v{VM}, 0
v_mov_b32 v{VLSAVE}, 0
s_mov_b32 s56, {THR:#x}
s_mov_b32 s57, 0xbf800000
s_mov_b32 s58, {FLOOR1:#x}
s_mov_b32 s59, 1
s_mov_b32 s60, 1.0
s_mov_b32 s61, s27
s_mov_b32 s62, 0
s_lshl_b32 s67, s25, 14
v_add_u32 v{VK}, {KSL}, v{VL16}
v_add_u32 v{VV}, {VSL}, v{VL16}
v_and_b32 v10, 63, v0
v_and_b32 v12, 31, v10
v_lshrrev_b32 v11, 5, v10
v_lshlrev_b32 v13, 2, v11
v_sub_u32 v{VZ}, v12, v13
s_mov_b32 s55, 0
s_mov_b32 s63, 16384
s_add_u32 s64, s46, 32768
s_lshl_b32 s49, s47, 1
s_add_u32 s49, s49, 2
s_cmp_eq_u32 s25, 0
s_cselect_b32 s49, 0, s49
s_cselect_b32 s66, 32, s27
s_lshl_b32 s68, s47, 1
s_add_u32 s68, s68, 4
s_min_u32 s68, s68, 32
s_cmp_eq_u32 s20, 0
s_cselect_b32 s66, s68, s66
""")
    p('s_waitcnt vmcnt(0) lgkmcnt(0)')
    p('s_barrier')
    st.stamp()

    def frag_read(f):
        hf = f >> 4; i = f & 15; dst = vr(FR + 4 * (f % 8), 4)
        if i < 8:  return f'ds_read_b128 {dst}, v{VK} offset:{hf*8192 + i*1024}'
        else:      return f'ds_read_b128 {dst}, v{VV} offset:{hf*8192 + (i-8)*1024}'
    def mfma(f):
        hf = f >> 4; i = f & 15; fr = vr(FR + 4 * (f % 8), 4)
        if i < 8:
            s = vr(S[hf], 16); c = vr(MN, 16) if i == 0 else s
            return f'{MF} {s}, {fr}, {vr(Q+4*i,4)}, {c}'
        dt = (i - 8) >> 1; tp = (i - 8) & 1
        o = vr(O + 16 * dt, 16)
        return f'{MF} {o}, {fr}, {vr(PP[hf]+4*tp,4)}, {o}'
    def bstage(hf, nslots):
        c = S[1 - hf]; pp_ = PP[1 - hf]
        groups = [[] for _ in range(nslots)]
        span = nslots - 2
        pos_e = [(kk * span) // 16 for kk in range(16)]
        late = [[] for _ in range(nslots)]
        for k in range(8):
            ea = E + (2 * k) % 8; eb = E + (2 * k + 1) % 8
            groups[pos_e[2 * k]].append(f'v_exp_f32 v{ea}, v{c+2*k}')
            groups[pos_e[2 * k + 1]].append(f'v_exp_f32 v{eb}, v{c+2*k+1}')
            sa = pos_e[2 * k] + 1; sb = pos_e[2 * k + 1] + 1
            if k == 0:
                late[sb].append(f'v_add_f32 v{VTS}, v{ea}, v{eb}')
            else:
                late[sa].append(f'v_add_f32 v{VTS}, v{VTS}, v{ea}')
                late[sb].append(f'v_add_f32 v{VTS}, v{VTS}, v{eb}')
            late[sb].append(f'v_cvt_pk_bf16_f32 v{pp_+k}, v{ea}, v{eb}')
        return [late[i] + groups[i] for i in range(nslots)]
    outl = []

    def step(kind):
        doA = kind != 'drain'
        slots = []
        for f in range(32):
            hf = f >> 4; i = f & 15
            isA = i < 8
            if isA and not doA: continue
            if not isA and kind == 'first': continue
            slots.append(f)
        pos = {f: n for n, f in enumerate(slots)}
        bb = [mfma(f) for f in slots]
        fl = {}
        def add(n, items): fl.setdefault(n, []).extend(items)
        nS = len(slots)
        DIST = 4
        last_read_slot = nS - 6
        for n in range(DIST, nS):
            add(min(n - DIST, last_read_slot) if kind != 'drain' else n - DIST, [frag_read(slots[n])])
        for hf in range(2):
            if kind == 'first' and hf == 0: continue
            if kind == 'drain' and hf == 1: continue
            hs = [n for n, f in enumerate(slots) if (f >> 4) == hf]
            groups = bstage(hf, len(hs))
            for gi, g in enumerate(groups): add(hs[gi], g)
            nm = f'{kind}{hf}'
            add(hs[-2], [f'v_cmp_nge_f32 vcc, s{56+hf}, v{VTS}'])
            add(hs[-1], [f's_cbranch_vccnz LF_rare{nm}', f'LF_ret{nm}:', f'v_add_f32 v{VLS}, v{VLS}, v{VTS}'])
            outl.append(('rare', nm, hf))
        for hf in range(2):
            if kind == 'drain' and hf == 1: continue
            nm = f'{kind}{hf}'
            first_slot = [n for n, f in enumerate(slots) if (f >> 4) == hf][0]
            fl.setdefault(('pre', first_slot), []).extend(
                ['s_cmp_ge_u32 s62, s66', f's_cbranch_scc1 LF_evt{nm}', f'LF_eret{nm}:'])
            add(first_slot, ['s_add_u32 s62, s62, 1'])
            outl.append(('evt', nm, hf))
        return bb, fl, add, pos, slots

    def prep_next():
        return [['s_add_u32 s55, s55, 1', 's_and_b32 s50, s55, 1'],
                ['s_lshl_b32 s50, s50, 15', 's_cmp_ge_u32 s55, s47'],
                ['s_cselect_b32 s69, s67, 0', 's_add_u32 s50, s50, s69', f's_add_u32 s50, s50, {KSL}']]
    def barrier_blk():
        return ['s_waitcnt vmcnt(0) lgkmcnt(0)', 's_barrier',
                f'v_add_u32 v{VV}, {(VSL - KSL) & 0xffffffff:#x}, v{VK}',
                f'v_add_u32 v{VK}, s50, v{VL16}']
    def dma_issue(name):
        L = f'buffer_load_dwordx4 v{VL16}, s[8:11], s43 offen{LS} lds'
        L2 = f'buffer_load_dwordx4 v{VL16}, s[8:11], s43 offen offset:1024{LS} lds'
        g = []
        g.append([f's_add_u32 m0, s64, {VSL}', 's_add_u32 s43, s45, s63', L])
        g.append([L2, 's_cmp_lt_u32 s55, s47'])
        g.append([f's_cbranch_scc1 LF_nov2{name}', '@COND', f's_add_u32 m0, s64, {VSL + 16384}', 's_add_u32 s43, s43, 16384', L, L2,
                  's_add_u32 s63, s63, 16384', '@ENDCOND', f'LF_nov2{name}:'])
        g.append(['s_add_u32 s63, s63, 16384', 's_xor_b32 s64, s64, 32768'])
        g.append([f's_add_u32 m0, s64, {KSL}', 's_add_u32 s43, s44, s63', L])
        g.append([L2, 's_add_u32 s65, s55, 1', 's_cmp_lt_u32 s65, s47'])
        g.append([f's_cbranch_scc1 LF_nok{name}', '@COND', f's_add_u32 m0, s64, {KSL + 16384}', 's_add_u32 s43, s43, 16384', L, L2,
                  '@ENDCOND', f'LF_nok{name}:'])
        return g

    PRIO = os.environ.get('PRIO', '1')
    if PRIO:
        p(f's_cmp_eq_u32 s25, {0 if PRIO == "1" else 1}')
        p('s_cbranch_scc1 LF_noprio')
        p('s_setprio 1')
        p.label('LF_noprio')
    bb, fl, add, pos, slots = step('first')
    for n in range(4): p(frag_read(slots[n]))
    nS = len(slots)
    for gi, g in enumerate(prep_next()): add(4 + gi, g)
    add(nS - 4, barrier_blk())
    for n in range(4): add(nS - 4 + n, [frag_read(n)])
    interleave(p, bb, fl)
    p.begin_loop()
    p.label('LF_loop')
    bb, fl, add, pos, slots = step('loop')
    XP = os.environ.get('XP', '')
    if 'nodma' not in XP:
        for gi, g in enumerate(dma_issue('loop')): add(1 + 3 * gi, g)
    for gi, g in enumerate(prep_next()): add(23 + gi, g)
    nb_ = barrier_blk()
    if 'nobar' in XP: nb_ = [x for x in nb_ if x != 's_barrier']
    add(28, nb_)
    for n in range(4): add(28 + n if n < 3 else 30, [frag_read(n)])
    add(30, ['s_cmp_lt_u32 s55, 17'])
    if XP:
        for kk_ in fl: fl[kk_] = [x for x in fl[kk_] if not (isinstance(x, str) and x.startswith('s_cbranch_vccnz'))]
    if 'noexp' in XP:
        for kk_ in fl: fl[kk_] = [x.replace('v_exp_f32', 'v_mov_b32') if isinstance(x, str) else x for x in fl[kk_]]
    if 'novalu' in XP:
        for kk_ in fl: fl[kk_] = [x for x in fl[kk_] if not (isinstance(x, str) and x.startswith(('v_exp', 'v_add_f32 v7', 'v_cvt')))]
    if 'nolds' in XP:
        for kk_ in fl: fl[kk_] = [x for x in fl[kk_] if not (isinstance(x, str) and x.startswith('ds_read'))]
    interleave(p, bb, fl)
    p('s_cbranch_scc1 LF_loop')
    p.end_loop()
    st.stamp()
    p('s_waitcnt lgkmcnt(0)')
    bb, fl, add, pos, slots = step('drain')
    for n in range(4): p(frag_read(slots[n]))
    interleave(p, bb, fl)
    st.stamp()
    p(f'''
v_mov_b32 v9, v{VLS}
v_permlane32_swap_b32 v{VLS}, v9
v_add_f32 v{VLS}, v{VLS}, v9
s_waitcnt lgkmcnt(0)
s_barrier
''')
    p(f'''
s_mul_i32 s49, s20, 8704
s_xor_b32 s50, s20, 4
s_mul_i32 s50, s50, 8704
v_add_u32 v9, s49, v{VL16}
v_add_u32 v10, s50, v{VL16}
v_lshrrev_b32 v11, 1, v{VL16}
v_add_u32 v12, s49, v11
v_add_u32 v13, s50, v11
v_mov_b32 v14, v{VLS}
v_mov_b32 v15, v{VM}
s_cmp_eq_u32 s25, 0
s_cbranch_scc1 LF_mg0
''')
    X = TT
    alt = p.begin_alt(join=True)
    for g in (1, 0):
        p.alt_branch(alt)
        if g == 0: p.label('LF_mg0')
        keep = O + 32 * g; send = O + 32 * (1 - g)
        for k in range(8): p(f'ds_write_b128 v9, {vr(send+4*k,4)} offset:{k*1024}')
        p('ds_write_b64 v12, v[14:15] offset:8192')
        p('s_waitcnt lgkmcnt(0)')
        p('s_barrier')
        p(f'ds_read_b64 v[{E}:{E+1}], v13 offset:8192')
        for k in range(8): p(f'ds_read_b128 {vr(X+4*k,4)}, v10 offset:{k*1024}')
        p(f'''
v_max_f32 v{E+2}, v{VM}, v{E+1}
v_sub_f32 v{E+4}, v{VM}, v{E+2}
v_sub_f32 v{E+6}, v{E+1}, v{E+2}
v_exp_f32 v{E+4}, v{E+4}
v_exp_f32 v{E+6}, v{E+6}
v_mul_f32 v{E+3}, v{E+4}, v{VLS}
v_fmac_f32 v{E+3}, v{E+6}, v{E}
v_rcp_f32 v{E+3}, v{E+3}
v_mul_f32 v{E+4}, v{E+4}, v{E+3}
v_mul_f32 v{E+6}, v{E+6}, v{E+3}
''')
        for i in range(0, 32, 2):
            p(f'v_pk_mul_f32 {vr(keep+i,2)}, {vr(keep+i,2)}, {vr(E+4,2)} op_sel_hi:[1,0]')
            p(f'v_pk_fma_f32 {vr(keep+i,2)}, {vr(X+i,2)}, {vr(E+6,2)}, {vr(keep+i,2)} op_sel_hi:[1,0,1]')
        for i in range(16): p(f'v_cvt_pk_bf16_f32 v{S[0]+i}, v{keep+2*i}, v{keep+2*i+1}')
        p(f'''
s_mul_i32 s52, s28, {AF_MT}
s_lshl_b32 s54, s21, 13
s_add_u32 s52, s52, s54
s_add_u32 s52, s52, {AF_OFF + g*4096:#x}
''')
        for k in range(4): p(f'buffer_store_dwordx4 {vr(S[0]+4*k,4)}, v{VL16}, s[8:11], s52 offen offset:{k*1024}{SC}')
        if g == 1: p('s_branch LF_p4')
        p.end_branch()
    p.label('LF_p4')
    if PRIO: p('s_setprio 0')
    st.stamp()
    NK = 43; D = int(os.environ.get("K3D", "4"))
    VA1 = 2; VW = 3; VT = [4, 5]
    ACT = 16; WF4 = 80; ACC4 = 96
    AF_END = AF_OFF + 64 * AF_MT
    p(f"""
s_load_dwordx2 s[28:29], s[0:1], 40
s_load_dwordx4 s[32:35], s[0:1], 72
s_load_dwordx2 s[30:31], s[0:1], 0
s_load_dwordx2 s[36:37], s[0:1], 96
v_and_b32 v10, 63, v0
v_add_u32 v{VA1}, {AF_MT}, v{VL16}
v_lshrrev_b32 v11, 3, v10
v_and_b32 v12, 7, v10
v_bfe_u32 v13, v10, 4, 1
v_lshlrev_b32 v13, 2, v13
v_xor_b32 v12, v12, v13
v_lshlrev_b32 v12, 4, v12
v_lshl_add_u32 v{VW}, v11, 10, v12
v_lshrrev_b32 v11, 5, v10
v_bfe_u32 v12, v10, 2, 2
v_lshl_add_u32 v13, v11, 2, v12
v_lshlrev_b32 v13, 7, v13
v_lshrrev_b32 v12, 1, v12
v_lshl_add_u32 v13, v12, 6, v13
v_bfe_u32 v12, v10, 4, 1
v_lshl_add_u32 v13, v12, 5, v13
v_and_b32 v12, 3, v10
v_lshl_add_u32 v13, v12, 3, v13
s_lshl_b32 s25, s20, 14
v_add_u32 v{VT[0]}, s25, v13
v_xor_b32 v{VT[1]}, 64, v{VT[0]}
s_mul_i32 s26, s20, 43
s_cmp_ge_u32 s20, 4
s_cselect_b32 s27, 1, 0
s_sub_u32 s26, s26, s27
s_cmp_ge_u32 s20, 5
s_cselect_b32 s27, 1, 0
s_sub_u32 s26, s26, s27
s_and_b32 s44, s23, 7
s_bfe_u32 s45, s23, 0x10003
s_cmp_ge_u32 s24, 4
s_cselect_b32 s46, 8, 0
s_add_u32 s46, s46, s22
s_lshl_b32 s47, s46, 1
s_add_u32 s47, s47, s45
s_sub_u32 s48, 15, s24
s_add_u32 s48, s48, {CNT_CTX}
s_lshl_b32 s48, s48, 2
s_add_u32 s49, s24, {CNT_CTX}
s_lshl_b32 s49, s49, 2
s_add_u32 s50, s46, {CNT_CTX}
s_lshl_b32 s50, s50, 2
""")
    st.stamp()
    p('s_waitcnt vmcnt(0) lgkmcnt(0)')
    st.stamp()
    p('s_barrier')
    st.stamp()
    emit(publish([48]))
    p('s_cmp_lg_u32 s24, 7')
    p('s_cbranch_scc1 LF_nopubS2')
    emit(publish([49]))
    p.label('LF_nopubS2')
    srd(p, 12, 36, 37, AF_END)
    srd(p, 16, 30, 31, 2 << 20)
    srd(p, 36, 34, 35, 2 << 20)
    p(f"""
s_cmp_ge_u32 s20, 6
s_cselect_b32 s4, s32, s28
s_cselect_b32 s5, s33, s29
s_mov_b32 s6, 0x400000
s_cselect_b32 s6, 0x158000, s6
s_and_b32 s5, s5, 0xffff
s_mov_b32 s7, 0x00020000
s_mul_i32 s40, s47, {2*AF_MT}
s_lshl_b32 s43, s26, 10
s_add_u32 s40, s40, s43
s_add_u32 s40, s40, {AF_OFF:#x}
s_cmp_ge_u32 s20, 6
s_cselect_b32 s43, 256, 0
s_sub_u32 s43, s26, s43
s_lshl_b32 s42, s43, 14
s_lshl_b32 s43, s44, 7
s_add_u32 s42, s42, s43
s_sub_u32 s51, s20, 4
s_cmp_lt_u32 s51, 2
s_cselect_b32 s41, 0x7fff0000, s40
s_cselect_b32 s52, 0x4000, 0
s_add_u32 s52, s52, s42
""")
    def wloads(ks):
        sl = ks % D
        if ks == 0:
            a0 = ['s_mov_b32 s54, s52', 's_add_u32 s53, s52, 0x2000']
        else:
            a0 = [f's_add_u32 s54, s42, {ks*16384}', f's_add_u32 s53, s42, {ks*16384+8192}']
        return [f's_add_u32 m0, s25, {sl*2048}'] + a0 + [
                (lambda pp: pp(f'buffer_load_dwordx4 v{VW}, s[4:7], s54 offen lds', f'x{ks}')),
                f's_add_u32 m0, s25, {sl*2048+1024}', 's_nop 0',
                (lambda pp: pp(f'buffer_load_dwordx4 v{VW}, s[4:7], s53 offen lds', f'x{ks}'))]
    def aloads(ks):
        a = ACT + 8 * (ks % D)
        pre = ['s_mov_b32 s55, s41'] if ks == 0 else [f's_add_u32 s55, s40, {ks*1024}']
        return pre + [f'buffer_load_dwordx4 {vr(a,4)}, v{VL16}, s[12:15], s55 offen{LS}',
                      f'buffer_load_dwordx4 {vr(a+4,4)}, v{VA1}, s[12:15], s55 offen{LS}']
    def trr(ks):
        sl = ks % D; out = [lambda pp: pp.wait_tag(f'x{ks}')]
        for nt in range(2):
            w = WF4 + 8 * (ks & 1) + 4 * nt
            out.append((lambda pp, w=w, nt=nt: pp(f'ds_read_b64_tr_b16 {vr(w,2)}, v{VT[nt]} offset:{sl*2048}', f'r{ks}')))
            out.append((lambda pp, w=w, nt=nt: pp(f'ds_read_b64_tr_b16 {vr(w+2,2)}, v{VT[nt]} offset:{sl*2048+1024}', f'r{ks}')))
        return out
    for ks in range(D): emit(wloads(ks))
    p(f"""
s_lshr_b32 s56, s20, 2
s_bfe_u32 s57, s20, 0x10001
s_and_b32 s58, s20, 1
s_lshl_b32 s59, s47, 6
s_lshl_b32 s60, s57, 5
s_add_u32 s59, s59, s60
s_lshl_b32 s59, s59, 10
s_lshl_b32 s60, s44, 6
s_lshl_b32 s61, s56, 5
s_add_u32 s60, s60, s61
s_lshl_b32 s61, s58, 4
s_add_u32 s60, s60, s61
s_lshl_b32 s60, s60, 1
s_add_u32 s59, s59, s60
v_and_b32 v11, 31, v10
v_lshrrev_b32 v12, 5, v10
v_lshlrev_b32 v11, 10, v11
v_lshl_add_u32 v9, v12, 3, v11
buffer_load_dwordx2 v[160:161], v9, s[16:19], s59 offen
buffer_load_dwordx2 v[162:163], v9, s[16:19], s59 offen offset:16
""")
    st.stamp()
    emit(poll_noinv([(50, 32)]))
    st.stamp()
    p('s_barrier')
    st.stamp()
    for ks in range(D): emit(aloads(ks))
    emit(trr(0))
    for ks in range(NK):
        a = ACT + 8 * (ks % D)
        if ks + 1 < NK: emit(trr(ks + 1))
        for nt in range(2):
            for mt in range(2):
                w = WF4 + 8 * (ks & 1) + 4 * nt
                acc = vr(ACC4 + 16 * (2 * nt + mt), 16); cc = '0' if ks == 0 else acc
                p(f'{MF} {acc}, {vr(w,4)}, {vr(a+4*mt,4)}, {cc}')
        if ks + D < NK:
            p.wait_tag(f'r{ks}')
            emit(wloads(ks + D)); emit(aloads(ks + D))
    p('s_waitcnt lgkmcnt(0)')
    p('s_barrier')
    p(f'v_add_u32 v6, s25, v{VL16}')
    for b in range(16): p(f'ds_write_b128 v6, {vr(ACC4+4*b,4)} offset:{b*1024}')
    p(f"""
s_lshl_b32 s56, s20, 11
v_add_u32 v7, s56, v{VL16}
v_add_u32 v8, 0x10000, v7
s_waitcnt lgkmcnt(0)
s_barrier
""")
    for src in range(8):
        base = 7 if src < 4 else 8
        for b in range(2):
            p(f'ds_read_b128 {vr(16+8*src+4*b,4)}, v{base} offset:{(src%4)*16384 + b*1024}')
    for i in range(8):
        p(f'v_add_f32 v{16+i}, v{16+i}, v{24+i}')
        p(f'v_add_f32 v{32+i}, v{32+i}, v{40+i}')
        p(f'v_add_f32 v{48+i}, v{48+i}, v{56+i}')
        p(f'v_add_f32 v{64+i}, v{64+i}, v{72+i}')
    for i in range(8):
        p(f'v_add_f32 v{16+i}, v{16+i}, v{32+i}')
        p(f'v_add_f32 v{16+i}, v{16+i}, v{48+i}')
    for i in range(4):
        p(f'v_cvt_pk_bf16_f32 v{24+i}, v{16+2*i}, v{17+2*i}')
        p(f'v_cvt_pk_bf16_f32 v{72+i}, v{64+2*i}, v{65+2*i}')
    for i in range(4):
        p(f'v_lshlrev_b32 v{16+2*i}, 16, v{24+i}')
        p(f'v_and_b32 v{17+2*i}, 0xffff0000, v{24+i}')
        p(f'v_lshlrev_b32 v{64+2*i}, 16, v{72+i}')
        p(f'v_and_b32 v{65+2*i}, 0xffff0000, v{72+i}')
    NL2E = f2u(-math.log2(math.e))
    for i in range(8): p(f'v_mul_f32 v{32+i}, {NL2E:#x}, v{64+i}')
    for i in range(8): p(f'v_exp_f32 v{32+i}, v{32+i}')
    for i in range(8): p(f'v_add_f32 v{32+i}, 1.0, v{32+i}')
    for i in range(8): p(f'v_rcp_f32 v{32+i}, v{32+i}')
    for i in range(8): p(f'v_mul_f32 v{32+i}, v{32+i}, v{64+i}')
    for i in range(4): p(f'v_cvt_pk_bf16_f32 v{40+i}, v{32+2*i}, v{33+2*i}')
    for i in range(4):
        p(f'v_lshlrev_b32 v{32+2*i}, 16, v{40+i}')
        p(f'v_and_b32 v{33+2*i}, 0xffff0000, v{40+i}')
    for i in range(8): p(f'v_mul_f32 v{32+i}, v{32+i}, v{16+i}')
    for i in range(4): p(f'v_cvt_pk_bf16_f32 v{40+i}, v{32+2*i}, v{33+2*i}')
    for i in range(4):
        p(f'v_lshlrev_b32 v{32+2*i}, 16, v{40+i}')
        p(f'v_and_b32 v{33+2*i}, 0xffff0000, v{40+i}')
        p(f'v_lshlrev_b32 v{48+2*i}, 16, v{160+i}')
        p(f'v_and_b32 v{49+2*i}, 0xffff0000, v{160+i}')
    for i in range(8): p(f'v_add_f32 v{32+i}, v{32+i}, v{48+i}')
    for i in range(4): p(f'v_cvt_pk_bf16_f32 v{40+i}, v{32+2*i}, v{33+2*i}')
    p('buffer_store_dwordx2 v[40:41], v9, s[36:39], s59 offen')
    p('buffer_store_dwordx2 v[42:43], v9, s[36:39], s59 offen offset:16')
    if PROF: p('s_waitcnt vmcnt(0)')
    st.stamp()
    st.dump(p, 8, 0, 20, 50, 57, 8)
    p('s_endpgm')

    ool = p.begin_alt()
    def routine(name):
        p.alt_branch(ool); p.label(name)
    def fin_code():
        p(f"""
s_nop 15
s_nop 7
v_mov_b32 v9, v{VLSAVE}
v_permlane32_swap_b32 v{VLSAVE}, v9
v_add_f32 v9, v{VLSAVE}, v9
v_rcp_f32 v9, v9
s_mul_i32 s52, s27, {AF_MT}
s_lshl_b32 s54, s21, 13
s_add_u32 s52, s52, s54
s_add_u32 s52, s52, {AF_OFF:#x}
s_add_u32 s53, s52, 4096
""")
        for half in range(2):
            for i in range(32): p(f'v_mul_f32 v{O+32*half+i}, v{O+32*half+i}, v9')
            for i in range(16): p(f'v_cvt_pk_bf16_f32 v{TT+16*half+i}, v{O+32*half+2*i}, v{O+32*half+2*i+1}')
            for k in range(4): p(f'buffer_store_dwordx4 {vr(TT+16*half+4*k,4)}, v{VL16}, s[8:11], s{52+half} offen offset:{k*1024}{SC}')
        for i in range(64): p(f'v_mov_b32 v{O+i}, 0')
    for kind, nm, hf in outl:
        if kind == 'evt':
            routine(f'LF_evt{nm}')
            p('s_lshl_b32 s68, s47, 1')
            if nm in ('loop0', 'drain0'):
                p(f"""
s_add_u32 s69, s68, 2
s_cmp_lg_u32 s62, s69
s_cbranch_scc1 LF_nofin{nm}
s_cmp_eq_u32 s25, 0
s_cbranch_scc1 LF_nofin{nm}
""")
                fin_code()
                p.label(f'LF_nofin{nm}')
            if nm == 'loop0':
                p(f"""
s_add_u32 s69, s68, 4
s_cmp_lg_u32 s62, s69
s_cbranch_scc1 LF_nopubS
s_add_u32 s69, s24, {CNT_CTX}
s_lshl_b32 s69, s69, 2
""")
                emit(publish([69]))
                p(f"""
LF_nopubS:
s_cmp_lg_u32 s62, s68
s_cbranch_scc1 LF_nosw
s_cmp_eq_u32 s25, 0
s_cbranch_scc1 LF_nosw
s_lshl_b32 s69, s26, 13
s_add_u32 s69, s69, {QX}
v_add_u32 v9, s69, v{VL16}
s_nop 7
""")
                for ks in range(8): p(f'ds_read_b128 {vr(Q+4*ks,4)}, v9 offset:{ks*1024}')
                for i in range(16): p(f'v_mov_b32 v{MN+i}, 0')
                p(f"""
v_mov_b32 v{VM}, 0
s_mov_b32 s61, s28
s_mov_b32 s60, 0
s_waitcnt lgkmcnt(0)
LF_nosw:
""")
            if nm == 'loop1':
                p(f"""
s_add_u32 s69, s68, 1
s_cmp_lg_u32 s62, s69
s_cbranch_scc1 LF_nomid
s_cmp_eq_u32 s25, 0
s_cbranch_scc1 LF_nomid
v_mov_b32 v{VLSAVE}, v{VLS}
v_mov_b32 v{VLS}, 0
s_mov_b32 s60, 1.0
s_mov_b32 s57, 0xbf800000
s_mov_b32 s58, {FLOOR1:#x}
s_mov_b32 s59, 1
LF_nomid:
""")
            if nm != 'drain0':
                p(f"""
s_lshr_b32 s68, s62, 1
s_lshl_b32 s69, s68, 1
s_sub_u32 s69, s69, s47
s_add_u32 s69, s69, s25
s_cmp_ge_u32 s68, s47
s_cselect_b32 s68, s69, s68
s_lshl_b32 s68, s68, 1
s_add_u32 s68, s68, {hf}
s_cmp_lt_u32 s68, s61
s_cbranch_scc1 LF_nomask{nm}
s_sub_u32 s68, s61, s68
s_lshl_b32 s68, s68, 5
v_add_u32 v9, s68, v{VZ}
v_mov_b32 v10, {NEG:#x}
""")
                for r in range(16):
                    cr = 8 * (r >> 2) + (r & 3)
                    p(f'v_cmp_gt_i32 vcc, {cr}, v9')
                    p(f'v_cndmask_b32 v{MN+r}, v{MN+r}, v10, vcc')
                p.label(f'LF_nomask{nm}')
            p(f"""
s_add_u32 s68, s62, 1
s_max_u32 s66, s68, 32
s_cmp_le_u32 s68, s49
s_cselect_b32 s66, s68, s66
s_branch LF_eret{nm}
""")
            p.end_branch()
        else:
            routine(f'LF_rare{nm}')
            c = S[1 - hf]; nx = S[hf]; pc = PP[1 - hf]
            p('s_nop 15\ns_nop 7')
            p(f'v_max3_f32 v9, v{c}, v{c+1}, v{c+2}')
            for k in range(3, 15, 2): p(f'v_max3_f32 v9, v9, v{c+k}, v{c+k+1}')
            p(f'v_max_f32 v9, v9, v{c+15}')
            p(f'''
v_mov_b32 v10, v9
v_permlane32_swap_b32 v9, v10
v_max_f32 v9, v9, v10
v_max_f32 v9, s58, v9
v_sub_f32 v10, 0, v9
v_min_f32 v10, 0x42fc0000, v10
v_exp_f32 v10, v10
v_mul_f32 v11, s60, v9
''')
            for k in range(16): p(f'v_sub_f32 v{c+k}, v{c+k}, v9')
            for k in range(16): p(f'v_exp_f32 v{TT+k}, v{c+k}')
            p(f'v_add_f32 v{VTS}, v{TT}, v{TT+1}')
            for k in range(2, 16): p(f'v_add_f32 v{VTS}, v{VTS}, v{TT+k}')
            for k in range(8): p(f'v_cvt_pk_bf16_f32 v{pc+k}, v{TT+2*k}, v{TT+2*k+1}')
            for k in range(16): p(f'v_sub_f32 v{nx+k}, v{nx+k}, v11')
            for k in range(16): p(f'v_sub_f32 v{MN+k}, v{MN+k}, v11')
            p(f'v_add_f32 v{VM}, v{VM}, v11')
            p(f'v_mul_f32 v{VLS}, v{VLS}, v10')
            p('s_cmp_lg_u32 s59, 0')
            p(f's_cbranch_scc1 LF_rskip{nm}')
            for k in range(64): p(f'v_mul_f32 v{O+k}, v{O+k}, v10')
            p.label(f'LF_rskip{nm}')
            p(f'''
s_mov_b32 s{56+hf}, {THR:#x}
''')
            if hf == 1:
                p('s_mov_b32 s58, 0\ns_mov_b32 s59, 0')
            if nm == 'loop1': p('s_cmp_lt_u32 s55, 17')
            p(f's_branch LF_ret{nm}')
            p.end_branch()
    p.alt_branch(ool); emit_slow(); p.end_branch()
    p.label('LF_end')
    p('s_endpgm')
    return ('kf_kernel', p, 256, 512, 163840, 256, 256)
```

```python
from common import *
from k1 import ln_stream
import struct, math

def f2u(x): return struct.unpack('<I', struct.pack('<f', x))[0]
MF = 'v_mfma_f32_32x32x16_bf16'
SC = os.environ.get('FSC', ' sc1')
CNT_LN = 0; CNT_KV = 16; CNT_CTX = 32; CNT_REG = 48
LS = os.environ.get('LS', ' sc1')
SPIN_MAX = 1 << 22

KVSC = os.environ.get('KVSC', '')
KVN = int(os.environ.get('KVN', '0'))
def gen_kf():
    p = Prog()
    st = Stamps(p, 70, 10)
    st.skip = set(int(x) for x in os.environ.get('STSKIP', '').split(',') if x)
    def emit(lst):
        for f in lst:
            if isinstance(f, list): emit(f)
            elif callable(f): f(p)
            else: p(f)
    VL16 = 1
    uid = [0]
    def publish(sreg_idx_list):
        uid[0] += 1; L = f'LF_pub{uid[0]}'
        out = ['s_cmp_lg_u32 s20, 0', f's_cbranch_scc1 {L}', '@COND', 'v_mov_b32 v14, 1', 'v_mov_b32 v15, 0', 's_mov_b64 exec, 1']
        for s in sreg_idx_list:
            out.append(f'buffer_atomic_add v14, v15, s[96:99], s{s} offen sc1')
        out += ['s_mov_b64 exec, -1', '@ENDCOND', f'{L}:']
        return out
    def poll(pairs):
        uid[0] += 1; L = f'LF_poll{uid[0]}'
        out = ['s_cmp_lg_u32 s20, 0', f's_cbranch_scc1 {L}_done', '@COND', 'v_mov_b32 v15, 0', f's_mov_b32 s3, {SPIN_MAX}']
        for n, (s, tgt) in enumerate(pairs):
            out += [f'{L}_{n}:',
                    f'buffer_load_dword v14, v15, s[96:99], s{s} offen sc1',
                    's_waitcnt vmcnt(0)',
                    'v_readfirstlane_b32 s100, v14',
                    's_sub_u32 s3, s3, 1',
                    's_cmp_eq_u32 s3, 0',
                    f's_cbranch_scc1 {L}_acq',
                    f's_cmp_ge_u32 s100, {tgt}',
                    f's_cbranch_scc1 {L}_{n}_ok',
                    's_sleep 2',
                    f's_branch {L}_{n}',
                    f'{L}_{n}_ok:']
        out += [f'{L}_acq:', 'buffer_inv sc1', 's_waitcnt vmcnt(0)', '@ENDCOND', f'{L}_done:']
        return out
    def poll_noinv(pairs):
        out = poll(pairs)
        i = out.index('buffer_inv sc1')
        return out[:i] + out[i + 2:]
    slow = []
    def poll_issue(sregs):
        uid[0] += 1; L = f'LF_pi{uid[0]}'
        out = ['s_cmp_lg_u32 s20, 0', f's_cbranch_scc1 {L}', '@COND', 'v_mov_b32 v8, 0']
        for n, s in enumerate(sregs): out.append(f'buffer_load_dword v{14+n}, v8, s[96:99], s{s} offen sc1')
        out += ['@ENDCOND', f'{L}:']
        return out
    def poll_check(pairs, inv_flag=None):
        uid[0] += 1; L = f'LF_pc{uid[0]}'
        out = ['s_cmp_lg_u32 s20, 0', f's_cbranch_scc1 {L}', '@COND']
        for n, (s, tgt) in enumerate(pairs):
            out += [f'v_readfirstlane_b32 s100, v{14+n}', f's_cmp_lt_u32 s100, {tgt}', f's_cbranch_scc1 {L}_slow']
        out += [f'{L}_ok:']
        if inv_flag is not None and inv_flag >= 0:
            out += [f's_cmp_lg_u32 s{inv_flag}, 0', f's_cbranch_scc1 {L}', (lambda pp: pp('buffer_inv sc1', 'inv'))]
        elif inv_flag is not None:
            out += [(lambda pp: pp('buffer_inv sc1', 'inv'))]
        out += ['@ENDCOND', f'{L}:']
        slow.append((L, pairs))
        return out
    def publish_kv():
        uid[0] += 1; L = f'LF_pkv{uid[0]}'
        return ['s_cmp_lg_u32 s20, 0', f's_cbranch_scc1 {L}', '@COND',
                'v_readfirstlane_b32 s100, v15',
                's_and_b32 s3, s100, 63', 's_bfe_u32 s29, s100, 0x90006', 's_lshr_b32 s30, s100, 15',
                's_mul_i32 s29, s29, s29', 's_lshl_b32 s30, s30, 5',
                's_cmp_eq_u32 s29, s30', 's_cselect_b32 s94, 1, 0',
                's_cmp_eq_u32 s3, 32', 's_cselect_b32 s94, s94, 0',
                's_cmp_lg_u32 s94, 0', f's_cbranch_scc1 {L}_fast',
                'buffer_wbl2 sc1', 's_waitcnt vmcnt(0)',
                f'{L}_fast:',
                'v_mov_b32 v14, 1', 'v_mov_b32 v15, 0', 's_mov_b64 exec, 1',
                'buffer_atomic_add v14, v15, s[96:99], s33 offen sc1',
                's_mov_b64 exec, -1', '@ENDCOND', f'{L}:']
    def w0_drain():
        uid[0] += 1; L = f'LF_dr{uid[0]}'
        return ['s_cmp_lg_u32 s20, 0', f's_cbranch_scc1 {L}', '@COND', (lambda pp: pp.wait_tag('inv')), '@ENDCOND', f'{L}:']
    def emit_slow():
        for L, pairs in slow:
            p.label(f'{L}_slow')
            p(f's_mov_b32 s3, {SPIN_MAX}')
            p('v_mov_b32 v8, 0')
            for n, (s, tgt) in enumerate(pairs):
                p(f"""
{L}_s{n}:
buffer_load_dword v14, v8, s[96:99], s{s} offen sc1
s_waitcnt vmcnt(0)
v_readfirstlane_b32 s100, v14
s_sub_u32 s3, s3, 1
s_cmp_eq_u32 s3, 0
s_cbranch_scc1 {L}_ok
s_cmp_ge_u32 s100, {tgt}
s_cbranch_scc1 {L}_s{n}_ok
s_sleep 2
s_branch {L}_s{n}
{L}_s{n}_ok:
""")
            p(f's_branch {L}_ok')
    p(f'''
s_cmp_ge_u32 s2, 256
s_cbranch_scc1 LF_end
s_load_dwordx4 s[28:31], s[0:1], 0
s_load_dwordx4 s[32:35], s[0:1], 24
s_load_dwordx4 s[36:39], s[0:1], 88
s_load_dwordx4 s[64:67], s[0:1], 56
s_load_dwordx2 s[68:69], s[0:1], 16
s_load_dwordx2 s[56:57], s[0:1], 40
s_load_dwordx2 s[58:59], s[0:1], 72
v_lshrrev_b32 v9, 6, v0
v_and_b32 v10, 63, v0
v_readfirstlane_b32 s20, v9
s_and_b32 s22, s2, 7
s_lshr_b32 s23, s2, 3
''')
    st.stamp()
    p('''
s_and_b32 s48, s23, 1
s_bfe_u32 s49, s23, 0x10001
s_lshr_b32 s50, s23, 2
s_lshl_b32 s51, s22, 9
s_lshl_b32 s3, s48, 8
s_add_u32 s51, s51, s3
''')
    p(f'v_lshlrev_b32 v{VL16}, 4, v10')
    STG = 65536
    p('''
v_lshrrev_b32 v11, 3, v10
v_and_b32 v12, 7, v10
v_lshrrev_b32 v13, 4, v10
v_xor_b32 v14, v12, v13
v_lshlrev_b32 v14, 4, v14
v_lshl_add_u32 v2, v11, 10, v14
v_xor_b32 v3, 64, v2
''')
    p('''
v_and_b32 v13, 1, v13
v_lshlrev_b32 v13, 2, v13
v_xor_b32 v14, v12, v13
v_lshlrev_b32 v14, 4, v14
v_lshl_add_u32 v4, v11, 13, v14
''')
    p(f'''
v_and_b32 v11, 31, v10
v_lshrrev_b32 v12, 5, v10
v_bfe_u32 v13, v11, 1, 3
v_xor_b32 v13, v12, v13
v_lshlrev_b32 v13, 4, v13
v_lshl_add_u32 v13, v11, 7, v13
s_lshl_b32 s52, s20, 13
s_add_u32 s52, s52, {STG}
v_add_u32 v16, s52, v13
v_xor_b32 v17, 32, v16
v_xor_b32 v18, 64, v16
v_xor_b32 v19, 96, v16
''')
    p('''
v_bfe_u32 v11, v10, 2, 2
v_lshl_add_u32 v13, v12, 3, v11
v_lshlrev_b32 v13, 7, v13
v_lshrrev_b32 v11, 1, v11
v_lshl_add_u32 v13, v11, 6, v13
v_bfe_u32 v11, v10, 4, 1
v_lshl_add_u32 v13, v11, 5, v13
v_and_b32 v11, 3, v10
v_lshl_add_u32 v20, v11, 3, v13
v_xor_b32 v21, 64, v20
v_add_u32 v22, 0x8000, v20
v_add_u32 v23, 0x8000, v21
v_add_u32 v24, 0x20000, v20
v_add_u32 v25, 0x20000, v21
v_add_u32 v26, 0x10000, v20
v_add_u32 v27, 0x10000, v21
v_lshlrev_b32 v14, 7, v10
v_lshrrev_b32 v15, 2, v10
v_lshlrev_b32 v15, 13, v15
v_and_b32 v11, 3, v10
v_lshl_add_u32 v15, v11, 7, v15
v_lshrrev_b32 v5, 1, v10
v_lshlrev_b32 v5, 10, v5
v_and_b32 v11, 1, v10
v_lshl_add_u32 v5, v11, 9, v5
''')
    p('s_waitcnt lgkmcnt(0)')
    srd(p, 12, 30, 31, 2 << 20)
    srd(p, 16, 28, 29, 2 << 20)
    srd(p, 8, 38, 39, WS_BYTES)
    srd(p, 96, 36, 37, 256)
    p('''
s_cmp_eq_u32 s49, 0
s_cselect_b32 s4, s32, s34
s_cselect_b32 s5, s33, s35
s_and_b32 s5, s5, 0xffff
s_mov_b32 s6, 0x400000
s_mov_b32 s7, 0x00020000
s_lshl_b32 s40, s50, 8
s_lshl_b32 s41, s20, 5
s_add_u32 s40, s40, s41
s_lshl_b32 s40, s40, 10
s_lshl_b32 s42, s20, 18
s_lshl_b32 s43, s51, 1
s_add_u32 s42, s42, s43
s_lshl_b32 s43, s20, 12
''')
    WS = [0, 32768, 131072, 65536]
    def wdma(u, q):
        sc = u >> 1; kh = u & 1
        return [f's_add_u32 m0, s43, {WS[u % 4] + q*1024}',
                f's_add_u32 s53, s42, {(kh*256 + 8*q)*8192 + sc*128}',
                (lambda pp: pp('buffer_load_dwordx4 v4, s[4:7], s53 offen lds', f'w{u}'))]
    def adma(e, jj):
        return [f's_add_u32 m0, s52, {(e&1)*4096 + jj*1024}',
                f's_add_u32 s54, s40, {8*jj*1024 + e*128}',
                (lambda pp: pp(f'buffer_load_dwordx4 v{2+(jj&1)}, s[12:15], s54 offen lds', f'a{e}'))]
    AR = 128
    def aread(e, k):
        ks = 4 * e + k
        return (lambda pp: pp(f'ds_read_b128 {vr(AR+4*ks,4)}, v{16+k} offset:{(e&1)*4096}', f'ar{e}'))
    for jj in range(4): emit(adma(0, jj))
    for q in range(4): emit(wdma(0, q))
    for jj in range(4): emit(adma(1, jj))
    p('''
s_lshl_b32 s29, s2, 3
s_add_u32 s29, s29, s20
s_lshl_b32 s30, s29, 10
''')
    LNR = 96; LNT = 100
    p(f'buffer_load_dwordx4 {vr(LNR,4)}, v{VL16}, s[16:19], s30 offen')
    if 'pf' in os.environ.get('XP1', '').split('_'):
        p("""
s_cmp_lt_u32 s2, 128
s_cselect_b32 s60, s32, s34
s_cselect_b32 s61, s33, s35
s_mov_b32 s62, 0x400000
s_and_b32 s3, s2, 127
s_lshl_b32 s3, s3, 15
s_lshl_b32 s53, s20, 13
s_add_u32 s3, s3, s53
s_lshl_b32 s53, s2, 13
s_cmp_eq_u32 s20, 4
s_cselect_b32 s60, s12, s60
s_cselect_b32 s61, s13, s61
s_cselect_b32 s62, s14, s62
s_cselect_b32 s3, s53, s3
s_cmp_gt_u32 s20, 4
s_cselect_b32 s3, 0x7f000000, s3
s_and_b32 s61, s61, 0xffff
s_mov_b32 s63, 0x00020000
buffer_load_dword v104, v14, s[60:63], s3 offen
""")
    for q in range(4): emit(wdma(1, q))
    p(f'''
s_lshr_b32 s44, s51, 7
s_lshl_b32 s44, s44, 19
s_lshl_b32 s45, s50, 3
s_add_u32 s45, s45, s20
s_lshl_b32 s45, s45, 13
s_add_u32 s44, s44, s45
s_mov_b32 s45, {KF_OFF:#x}
s_mov_b32 s46, {VF_OFF:#x}
s_cmp_eq_u32 s49, 0
s_cselect_b32 s45, s45, s46
s_add_u32 s41, s44, s45
s_lshr_b32 s31, s29, 5
s_lshl_b32 s31, s31, 15
s_and_b32 s3, s29, 31
s_lshl_b32 s3, s3, 4
s_add_u32 s31, s31, s3
s_lshr_b32 s32, s2, 4
s_lshl_b32 s32, s32, 2
s_lshr_b32 s33, s51, 8
s_add_u32 s33, s33, {CNT_KV}
s_lshl_b32 s33, s33, 2
s_getreg_b32 s3, hwreg(HW_REG_XCC_ID, 0, 4)
s_mul_i32 s53, s3, s3
s_lshl_b32 s53, s53, 15
s_lshl_b32 s3, s3, 6
s_add_u32 s53, s53, s3
s_add_u32 s53, s53, 1
s_add_u32 s101, s22, {CNT_REG}
s_lshl_b32 s101, s101, 2
s_cmp_lg_u32 s20, 0
s_cbranch_scc1 LF_noreg
@COND
v_mov_b32 v8, s53
v_mov_b32 v9, 0
s_mov_b64 exec, 1
buffer_atomic_add v8, v9, s[96:99], s101 offen sc1
s_mov_b64 exec, -1
@ENDCOND
LF_noreg:
''')
    if XF_OFF: p(f's_add_u32 s31, s31, {XF_OFF:#x}')
    p('''
s_and_b32 s3, s23, 3
s_lshl_b32 s21, s22, 2
s_add_u32 s21, s21, s3
s_lshr_b32 s24, s23, 2
s_lshr_b32 s25, s20, 2
s_and_b32 s26, s20, 3
s_sub_u32 s28, 15, s24
s_lshl_b32 s28, s28, 2
s_add_u32 s28, s28, s26
s_lshl_b32 s27, s24, 2
s_add_u32 s27, s27, s26
s_cmp_eq_u32 s25, 0
s_cselect_b32 s27, s28, s27
''')
    p.wait_tag('a0')
    for k in range(4): emit([aread(0, k)])
    p.wait_tag('ar0')
    for jj in range(4): emit(adma(2, jj))
    p.wait_tag('w0')
    p('s_barrier')
    st.stamp()
    p('s_cmp_lg_u32 s49, 0')
    p('s_cbranch_scc1 LF_v')

    WF = 32; NST = 4; ACC = 64; PK = 96
    def trread(u, kk):
        out = []
        for nt in range(2):
            w = WF + 8 * (kk % NST) + 4 * nt
            out.append(f'ds_read_b64_tr_b16 {vr(w,2)}, v{20+2*(u%4)+nt} offset:{kk*2048}')
            out.append(f'ds_read_b64_tr_b16 {vr(w+2,2)}, v{20+2*(u%4)+nt} offset:{kk*2048+512}')
        return out
    def kv_epilogue(sc, nt):
        g = []
        PKB = PK if sc < 3 else 32
        for half in range(2):
            pk = PKB + 8 * nt + 4 * half
            for i in range(4):
                s = ACC + 16 * nt + 8 * half + 2 * i
                g.append(f'v_cvt_pk_bf16_f32 v{pk+i}, v{s}, v{s+1}')
        off = (sc >> 1) * 524288 + (sc & 1) * 4096
        st_ = [[f's_add_u32 s55, s41, {off + nt*2048 + half*1024}',
                (lambda pp, half=half: pp(f'buffer_store_dwordx4 {vr(PKB+8*nt+4*half,4)}, v{VL16}, s[8:11], s55 offen{KVSC if sc >= KVN else SC}', 'kvst'))]
               for half in range(2)]
        return g, st_
    lns = ln_stream(LNR, LNT, LNT + 16)
    lns.append(lambda pp: pp(f'buffer_store_dwordx4 {vr(LNR,4)}, v5, s[8:11], s31 offen{SC}', 'lnst'))
    SLOT = 29184
    GSL = [0, SLOT, 131072, 65536]
    KSL = 0; VSL = 65536; QX = 131072
    GD = 28
    def p2_setup():
        q = Prog(); pp = q
        pp("""
v_and_b32 v10, 63, v0
v_lshrrev_b32 v11, 4, v10
v_bfe_u32 v12, v10, 2, 2
v_and_b32 v13, 3, v11
v_xor_b32 v12, v12, v13
v_lshlrev_b32 v12, 6, v12
v_and_b32 v13, 3, v10
v_lshl_add_u32 v12, v13, 4, v12
v_lshl_add_u32 v12, v11, 13, v12
s_lshl_b32 s29, s26, 17
v_add_u32 v28, s29, v12
v_add_u32 v29, 0x8000, v28
v_add_u32 v30, 0x10000, v28
v_add_u32 v31, 0x18000, v28
s_and_b32 s29, s20, 1
s_mul_i32 s29, s29, 192
s_mov_b32 s30, 43691
s_movk_i32 s34, 2752
s_cmp_eq_u32 s25, 0
s_cselect_b64 s[36:37], -1, 0
""")
        for t in range(3):
            pp(f"""
v_add_u32 v11, s29, v10
v_add_u32 v11, {64*t}, v11
v_mul_lo_u32 v12, v11, s30
v_lshrrev_b32 v12, 18, v12
v_mul_u32_u24 v13, 6, v12
v_sub_u32 v13, v11, v13
v_mul_lo_u32 v12, v12, s34
v_lshl_add_u32 v9, v13, 4, v12
v_cndmask_b32 v{28+t}, v9, v{28+t}, s[36:37]
""")
        pp('v_cndmask_b32 v31, v9, v31, s[36:37]')
        pp("""
v_lshrrev_b32 v11, 5, v10
v_bfe_u32 v12, v10, 2, 2
v_lshl_add_u32 v13, v11, 3, v12
v_lshlrev_b32 v6, 8, v13
v_lshl_add_u32 v6, v12, 6, v6
v_bfe_u32 v7, v10, 4, 1
v_lshl_add_u32 v6, v7, 5, v6
v_and_b32 v9, 3, v10
v_lshl_add_u32 v6, v9, 3, v6
v_mul_u32_u24 v13, 96, v13
v_mul_u32_u24 v7, 6272, v7
v_add_u32 v13, v13, v7
v_lshl_add_u32 v13, v9, 3, v13
v_add_u32 v7, 0x4000, v13
""")
        pp("""
s_mov_b32 s60, s68
s_mov_b32 s61, s69
s_cmp_eq_u32 s20, 2
s_cselect_b32 s60, s64, s60
s_cselect_b32 s61, s65, s61
s_cmp_eq_u32 s20, 3
s_cselect_b32 s60, s66, s60
s_cselect_b32 s61, s67, s61
s_cmp_ge_u32 s20, 4
s_cselect_b32 s60, s56, s60
s_cselect_b32 s61, s57, s61
s_cmp_ge_u32 s20, 6
s_cselect_b32 s60, s58, s60
s_cselect_b32 s61, s59, s61
s_and_b32 s61, s61, 0xffff
s_mov_b32 s63, 0x00020000
s_mov_b32 s62, 0x158000
s_movk_i32 s35, 5504
s_and_b32 s38, s20, 2
s_cmp_eq_u32 s38, 0
s_cselect_b32 s62, 0x400000, s62
s_cselect_b32 s35, 0x4000, s35
s_mul_i32 s35, s35, s2
s_and_b32 s39, s20, 1
s_lshl_b32 s39, s39, 13
s_cmp_eq_u32 s38, 0
s_cselect_b32 s39, s39, 0
s_add_u32 s35, s35, s39
s_cmp_ge_u32 s20, 4
s_cselect_b32 s35, 0x7f000000, s35
v_lshlrev_b32 v12, 3, v1
buffer_load_dword v11, v12, s[60:63], s35 offen
""")
        pp("""
s_bfe_u32 s29, s20, 0x10001
s_cmp_eq_u32 s29, 0
s_cselect_b32 s16, s64, s66
s_cselect_b32 s17, s65, s67
s_mov_b32 s18, 0x158000
s_cmp_eq_u32 s25, 0
s_cselect_b32 s16, s68, s16
s_cselect_b32 s17, s69, s17
s_cselect_b32 s18, 0x400000, s18
s_and_b32 s17, s17, 0xffff
s_mov_b32 s19, 0x00020000
s_lshl_b32 s56, s21, 8
s_mul_i32 s38, s21, 96
s_lshl_b32 s58, s26, 12
s_mul_i32 s39, s29, 6272
s_and_b32 s30, s20, 1
s_mul_i32 s30, s30, 3072
s_add_u32 s39, s39, s30
s_add_u32 s39, s39, 16384
s_cmp_eq_u32 s25, 0
s_cselect_b32 s56, s56, s38
s_mov_b32 s57, 0x2b000
s_cselect_b32 s57, 0x80000, s57
s_cselect_b32 s58, s58, s39
s_movk_i32 s59, 2048
s_cselect_b32 s59, 3072, s59
s_add_u32 s59, s59, s58
s_lshl_b32 s60, s27, 15
""")
        if XF_OFF: pp(f's_add_u32 s60, s60, {XF_OFF:#x}')
        return [i.text for i in q.items]
    GX = 128; GW = 192; GT = [48, 64, 80, 96, 112, 160, 176]
    def gdma(sl):
        base = GSL[sl % 4]
        out = []
        for t in range(4):
            out.append([f's_add_u32 m0, s{58 if t < 3 else 59}, {base + (t*1024 if t < 3 else 0)}',
                        's_nop 0',
                        (lambda pp, t=t, sl=sl: pp(f'buffer_load_dwordx4 v{GD+t}, s[16:19], s56 offen lds', f'g{sl}'))])
        out[3].append('s_add_u32 s56, s56, s57')
        return out
    def xload(sl):
        out = []
        b = GX + 16 * (sl & 1)
        for k in range(4):
            out.append(f'buffer_load_dwordx4 {vr(b+4*k,4)}, v{VL16}, s[8:11], s61 offen offset:{k*1024}{LS}')
        return [f's_add_u32 s61, s60, {sl*4096}'] + out

    alt = p.begin_alt(join=True)
    for variant in ('k', 'v'):
        p.alt_branch(alt)
        if variant == 'v': p.label('LF_v')
        for kk in range(3): emit(trread(0, kk))
        pend = []
        for u in range(8):
            sc = u >> 1; kh = u & 1
            bb = []; fl = {}
            def add(slot, items): fl.setdefault(slot, []).extend(items)
            for kk in range(16):
                ks = kh * 16 + kk
                for nt in range(2):
                    w = WF + 8 * (kk % NST) + 4 * nt
                    acc = vr(ACC + 16 * nt, 16); cc = '0' if ks == 0 else acc
                    A = vr(AR + 4 * ks, 4)
                    if variant == 'k': bb.append(f'{MF} {acc}, {vr(w,4)}, {A}, {cc}')
                    else:              bb.append(f'{MF} {acc}, {A}, {vr(w,4)}, {cc}')
            for kk in range(3, 16):
                t = trread(u, kk)
                s0 = min(2 * (kk - 3), 24)
                add(s0, t[:2]); add(s0 + 1, t[2:])
            if u < 2:
                for q4 in range(4):
                    e = 4 * kh + q4; base = 8 * q4
                    if e + 1 < 8:
                        add(base + 1, [lambda pp, e=e: pp.wait_tag(f'a{e+1}')])
                        for k_ in range(4): add(base + 1 + k_ // 2, [aread(e + 1, k_)])
                        if e + 3 < 8:
                            add(base + 5, [lambda pp, e=e: pp.wait_tag(f'ar{e+1}')])
                            for jj in range(4): add(base + 5 + jj // 2, adma(e + 3, jj))
            loads = {0: [2], 2: [3, 4], 3: [5], 4: [6], 5: [7]}.get(u, [])
            grps = [wdma(lu, q) for lu in loads for q in range(4)]
            if grps: spread(add, grps, 2 if u else 10, 25)
            X1 = os.environ.get('XP1', '')
            if u == 1: spread(add, atomic_groups(lns, 3), 1, 25)
            if u == 3: spread(add, atomic_groups(p2_setup(), 4), 10, 26)
            if kh == 0 and sc > 0:
                for nt in range(2):
                    g, st_ = kv_epilogue(sc - 1, nt)
                    fl.setdefault(('pre', nt), []).extend(g)
                    pend.extend(st_)
            if pend:
                a_, b_ = pend.pop(0), pend.pop(0)
                if 'nokvst' not in os.environ.get('XP1', ''): add(12, a_); add(24, b_)
            extra = []; post = []
            if u == (3 if 'latepub' in X1 else 2): extra = [lambda pp: pp.wait_tag('lnst')]; post = publish([32])
            if u == 5 and 'nopoll' not in X1: add(18, ['s_sub_u32 s29, 15, s24', 's_lshl_b32 s29, s29, 2', 's_lshl_b32 s30, s24, 2'] + poll_issue([29, 30]))
            if u == 5 and 'nopoll' not in X1: post = poll_check([(29, 16), (30, 16)])
            if u == 6 and 'nog01' not in X1:
                spread(add, gdma(0) + gdma(1), 1, 25)
            if u == 7 and 'nog01' in X1:
                spread(add, gdma(0) + gdma(1), 1, 25)
            if u == 7:
                xl = xload(0)
                spread(add, [xl[:2], [xl[2]], [xl[3]], [xl[4]]] + gdma(2), 1, 28)
            if u < 7:
                add(27, [lambda pp, u=u: pp.wait_tag(f'w{u+1}'), 's_waitcnt lgkmcnt(0)'] + extra + ['s_barrier'] + post)
                for kk in range(3):
                    t = trread(u + 1, kk)
                    add(min(27 + 2 * kk, 31), t[:2]); add(min(28 + 2 * kk, 31), t[2:])
            interleave(p, bb, fl)
            if os.environ.get('P1ST'): st.i = 2 + u; st.stamp()
        for nt in range(2):
            g, st_ = kv_epilogue(3, nt)
            emit(g); pend.extend(st_)
        if variant == 'k': p('s_branch LF_p2')
        p.end_branch()
    p.label('LF_p2')
    st.stamp()
    VK = 2; VV = 3; VZ = 4; VLS = 5; VM = 6; VTS = 7; VLSAVE = 8
    T0 = 9
    Q = 16; O = 48; S = [112, 128]; PP = [144, 152]; MN = 160; FR = 176; E = 208; TT = 216
    THR = f2u(float(2 ** 20)); NEG = f2u(-1e30); FLOOR1 = f2u(-1e20)
    p(f"""
s_lshl_b32 s44, s21, 19
s_lshl_b32 s46, s20, 11
s_add_u32 s44, s44, s46
s_add_u32 s45, s44, {VF_OFF:#x}
s_add_u32 s44, s44, {KF_OFF:#x}
s_lshl_b32 s47, s24, 1
s_add_u32 s47, s47, 2
""")
    AQ = [T0, T0 + 1, T0 + 2, T0 + 3]; AF_ = T0 + 4
    def set_addr(sl):
        base = GSL[sl % 4]
        out = [f'v_add_u32 v{AQ[0]}, {base}, v6']
        for nt in range(1, 4): out.append(f'v_xor_b32 v{AQ[nt]}, {nt<<6}, v{AQ[0]}')
        out.append(f'v_add_u32 v{AF_}, {base}, v7')
        return out
    assert all((s & 0xff) == 0 for s in GSL)
    def gtr(g):
        kk = g & 3; out = []
        for tl in range(7):
            w = GW + 28 * (g & 1) + 4 * tl
            if tl < 4:
                out.append(f'ds_read_b64_tr_b16 {vr(w,2)}, v{AQ[tl]} offset:{kk*4096}')
                out.append(f'ds_read_b64_tr_b16 {vr(w+2,2)}, v{AQ[tl]} offset:{kk*4096+1024}')
            else:
                o = kk * 1536 + (tl - 4) * 32
                out.append(f'ds_read_b64_tr_b16 {vr(w,2)}, v{AF_} offset:{o}')
                out.append(f'ds_read_b64_tr_b16 {vr(w+2,2)}, v{AF_} offset:{o+384}')
        return out
    def kvcopy(sbase, chunk_off, ldsbase, tag, tmp=43):
        return [f's_add_u32 m0, s46, {ldsbase}',
                f's_add_u32 s{tmp}, s{sbase}, {chunk_off}',
                (lambda pp: pp(f'buffer_load_dwordx4 v{VL16}, s[8:11], s{tmp} offen{LS} lds', tag)),
                (lambda pp: pp(f'buffer_load_dwordx4 v{VL16}, s[8:11], s{tmp} offen offset:1024{LS} lds', tag))]
    PUB_SL = int(os.environ.get('PUB_SL', '4'))
    p.wait_tag('g0')
    p('s_waitcnt lgkmcnt(0)')
    p('s_barrier')
    emit(set_addr(0))
    emit(gtr(0))
    for sl in range(8):
        bb = []; fl = {}
        def add(slot, items): fl.setdefault(slot, []).extend(items)
        for kk in range(4):
            g = sl * 4 + kk
            xb = GX + 16 * (sl & 1) + 4 * kk
            for tl in range(7):
                w = GW + 28 * (g & 1) + 4 * tl
                acc = vr(GT[tl], 16); cc = '0' if g == 0 else acc
                bb.append(f'{MF} {acc}, {vr(w,4)}, {vr(xb,4)}, {cc}')
            ng = g + 1
            if ng < 32:
                if kk == 3: add(7 * kk - 1, set_addr(sl + 1))
                rd = gtr(ng)
                for i in range(7): add(7 * kk + i, rd[2 * i:2 * i + 2])
        if sl + 1 < 8:
            xl = xload(sl + 1)
            add(0, xl[:1])
            for k in range(4): add(1 + k, [xl[1 + k]])
            pre = []; post = []
            if sl < 4: add(10, pend[sl])
            if sl == PUB_SL:
                pre = [lambda pp: pp.wait_tag('kvst')]; post = publish_kv()
            if sl == PUB_SL - 1:
                add(6, poll_issue([101, 101]))
            if sl == 6:
                add(8, [f's_lshr_b32 s29, s21, 1', f's_add_u32 s29, s29, {CNT_KV}', 's_lshl_b32 s29, s29, 2'] + poll_issue([29]))
                post = poll_check([(29, 16)], inv_flag=(94 if os.environ.get('KVINV', 'cond') == 'cond' else -1))

            add(17, [lambda pp, sl=sl: pp.wait_tag(f'g{sl+1}')] + pre + ['s_barrier'] + post)
            if sl + 3 < 8:
                for t, grp in enumerate(gdma(sl + 3)): add(18 + 2 * t if t < 1 else 21 + 2 * (t - 1), grp)
        interleave(p, bb, fl)
    st.stamp()
    p('s_waitcnt lgkmcnt(0)')
    emit(w0_drain())
    p('s_barrier')
    emit(kvcopy(44, 0, KSL, 'k0'))
    emit(kvcopy(44, 16384, KSL + 32768, 'k1'))
    emit(kvcopy(45, 0, VSL, 'v0'))
    p("""
s_load_dwordx2 s[56:57], s[0:1], 40
s_load_dwordx2 s[58:59], s[0:1], 72
s_waitcnt lgkmcnt(0)
s_cmp_ge_u32 s20, 2
s_cselect_b32 s60, s58, s56
s_cselect_b32 s61, s59, s57
s_mov_b32 s62, 0x400000
s_cselect_b32 s62, 0x158000, s62
s_movk_i32 s35, 0x4000
s_cselect_b32 s35, 5504, s35
s_and_b32 s61, s61, 0xffff
s_mov_b32 s63, 0x00020000
s_mul_i32 s35, s35, s2
s_cmp_eq_u32 s20, 1
s_cselect_b32 s39, 0x2000, 0
s_add_u32 s35, s35, s39
s_cmp_ge_u32 s20, 3
s_cselect_b32 s35, 0x7f000000, s35
v_lshlrev_b32 v12, 3, v1
buffer_load_dword v255, v12, s[60:63], s35 offen
""")
    CQ = f2u(math.log2(math.e) / math.sqrt(128.0))
    p(f's_mov_b32 s48, {CQ:#x}')
    p(f's_mov_b32 s49, {CQ:#x}')
    for tl in range(4):
        for i in range(8): p(f'v_pk_mul_f32 {vr(GT[tl]+2*i,2)}, {vr(GT[tl]+2*i,2)}, s[48:49]')
        for i in range(8): p(f'v_cvt_pk_bf16_f32 v{Q+8*tl+i}, v{GT[tl]+2*i}, v{GT[tl]+2*i+1}')
    p(f'''
s_lshl_b32 s49, s26, 13
s_add_u32 s49, s49, {QX}
v_add_u32 v9, s49, v{VL16}
s_cmp_lg_u32 s25, 0
s_cbranch_scc1 LF_noqx
@COND
''')
    for ks in range(8): p(f'ds_write_b128 v9, {vr(Q+4*ks,4)} offset:{ks*1024}')
    p('s_waitcnt lgkmcnt(0)')
    p('@ENDCOND')
    p.label('LF_noqx')
    KG = -2.0 * math.sqrt(2.0 / math.pi) * math.log2(math.e)
    p(f's_mov_b32 s50, {f2u(KG*0.044715):#x}')
    p(f's_mov_b32 s51, {f2u(KG*0.044715):#x}')
    p(f'v_mov_b32 v{GW+16}, {f2u(KG):#x}')
    p(f'v_mov_b32 v{GW+17}, {f2u(KG):#x}')
    p(f'''
s_mul_i32 s52, s27, {AF_MT}
s_mul_i32 s53, s21, 3
s_add_u32 s54, s53, 256
s_lshl_b32 s54, s54, 10
s_add_u32 s52, s52, s54
s_add_u32 s52, s52, {AF_OFF:#x}
''')
    for tt in range(3):
        a = GT[4 + tt]; t = GW
        p(f's_add_u32 s54, s53, {tt}')
        p('s_cmp_ge_u32 s54, 86')
        p(f's_cbranch_scc1 LF_ffn_skip{tt}')
        p('@COND')
        P2 = lambda r: vr(r, 2)
        for i in range(0, 8, 2): p(f'v_pk_mul_f32 {P2(t+i)}, {P2(a+i)}, {P2(a+i)}')
        for i in range(0, 8, 2): p(f'v_pk_fma_f32 {P2(t+i)}, {P2(t+i)}, s[50:51], {P2(t+16)}')
        for i in range(0, 8, 2): p(f'v_pk_mul_f32 {P2(t+i)}, {P2(t+i)}, {P2(a+i)}')
        for i in range(8): p(f'v_exp_f32 v{t+i}, v{t+i}')
        for i in range(0, 8, 2): p(f'v_pk_mul_f32 {P2(t+8+i)}, {P2(a+i)}, {P2(a+8+i)}')
        for i in range(0, 8, 2): p(f'v_pk_add_f32 {P2(t+i)}, {P2(t+i)}, 1.0 op_sel_hi:[1,0]')
        for i in range(8): p(f'v_rcp_f32 v{t+i}, v{t+i}')
        for i in range(0, 8, 2): p(f'v_pk_mul_f32 {P2(t+i)}, {P2(t+i)}, {P2(t+8+i)}')
        for i in range(4): p(f'v_cvt_pk_bf16_f32 v{t+20+4*tt+i}, v{t+2*i}, v{t+2*i+1}')
        p(f'buffer_store_dwordx4 {vr(t+20+4*tt,4)}, v{VL16}, s[8:11], s52 offen offset:{tt*1024}{SC}')
        p('@ENDCOND')
        p.label(f'LF_ffn_skip{tt}')
    st.stamp()
    for i in range(0, 64, 2): p(f'v_pk_mov_b32 {vr(O+i,2)}, 0, 0')
    for i in range(0, 16, 2): p(f'v_pk_mov_b32 {vr(MN+i,2)}, 0, 0')
    p(f"""
v_mov_b32 v{VLS}, 0
v_mov_b32 v{VM}, 0
v_mov_b32 v{VLSAVE}, 0
s_mov_b32 s56, {THR:#x}
s_mov_b32 s57, 0xbf800000
s_mov_b32 s58, {FLOOR1:#x}
s_mov_b32 s59, 1
s_mov_b32 s60, 1.0
s_mov_b32 s61, s27
s_mov_b32 s62, 0
s_lshl_b32 s67, s25, 14
v_add_u32 v{VK}, {KSL}, v{VL16}
v_add_u32 v{VV}, {VSL}, v{VL16}
v_and_b32 v10, 63, v0
v_and_b32 v12, 31, v10
v_lshrrev_b32 v11, 5, v10
v_lshlrev_b32 v13, 2, v11
v_sub_u32 v{VZ}, v12, v13
s_mov_b32 s55, 0
s_mov_b32 s63, 16384
s_add_u32 s64, s46, 32768
s_lshl_b32 s49, s47, 1
s_add_u32 s49, s49, 2
s_cmp_eq_u32 s25, 0
s_cselect_b32 s49, 0, s49
s_cselect_b32 s66, 32, s27
s_lshl_b32 s68, s47, 1
s_add_u32 s68, s68, 4
s_min_u32 s68, s68, 32
s_cmp_eq_u32 s20, 0
s_cselect_b32 s66, s68, s66
""")
    p('s_waitcnt vmcnt(0) lgkmcnt(0)')
    p('s_barrier')
    st.stamp()

    def frag_read(f):
        hf = f >> 4; i = f & 15; dst = vr(FR + 4 * (f % 8), 4)
        if i < 8:  return f'ds_read_b128 {dst}, v{VK} offset:{hf*8192 + i*1024}'
        else:      return f'ds_read_b128 {dst}, v{VV} offset:{hf*8192 + (i-8)*1024}'
    def mfma(f):
        hf = f >> 4; i = f & 15; fr = vr(FR + 4 * (f % 8), 4)
        if i < 8:
            s = vr(S[hf], 16); c = vr(MN, 16) if i == 0 else s
            return f'{MF} {s}, {fr}, {vr(Q+4*i,4)}, {c}'
        dt = (i - 8) >> 1; tp = (i - 8) & 1
        o = vr(O + 16 * dt, 16)
        return f'{MF} {o}, {fr}, {vr(PP[hf]+4*tp,4)}, {o}'
    def bstage(hf, nslots):
        c = S[1 - hf]; pp_ = PP[1 - hf]
        groups = [[] for _ in range(nslots)]
        span = nslots - 2
        pos_e = [(kk * span) // 16 for kk in range(16)]
        late = [[] for _ in range(nslots)]
        for k in range(8):
            ea = E + (2 * k) % 8; eb = E + (2 * k + 1) % 8
            groups[pos_e[2 * k]].append(f'v_exp_f32 v{ea}, v{c+2*k}')
            groups[pos_e[2 * k + 1]].append(f'v_exp_f32 v{eb}, v{c+2*k+1}')
            sa = pos_e[2 * k] + 1; sb = pos_e[2 * k + 1] + 1
            if k == 0:
                late[sb].append(f'v_add_f32 v{VTS}, v{ea}, v{eb}')
            else:
                late[sa].append(f'v_add_f32 v{VTS}, v{VTS}, v{ea}')
                late[sb].append(f'v_add_f32 v{VTS}, v{VTS}, v{eb}')
            late[sb].append(f'v_cvt_pk_bf16_f32 v{pp_+k}, v{ea}, v{eb}')
        return [late[i] + groups[i] for i in range(nslots)]
    outl = []

    def step(kind):
        doA = kind != 'drain'
        slots = []
        for f in range(32):
            hf = f >> 4; i = f & 15
            isA = i < 8
            if isA and not doA: continue
            if not isA and kind == 'first': continue
            slots.append(f)
        pos = {f: n for n, f in enumerate(slots)}
        bb = [mfma(f) for f in slots]
        fl = {}
        def add(n, items): fl.setdefault(n, []).extend(items)
        nS = len(slots)
        DIST = 4
        last_read_slot = nS - 6
        for n in range(DIST, nS):
            add(min(n - DIST, last_read_slot) if kind != 'drain' else n - DIST, [frag_read(slots[n])])
        for hf in range(2):
            if kind == 'first' and hf == 0: continue
            if kind == 'drain' and hf == 1: continue
            hs = [n for n, f in enumerate(slots) if (f >> 4) == hf]
            groups = bstage(hf, len(hs))
            for gi, g in enumerate(groups): add(hs[gi], g)
            nm = f'{kind}{hf}'
            add(hs[-2], [f'v_cmp_nge_f32 vcc, s{56+hf}, v{VTS}'])
            add(hs[-1], [f's_cbranch_vccnz LF_rare{nm}', f'LF_ret{nm}:', f'v_add_f32 v{VLS}, v{VLS}, v{VTS}'])
            outl.append(('rare', nm, hf))
        for hf in range(2):
            if kind == 'drain' and hf == 1: continue
            nm = f'{kind}{hf}'
            first_slot = [n for n, f in enumerate(slots) if (f >> 4) == hf][0]
            fl.setdefault(('pre', first_slot), []).extend(
                ['s_cmp_ge_u32 s62, s66', f's_cbranch_scc1 LF_evt{nm}', f'LF_eret{nm}:'])
            add(first_slot, ['s_add_u32 s62, s62, 1'])
            outl.append(('evt', nm, hf))
        return bb, fl, add, pos, slots

    def prep_next():
        return [['s_add_u32 s55, s55, 1', 's_and_b32 s50, s55, 1'],
                ['s_lshl_b32 s50, s50, 15', 's_cmp_ge_u32 s55, s47'],
                ['s_cselect_b32 s69, s67, 0', 's_add_u32 s50, s50, s69', f's_add_u32 s50, s50, {KSL}']]
    def barrier_blk():
        return ['s_waitcnt vmcnt(0) lgkmcnt(0)', 's_barrier',
                f'v_add_u32 v{VV}, {(VSL - KSL) & 0xffffffff:#x}, v{VK}',
                f'v_add_u32 v{VK}, s50, v{VL16}']
    def dma_issue(name):
        L = f'buffer_load_dwordx4 v{VL16}, s[8:11], s43 offen{LS} lds'
        L2 = f'buffer_load_dwordx4 v{VL16}, s[8:11], s43 offen offset:1024{LS} lds'
        g = []
        g.append([f's_add_u32 m0, s64, {VSL}', 's_add_u32 s43, s45, s63', L])
        g.append([L2, 's_cmp_lt_u32 s55, s47'])
        g.append([f's_cbranch_scc1 LF_nov2{name}', '@COND', f's_add_u32 m0, s64, {VSL + 16384}', 's_add_u32 s43, s43, 16384', L, L2,
                  's_add_u32 s63, s63, 16384', '@ENDCOND', f'LF_nov2{name}:'])
        g.append(['s_add_u32 s63, s63, 16384', 's_xor_b32 s64, s64, 32768'])
        g.append([f's_add_u32 m0, s64, {KSL}', 's_add_u32 s43, s44, s63', L])
        g.append([L2, 's_add_u32 s65, s55, 1', 's_cmp_lt_u32 s65, s47'])
        g.append([f's_cbranch_scc1 LF_nok{name}', '@COND', f's_add_u32 m0, s64, {KSL + 16384}', 's_add_u32 s43, s43, 16384', L, L2,
                  '@ENDCOND', f'LF_nok{name}:'])
        return g

    PRIO = os.environ.get('PRIO', '1')
    if PRIO:
        p(f's_cmp_eq_u32 s25, {0 if PRIO == "1" else 1}')
        p('s_cbranch_scc1 LF_noprio')
        p('s_setprio 1')
        p.label('LF_noprio')
    bb, fl, add, pos, slots = step('first')
    for n in range(4): p(frag_read(slots[n]))
    nS = len(slots)
    for gi, g in enumerate(prep_next()): add(4 + gi, g)
    add(nS - 4, barrier_blk())
    for n in range(4): add(nS - 4 + n, [frag_read(n)])
    interleave(p, bb, fl)
    p.begin_loop()
    p.label('LF_loop')
    bb, fl, add, pos, slots = step('loop')
    XP = os.environ.get('XP', '')
    if 'nodma' not in XP:
        for gi, g in enumerate(dma_issue('loop')): add(1 + 3 * gi, g)
    for gi, g in enumerate(prep_next()): add(23 + gi, g)
    nb_ = barrier_blk()
    if 'nobar' in XP: nb_ = [x for x in nb_ if x != 's_barrier']
    add(28, nb_)
    for n in range(4): add(28 + n if n < 3 else 30, [frag_read(n)])
    add(30, ['s_cmp_lt_u32 s55, 17'])
    if XP:
        for kk_ in fl: fl[kk_] = [x for x in fl[kk_] if not (isinstance(x, str) and x.startswith('s_cbranch_vccnz'))]
    if 'noexp' in XP:
        for kk_ in fl: fl[kk_] = [x.replace('v_exp_f32', 'v_mov_b32') if isinstance(x, str) else x for x in fl[kk_]]
    if 'novalu' in XP:
        for kk_ in fl: fl[kk_] = [x for x in fl[kk_] if not (isinstance(x, str) and x.startswith(('v_exp', 'v_add_f32 v7', 'v_cvt')))]
    if 'nolds' in XP:
        for kk_ in fl: fl[kk_] = [x for x in fl[kk_] if not (isinstance(x, str) and x.startswith('ds_read'))]
    interleave(p, bb, fl)
    p('s_cbranch_scc1 LF_loop')
    p.end_loop()
    st.stamp()
    p('s_waitcnt lgkmcnt(0)')
    bb, fl, add, pos, slots = step('drain')
    for n in range(4): p(frag_read(slots[n]))
    interleave(p, bb, fl)
    st.stamp()
    p(f'''
v_mov_b32 v9, v{VLS}
v_permlane32_swap_b32 v{VLS}, v9
v_add_f32 v{VLS}, v{VLS}, v9
s_waitcnt lgkmcnt(0)
s_barrier
''')
    p(f'''
s_mul_i32 s49, s20, 8704
s_xor_b32 s50, s20, 4
s_mul_i32 s50, s50, 8704
v_add_u32 v9, s49, v{VL16}
v_add_u32 v10, s50, v{VL16}
v_lshrrev_b32 v11, 1, v{VL16}
v_add_u32 v12, s49, v11
v_add_u32 v13, s50, v11
v_mov_b32 v14, v{VLS}
v_mov_b32 v15, v{VM}
s_cmp_eq_u32 s25, 0
s_cbranch_scc1 LF_mg0
''')
    X = TT
    alt = p.begin_alt(join=True)
    for g in (1, 0):
        p.alt_branch(alt)
        if g == 0: p.label('LF_mg0')
        keep = O + 32 * g; send = O + 32 * (1 - g)
        for k in range(8): p(f'ds_write_b128 v9, {vr(send+4*k,4)} offset:{k*1024}')
        p('ds_write_b64 v12, v[14:15] offset:8192')
        p('s_waitcnt lgkmcnt(0)')
        p('s_barrier')
        p(f'ds_read_b64 v[{E}:{E+1}], v13 offset:8192')
        for k in range(8): p(f'ds_read_b128 {vr(X+4*k,4)}, v10 offset:{k*1024}')
        p(f'''
v_max_f32 v{E+2}, v{VM}, v{E+1}
v_sub_f32 v{E+4}, v{VM}, v{E+2}
v_sub_f32 v{E+6}, v{E+1}, v{E+2}
v_exp_f32 v{E+4}, v{E+4}
v_exp_f32 v{E+6}, v{E+6}
v_mul_f32 v{E+3}, v{E+4}, v{VLS}
v_fmac_f32 v{E+3}, v{E+6}, v{E}
v_rcp_f32 v{E+3}, v{E+3}
v_mul_f32 v{E+4}, v{E+4}, v{E+3}
v_mul_f32 v{E+6}, v{E+6}, v{E+3}
''')
        for i in range(0, 32, 2):
            p(f'v_pk_mul_f32 {vr(keep+i,2)}, {vr(keep+i,2)}, {vr(E+4,2)} op_sel_hi:[1,0]')
            p(f'v_pk_fma_f32 {vr(keep+i,2)}, {vr(X+i,2)}, {vr(E+6,2)}, {vr(keep+i,2)} op_sel_hi:[1,0,1]')
        for i in range(16): p(f'v_cvt_pk_bf16_f32 v{S[0]+i}, v{keep+2*i}, v{keep+2*i+1}')
        p(f'''
s_mul_i32 s52, s28, {AF_MT}
s_lshl_b32 s54, s21, 13
s_add_u32 s52, s52, s54
s_add_u32 s52, s52, {AF_OFF + g*4096:#x}
''')
        for k in range(4): p(f'buffer_store_dwordx4 {vr(S[0]+4*k,4)}, v{VL16}, s[8:11], s52 offen offset:{k*1024}{SC}')
        if g == 1: p('s_branch LF_p4')
        p.end_branch()
    p.label('LF_p4')
    if PRIO: p('s_setprio 0')
    st.stamp()
    NK = 43; D = int(os.environ.get("K3D", "6"))
    NL = 9; NR = int(os.environ.get("K3R", "12"))
    VA1 = 2; VW = 3; VT = [4, 5]
    ACT = 16; WF4 = 64; ACC4 = 80; WR = 144; XR = 240
    assert D <= 6 and WR + 8 * NR <= XR
    AF_END = AF_OFF + 64 * AF_MT
    p(f"""
s_load_dwordx2 s[28:29], s[0:1], 40
s_load_dwordx4 s[32:35], s[0:1], 72
s_load_dwordx2 s[30:31], s[0:1], 0
s_load_dwordx2 s[36:37], s[0:1], 96
v_and_b32 v10, 63, v0
v_add_u32 v{VA1}, {AF_MT}, v{VL16}
v_lshrrev_b32 v11, 3, v10
v_and_b32 v12, 7, v10
v_bfe_u32 v13, v10, 4, 1
v_lshlrev_b32 v13, 2, v13
v_xor_b32 v12, v12, v13
v_lshlrev_b32 v12, 4, v12
v_lshl_add_u32 v{VW}, v11, 10, v12
v_lshrrev_b32 v11, 5, v10
v_bfe_u32 v12, v10, 2, 2
v_lshl_add_u32 v13, v11, 2, v12
v_lshlrev_b32 v13, 7, v13
v_lshrrev_b32 v12, 1, v12
v_lshl_add_u32 v13, v12, 6, v13
v_bfe_u32 v12, v10, 4, 1
v_lshl_add_u32 v13, v12, 5, v13
v_and_b32 v12, 3, v10
v_lshl_add_u32 v13, v12, 3, v13
s_mul_i32 s25, s20, {NL*2048}
v_add_u32 v{VT[0]}, s25, v13
v_xor_b32 v{VT[1]}, 64, v{VT[0]}
s_mul_i32 s26, s20, 43
s_cmp_ge_u32 s20, 4
s_cselect_b32 s27, 1, 0
s_sub_u32 s26, s26, s27
s_cmp_ge_u32 s20, 5
s_cselect_b32 s27, 1, 0
s_sub_u32 s26, s26, s27
s_and_b32 s44, s23, 7
s_bfe_u32 s45, s23, 0x10003
s_cmp_ge_u32 s24, 4
s_cselect_b32 s46, 8, 0
s_add_u32 s46, s46, s22
s_lshl_b32 s47, s46, 1
s_add_u32 s47, s47, s45
s_sub_u32 s48, 15, s24
s_add_u32 s48, s48, {CNT_CTX}
s_lshl_b32 s48, s48, 2
s_add_u32 s49, s24, {CNT_CTX}
s_lshl_b32 s49, s49, 2
s_add_u32 s50, s46, {CNT_CTX}
s_lshl_b32 s50, s50, 2
""")
    st.stamp()
    p('s_waitcnt vmcnt(0) lgkmcnt(0)')
    st.stamp()
    p('s_barrier')
    st.stamp()
    emit(publish([48]))
    p('s_cmp_lg_u32 s24, 7')
    p('s_cbranch_scc1 LF_nopubS2')
    emit(publish([49]))
    p.label('LF_nopubS2')
    srd(p, 12, 36, 37, AF_END)
    srd(p, 16, 30, 31, 2 << 20)
    srd(p, 36, 34, 35, 2 << 20)
    p(f"""
s_cmp_ge_u32 s20, 6
s_cselect_b32 s4, s32, s28
s_cselect_b32 s5, s33, s29
s_mov_b32 s6, 0x400000
s_cselect_b32 s6, 0x158000, s6
s_and_b32 s5, s5, 0xffff
s_mov_b32 s7, 0x00020000
s_mul_i32 s40, s47, {2*AF_MT}
s_lshl_b32 s43, s26, 10
s_add_u32 s40, s40, s43
s_add_u32 s40, s40, {AF_OFF:#x}
s_cmp_ge_u32 s20, 6
s_cselect_b32 s43, 256, 0
s_sub_u32 s43, s26, s43
s_lshl_b32 s42, s43, 14
s_lshl_b32 s43, s44, 7
s_add_u32 s42, s42, s43
s_sub_u32 s51, s20, 4
s_cmp_lt_u32 s51, 2
s_cselect_b32 s41, 0x7fff0000, s40
s_cselect_b32 s52, 0x4000, 0
s_add_u32 s52, s52, s42
""")
    def wloads(ks):
        sl = ks % NL
        if ks == 0:
            a0 = ['s_mov_b32 s54, s52', 's_add_u32 s53, s52, 0x2000']
        else:
            a0 = [f's_add_u32 s54, s42, {ks*16384}', f's_add_u32 s53, s42, {ks*16384+8192}']
        return [f's_add_u32 m0, s25, {sl*2048}'] + a0 + [
                (lambda pp: pp(f'buffer_load_dwordx4 v{VW}, s[4:7], s54 offen lds', f'x{ks}')),
                f's_add_u32 m0, s25, {sl*2048+1024}', 's_nop 0',
                (lambda pp: pp(f'buffer_load_dwordx4 v{VW}, s[4:7], s53 offen lds', f'x{ks}'))]
    def aloads(ks):
        a = ACT + 8 * (ks % D)
        pre = ['s_mov_b32 s55, s41'] if ks == 0 else [f's_add_u32 s55, s40, {ks*1024}']
        return pre + [f'buffer_load_dwordx4 {vr(a,4)}, v{VL16}, s[12:15], s55 offen{LS}',
                      f'buffer_load_dwordx4 {vr(a+4,4)}, v{VA1}, s[12:15], s55 offen{LS}']
    def wreg(ks, nt):
        return (WR + 8 * ks + 4 * nt) if ks < NR else (WF4 + 8 * (ks & 1) + 4 * nt)
    def trr(ks):
        sl = ks % NL; out = [lambda pp: pp.wait_tag(f'x{ks}')]
        for nt in range(2):
            w = wreg(ks, nt)
            out.append((lambda pp, w=w, nt=nt: pp(f'ds_read_b64_tr_b16 {vr(w,2)}, v{VT[nt]} offset:{sl*2048}', f'r{ks}')))
            out.append((lambda pp, w=w, nt=nt: pp(f'ds_read_b64_tr_b16 {vr(w+2,2)}, v{VT[nt]} offset:{sl*2048+1024}', f'r{ks}')))
        return out
    for ks in range(NL): emit(wloads(ks))
    p(f"""
s_lshr_b32 s56, s20, 2
s_bfe_u32 s57, s20, 0x10001
s_and_b32 s58, s20, 1
s_lshl_b32 s59, s47, 6
s_lshl_b32 s60, s57, 5
s_add_u32 s59, s59, s60
s_lshl_b32 s59, s59, 10
s_lshl_b32 s60, s44, 6
s_lshl_b32 s61, s56, 5
s_add_u32 s60, s60, s61
s_lshl_b32 s61, s58, 4
s_add_u32 s60, s60, s61
s_lshl_b32 s60, s60, 1
s_add_u32 s59, s59, s60
v_and_b32 v11, 31, v10
v_lshrrev_b32 v12, 5, v10
v_lshlrev_b32 v11, 10, v11
v_lshl_add_u32 v9, v12, 3, v11
buffer_load_dwordx2 v[{XR}:{XR+1}], v9, s[16:19], s59 offen
buffer_load_dwordx2 v[{XR+2}:{XR+3}], v9, s[16:19], s59 offen offset:16
""")
    for ks in range(NR):
        emit(trr(ks))
        if ks >= 1:
            p.wait_tag(f'r{ks-1}')
            emit(wloads(ks - 1 + NL))
    p.wait_tag(f'r{NR-1}')
    emit(wloads(NR - 1 + NL))
    st.stamp()
    emit(poll_noinv([(50, 32)]))
    st.stamp()
    p('s_barrier')
    st.stamp()
    for ks in range(D): emit(aloads(ks))
    for ks in range(NK):
        a = ACT + 8 * (ks % D)
        if NR <= ks + 1 < NK: emit(trr(ks + 1))
        for nt in range(2):
            for mt in range(2):
                w = wreg(ks, nt)
                acc = vr(ACC4 + 16 * (2 * nt + mt), 16); cc = '0' if ks == 0 else acc
                p(f'{MF} {acc}, {vr(w,4)}, {vr(a+4*mt,4)}, {cc}')
        if ks + D < NK: emit(aloads(ks + D))
        if ks >= NR and ks + NL < NK:
            p.wait_tag(f'r{ks}')
            emit(wloads(ks + NL))
    p('s_waitcnt lgkmcnt(0)')
    p('s_barrier')
    p('s_lshl_b32 s25, s20, 14')
    p(f'v_add_u32 v6, s25, v{VL16}')
    for b in range(16): p(f'ds_write_b128 v6, {vr(ACC4+4*b,4)} offset:{b*1024}')
    p(f"""
s_lshl_b32 s56, s20, 11
v_add_u32 v7, s56, v{VL16}
v_add_u32 v8, 0x10000, v7
s_waitcnt lgkmcnt(0)
s_barrier
""")
    for src in range(8):
        base = 7 if src < 4 else 8
        for b in range(2):
            p(f'ds_read_b128 {vr(16+8*src+4*b,4)}, v{base} offset:{(src%4)*16384 + b*1024}')
    for i in range(8):
        p(f'v_add_f32 v{16+i}, v{16+i}, v{24+i}')
        p(f'v_add_f32 v{32+i}, v{32+i}, v{40+i}')
        p(f'v_add_f32 v{48+i}, v{48+i}, v{56+i}')
        p(f'v_add_f32 v{64+i}, v{64+i}, v{72+i}')
    for i in range(8):
        p(f'v_add_f32 v{16+i}, v{16+i}, v{32+i}')
        p(f'v_add_f32 v{16+i}, v{16+i}, v{48+i}')
    for i in range(4):
        p(f'v_cvt_pk_bf16_f32 v{24+i}, v{16+2*i}, v{17+2*i}')
        p(f'v_cvt_pk_bf16_f32 v{72+i}, v{64+2*i}, v{65+2*i}')
    for i in range(4):
        p(f'v_lshlrev_b32 v{16+2*i}, 16, v{24+i}')
        p(f'v_and_b32 v{17+2*i}, 0xffff0000, v{24+i}')
        p(f'v_lshlrev_b32 v{64+2*i}, 16, v{72+i}')
        p(f'v_and_b32 v{65+2*i}, 0xffff0000, v{72+i}')
    NL2E = f2u(-math.log2(math.e))
    for i in range(8): p(f'v_mul_f32 v{32+i}, {NL2E:#x}, v{64+i}')
    for i in range(8): p(f'v_exp_f32 v{32+i}, v{32+i}')
    for i in range(8): p(f'v_add_f32 v{32+i}, 1.0, v{32+i}')
    for i in range(8): p(f'v_rcp_f32 v{32+i}, v{32+i}')
    for i in range(8): p(f'v_mul_f32 v{32+i}, v{32+i}, v{64+i}')
    for i in range(4): p(f'v_cvt_pk_bf16_f32 v{40+i}, v{32+2*i}, v{33+2*i}')
    for i in range(4):
        p(f'v_lshlrev_b32 v{32+2*i}, 16, v{40+i}')
        p(f'v_and_b32 v{33+2*i}, 0xffff0000, v{40+i}')
    for i in range(8): p(f'v_mul_f32 v{32+i}, v{32+i}, v{16+i}')
    for i in range(4): p(f'v_cvt_pk_bf16_f32 v{40+i}, v{32+2*i}, v{33+2*i}')
    for i in range(4):
        p(f'v_lshlrev_b32 v{32+2*i}, 16, v{40+i}')
        p(f'v_and_b32 v{33+2*i}, 0xffff0000, v{40+i}')
        p(f'v_lshlrev_b32 v{48+2*i}, 16, v{XR+i}')
        p(f'v_and_b32 v{49+2*i}, 0xffff0000, v{XR+i}')
    for i in range(8): p(f'v_add_f32 v{32+i}, v{32+i}, v{48+i}')
    for i in range(4): p(f'v_cvt_pk_bf16_f32 v{40+i}, v{32+2*i}, v{33+2*i}')
    p('buffer_store_dwordx2 v[40:41], v9, s[36:39], s59 offen')
    p('buffer_store_dwordx2 v[42:43], v9, s[36:39], s59 offen offset:16')
    if PROF: p('s_waitcnt vmcnt(0)')
    st.stamp()
    st.dump(p, 8, 0, 20, 50, 57, 8)
    p('s_endpgm')

    ool = p.begin_alt()
    def routine(name):
        p.alt_branch(ool); p.label(name)
    def fin_code():
        p(f"""
s_nop 15
s_nop 7
v_mov_b32 v9, v{VLSAVE}
v_permlane32_swap_b32 v{VLSAVE}, v9
v_add_f32 v9, v{VLSAVE}, v9
v_rcp_f32 v9, v9
s_mul_i32 s52, s27, {AF_MT}
s_lshl_b32 s54, s21, 13
s_add_u32 s52, s52, s54
s_add_u32 s52, s52, {AF_OFF:#x}
s_add_u32 s53, s52, 4096
""")
        for half in range(2):
            for i in range(32): p(f'v_mul_f32 v{O+32*half+i}, v{O+32*half+i}, v9')
            for i in range(16): p(f'v_cvt_pk_bf16_f32 v{TT+16*half+i}, v{O+32*half+2*i}, v{O+32*half+2*i+1}')
            for k in range(4): p(f'buffer_store_dwordx4 {vr(TT+16*half+4*k,4)}, v{VL16}, s[8:11], s{52+half} offen offset:{k*1024}{SC}')
        for i in range(64): p(f'v_mov_b32 v{O+i}, 0')
    for kind, nm, hf in outl:
        if kind == 'evt':
            routine(f'LF_evt{nm}')
            p('s_lshl_b32 s68, s47, 1')
            if nm in ('loop0', 'drain0'):
                p(f"""
s_add_u32 s69, s68, 2
s_cmp_lg_u32 s62, s69
s_cbranch_scc1 LF_nofin{nm}
s_cmp_eq_u32 s25, 0
s_cbranch_scc1 LF_nofin{nm}
""")
                fin_code()
                p.label(f'LF_nofin{nm}')
            if nm == 'loop0':
                p(f"""
s_add_u32 s69, s68, 4
s_cmp_lg_u32 s62, s69
s_cbranch_scc1 LF_nopubS
s_add_u32 s69, s24, {CNT_CTX}
s_lshl_b32 s69, s69, 2
""")
                emit(publish([69]))
                p(f"""
LF_nopubS:
s_cmp_lg_u32 s62, s68
s_cbranch_scc1 LF_nosw
s_cmp_eq_u32 s25, 0
s_cbranch_scc1 LF_nosw
s_lshl_b32 s69, s26, 13
s_add_u32 s69, s69, {QX}
v_add_u32 v9, s69, v{VL16}
s_nop 7
""")
                for ks in range(8): p(f'ds_read_b128 {vr(Q+4*ks,4)}, v9 offset:{ks*1024}')
                for i in range(16): p(f'v_mov_b32 v{MN+i}, 0')
                p(f"""
v_mov_b32 v{VM}, 0
s_mov_b32 s61, s28
s_mov_b32 s60, 0
s_waitcnt lgkmcnt(0)
LF_nosw:
""")
            if nm == 'loop1':
                p(f"""
s_add_u32 s69, s68, 1
s_cmp_lg_u32 s62, s69
s_cbranch_scc1 LF_nomid
s_cmp_eq_u32 s25, 0
s_cbranch_scc1 LF_nomid
v_mov_b32 v{VLSAVE}, v{VLS}
v_mov_b32 v{VLS}, 0
s_mov_b32 s60, 1.0
s_mov_b32 s57, 0xbf800000
s_mov_b32 s58, {FLOOR1:#x}
s_mov_b32 s59, 1
LF_nomid:
""")
            if nm != 'drain0':
                p(f"""
s_lshr_b32 s68, s62, 1
s_lshl_b32 s69, s68, 1
s_sub_u32 s69, s69, s47
s_add_u32 s69, s69, s25
s_cmp_ge_u32 s68, s47
s_cselect_b32 s68, s69, s68
s_lshl_b32 s68, s68, 1
s_add_u32 s68, s68, {hf}
s_cmp_lt_u32 s68, s61
s_cbranch_scc1 LF_nomask{nm}
s_sub_u32 s68, s61, s68
s_lshl_b32 s68, s68, 5
v_add_u32 v9, s68, v{VZ}
v_mov_b32 v10, {NEG:#x}
""")
                for r in range(16):
                    cr = 8 * (r >> 2) + (r & 3)
                    p(f'v_cmp_gt_i32 vcc, {cr}, v9')
                    p(f'v_cndmask_b32 v{MN+r}, v{MN+r}, v10, vcc')
                p.label(f'LF_nomask{nm}')
            p(f"""
s_add_u32 s68, s62, 1
s_max_u32 s66, s68, 32
s_cmp_le_u32 s68, s49
s_cselect_b32 s66, s68, s66
s_branch LF_eret{nm}
""")
            p.end_branch()
        else:
            routine(f'LF_rare{nm}')
            c = S[1 - hf]; nx = S[hf]; pc = PP[1 - hf]
            p('s_nop 15\ns_nop 7')
            p(f'v_max3_f32 v9, v{c}, v{c+1}, v{c+2}')
            for k in range(3, 15, 2): p(f'v_max3_f32 v9, v9, v{c+k}, v{c+k+1}')
            p(f'v_max_f32 v9, v9, v{c+15}')
            p(f'''
v_mov_b32 v10, v9
v_permlane32_swap_b32 v9, v10
v_max_f32 v9, v9, v10
v_max_f32 v9, s58, v9
v_sub_f32 v10, 0, v9
v_min_f32 v10, 0x42fc0000, v10
v_exp_f32 v10, v10
v_mul_f32 v11, s60, v9
''')
            for k in range(16): p(f'v_sub_f32 v{c+k}, v{c+k}, v9')
            for k in range(16): p(f'v_exp_f32 v{TT+k}, v{c+k}')
            p(f'v_add_f32 v{VTS}, v{TT}, v{TT+1}')
            for k in range(2, 16): p(f'v_add_f32 v{VTS}, v{VTS}, v{TT+k}')
            for k in range(8): p(f'v_cvt_pk_bf16_f32 v{pc+k}, v{TT+2*k}, v{TT+2*k+1}')
            for k in range(16): p(f'v_sub_f32 v{nx+k}, v{nx+k}, v11')
            for k in range(16): p(f'v_sub_f32 v{MN+k}, v{MN+k}, v11')
            p(f'v_add_f32 v{VM}, v{VM}, v11')
            p(f'v_mul_f32 v{VLS}, v{VLS}, v10')
            p('s_cmp_lg_u32 s59, 0')
            p(f's_cbranch_scc1 LF_rskip{nm}')
            for k in range(64): p(f'v_mul_f32 v{O+k}, v{O+k}, v10')
            p.label(f'LF_rskip{nm}')
            p(f'''
s_mov_b32 s{56+hf}, {THR:#x}
''')
            if hf == 1:
                p('s_mov_b32 s58, 0\ns_mov_b32 s59, 0')
            if nm == 'loop1': p('s_cmp_lt_u32 s55, 17')
            p(f's_branch LF_ret{nm}')
            p.end_branch()
    p.alt_branch(ool); emit_slow(); p.end_branch()
    p.label('LF_end')
    p('s_endpgm')
    return ('kf_kernel', p, 256, 512, 163840, 256, 256)
```

```python
from common import *
from k1 import ln_stream
import struct, math

def f2u(x): return struct.unpack('<I', struct.pack('<f', x))[0]
MF = 'v_mfma_f32_32x32x16_bf16'
SC = os.environ.get('FSC', ' sc1')
CNT_LN = 0; CNT_KV = 16; CNT_CTX = 32; CNT_REG = 48
LS = os.environ.get('LS', ' sc1')
SPIN_MAX = 1 << 22

KVSC = os.environ.get('KVSC', '')
KVN = int(os.environ.get('KVN', '0'))
def gen_kf():
    p = Prog()
    st = Stamps(p, 70, 10)
    st.skip = set(int(x) for x in os.environ.get('STSKIP', '').split(',') if x)
    def emit(lst):
        for f in lst:
            if isinstance(f, list): emit(f)
            elif callable(f): f(p)
            else: p(f)
    VL16 = 1
    uid = [0]
    def publish(sreg_idx_list):
        uid[0] += 1; L = f'LF_pub{uid[0]}'
        out = ['s_cmp_lg_u32 s20, 0', f's_cbranch_scc1 {L}', '@COND', 'v_mov_b32 v14, 1', 'v_mov_b32 v15, 0', 's_mov_b64 exec, 1']
        for s in sreg_idx_list:
            out.append(f'buffer_atomic_add v14, v15, s[96:99], s{s} offen sc1')
        out += ['s_mov_b64 exec, -1', '@ENDCOND', f'{L}:']
        return out
    def poll(pairs):
        uid[0] += 1; L = f'LF_poll{uid[0]}'
        out = ['s_cmp_lg_u32 s20, 0', f's_cbranch_scc1 {L}_done', '@COND', 'v_mov_b32 v15, 0', f's_mov_b32 s3, {SPIN_MAX}']
        for n, (s, tgt) in enumerate(pairs):
            out += [f'{L}_{n}:',
                    f'buffer_load_dword v14, v15, s[96:99], s{s} offen sc1',
                    's_waitcnt vmcnt(0)',
                    'v_readfirstlane_b32 s100, v14',
                    's_sub_u32 s3, s3, 1',
                    's_cmp_eq_u32 s3, 0',
                    f's_cbranch_scc1 {L}_acq',
                    f's_cmp_ge_u32 s100, {tgt}',
                    f's_cbranch_scc1 {L}_{n}_ok',
                    's_sleep 2',
                    f's_branch {L}_{n}',
                    f'{L}_{n}_ok:']
        out += [f'{L}_acq:', 'buffer_inv sc1', 's_waitcnt vmcnt(0)', '@ENDCOND', f'{L}_done:']
        return out
    def poll_noinv(pairs):
        out = poll(pairs)
        i = out.index('buffer_inv sc1')
        return out[:i] + out[i + 2:]
    slow = []
    def poll_issue(sregs):
        uid[0] += 1; L = f'LF_pi{uid[0]}'
        out = ['s_cmp_lg_u32 s20, 0', f's_cbranch_scc1 {L}', '@COND', 'v_mov_b32 v8, 0']
        for n, s in enumerate(sregs): out.append(f'buffer_load_dword v{14+n}, v8, s[96:99], s{s} offen sc1')
        out += ['@ENDCOND', f'{L}:']
        return out
    def poll_check(pairs, inv_flag=None):
        uid[0] += 1; L = f'LF_pc{uid[0]}'
        out = ['s_cmp_lg_u32 s20, 0', f's_cbranch_scc1 {L}', '@COND']
        for n, (s, tgt) in enumerate(pairs):
            out += [f'v_readfirstlane_b32 s100, v{14+n}', f's_cmp_lt_u32 s100, {tgt}', f's_cbranch_scc1 {L}_slow']
        out += [f'{L}_ok:']
        if inv_flag is not None and inv_flag >= 0:
            out += [f's_cmp_lg_u32 s{inv_flag}, 0', f's_cbranch_scc1 {L}', (lambda pp: pp('buffer_inv sc1', 'inv'))]
        elif inv_flag is not None:
            out += [(lambda pp: pp('buffer_inv sc1', 'inv'))]
        out += ['@ENDCOND', f'{L}:']
        slow.append((L, pairs))
        return out
    def publish_kv():
        uid[0] += 1; L = f'LF_pkv{uid[0]}'
        return ['s_cmp_lg_u32 s20, 0', f's_cbranch_scc1 {L}', '@COND',
                'v_readfirstlane_b32 s100, v15',
                's_and_b32 s3, s100, 63', 's_bfe_u32 s29, s100, 0x90006', 's_lshr_b32 s30, s100, 15',
                's_mul_i32 s29, s29, s29', 's_lshl_b32 s30, s30, 5',
                's_cmp_eq_u32 s29, s30', 's_cselect_b32 s94, 1, 0',
                's_cmp_eq_u32 s3, 32', 's_cselect_b32 s94, s94, 0',
                's_cmp_lg_u32 s94, 0', f's_cbranch_scc1 {L}_fast',
                'buffer_wbl2 sc1', 's_waitcnt vmcnt(0)',
                f'{L}_fast:',
                'v_mov_b32 v14, 1', 'v_mov_b32 v15, 0', 's_mov_b64 exec, 1',
                'buffer_atomic_add v14, v15, s[96:99], s33 offen sc1',
                's_mov_b64 exec, -1', '@ENDCOND', f'{L}:']
    def w0_drain():
        uid[0] += 1; L = f'LF_dr{uid[0]}'
        return ['s_cmp_lg_u32 s20, 0', f's_cbranch_scc1 {L}', '@COND', (lambda pp: pp.wait_tag('inv')), '@ENDCOND', f'{L}:']
    def emit_slow():
        for L, pairs in slow:
            p.label(f'{L}_slow')
            p(f's_mov_b32 s3, {SPIN_MAX}')
            p('v_mov_b32 v8, 0')
            for n, (s, tgt) in enumerate(pairs):
                p(f"""
{L}_s{n}:
buffer_load_dword v14, v8, s[96:99], s{s} offen sc1
s_waitcnt vmcnt(0)
v_readfirstlane_b32 s100, v14
s_sub_u32 s3, s3, 1
s_cmp_eq_u32 s3, 0
s_cbranch_scc1 {L}_ok
s_cmp_ge_u32 s100, {tgt}
s_cbranch_scc1 {L}_s{n}_ok
s_sleep 2
s_branch {L}_s{n}
{L}_s{n}_ok:
""")
            p(f's_branch {L}_ok')
    p(f'''
s_cmp_ge_u32 s2, 256
s_cbranch_scc1 LF_end
s_load_dwordx4 s[28:31], s[0:1], 0
s_load_dwordx4 s[32:35], s[0:1], 24
s_load_dwordx4 s[36:39], s[0:1], 88
s_load_dwordx4 s[64:67], s[0:1], 56
s_load_dwordx2 s[68:69], s[0:1], 16
s_load_dwordx2 s[56:57], s[0:1], 40
s_load_dwordx2 s[58:59], s[0:1], 72
v_lshrrev_b32 v9, 6, v0
v_and_b32 v10, 63, v0
v_readfirstlane_b32 s20, v9
s_and_b32 s22, s2, 7
s_lshr_b32 s23, s2, 3
''')
    st.stamp()
    p('''
s_and_b32 s48, s23, 1
s_bfe_u32 s49, s23, 0x10001
s_lshr_b32 s50, s23, 2
s_lshl_b32 s51, s22, 9
s_lshl_b32 s3, s48, 8
s_add_u32 s51, s51, s3
''')
    p(f'v_lshlrev_b32 v{VL16}, 4, v10')
    STG = 65536
    p('''
v_lshrrev_b32 v11, 3, v10
v_and_b32 v12, 7, v10
v_lshrrev_b32 v13, 4, v10
v_xor_b32 v14, v12, v13
v_lshlrev_b32 v14, 4, v14
v_lshl_add_u32 v2, v11, 10, v14
v_xor_b32 v3, 64, v2
''')
    p('''
v_and_b32 v13, 1, v13
v_lshlrev_b32 v13, 2, v13
v_xor_b32 v14, v12, v13
v_lshlrev_b32 v14, 4, v14
v_lshl_add_u32 v4, v11, 13, v14
''')
    p(f'''
v_and_b32 v11, 31, v10
v_lshrrev_b32 v12, 5, v10
v_bfe_u32 v13, v11, 1, 3
v_xor_b32 v13, v12, v13
v_lshlrev_b32 v13, 4, v13
v_lshl_add_u32 v13, v11, 7, v13
s_lshl_b32 s52, s20, 13
s_add_u32 s52, s52, {STG}
v_add_u32 v16, s52, v13
v_xor_b32 v17, 32, v16
v_xor_b32 v18, 64, v16
v_xor_b32 v19, 96, v16
''')
    p('''
v_bfe_u32 v11, v10, 2, 2
v_lshl_add_u32 v13, v12, 3, v11
v_lshlrev_b32 v13, 7, v13
v_lshrrev_b32 v11, 1, v11
v_lshl_add_u32 v13, v11, 6, v13
v_bfe_u32 v11, v10, 4, 1
v_lshl_add_u32 v13, v11, 5, v13
v_and_b32 v11, 3, v10
v_lshl_add_u32 v20, v11, 3, v13
v_xor_b32 v21, 64, v20
v_add_u32 v22, 0x8000, v20
v_add_u32 v23, 0x8000, v21
v_add_u32 v24, 0x20000, v20
v_add_u32 v25, 0x20000, v21
v_add_u32 v26, 0x10000, v20
v_add_u32 v27, 0x10000, v21
v_lshlrev_b32 v14, 7, v10
v_lshrrev_b32 v15, 2, v10
v_lshlrev_b32 v15, 13, v15
v_and_b32 v11, 3, v10
v_lshl_add_u32 v15, v11, 7, v15
v_lshrrev_b32 v5, 1, v10
v_lshlrev_b32 v5, 10, v5
v_and_b32 v11, 1, v10
v_lshl_add_u32 v5, v11, 9, v5
''')
    p('s_waitcnt lgkmcnt(0)')
    srd(p, 12, 30, 31, 2 << 20)
    srd(p, 16, 28, 29, 2 << 20)
    srd(p, 8, 38, 39, WS_BYTES)
    srd(p, 96, 36, 37, 256)
    p('''
s_cmp_eq_u32 s49, 0
s_cselect_b32 s4, s32, s34
s_cselect_b32 s5, s33, s35
s_and_b32 s5, s5, 0xffff
s_mov_b32 s6, 0x400000
s_mov_b32 s7, 0x00020000
s_lshl_b32 s40, s50, 8
s_lshl_b32 s41, s20, 5
s_add_u32 s40, s40, s41
s_lshl_b32 s40, s40, 10
s_lshl_b32 s42, s20, 18
s_lshl_b32 s43, s51, 1
s_add_u32 s42, s42, s43
s_lshl_b32 s43, s20, 12
''')
    WS = [0, 32768, 131072, 65536]
    def wdma(u, q):
        sc = u >> 1; kh = u & 1
        return [f's_add_u32 m0, s43, {WS[u % 4] + q*1024}',
                f's_add_u32 s53, s42, {(kh*256 + 8*q)*8192 + sc*128}',
                (lambda pp: pp('buffer_load_dwordx4 v4, s[4:7], s53 offen lds', f'w{u}'))]
    def adma(e, jj):
        return [f's_add_u32 m0, s52, {(e&1)*4096 + jj*1024}',
                f's_add_u32 s54, s40, {8*jj*1024 + e*128}',
                (lambda pp: pp(f'buffer_load_dwordx4 v{2+(jj&1)}, s[12:15], s54 offen lds', f'a{e}'))]
    AR = 128
    def aread(e, k):
        ks = 4 * e + k
        return (lambda pp: pp(f'ds_read_b128 {vr(AR+4*ks,4)}, v{16+k} offset:{(e&1)*4096}', f'ar{e}'))
    for jj in range(4): emit(adma(0, jj))
    for q in range(4): emit(wdma(0, q))
    for jj in range(4): emit(adma(1, jj))
    p('''
s_lshl_b32 s29, s2, 3
s_add_u32 s29, s29, s20
s_lshl_b32 s30, s29, 10
''')
    LNR = 96; LNT = 100
    p(f'buffer_load_dwordx4 {vr(LNR,4)}, v{VL16}, s[16:19], s30 offen')
    if 'pf' in os.environ.get('XP1', '').split('_'):
        p("""
s_cmp_lt_u32 s2, 128
s_cselect_b32 s60, s32, s34
s_cselect_b32 s61, s33, s35
s_mov_b32 s62, 0x400000
s_and_b32 s3, s2, 127
s_lshl_b32 s3, s3, 15
s_lshl_b32 s53, s20, 13
s_add_u32 s3, s3, s53
s_lshl_b32 s53, s2, 13
s_cmp_eq_u32 s20, 4
s_cselect_b32 s60, s12, s60
s_cselect_b32 s61, s13, s61
s_cselect_b32 s62, s14, s62
s_cselect_b32 s3, s53, s3
s_cmp_gt_u32 s20, 4
s_cselect_b32 s3, 0x7f000000, s3
s_and_b32 s61, s61, 0xffff
s_mov_b32 s63, 0x00020000
buffer_load_dword v104, v14, s[60:63], s3 offen
""")
    for q in range(4): emit(wdma(1, q))
    p(f'''
s_lshr_b32 s44, s51, 7
s_lshl_b32 s44, s44, 19
s_lshl_b32 s45, s50, 3
s_add_u32 s45, s45, s20
s_lshl_b32 s45, s45, 13
s_add_u32 s44, s44, s45
s_mov_b32 s45, {KF_OFF:#x}
s_mov_b32 s46, {VF_OFF:#x}
s_cmp_eq_u32 s49, 0
s_cselect_b32 s45, s45, s46
s_add_u32 s41, s44, s45
s_lshr_b32 s31, s29, 5
s_lshl_b32 s31, s31, 15
s_and_b32 s3, s29, 31
s_lshl_b32 s3, s3, 4
s_add_u32 s31, s31, s3
s_lshr_b32 s32, s2, 4
s_lshl_b32 s32, s32, 2
s_lshr_b32 s33, s51, 8
s_add_u32 s33, s33, {CNT_KV}
s_lshl_b32 s33, s33, 2
s_getreg_b32 s3, hwreg(HW_REG_XCC_ID, 0, 4)
s_mul_i32 s53, s3, s3
s_lshl_b32 s53, s53, 15
s_lshl_b32 s3, s3, 6
s_add_u32 s53, s53, s3
s_add_u32 s53, s53, 1
s_add_u32 s101, s22, {CNT_REG}
s_lshl_b32 s101, s101, 2
s_cmp_lg_u32 s20, 0
s_cbranch_scc1 LF_noreg
@COND
v_mov_b32 v8, s53
v_mov_b32 v9, 0
s_mov_b64 exec, 1
buffer_atomic_add v8, v9, s[96:99], s101 offen sc1
s_mov_b64 exec, -1
@ENDCOND
LF_noreg:
''')
    if XF_OFF: p(f's_add_u32 s31, s31, {XF_OFF:#x}')
    p('''
s_and_b32 s3, s23, 3
s_lshl_b32 s21, s22, 2
s_add_u32 s21, s21, s3
s_lshr_b32 s24, s23, 2
s_lshr_b32 s25, s20, 2
s_and_b32 s26, s20, 3
s_sub_u32 s28, 15, s24
s_lshl_b32 s28, s28, 2
s_add_u32 s28, s28, s26
s_lshl_b32 s27, s24, 2
s_add_u32 s27, s27, s26
s_cmp_eq_u32 s25, 0
s_cselect_b32 s27, s28, s27
''')
    p.wait_tag('a0')
    for k in range(4): emit([aread(0, k)])
    p.wait_tag('ar0')
    for jj in range(4): emit(adma(2, jj))
    p.wait_tag('w0')
    p('s_barrier')
    st.stamp()
    p('s_cmp_lg_u32 s49, 0')
    p('s_cbranch_scc1 LF_v')

    WF = 32; NST = 4; ACC = 64; PK = 96
    def trread(u, kk):
        out = []
        for nt in range(2):
            w = WF + 8 * (kk % NST) + 4 * nt
            out.append(f'ds_read_b64_tr_b16 {vr(w,2)}, v{20+2*(u%4)+nt} offset:{kk*2048}')
            out.append(f'ds_read_b64_tr_b16 {vr(w+2,2)}, v{20+2*(u%4)+nt} offset:{kk*2048+512}')
        return out
    def kv_epilogue(sc, nt):
        g = []
        PKB = PK if sc < 3 else 32
        for half in range(2):
            pk = PKB + 8 * nt + 4 * half
            for i in range(4):
                s = ACC + 16 * nt + 8 * half + 2 * i
                g.append(f'v_cvt_pk_bf16_f32 v{pk+i}, v{s}, v{s+1}')
        off = (sc >> 1) * 524288 + (sc & 1) * 4096
        st_ = [[f's_add_u32 s55, s41, {off + nt*2048 + half*1024}',
                (lambda pp, half=half: pp(f'buffer_store_dwordx4 {vr(PKB+8*nt+4*half,4)}, v{VL16}, s[8:11], s55 offen{KVSC if sc >= KVN else SC}', 'kvst'))]
               for half in range(2)]
        return g, st_
    lns = ln_stream(LNR, LNT, LNT + 16)
    lns.append(lambda pp: pp(f'buffer_store_dwordx4 {vr(LNR,4)}, v5, s[8:11], s31 offen{SC}', 'lnst'))
    SLOT = 29184
    GSL = [0, SLOT, 131072, 65536]
    KSL = 0; VSL = 65536; QX = 131072
    GD = 28
    def p2_setup():
        q = Prog(); pp = q
        pp("""
v_and_b32 v10, 63, v0
v_lshrrev_b32 v11, 4, v10
v_bfe_u32 v12, v10, 2, 2
v_and_b32 v13, 3, v11
v_xor_b32 v12, v12, v13
v_lshlrev_b32 v12, 6, v12
v_and_b32 v13, 3, v10
v_lshl_add_u32 v12, v13, 4, v12
v_lshl_add_u32 v12, v11, 13, v12
s_lshl_b32 s29, s26, 17
v_add_u32 v28, s29, v12
v_add_u32 v29, 0x8000, v28
v_add_u32 v30, 0x10000, v28
v_add_u32 v31, 0x18000, v28
s_and_b32 s29, s20, 1
s_mul_i32 s29, s29, 192
s_mov_b32 s30, 43691
s_movk_i32 s34, 2752
s_cmp_eq_u32 s25, 0
s_cselect_b64 s[36:37], -1, 0
""")
        for t in range(3):
            pp(f"""
v_add_u32 v11, s29, v10
v_add_u32 v11, {64*t}, v11
v_mul_lo_u32 v12, v11, s30
v_lshrrev_b32 v12, 18, v12
v_mul_u32_u24 v13, 6, v12
v_sub_u32 v13, v11, v13
v_mul_lo_u32 v12, v12, s34
v_lshl_add_u32 v9, v13, 4, v12
v_cndmask_b32 v{28+t}, v9, v{28+t}, s[36:37]
""")
        pp('v_cndmask_b32 v31, v9, v31, s[36:37]')
        pp("""
v_lshrrev_b32 v11, 5, v10
v_bfe_u32 v12, v10, 2, 2
v_lshl_add_u32 v13, v11, 3, v12
v_lshlrev_b32 v6, 8, v13
v_lshl_add_u32 v6, v12, 6, v6
v_bfe_u32 v7, v10, 4, 1
v_lshl_add_u32 v6, v7, 5, v6
v_and_b32 v9, 3, v10
v_lshl_add_u32 v6, v9, 3, v6
v_mul_u32_u24 v13, 96, v13
v_mul_u32_u24 v7, 6272, v7
v_add_u32 v13, v13, v7
v_lshl_add_u32 v13, v9, 3, v13
v_add_u32 v7, 0x4000, v13
""")
        pp("""
s_mov_b32 s60, s68
s_mov_b32 s61, s69
s_cmp_eq_u32 s20, 2
s_cselect_b32 s60, s64, s60
s_cselect_b32 s61, s65, s61
s_cmp_eq_u32 s20, 3
s_cselect_b32 s60, s66, s60
s_cselect_b32 s61, s67, s61
s_cmp_ge_u32 s20, 4
s_cselect_b32 s60, s56, s60
s_cselect_b32 s61, s57, s61
s_cmp_ge_u32 s20, 6
s_cselect_b32 s60, s58, s60
s_cselect_b32 s61, s59, s61
s_and_b32 s61, s61, 0xffff
s_mov_b32 s63, 0x00020000
s_mov_b32 s62, 0x158000
s_movk_i32 s35, 5504
s_and_b32 s38, s20, 2
s_cmp_eq_u32 s38, 0
s_cselect_b32 s62, 0x400000, s62
s_cselect_b32 s35, 0x4000, s35
s_mul_i32 s35, s35, s2
s_and_b32 s39, s20, 1
s_lshl_b32 s39, s39, 13
s_cmp_eq_u32 s38, 0
s_cselect_b32 s39, s39, 0
s_add_u32 s35, s35, s39
s_cmp_ge_u32 s20, 4
s_cselect_b32 s35, 0x7f000000, s35
v_lshlrev_b32 v12, 3, v1
buffer_load_dword v11, v12, s[60:63], s35 offen
""")
        pp("""
s_bfe_u32 s29, s20, 0x10001
s_cmp_eq_u32 s29, 0
s_cselect_b32 s16, s64, s66
s_cselect_b32 s17, s65, s67
s_mov_b32 s18, 0x158000
s_cmp_eq_u32 s25, 0
s_cselect_b32 s16, s68, s16
s_cselect_b32 s17, s69, s17
s_cselect_b32 s18, 0x400000, s18
s_and_b32 s17, s17, 0xffff
s_mov_b32 s19, 0x00020000
s_lshl_b32 s56, s21, 8
s_mul_i32 s38, s21, 96
s_lshl_b32 s58, s26, 12
s_mul_i32 s39, s29, 6272
s_and_b32 s30, s20, 1
s_mul_i32 s30, s30, 3072
s_add_u32 s39, s39, s30
s_add_u32 s39, s39, 16384
s_cmp_eq_u32 s25, 0
s_cselect_b32 s56, s56, s38
s_mov_b32 s57, 0x2b000
s_cselect_b32 s57, 0x80000, s57
s_cselect_b32 s58, s58, s39
s_movk_i32 s59, 2048
s_cselect_b32 s59, 3072, s59
s_add_u32 s59, s59, s58
s_lshl_b32 s60, s27, 15
""")
        if XF_OFF: pp(f's_add_u32 s60, s60, {XF_OFF:#x}')
        return [i.text for i in q.items]
    GX = 128; GW = 192; GT = [48, 64, 80, 96, 112, 160, 176]
    def gdma(sl):
        base = GSL[sl % 4]
        out = []
        for t in range(4):
            out.append([f's_add_u32 m0, s{58 if t < 3 else 59}, {base + (t*1024 if t < 3 else 0)}',
                        's_nop 0',
                        (lambda pp, t=t, sl=sl: pp(f'buffer_load_dwordx4 v{GD+t}, s[16:19], s56 offen lds', f'g{sl}'))])
        out[3].append('s_add_u32 s56, s56, s57')
        return out
    def xload(sl):
        out = []
        b = GX + 16 * (sl & 1)
        for k in range(4):
            out.append(f'buffer_load_dwordx4 {vr(b+4*k,4)}, v{VL16}, s[8:11], s61 offen offset:{k*1024}{LS}')
        return [f's_add_u32 s61, s60, {sl*4096}'] + out

    alt = p.begin_alt(join=True)
    for variant in ('k', 'v'):
        p.alt_branch(alt)
        if variant == 'v': p.label('LF_v')
        for kk in range(3): emit(trread(0, kk))
        pend = []
        for u in range(8):
            sc = u >> 1; kh = u & 1
            bb = []; fl = {}
            def add(slot, items): fl.setdefault(slot, []).extend(items)
            for kk in range(16):
                ks = kh * 16 + kk
                for nt in range(2):
                    w = WF + 8 * (kk % NST) + 4 * nt
                    acc = vr(ACC + 16 * nt, 16); cc = '0' if ks == 0 else acc
                    A = vr(AR + 4 * ks, 4)
                    if variant == 'k': bb.append(f'{MF} {acc}, {vr(w,4)}, {A}, {cc}')
                    else:              bb.append(f'{MF} {acc}, {A}, {vr(w,4)}, {cc}')
            for kk in range(3, 16):
                t = trread(u, kk)
                s0 = min(2 * (kk - 3), 24)
                add(s0, t[:2]); add(s0 + 1, t[2:])
            if u < 2:
                for q4 in range(4):
                    e = 4 * kh + q4; base = 8 * q4
                    if e + 1 < 8:
                        add(base + 1, [lambda pp, e=e: pp.wait_tag(f'a{e+1}')])
                        for k_ in range(4): add(base + 1 + k_ // 2, [aread(e + 1, k_)])
                        if e + 3 < 8:
                            add(base + 5, [lambda pp, e=e: pp.wait_tag(f'ar{e+1}')])
                            for jj in range(4): add(base + 5 + jj // 2, adma(e + 3, jj))
            loads = {0: [2], 2: [3, 4], 3: [5], 4: [6], 5: [7]}.get(u, [])
            grps = [wdma(lu, q) for lu in loads for q in range(4)]
            if grps: spread(add, grps, 2 if u else 10, 25)
            X1 = os.environ.get('XP1', '')
            if u == 1: spread(add, atomic_groups(lns, 3), 1, 25)
            if u == 3: spread(add, atomic_groups(p2_setup(), 4), 10, 26)
            if kh == 0 and sc > 0:
                for nt in range(2):
                    g, st_ = kv_epilogue(sc - 1, nt)
                    fl.setdefault(('pre', nt), []).extend(g)
                    pend.extend(st_)
            if pend:
                a_, b_ = pend.pop(0), pend.pop(0)
                if 'nokvst' not in os.environ.get('XP1', ''): add(12, a_); add(24, b_)
            extra = []; post = []
            if u == (3 if 'latepub' in X1 else 2): extra = [lambda pp: pp.wait_tag('lnst')]; post = publish([32])
            if u == 5 and 'nopoll' not in X1: add(18, ['s_sub_u32 s29, 15, s24', 's_lshl_b32 s29, s29, 2', 's_lshl_b32 s30, s24, 2'] + poll_issue([29, 30]))
            if u == 5 and 'nopoll' not in X1: post = poll_check([(29, 16), (30, 16)])
            if u == 6 and 'nog01' not in X1:
                spread(add, gdma(0) + gdma(1), 1, 25)
            if u == 7 and 'nog01' in X1:
                spread(add, gdma(0) + gdma(1), 1, 25)
            if u == 7:
                xl = xload(0)
                spread(add, [xl[:2], [xl[2]], [xl[3]], [xl[4]]] + gdma(2), 1, 28)
            if u < 7:
                add(27, [lambda pp, u=u: pp.wait_tag(f'w{u+1}'), 's_waitcnt lgkmcnt(0)'] + extra + ['s_barrier'] + post)
                for kk in range(3):
                    t = trread(u + 1, kk)
                    add(min(27 + 2 * kk, 31), t[:2]); add(min(28 + 2 * kk, 31), t[2:])
            interleave(p, bb, fl)
            if os.environ.get('P1ST'): st.i = 2 + u; st.stamp()
        for nt in range(2):
            g, st_ = kv_epilogue(3, nt)
            emit(g); pend.extend(st_)
        if variant == 'k': p('s_branch LF_p2')
        p.end_branch()
    p.label('LF_p2')
    st.stamp()
    VK = 2; VV = 3; VZ = 4; VLS = 5; VM = 6; VTS = 7; VLSAVE = 8
    T0 = 9
    Q = 16; O = 48; S = [112, 128]; PP = [144, 152]; MN = 160; FR = 176; E = 208; TT = 216
    THR = f2u(float(2 ** 20)); NEG = f2u(-1e30); FLOOR1 = f2u(-1e20)
    p(f"""
s_lshl_b32 s44, s21, 19
s_lshl_b32 s46, s20, 11
s_add_u32 s44, s44, s46
s_add_u32 s45, s44, {VF_OFF:#x}
s_add_u32 s44, s44, {KF_OFF:#x}
s_lshl_b32 s47, s24, 1
s_add_u32 s47, s47, 2
""")
    AQ = [T0, T0 + 1, T0 + 2, T0 + 3]; AF_ = T0 + 4
    def set_addr(sl):
        base = GSL[sl % 4]
        out = [f'v_add_u32 v{AQ[0]}, {base}, v6']
        for nt in range(1, 4): out.append(f'v_xor_b32 v{AQ[nt]}, {nt<<6}, v{AQ[0]}')
        out.append(f'v_add_u32 v{AF_}, {base}, v7')
        return out
    assert all((s & 0xff) == 0 for s in GSL)
    def gtr(g):
        kk = g & 3; out = []
        for tl in range(7):
            w = GW + 28 * (g & 1) + 4 * tl
            if tl < 4:
                out.append(f'ds_read_b64_tr_b16 {vr(w,2)}, v{AQ[tl]} offset:{kk*4096}')
                out.append(f'ds_read_b64_tr_b16 {vr(w+2,2)}, v{AQ[tl]} offset:{kk*4096+1024}')
            else:
                o = kk * 1536 + (tl - 4) * 32
                out.append(f'ds_read_b64_tr_b16 {vr(w,2)}, v{AF_} offset:{o}')
                out.append(f'ds_read_b64_tr_b16 {vr(w+2,2)}, v{AF_} offset:{o+384}')
        return out
    def kvcopy(sbase, chunk_off, ldsbase, tag, tmp=43):
        return [f's_add_u32 m0, s46, {ldsbase}',
                f's_add_u32 s{tmp}, s{sbase}, {chunk_off}',
                (lambda pp: pp(f'buffer_load_dwordx4 v{VL16}, s[8:11], s{tmp} offen{LS} lds', tag)),
                (lambda pp: pp(f'buffer_load_dwordx4 v{VL16}, s[8:11], s{tmp} offen offset:1024{LS} lds', tag))]
    PUB_SL = int(os.environ.get('PUB_SL', '4'))
    PFN = 8; PFS = int(os.environ.get('PFS', '2')); PFO = int(os.environ.get('PFO', '0'))
    p.wait_tag('g0')
    p('s_waitcnt lgkmcnt(0)')
    p('s_barrier')
    emit(set_addr(0))
    emit(gtr(0))
    for sl in range(8):
        bb = []; fl = {}
        def add(slot, items): fl.setdefault(slot, []).extend(items)
        for kk in range(4):
            g = sl * 4 + kk
            xb = GX + 16 * (sl & 1) + 4 * kk
            for tl in range(7):
                w = GW + 28 * (g & 1) + 4 * tl
                acc = vr(GT[tl], 16); cc = '0' if g == 0 else acc
                bb.append(f'{MF} {acc}, {vr(w,4)}, {vr(xb,4)}, {cc}')
            ng = g + 1
            if ng < 32:
                if kk == 3: add(7 * kk - 1, set_addr(sl + 1))
                rd = gtr(ng)
                for i in range(7): add(7 * kk + i, rd[2 * i:2 * i + 2])
        if sl + 1 < 8:
            xl = xload(sl + 1)
            add(0, xl[:1])
            for k in range(4): add(1 + k, [xl[1 + k]])
            pre = []; post = []
            if sl < 4: add(10, pend[sl])
            if sl == PUB_SL:
                pre = [lambda pp: pp.wait_tag('kvst')]; post = publish_kv()
            if sl == PUB_SL - 1:
                add(6, poll_issue([101, 101]))
            if sl == 6:
                add(8, [f's_lshr_b32 s29, s21, 1', f's_add_u32 s29, s29, {CNT_KV}', 's_lshl_b32 s29, s29, 2'] + poll_issue([29]))
                post = poll_check([(29, 16)], inv_flag=(94 if os.environ.get('KVINV', 'cond') == 'cond' else -1))

            add(17, [lambda pp, sl=sl: pp.wait_tag(f'g{sl+1}')] + pre + ['s_barrier'] + post)
            if sl + 3 < 8:
                for t, grp in enumerate(gdma(sl + 3)): add(18 + 2 * t if t < 1 else 21 + 2 * (t - 1), grp)
        interleave(p, bb, fl)
    st.stamp()
    p('s_waitcnt lgkmcnt(0)')
    emit(w0_drain())
    p('s_barrier')
    emit(kvcopy(44, 0, KSL, 'k0'))
    emit(kvcopy(44, 16384, KSL + 32768, 'k1'))
    emit(kvcopy(45, 0, VSL, 'v0'))
    p("""
s_load_dwordx2 s[56:57], s[0:1], 40
s_load_dwordx2 s[58:59], s[0:1], 72
s_waitcnt lgkmcnt(0)
s_cmp_ge_u32 s20, 2
s_cselect_b32 s60, s58, s56
s_cselect_b32 s61, s59, s57
s_mov_b32 s62, 0x400000
s_cselect_b32 s62, 0x158000, s62
s_movk_i32 s35, 0x4000
s_cselect_b32 s35, 5504, s35
s_and_b32 s61, s61, 0xffff
s_mov_b32 s63, 0x00020000
s_mul_i32 s35, s35, s2
s_cmp_eq_u32 s20, 1
s_cselect_b32 s39, 0x2000, 0
s_add_u32 s35, s35, s39
s_cmp_ge_u32 s20, 3
s_cselect_b32 s35, 0x7f000000, s35
v_lshlrev_b32 v12, 3, v1
buffer_load_dword v255, v12, s[60:63], s35 offen
s_lshr_b32 s17, s23, 2
s_and_b32 s18, s23, 3
s_cmp_ge_u32 s17, 6
s_cselect_b32 s12, s58, s56
s_cselect_b32 s13, s59, s57
s_mov_b32 s14, 0x400000
s_cselect_b32 s14, 0x158000, s14
s_cselect_b32 s19, 6, 0
s_and_b32 s13, s13, 0xffff
s_mov_b32 s15, 0x00020000
s_sub_u32 s19, s17, s19
s_mul_i32 s16, s19, 43
s_cmp_eq_u32 s17, 5
s_cselect_b32 s19, 1, 0
s_sub_u32 s16, s16, s19
s_lshl_b32 s16, s16, 4
s_mul_i32 s18, s18, 84
s_add_u32 s16, s16, s18
s_mul_i32 s18, s20, PFROWS
s_add_u32 s16, s16, s18
s_lshl_b32 s16, s16, 10
v_lshlrev_b32 v249, 3, v1
""".replace('PFROWS', str(PFN * PFS)))
    CQ = f2u(math.log2(math.e) / math.sqrt(128.0))
    p(f's_mov_b32 s48, {CQ:#x}')
    p(f's_mov_b32 s49, {CQ:#x}')
    for tl in range(4):
        for i in range(8): p(f'v_pk_mul_f32 {vr(GT[tl]+2*i,2)}, {vr(GT[tl]+2*i,2)}, s[48:49]')
        for i in range(8): p(f'v_cvt_pk_bf16_f32 v{Q+8*tl+i}, v{GT[tl]+2*i}, v{GT[tl]+2*i+1}')
    p(f'''
s_lshl_b32 s49, s26, 13
s_add_u32 s49, s49, {QX}
v_add_u32 v9, s49, v{VL16}
s_cmp_lg_u32 s25, 0
s_cbranch_scc1 LF_noqx
@COND
''')
    for ks in range(8): p(f'ds_write_b128 v9, {vr(Q+4*ks,4)} offset:{ks*1024}')
    p('s_waitcnt lgkmcnt(0)')
    p('@ENDCOND')
    p.label('LF_noqx')
    KG = -2.0 * math.sqrt(2.0 / math.pi) * math.log2(math.e)
    p(f's_mov_b32 s50, {f2u(KG*0.044715):#x}')
    p(f's_mov_b32 s51, {f2u(KG*0.044715):#x}')
    p(f'v_mov_b32 v{GW+16}, {f2u(KG):#x}')
    p(f'v_mov_b32 v{GW+17}, {f2u(KG):#x}')
    p(f'''
s_mul_i32 s52, s27, {AF_MT}
s_mul_i32 s53, s21, 3
s_add_u32 s54, s53, 256
s_lshl_b32 s54, s54, 10
s_add_u32 s52, s52, s54
s_add_u32 s52, s52, {AF_OFF:#x}
''')
    for tt in range(3):
        a = GT[4 + tt]; t = GW
        p(f's_add_u32 s54, s53, {tt}')
        p('s_cmp_ge_u32 s54, 86')
        p(f's_cbranch_scc1 LF_ffn_skip{tt}')
        p('@COND')
        P2 = lambda r: vr(r, 2)
        for i in range(0, 8, 2): p(f'v_pk_mul_f32 {P2(t+i)}, {P2(a+i)}, {P2(a+i)}')
        for i in range(0, 8, 2): p(f'v_pk_fma_f32 {P2(t+i)}, {P2(t+i)}, s[50:51], {P2(t+16)}')
        for i in range(0, 8, 2): p(f'v_pk_mul_f32 {P2(t+i)}, {P2(t+i)}, {P2(a+i)}')
        for i in range(8): p(f'v_exp_f32 v{t+i}, v{t+i}')
        for i in range(0, 8, 2): p(f'v_pk_mul_f32 {P2(t+8+i)}, {P2(a+i)}, {P2(a+8+i)}')
        for i in range(0, 8, 2): p(f'v_pk_add_f32 {P2(t+i)}, {P2(t+i)}, 1.0 op_sel_hi:[1,0]')
        for i in range(8): p(f'v_rcp_f32 v{t+i}, v{t+i}')
        for i in range(0, 8, 2): p(f'v_pk_mul_f32 {P2(t+i)}, {P2(t+i)}, {P2(t+8+i)}')
        for i in range(4): p(f'v_cvt_pk_bf16_f32 v{t+20+4*tt+i}, v{t+2*i}, v{t+2*i+1}')
        p(f'buffer_store_dwordx4 {vr(t+20+4*tt,4)}, v{VL16}, s[8:11], s52 offen offset:{tt*1024}{SC}')
        p('@ENDCOND')
        p.label(f'LF_ffn_skip{tt}')
    st.stamp()
    for i in range(0, 64, 2): p(f'v_pk_mov_b32 {vr(O+i,2)}, 0, 0')
    for i in range(0, 16, 2): p(f'v_pk_mov_b32 {vr(MN+i,2)}, 0, 0')
    p(f"""
v_mov_b32 v{VLS}, 0
v_mov_b32 v{VM}, 0
v_mov_b32 v{VLSAVE}, 0
s_mov_b32 s56, {THR:#x}
s_mov_b32 s57, 0xbf800000
s_mov_b32 s58, {FLOOR1:#x}
s_mov_b32 s59, 1
s_mov_b32 s60, 1.0
s_mov_b32 s61, s27
s_mov_b32 s62, 0
s_lshl_b32 s67, s25, 14
v_add_u32 v{VK}, {KSL}, v{VL16}
v_add_u32 v{VV}, {VSL}, v{VL16}
v_and_b32 v10, 63, v0
v_and_b32 v12, 31, v10
v_lshrrev_b32 v11, 5, v10
v_lshlrev_b32 v13, 2, v11
v_sub_u32 v{VZ}, v12, v13
s_mov_b32 s55, 0
s_mov_b32 s63, 16384
s_add_u32 s64, s46, 32768
s_lshl_b32 s49, s47, 1
s_add_u32 s49, s49, 2
s_cmp_eq_u32 s25, 0
s_cselect_b32 s49, 0, s49
s_cselect_b32 s66, 32, s27
s_lshl_b32 s68, s47, 1
s_add_u32 s68, s68, 4
s_min_u32 s68, s68, 32
s_cmp_eq_u32 s20, 0
s_cselect_b32 s66, s68, s66
""")
    p('s_waitcnt vmcnt(0) lgkmcnt(0)')
    p('s_barrier')
    st.stamp()

    def frag_read(f):
        hf = f >> 4; i = f & 15; dst = vr(FR + 4 * (f % 8), 4)
        if i < 8:  return f'ds_read_b128 {dst}, v{VK} offset:{hf*8192 + i*1024}'
        else:      return f'ds_read_b128 {dst}, v{VV} offset:{hf*8192 + (i-8)*1024}'
    def mfma(f):
        hf = f >> 4; i = f & 15; fr = vr(FR + 4 * (f % 8), 4)
        if i < 8:
            s = vr(S[hf], 16); c = vr(MN, 16) if i == 0 else s
            return f'{MF} {s}, {fr}, {vr(Q+4*i,4)}, {c}'
        dt = (i - 8) >> 1; tp = (i - 8) & 1
        o = vr(O + 16 * dt, 16)
        return f'{MF} {o}, {fr}, {vr(PP[hf]+4*tp,4)}, {o}'
    def bstage(hf, nslots):
        c = S[1 - hf]; pp_ = PP[1 - hf]
        groups = [[] for _ in range(nslots)]
        span = nslots - 2
        pos_e = [(kk * span) // 16 for kk in range(16)]
        late = [[] for _ in range(nslots)]
        for k in range(8):
            ea = E + (2 * k) % 8; eb = E + (2 * k + 1) % 8
            groups[pos_e[2 * k]].append(f'v_exp_f32 v{ea}, v{c+2*k}')
            groups[pos_e[2 * k + 1]].append(f'v_exp_f32 v{eb}, v{c+2*k+1}')
            sa = pos_e[2 * k] + 1; sb = pos_e[2 * k + 1] + 1
            if k == 0:
                late[sb].append(f'v_add_f32 v{VTS}, v{ea}, v{eb}')
            else:
                late[sa].append(f'v_add_f32 v{VTS}, v{VTS}, v{ea}')
                late[sb].append(f'v_add_f32 v{VTS}, v{VTS}, v{eb}')
            late[sb].append(f'v_cvt_pk_bf16_f32 v{pp_+k}, v{ea}, v{eb}')
        return [late[i] + groups[i] for i in range(nslots)]
    outl = []

    def step(kind):
        doA = kind != 'drain'
        slots = []
        for f in range(32):
            hf = f >> 4; i = f & 15
            isA = i < 8
            if isA and not doA: continue
            if not isA and kind == 'first': continue
            slots.append(f)
        pos = {f: n for n, f in enumerate(slots)}
        bb = [mfma(f) for f in slots]
        fl = {}
        def add(n, items): fl.setdefault(n, []).extend(items)
        nS = len(slots)
        DIST = 4
        last_read_slot = nS - 6
        for n in range(DIST, nS):
            add(min(n - DIST, last_read_slot) if kind != 'drain' else n - DIST, [frag_read(slots[n])])
        for hf in range(2):
            if kind == 'first' and hf == 0: continue
            if kind == 'drain' and hf == 1: continue
            hs = [n for n, f in enumerate(slots) if (f >> 4) == hf]
            groups = bstage(hf, len(hs))
            for gi, g in enumerate(groups): add(hs[gi], g)
            nm = f'{kind}{hf}'
            add(hs[-2], [f'v_cmp_nge_f32 vcc, s{56+hf}, v{VTS}'])
            add(hs[-1], [f's_cbranch_vccnz LF_rare{nm}', f'LF_ret{nm}:', f'v_add_f32 v{VLS}, v{VLS}, v{VTS}'])
            outl.append(('rare', nm, hf))
        for hf in range(2):
            if kind == 'drain' and hf == 1: continue
            nm = f'{kind}{hf}'
            first_slot = [n for n, f in enumerate(slots) if (f >> 4) == hf][0]
            fl.setdefault(('pre', first_slot), []).extend(
                ['s_cmp_ge_u32 s62, s66', f's_cbranch_scc1 LF_evt{nm}', f'LF_eret{nm}:'])
            add(first_slot, ['s_add_u32 s62, s62, 1'])
            outl.append(('evt', nm, hf))
        return bb, fl, add, pos, slots

    def prep_next():
        return [['s_add_u32 s55, s55, 1', 's_and_b32 s50, s55, 1'],
                ['s_lshl_b32 s50, s50, 15', 's_cmp_ge_u32 s55, s47'],
                ['s_cselect_b32 s69, s67, 0', 's_add_u32 s50, s50, s69', f's_add_u32 s50, s50, {KSL}']]
    def barrier_blk():
        return ['s_waitcnt vmcnt(0) lgkmcnt(0)', 's_barrier',
                f'v_add_u32 v{VV}, {(VSL - KSL) & 0xffffffff:#x}, v{VK}',
                f'v_add_u32 v{VK}, s50, v{VL16}']
    def dma_issue(name):
        L = f'buffer_load_dwordx4 v{VL16}, s[8:11], s43 offen{LS} lds'
        L2 = f'buffer_load_dwordx4 v{VL16}, s[8:11], s43 offen offset:1024{LS} lds'
        g = []
        g.append([f's_add_u32 m0, s64, {VSL}', 's_add_u32 s43, s45, s63', L])
        g.append([L2, 's_cmp_lt_u32 s55, s47'])
        g.append([f's_cbranch_scc1 LF_nov2{name}', '@COND', f's_add_u32 m0, s64, {VSL + 16384}', 's_add_u32 s43, s43, 16384', L, L2,
                  's_add_u32 s63, s63, 16384', '@ENDCOND', f'LF_nov2{name}:'])
        g.append(['s_add_u32 s63, s63, 16384', 's_xor_b32 s64, s64, 32768'])
        g.append([f's_add_u32 m0, s64, {KSL}', 's_add_u32 s43, s44, s63', L])
        g.append([L2, 's_add_u32 s65, s55, 1', 's_cmp_lt_u32 s65, s47'])
        g.append([f's_cbranch_scc1 LF_nok{name}', '@COND', f's_add_u32 m0, s64, {KSL + 16384}', 's_add_u32 s43, s43, 16384', L, L2,
                  '@ENDCOND', f'LF_nok{name}:'])
        return g

    PRIO = os.environ.get('PRIO', '1')
    if PRIO:
        p(f's_cmp_eq_u32 s25, {0 if PRIO == "1" else 1}')
        p('s_cbranch_scc1 LF_noprio')
        p('s_setprio 1')
        p.label('LF_noprio')
    bb, fl, add, pos, slots = step('first')
    for n in range(4): p(frag_read(slots[n]))
    nS = len(slots)
    for gi, g in enumerate(prep_next()): add(4 + gi, g)
    add(nS - 4, barrier_blk())
    for n in range(4): add(nS - 4 + n, [frag_read(n)])
    interleave(p, bb, fl)
    p.begin_loop()
    p.label('LF_loop')
    bb, fl, add, pos, slots = step('loop')
    XP = os.environ.get('XP', '')
    if 'nodma' not in XP:
        for gi, g in enumerate(dma_issue('loop')): add(1 + 3 * gi, g)
    if PFS:
        blk = [f's_cmp_lt_u32 s55, {17 - PFS - PFO}', 's_cbranch_scc1 LF_nopf', f's_cmp_ge_u32 s55, {17 - PFO}', 's_cbranch_scc1 LF_nopf', '@COND',
               f'buffer_load_dword v248, v249, s[12:15], s16 offen',
               f's_add_u32 s16, s16, 8192', '@ENDCOND', 'LF_nopf:']
        add(2, blk)
    for gi, g in enumerate(prep_next()): add(23 + gi, g)
    nb_ = barrier_blk()
    if 'nobar' in XP: nb_ = [x for x in nb_ if x != 's_barrier']
    add(28, nb_)
    for n in range(4): add(28 + n if n < 3 else 30, [frag_read(n)])
    add(30, ['s_cmp_lt_u32 s55, 17'])
    if XP:
        for kk_ in fl: fl[kk_] = [x for x in fl[kk_] if not (isinstance(x, str) and x.startswith('s_cbranch_vccnz'))]
    if 'noexp' in XP:
        for kk_ in fl: fl[kk_] = [x.replace('v_exp_f32', 'v_mov_b32') if isinstance(x, str) else x for x in fl[kk_]]
    if 'novalu' in XP:
        for kk_ in fl: fl[kk_] = [x for x in fl[kk_] if not (isinstance(x, str) and x.startswith(('v_exp', 'v_add_f32 v7', 'v_cvt')))]
    if 'nolds' in XP:
        for kk_ in fl: fl[kk_] = [x for x in fl[kk_] if not (isinstance(x, str) and x.startswith('ds_read'))]
    interleave(p, bb, fl)
    p('s_cbranch_scc1 LF_loop')
    p.end_loop()
    st.stamp()
    p('s_waitcnt lgkmcnt(0)')
    bb, fl, add, pos, slots = step('drain')
    for n in range(4): p(frag_read(slots[n]))
    interleave(p, bb, fl)
    st.stamp()
    p(f'''
v_mov_b32 v9, v{VLS}
v_permlane32_swap_b32 v{VLS}, v9
v_add_f32 v{VLS}, v{VLS}, v9
s_waitcnt lgkmcnt(0)
s_barrier
''')
    p(f'''
s_mul_i32 s49, s20, 8704
s_xor_b32 s50, s20, 4
s_mul_i32 s50, s50, 8704
v_add_u32 v9, s49, v{VL16}
v_add_u32 v10, s50, v{VL16}
v_lshrrev_b32 v11, 1, v{VL16}
v_add_u32 v12, s49, v11
v_add_u32 v13, s50, v11
v_mov_b32 v14, v{VLS}
v_mov_b32 v15, v{VM}
s_cmp_eq_u32 s25, 0
s_cbranch_scc1 LF_mg0
''')
    X = TT
    alt = p.begin_alt(join=True)
    for g in (1, 0):
        p.alt_branch(alt)
        if g == 0: p.label('LF_mg0')
        keep = O + 32 * g; send = O + 32 * (1 - g)
        for k in range(8): p(f'ds_write_b128 v9, {vr(send+4*k,4)} offset:{k*1024}')
        p('ds_write_b64 v12, v[14:15] offset:8192')
        p('s_waitcnt lgkmcnt(0)')
        p('s_barrier')
        p(f'ds_read_b64 v[{E}:{E+1}], v13 offset:8192')
        for k in range(8): p(f'ds_read_b128 {vr(X+4*k,4)}, v10 offset:{k*1024}')
        p(f'''
v_max_f32 v{E+2}, v{VM}, v{E+1}
v_sub_f32 v{E+4}, v{VM}, v{E+2}
v_sub_f32 v{E+6}, v{E+1}, v{E+2}
v_exp_f32 v{E+4}, v{E+4}
v_exp_f32 v{E+6}, v{E+6}
v_mul_f32 v{E+3}, v{E+4}, v{VLS}
v_fmac_f32 v{E+3}, v{E+6}, v{E}
v_rcp_f32 v{E+3}, v{E+3}
v_mul_f32 v{E+4}, v{E+4}, v{E+3}
v_mul_f32 v{E+6}, v{E+6}, v{E+3}
''')
        for i in range(0, 32, 2):
            p(f'v_pk_mul_f32 {vr(keep+i,2)}, {vr(keep+i,2)}, {vr(E+4,2)} op_sel_hi:[1,0]')
            p(f'v_pk_fma_f32 {vr(keep+i,2)}, {vr(X+i,2)}, {vr(E+6,2)}, {vr(keep+i,2)} op_sel_hi:[1,0,1]')
        for i in range(16): p(f'v_cvt_pk_bf16_f32 v{S[0]+i}, v{keep+2*i}, v{keep+2*i+1}')
        p(f'''
s_mul_i32 s52, s28, {AF_MT}
s_lshl_b32 s54, s21, 13
s_add_u32 s52, s52, s54
s_add_u32 s52, s52, {AF_OFF + g*4096:#x}
''')
        for k in range(4): p(f'buffer_store_dwordx4 {vr(S[0]+4*k,4)}, v{VL16}, s[8:11], s52 offen offset:{k*1024}{SC}')
        if g == 1: p('s_branch LF_p4')
        p.end_branch()
    p.label('LF_p4')
    if PRIO: p('s_setprio 0')
    st.stamp()
    NK = 43; D = int(os.environ.get("K3D", "6"))
    NL = 9; NR = int(os.environ.get("K3R", "12"))
    VA1 = 2; VW = 3; VT = [4, 5]
    ACT = 16; WF4 = 64; ACC4 = 80; WR = 144; XR = 240
    assert D <= 6 and WR + 8 * NR <= XR
    AF_END = AF_OFF + 64 * AF_MT
    p(f"""
s_load_dwordx2 s[28:29], s[0:1], 40
s_load_dwordx4 s[32:35], s[0:1], 72
s_load_dwordx2 s[30:31], s[0:1], 0
s_load_dwordx2 s[36:37], s[0:1], 96
v_and_b32 v10, 63, v0
v_add_u32 v{VA1}, {AF_MT}, v{VL16}
v_lshrrev_b32 v11, 3, v10
v_and_b32 v12, 7, v10
v_bfe_u32 v13, v10, 4, 1
v_lshlrev_b32 v13, 2, v13
v_xor_b32 v12, v12, v13
v_lshlrev_b32 v12, 4, v12
v_lshl_add_u32 v{VW}, v11, 10, v12
v_lshrrev_b32 v11, 5, v10
v_bfe_u32 v12, v10, 2, 2
v_lshl_add_u32 v13, v11, 2, v12
v_lshlrev_b32 v13, 7, v13
v_lshrrev_b32 v12, 1, v12
v_lshl_add_u32 v13, v12, 6, v13
v_bfe_u32 v12, v10, 4, 1
v_lshl_add_u32 v13, v12, 5, v13
v_and_b32 v12, 3, v10
v_lshl_add_u32 v13, v12, 3, v13
s_mul_i32 s25, s20, {NL*2048}
v_add_u32 v{VT[0]}, s25, v13
v_xor_b32 v{VT[1]}, 64, v{VT[0]}
s_mul_i32 s26, s20, 43
s_cmp_ge_u32 s20, 4
s_cselect_b32 s27, 1, 0
s_sub_u32 s26, s26, s27
s_cmp_ge_u32 s20, 5
s_cselect_b32 s27, 1, 0
s_sub_u32 s26, s26, s27
s_and_b32 s44, s23, 7
s_bfe_u32 s45, s23, 0x10003
s_cmp_ge_u32 s24, 4
s_cselect_b32 s46, 8, 0
s_add_u32 s46, s46, s22
s_lshl_b32 s47, s46, 1
s_add_u32 s47, s47, s45
s_sub_u32 s48, 15, s24
s_add_u32 s48, s48, {CNT_CTX}
s_lshl_b32 s48, s48, 2
s_add_u32 s49, s24, {CNT_CTX}
s_lshl_b32 s49, s49, 2
s_add_u32 s50, s46, {CNT_CTX}
s_lshl_b32 s50, s50, 2
""")
    st.stamp()
    p('s_waitcnt vmcnt(0) lgkmcnt(0)')
    st.stamp()
    p('s_barrier')
    st.stamp()
    emit(publish([48]))
    p('s_cmp_lg_u32 s24, 7')
    p('s_cbranch_scc1 LF_nopubS2')
    emit(publish([49]))
    p.label('LF_nopubS2')
    srd(p, 12, 36, 37, AF_END)
    srd(p, 16, 30, 31, 2 << 20)
    srd(p, 36, 34, 35, 2 << 20)
    p(f"""
s_cmp_ge_u32 s20, 6
s_cselect_b32 s4, s32, s28
s_cselect_b32 s5, s33, s29
s_mov_b32 s6, 0x400000
s_cselect_b32 s6, 0x158000, s6
s_and_b32 s5, s5, 0xffff
s_mov_b32 s7, 0x00020000
s_mul_i32 s40, s47, {2*AF_MT}
s_lshl_b32 s43, s26, 10
s_add_u32 s40, s40, s43
s_add_u32 s40, s40, {AF_OFF:#x}
s_cmp_ge_u32 s20, 6
s_cselect_b32 s43, 256, 0
s_sub_u32 s43, s26, s43
s_lshl_b32 s42, s43, 14
s_lshl_b32 s43, s44, 7
s_add_u32 s42, s42, s43
s_sub_u32 s51, s20, 4
s_cmp_lt_u32 s51, 2
s_cselect_b32 s41, 0x7fff0000, s40
s_cselect_b32 s52, 0x4000, 0
s_add_u32 s52, s52, s42
""")
    def wloads(ks):
        sl = ks % NL
        if ks == 0:
            a0 = ['s_mov_b32 s54, s52', 's_add_u32 s53, s52, 0x2000']
        else:
            a0 = [f's_add_u32 s54, s42, {ks*16384}', f's_add_u32 s53, s42, {ks*16384+8192}']
        return [f's_add_u32 m0, s25, {sl*2048}'] + a0 + [
                (lambda pp: pp(f'buffer_load_dwordx4 v{VW}, s[4:7], s54 offen lds', f'x{ks}')),
                f's_add_u32 m0, s25, {sl*2048+1024}', 's_nop 0',
                (lambda pp: pp(f'buffer_load_dwordx4 v{VW}, s[4:7], s53 offen lds', f'x{ks}'))]
    def aloads(ks):
        a = ACT + 8 * (ks % D)
        pre = ['s_mov_b32 s55, s41'] if ks == 0 else [f's_add_u32 s55, s40, {ks*1024}']
        return pre + [f'buffer_load_dwordx4 {vr(a,4)}, v{VL16}, s[12:15], s55 offen{LS}',
                      f'buffer_load_dwordx4 {vr(a+4,4)}, v{VA1}, s[12:15], s55 offen{LS}']
    def wreg(ks, nt):
        return (WR + 8 * ks + 4 * nt) if ks < NR else (WF4 + 8 * (ks & 1) + 4 * nt)
    def trr(ks):
        sl = ks % NL; out = [lambda pp: pp.wait_tag(f'x{ks}')]
        for nt in range(2):
            w = wreg(ks, nt)
            out.append((lambda pp, w=w, nt=nt: pp(f'ds_read_b64_tr_b16 {vr(w,2)}, v{VT[nt]} offset:{sl*2048}', f'r{ks}')))
            out.append((lambda pp, w=w, nt=nt: pp(f'ds_read_b64_tr_b16 {vr(w+2,2)}, v{VT[nt]} offset:{sl*2048+1024}', f'r{ks}')))
        return out
    for ks in range(NL): emit(wloads(ks))
    p(f"""
s_lshr_b32 s56, s20, 2
s_bfe_u32 s57, s20, 0x10001
s_and_b32 s58, s20, 1
s_lshl_b32 s59, s47, 6
s_lshl_b32 s60, s57, 5
s_add_u32 s59, s59, s60
s_lshl_b32 s59, s59, 10
s_lshl_b32 s60, s44, 6
s_lshl_b32 s61, s56, 5
s_add_u32 s60, s60, s61
s_lshl_b32 s61, s58, 4
s_add_u32 s60, s60, s61
s_lshl_b32 s60, s60, 1
s_add_u32 s59, s59, s60
v_and_b32 v11, 31, v10
v_lshrrev_b32 v12, 5, v10
v_lshlrev_b32 v11, 10, v11
v_lshl_add_u32 v9, v12, 3, v11
buffer_load_dwordx2 v[{XR}:{XR+1}], v9, s[16:19], s59 offen
buffer_load_dwordx2 v[{XR+2}:{XR+3}], v9, s[16:19], s59 offen offset:16
""")
    for ks in range(NR):
        emit(trr(ks))
        if ks >= 1:
            p.wait_tag(f'r{ks-1}')
            emit(wloads(ks - 1 + NL))
    p.wait_tag(f'r{NR-1}')
    emit(wloads(NR - 1 + NL))
    st.stamp()
    emit(poll_noinv([(50, 32)]))
    st.stamp()
    p('s_barrier')
    st.stamp()
    for ks in range(D): emit(aloads(ks))
    for ks in range(NK):
        a = ACT + 8 * (ks % D)
        if NR <= ks + 1 < NK: emit(trr(ks + 1))
        for nt in range(2):
            for mt in range(2):
                w = wreg(ks, nt)
                acc = vr(ACC4 + 16 * (2 * nt + mt), 16); cc = '0' if ks == 0 else acc
                p(f'{MF} {acc}, {vr(w,4)}, {vr(a+4*mt,4)}, {cc}')
        if ks + D < NK: emit(aloads(ks + D))
        if ks >= NR and ks + NL < NK:
            p.wait_tag(f'r{ks}')
            emit(wloads(ks + NL))
    p('s_waitcnt lgkmcnt(0)')
    p('s_barrier')
    p('s_lshl_b32 s25, s20, 14')
    p(f'v_add_u32 v6, s25, v{VL16}')
    for b in range(16): p(f'ds_write_b128 v6, {vr(ACC4+4*b,4)} offset:{b*1024}')
    p(f"""
s_lshl_b32 s56, s20, 11
v_add_u32 v7, s56, v{VL16}
v_add_u32 v8, 0x10000, v7
s_waitcnt lgkmcnt(0)
s_barrier
""")
    for src in range(8):
        base = 7 if src < 4 else 8
        for b in range(2):
            p(f'ds_read_b128 {vr(16+8*src+4*b,4)}, v{base} offset:{(src%4)*16384 + b*1024}')
    for i in range(8):
        p(f'v_add_f32 v{16+i}, v{16+i}, v{24+i}')
        p(f'v_add_f32 v{32+i}, v{32+i}, v{40+i}')
        p(f'v_add_f32 v{48+i}, v{48+i}, v{56+i}')
        p(f'v_add_f32 v{64+i}, v{64+i}, v{72+i}')
    for i in range(8):
        p(f'v_add_f32 v{16+i}, v{16+i}, v{32+i}')
        p(f'v_add_f32 v{16+i}, v{16+i}, v{48+i}')
    for i in range(4):
        p(f'v_cvt_pk_bf16_f32 v{24+i}, v{16+2*i}, v{17+2*i}')
        p(f'v_cvt_pk_bf16_f32 v{72+i}, v{64+2*i}, v{65+2*i}')
    for i in range(4):
        p(f'v_lshlrev_b32 v{16+2*i}, 16, v{24+i}')
        p(f'v_and_b32 v{17+2*i}, 0xffff0000, v{24+i}')
        p(f'v_lshlrev_b32 v{64+2*i}, 16, v{72+i}')
        p(f'v_and_b32 v{65+2*i}, 0xffff0000, v{72+i}')
    NL2E = f2u(-math.log2(math.e))
    for i in range(8): p(f'v_mul_f32 v{32+i}, {NL2E:#x}, v{64+i}')
    for i in range(8): p(f'v_exp_f32 v{32+i}, v{32+i}')
    for i in range(8): p(f'v_add_f32 v{32+i}, 1.0, v{32+i}')
    for i in range(8): p(f'v_rcp_f32 v{32+i}, v{32+i}')
    for i in range(8): p(f'v_mul_f32 v{32+i}, v{32+i}, v{64+i}')
    for i in range(4): p(f'v_cvt_pk_bf16_f32 v{40+i}, v{32+2*i}, v{33+2*i}')
    for i in range(4):
        p(f'v_lshlrev_b32 v{32+2*i}, 16, v{40+i}')
        p(f'v_and_b32 v{33+2*i}, 0xffff0000, v{40+i}')
    for i in range(8): p(f'v_mul_f32 v{32+i}, v{32+i}, v{16+i}')
    for i in range(4): p(f'v_cvt_pk_bf16_f32 v{40+i}, v{32+2*i}, v{33+2*i}')
    for i in range(4):
        p(f'v_lshlrev_b32 v{32+2*i}, 16, v{40+i}')
        p(f'v_and_b32 v{33+2*i}, 0xffff0000, v{40+i}')
        p(f'v_lshlrev_b32 v{48+2*i}, 16, v{XR+i}')
        p(f'v_and_b32 v{49+2*i}, 0xffff0000, v{XR+i}')
    for i in range(8): p(f'v_add_f32 v{32+i}, v{32+i}, v{48+i}')
    for i in range(4): p(f'v_cvt_pk_bf16_f32 v{40+i}, v{32+2*i}, v{33+2*i}')
    p('buffer_store_dwordx2 v[40:41], v9, s[36:39], s59 offen')
    p('buffer_store_dwordx2 v[42:43], v9, s[36:39], s59 offen offset:16')
    if PROF: p('s_waitcnt vmcnt(0)')
    st.stamp()
    st.dump(p, 8, 0, 20, 50, 57, 8)
    p('s_endpgm')

    ool = p.begin_alt()
    def routine(name):
        p.alt_branch(ool); p.label(name)
    def fin_code():
        p(f"""
s_nop 15
s_nop 7
v_mov_b32 v9, v{VLSAVE}
v_permlane32_swap_b32 v{VLSAVE}, v9
v_add_f32 v9, v{VLSAVE}, v9
v_rcp_f32 v9, v9
s_mul_i32 s52, s27, {AF_MT}
s_lshl_b32 s54, s21, 13
s_add_u32 s52, s52, s54
s_add_u32 s52, s52, {AF_OFF:#x}
s_add_u32 s53, s52, 4096
""")
        for half in range(2):
            for i in range(32): p(f'v_mul_f32 v{O+32*half+i}, v{O+32*half+i}, v9')
            for i in range(16): p(f'v_cvt_pk_bf16_f32 v{TT+16*half+i}, v{O+32*half+2*i}, v{O+32*half+2*i+1}')
            for k in range(4): p(f'buffer_store_dwordx4 {vr(TT+16*half+4*k,4)}, v{VL16}, s[8:11], s{52+half} offen offset:{k*1024}{SC}')
        for i in range(64): p(f'v_mov_b32 v{O+i}, 0')
    for kind, nm, hf in outl:
        if kind == 'evt':
            routine(f'LF_evt{nm}')
            p('s_lshl_b32 s68, s47, 1')
            if nm in ('loop0', 'drain0'):
                p(f"""
s_add_u32 s69, s68, 2
s_cmp_lg_u32 s62, s69
s_cbranch_scc1 LF_nofin{nm}
s_cmp_eq_u32 s25, 0
s_cbranch_scc1 LF_nofin{nm}
""")
                fin_code()
                p.label(f'LF_nofin{nm}')
            if nm == 'loop0':
                p(f"""
s_add_u32 s69, s68, 4
s_cmp_lg_u32 s62, s69
s_cbranch_scc1 LF_nopubS
s_add_u32 s69, s24, {CNT_CTX}
s_lshl_b32 s69, s69, 2
""")
                emit(publish([69]))
                p(f"""
LF_nopubS:
s_cmp_lg_u32 s62, s68
s_cbranch_scc1 LF_nosw
s_cmp_eq_u32 s25, 0
s_cbranch_scc1 LF_nosw
s_lshl_b32 s69, s26, 13
s_add_u32 s69, s69, {QX}
v_add_u32 v9, s69, v{VL16}
s_nop 7
""")
                for ks in range(8): p(f'ds_read_b128 {vr(Q+4*ks,4)}, v9 offset:{ks*1024}')
                for i in range(16): p(f'v_mov_b32 v{MN+i}, 0')
                p(f"""
v_mov_b32 v{VM}, 0
s_mov_b32 s61, s28
s_mov_b32 s60, 0
s_waitcnt lgkmcnt(0)
LF_nosw:
""")
            if nm == 'loop1':
                p(f"""
s_add_u32 s69, s68, 1
s_cmp_lg_u32 s62, s69
s_cbranch_scc1 LF_nomid
s_cmp_eq_u32 s25, 0
s_cbranch_scc1 LF_nomid
v_mov_b32 v{VLSAVE}, v{VLS}
v_mov_b32 v{VLS}, 0
s_mov_b32 s60, 1.0
s_mov_b32 s57, 0xbf800000
s_mov_b32 s58, {FLOOR1:#x}
s_mov_b32 s59, 1
LF_nomid:
""")
            if nm != 'drain0':
                p(f"""
s_lshr_b32 s68, s62, 1
s_lshl_b32 s69, s68, 1
s_sub_u32 s69, s69, s47
s_add_u32 s69, s69, s25
s_cmp_ge_u32 s68, s47
s_cselect_b32 s68, s69, s68
s_lshl_b32 s68, s68, 1
s_add_u32 s68, s68, {hf}
s_cmp_lt_u32 s68, s61
s_cbranch_scc1 LF_nomask{nm}
s_sub_u32 s68, s61, s68
s_lshl_b32 s68, s68, 5
v_add_u32 v9, s68, v{VZ}
v_mov_b32 v10, {NEG:#x}
""")
                for r in range(16):
                    cr = 8 * (r >> 2) + (r & 3)
                    p(f'v_cmp_gt_i32 vcc, {cr}, v9')
                    p(f'v_cndmask_b32 v{MN+r}, v{MN+r}, v10, vcc')
                p.label(f'LF_nomask{nm}')
            p(f"""
s_add_u32 s68, s62, 1
s_max_u32 s66, s68, 32
s_cmp_le_u32 s68, s49
s_cselect_b32 s66, s68, s66
s_branch LF_eret{nm}
""")
            p.end_branch()
        else:
            routine(f'LF_rare{nm}')
            c = S[1 - hf]; nx = S[hf]; pc = PP[1 - hf]
            p('s_nop 15\ns_nop 7')
            p(f'v_max3_f32 v9, v{c}, v{c+1}, v{c+2}')
            for k in range(3, 15, 2): p(f'v_max3_f32 v9, v9, v{c+k}, v{c+k+1}')
            p(f'v_max_f32 v9, v9, v{c+15}')
            p(f'''
v_mov_b32 v10, v9
v_permlane32_swap_b32 v9, v10
v_max_f32 v9, v9, v10
v_max_f32 v9, s58, v9
v_sub_f32 v10, 0, v9
v_min_f32 v10, 0x42fc0000, v10
v_exp_f32 v10, v10
v_mul_f32 v11, s60, v9
''')
            for k in range(16): p(f'v_sub_f32 v{c+k}, v{c+k}, v9')
            for k in range(16): p(f'v_exp_f32 v{TT+k}, v{c+k}')
            p(f'v_add_f32 v{VTS}, v{TT}, v{TT+1}')
            for k in range(2, 16): p(f'v_add_f32 v{VTS}, v{VTS}, v{TT+k}')
            for k in range(8): p(f'v_cvt_pk_bf16_f32 v{pc+k}, v{TT+2*k}, v{TT+2*k+1}')
            for k in range(16): p(f'v_sub_f32 v{nx+k}, v{nx+k}, v11')
            for k in range(16): p(f'v_sub_f32 v{MN+k}, v{MN+k}, v11')
            p(f'v_add_f32 v{VM}, v{VM}, v11')
            p(f'v_mul_f32 v{VLS}, v{VLS}, v10')
            p('s_cmp_lg_u32 s59, 0')
            p(f's_cbranch_scc1 LF_rskip{nm}')
            for k in range(64): p(f'v_mul_f32 v{O+k}, v{O+k}, v10')
            p.label(f'LF_rskip{nm}')
            p(f'''
s_mov_b32 s{56+hf}, {THR:#x}
''')
            if hf == 1:
                p('s_mov_b32 s58, 0\ns_mov_b32 s59, 0')
            if nm == 'loop1': p('s_cmp_lt_u32 s55, 17')
            p(f's_branch LF_ret{nm}')
            p.end_branch()
    p.alt_branch(ool); emit_slow(); p.end_branch()
    p.label('LF_end')
    p('s_endpgm')
    return ('kf_kernel', p, 256, 512, 163840, 256, 256)
```

```python
from common import *
from k1 import ln_stream
import struct, math

def f2u(x): return struct.unpack('<I', struct.pack('<f', x))[0]
MF = 'v_mfma_f32_32x32x16_bf16'
SC = os.environ.get('FSC', ' sc1')
CNT_LN = 0; CNT_KV = 16; CNT_CTX = 32; CNT_REG = 48
LS = os.environ.get('LS', ' sc1')
SPIN_MAX = 1 << 22

KVSC = os.environ.get('KVSC', '')
KVN = int(os.environ.get('KVN', '0'))
def gen_kf():
    p = Prog()
    st = Stamps(p, 70, 10)
    st.skip = set(int(x) for x in os.environ.get('STSKIP', '').split(',') if x)
    def emit(lst):
        for f in lst:
            if isinstance(f, list): emit(f)
            elif callable(f): f(p)
            else: p(f)
    VL16 = 1
    uid = [0]
    def publish(sreg_idx_list):
        uid[0] += 1; L = f'LF_pub{uid[0]}'
        out = ['s_cmp_lg_u32 s20, 0', f's_cbranch_scc1 {L}', '@COND', 'v_mov_b32 v14, 1', 'v_mov_b32 v15, 0', 's_mov_b64 exec, 1']
        for s in sreg_idx_list:
            out.append(f'buffer_atomic_add v14, v15, s[96:99], s{s} offen sc1')
        out += ['s_mov_b64 exec, -1', '@ENDCOND', f'{L}:']
        return out
    def poll(pairs):
        uid[0] += 1; L = f'LF_poll{uid[0]}'
        out = ['s_cmp_lg_u32 s20, 0', f's_cbranch_scc1 {L}_done', '@COND', 'v_mov_b32 v15, 0', f's_mov_b32 s3, {SPIN_MAX}']
        for n, (s, tgt) in enumerate(pairs):
            out += [f'{L}_{n}:',
                    f'buffer_load_dword v14, v15, s[96:99], s{s} offen sc1',
                    's_waitcnt vmcnt(0)',
                    'v_readfirstlane_b32 s100, v14',
                    's_sub_u32 s3, s3, 1',
                    's_cmp_eq_u32 s3, 0',
                    f's_cbranch_scc1 {L}_acq',
                    f's_cmp_ge_u32 s100, {tgt}',
                    f's_cbranch_scc1 {L}_{n}_ok',
                    's_sleep 2',
                    f's_branch {L}_{n}',
                    f'{L}_{n}_ok:']
        out += [f'{L}_acq:', 'buffer_inv sc1', 's_waitcnt vmcnt(0)', '@ENDCOND', f'{L}_done:']
        return out
    def poll_noinv(pairs):
        out = poll(pairs)
        i = out.index('buffer_inv sc1')
        return out[:i] + out[i + 2:]
    slow = []
    def poll_issue(sregs):
        uid[0] += 1; L = f'LF_pi{uid[0]}'
        out = ['s_cmp_lg_u32 s20, 0', f's_cbranch_scc1 {L}', '@COND', 'v_mov_b32 v8, 0']
        for n, s in enumerate(sregs): out.append(f'buffer_load_dword v{14+n}, v8, s[96:99], s{s} offen sc1')
        out += ['@ENDCOND', f'{L}:']
        return out
    def poll_check(pairs, inv_flag=None):
        uid[0] += 1; L = f'LF_pc{uid[0]}'
        out = ['s_cmp_lg_u32 s20, 0', f's_cbranch_scc1 {L}', '@COND']
        for n, (s, tgt) in enumerate(pairs):
            out += [f'v_readfirstlane_b32 s100, v{14+n}', f's_cmp_lt_u32 s100, {tgt}', f's_cbranch_scc1 {L}_slow']
        out += [f'{L}_ok:']
        if inv_flag is not None and inv_flag >= 0:
            out += [f's_cmp_lg_u32 s{inv_flag}, 0', f's_cbranch_scc1 {L}', (lambda pp: pp('buffer_inv sc1', 'inv'))]
        elif inv_flag is not None:
            out += [(lambda pp: pp('buffer_inv sc1', 'inv'))]
        out += ['@ENDCOND', f'{L}:']
        slow.append((L, pairs))
        return out
    def publish_kv():
        uid[0] += 1; L = f'LF_pkv{uid[0]}'
        return ['s_cmp_lg_u32 s20, 0', f's_cbranch_scc1 {L}', '@COND',
                'v_readfirstlane_b32 s100, v15',
                's_and_b32 s3, s100, 63', 's_bfe_u32 s29, s100, 0x90006', 's_lshr_b32 s30, s100, 15',
                's_mul_i32 s29, s29, s29', 's_lshl_b32 s30, s30, 5',
                's_cmp_eq_u32 s29, s30', 's_cselect_b32 s94, 1, 0',
                's_cmp_eq_u32 s3, 32', 's_cselect_b32 s94, s94, 0',
                's_cmp_lg_u32 s94, 0', f's_cbranch_scc1 {L}_fast',
                'buffer_wbl2 sc1', 's_waitcnt vmcnt(0)',
                f'{L}_fast:',
                'v_mov_b32 v14, 1', 'v_mov_b32 v15, 0', 's_mov_b64 exec, 1',
                'buffer_atomic_add v14, v15, s[96:99], s33 offen sc1',
                's_mov_b64 exec, -1', '@ENDCOND', f'{L}:']
    def w0_drain():
        uid[0] += 1; L = f'LF_dr{uid[0]}'
        return ['s_cmp_lg_u32 s20, 0', f's_cbranch_scc1 {L}', '@COND', (lambda pp: pp.wait_tag('inv')), '@ENDCOND', f'{L}:']
    def emit_slow():
        for L, pairs in slow:
            p.label(f'{L}_slow')
            p(f's_mov_b32 s3, {SPIN_MAX}')
            p('v_mov_b32 v8, 0')
            for n, (s, tgt) in enumerate(pairs):
                p(f"""
{L}_s{n}:
buffer_load_dword v14, v8, s[96:99], s{s} offen sc1
s_waitcnt vmcnt(0)
v_readfirstlane_b32 s100, v14
s_sub_u32 s3, s3, 1
s_cmp_eq_u32 s3, 0
s_cbranch_scc1 {L}_ok
s_cmp_ge_u32 s100, {tgt}
s_cbranch_scc1 {L}_s{n}_ok
s_sleep 2
s_branch {L}_s{n}
{L}_s{n}_ok:
""")
            p(f's_branch {L}_ok')
    p(f'''
s_cmp_ge_u32 s2, 256
s_cbranch_scc1 LF_end
s_load_dwordx4 s[28:31], s[0:1], 0
s_load_dwordx4 s[32:35], s[0:1], 24
s_load_dwordx4 s[36:39], s[0:1], 88
s_load_dwordx4 s[64:67], s[0:1], 56
s_load_dwordx2 s[68:69], s[0:1], 16
s_load_dwordx2 s[56:57], s[0:1], 40
s_load_dwordx2 s[58:59], s[0:1], 72
v_lshrrev_b32 v9, 6, v0
v_and_b32 v10, 63, v0
v_readfirstlane_b32 s20, v9
s_and_b32 s22, s2, 7
s_lshr_b32 s23, s2, 3
''')
    st.stamp()
    p('''
s_and_b32 s48, s23, 1
s_bfe_u32 s49, s23, 0x10001
s_lshr_b32 s50, s23, 2
s_lshl_b32 s51, s22, 9
s_lshl_b32 s3, s48, 8
s_add_u32 s51, s51, s3
''')
    p(f'v_lshlrev_b32 v{VL16}, 4, v10')
    STG = 65536
    p('''
v_lshrrev_b32 v11, 3, v10
v_and_b32 v12, 7, v10
v_lshrrev_b32 v13, 4, v10
v_xor_b32 v14, v12, v13
v_lshlrev_b32 v14, 4, v14
v_lshl_add_u32 v2, v11, 10, v14
v_xor_b32 v3, 64, v2
''')
    p('''
v_and_b32 v13, 1, v13
v_lshlrev_b32 v13, 2, v13
v_xor_b32 v14, v12, v13
v_lshlrev_b32 v14, 4, v14
v_lshl_add_u32 v4, v11, 13, v14
''')
    p(f'''
v_and_b32 v11, 31, v10
v_lshrrev_b32 v12, 5, v10
v_bfe_u32 v13, v11, 1, 3
v_xor_b32 v13, v12, v13
v_lshlrev_b32 v13, 4, v13
v_lshl_add_u32 v13, v11, 7, v13
s_lshl_b32 s52, s20, 13
s_add_u32 s52, s52, {STG}
v_add_u32 v16, s52, v13
v_xor_b32 v17, 32, v16
v_xor_b32 v18, 64, v16
v_xor_b32 v19, 96, v16
''')
    p('''
v_bfe_u32 v11, v10, 2, 2
v_lshl_add_u32 v13, v12, 3, v11
v_lshlrev_b32 v13, 7, v13
v_lshrrev_b32 v11, 1, v11
v_lshl_add_u32 v13, v11, 6, v13
v_bfe_u32 v11, v10, 4, 1
v_lshl_add_u32 v13, v11, 5, v13
v_and_b32 v11, 3, v10
v_lshl_add_u32 v20, v11, 3, v13
v_xor_b32 v21, 64, v20
v_add_u32 v22, 0x8000, v20
v_add_u32 v23, 0x8000, v21
v_add_u32 v24, 0x20000, v20
v_add_u32 v25, 0x20000, v21
v_add_u32 v26, 0x10000, v20
v_add_u32 v27, 0x10000, v21
v_lshlrev_b32 v14, 7, v10
v_lshrrev_b32 v15, 2, v10
v_lshlrev_b32 v15, 13, v15
v_and_b32 v11, 3, v10
v_lshl_add_u32 v15, v11, 7, v15
v_lshrrev_b32 v5, 1, v10
v_lshlrev_b32 v5, 10, v5
v_and_b32 v11, 1, v10
v_lshl_add_u32 v5, v11, 9, v5
''')
    p('s_waitcnt lgkmcnt(0)')
    srd(p, 12, 30, 31, 2 << 20)
    srd(p, 16, 28, 29, 2 << 20)
    srd(p, 8, 38, 39, WS_BYTES)
    srd(p, 96, 36, 37, 256)
    p('''
s_cmp_eq_u32 s49, 0
s_cselect_b32 s4, s32, s34
s_cselect_b32 s5, s33, s35
s_and_b32 s5, s5, 0xffff
s_mov_b32 s6, 0x400000
s_mov_b32 s7, 0x00020000
s_lshl_b32 s40, s50, 8
s_lshl_b32 s41, s20, 5
s_add_u32 s40, s40, s41
s_lshl_b32 s40, s40, 10
s_lshl_b32 s42, s20, 18
s_lshl_b32 s43, s51, 1
s_add_u32 s42, s42, s43
s_lshl_b32 s43, s20, 12
''')
    WS = [0, 32768, 131072, 65536]
    def wdma(u, q):
        sc = u >> 1; kh = u & 1
        return [f's_add_u32 m0, s43, {WS[u % 4] + q*1024}',
                f's_add_u32 s53, s42, {(kh*256 + 8*q)*8192 + sc*128}',
                (lambda pp: pp('buffer_load_dwordx4 v4, s[4:7], s53 offen lds', f'w{u}'))]
    def adma(e, jj):
        return [f's_add_u32 m0, s52, {(e&1)*4096 + jj*1024}',
                f's_add_u32 s54, s40, {8*jj*1024 + e*128}',
                (lambda pp: pp(f'buffer_load_dwordx4 v{2+(jj&1)}, s[12:15], s54 offen lds', f'a{e}'))]
    AR = 128
    def aread(e, k):
        ks = 4 * e + k
        return (lambda pp: pp(f'ds_read_b128 {vr(AR+4*ks,4)}, v{16+k} offset:{(e&1)*4096}', f'ar{e}'))
    for jj in range(4): emit(adma(0, jj))
    for q in range(4): emit(wdma(0, q))
    for jj in range(4): emit(adma(1, jj))
    p('''
s_lshl_b32 s29, s2, 3
s_add_u32 s29, s29, s20
s_lshl_b32 s30, s29, 10
''')
    LNR = 96; LNT = 100
    p(f'buffer_load_dwordx4 {vr(LNR,4)}, v{VL16}, s[16:19], s30 offen')
    if 'pf' in os.environ.get('XP1', '').split('_'):
        p("""
s_cmp_lt_u32 s2, 128
s_cselect_b32 s60, s32, s34
s_cselect_b32 s61, s33, s35
s_mov_b32 s62, 0x400000
s_and_b32 s3, s2, 127
s_lshl_b32 s3, s3, 15
s_lshl_b32 s53, s20, 13
s_add_u32 s3, s3, s53
s_lshl_b32 s53, s2, 13
s_cmp_eq_u32 s20, 4
s_cselect_b32 s60, s12, s60
s_cselect_b32 s61, s13, s61
s_cselect_b32 s62, s14, s62
s_cselect_b32 s3, s53, s3
s_cmp_gt_u32 s20, 4
s_cselect_b32 s3, 0x7f000000, s3
s_and_b32 s61, s61, 0xffff
s_mov_b32 s63, 0x00020000
buffer_load_dword v104, v14, s[60:63], s3 offen
""")
    for q in range(4): emit(wdma(1, q))
    p(f'''
s_lshr_b32 s44, s51, 7
s_lshl_b32 s44, s44, 19
s_lshl_b32 s45, s50, 3
s_add_u32 s45, s45, s20
s_lshl_b32 s45, s45, 13
s_add_u32 s44, s44, s45
s_mov_b32 s45, {KF_OFF:#x}
s_mov_b32 s46, {VF_OFF:#x}
s_cmp_eq_u32 s49, 0
s_cselect_b32 s45, s45, s46
s_add_u32 s41, s44, s45
s_lshr_b32 s31, s29, 5
s_lshl_b32 s31, s31, 15
s_and_b32 s3, s29, 31
s_lshl_b32 s3, s3, 4
s_add_u32 s31, s31, s3
s_lshr_b32 s32, s2, 4
s_lshl_b32 s32, s32, 2
s_lshr_b32 s33, s51, 8
s_add_u32 s33, s33, {CNT_KV}
s_lshl_b32 s33, s33, 2
s_getreg_b32 s3, hwreg(HW_REG_XCC_ID, 0, 4)
s_mul_i32 s53, s3, s3
s_lshl_b32 s53, s53, 15
s_lshl_b32 s3, s3, 6
s_add_u32 s53, s53, s3
s_add_u32 s53, s53, 1
s_add_u32 s101, s22, {CNT_REG}
s_lshl_b32 s101, s101, 2
s_cmp_lg_u32 s20, 0
s_cbranch_scc1 LF_noreg
@COND
v_mov_b32 v8, s53
v_mov_b32 v9, 0
s_mov_b64 exec, 1
buffer_atomic_add v8, v9, s[96:99], s101 offen sc1
s_mov_b64 exec, -1
@ENDCOND
LF_noreg:
''')
    if XF_OFF: p(f's_add_u32 s31, s31, {XF_OFF:#x}')
    p('''
s_and_b32 s3, s23, 3
s_lshl_b32 s21, s22, 2
s_add_u32 s21, s21, s3
s_lshr_b32 s24, s23, 2
s_lshr_b32 s25, s20, 2
s_and_b32 s26, s20, 3
s_sub_u32 s28, 15, s24
s_lshl_b32 s28, s28, 2
s_add_u32 s28, s28, s26
s_lshl_b32 s27, s24, 2
s_add_u32 s27, s27, s26
s_cmp_eq_u32 s25, 0
s_cselect_b32 s27, s28, s27
''')
    p.wait_tag('a0')
    for k in range(4): emit([aread(0, k)])
    p.wait_tag('ar0')
    for jj in range(4): emit(adma(2, jj))
    p.wait_tag('w0')
    p('s_barrier')
    st.stamp()
    p('s_cmp_lg_u32 s49, 0')
    p('s_cbranch_scc1 LF_v')

    WF = 32; NST = 4; ACC = 64; PK = 96
    def trread(u, kk):
        out = []
        for nt in range(2):
            w = WF + 8 * (kk % NST) + 4 * nt
            out.append(f'ds_read_b64_tr_b16 {vr(w,2)}, v{20+2*(u%4)+nt} offset:{kk*2048}')
            out.append(f'ds_read_b64_tr_b16 {vr(w+2,2)}, v{20+2*(u%4)+nt} offset:{kk*2048+512}')
        return out
    def kv_epilogue(sc, nt):
        g = []
        PKB = PK if sc < 3 else 32
        for half in range(2):
            pk = PKB + 8 * nt + 4 * half
            for i in range(4):
                s = ACC + 16 * nt + 8 * half + 2 * i
                g.append(f'v_cvt_pk_bf16_f32 v{pk+i}, v{s}, v{s+1}')
        off = (sc >> 1) * 524288 + (sc & 1) * 4096
        st_ = [[f's_add_u32 s55, s41, {off + nt*2048 + half*1024}',
                (lambda pp, half=half: pp(f'buffer_store_dwordx4 {vr(PKB+8*nt+4*half,4)}, v{VL16}, s[8:11], s55 offen{KVSC if sc >= KVN else SC}', 'kvst'))]
               for half in range(2)]
        return g, st_
    lns = ln_stream(LNR, LNT, LNT + 16)
    lns.append(lambda pp: pp(f'buffer_store_dwordx4 {vr(LNR,4)}, v5, s[8:11], s31 offen{SC}', 'lnst'))
    SLOT = 29184
    GSL = [0, SLOT, 131072, 65536]
    KSL = 0; VSL = 65536; QX = 131072
    GD = 28
    def p2_setup():
        q = Prog(); pp = q
        pp("""
v_and_b32 v10, 63, v0
v_lshrrev_b32 v11, 4, v10
v_bfe_u32 v12, v10, 2, 2
v_and_b32 v13, 3, v11
v_xor_b32 v12, v12, v13
v_lshlrev_b32 v12, 6, v12
v_and_b32 v13, 3, v10
v_lshl_add_u32 v12, v13, 4, v12
v_lshl_add_u32 v12, v11, 13, v12
s_lshl_b32 s29, s26, 17
v_add_u32 v28, s29, v12
v_add_u32 v29, 0x8000, v28
v_add_u32 v30, 0x10000, v28
v_add_u32 v31, 0x18000, v28
s_and_b32 s29, s20, 1
s_mul_i32 s29, s29, 192
s_mov_b32 s30, 43691
s_movk_i32 s34, 2752
s_cmp_eq_u32 s25, 0
s_cselect_b64 s[36:37], -1, 0
""")
        for t in range(3):
            pp(f"""
v_add_u32 v11, s29, v10
v_add_u32 v11, {64*t}, v11
v_mul_lo_u32 v12, v11, s30
v_lshrrev_b32 v12, 18, v12
v_mul_u32_u24 v13, 6, v12
v_sub_u32 v13, v11, v13
v_mul_lo_u32 v12, v12, s34
v_lshl_add_u32 v9, v13, 4, v12
v_cndmask_b32 v{28+t}, v9, v{28+t}, s[36:37]
""")
        pp('v_cndmask_b32 v31, v9, v31, s[36:37]')
        pp("""
v_lshrrev_b32 v11, 5, v10
v_bfe_u32 v12, v10, 2, 2
v_lshl_add_u32 v13, v11, 3, v12
v_lshlrev_b32 v6, 8, v13
v_lshl_add_u32 v6, v12, 6, v6
v_bfe_u32 v7, v10, 4, 1
v_lshl_add_u32 v6, v7, 5, v6
v_and_b32 v9, 3, v10
v_lshl_add_u32 v6, v9, 3, v6
v_mul_u32_u24 v13, 96, v13
v_mul_u32_u24 v7, 6272, v7
v_add_u32 v13, v13, v7
v_lshl_add_u32 v13, v9, 3, v13
v_add_u32 v7, 0x4000, v13
""")
        pp("""
s_mov_b32 s60, s68
s_mov_b32 s61, s69
s_cmp_eq_u32 s20, 2
s_cselect_b32 s60, s64, s60
s_cselect_b32 s61, s65, s61
s_cmp_eq_u32 s20, 3
s_cselect_b32 s60, s66, s60
s_cselect_b32 s61, s67, s61
s_cmp_ge_u32 s20, 4
s_cselect_b32 s60, s56, s60
s_cselect_b32 s61, s57, s61
s_cmp_ge_u32 s20, 6
s_cselect_b32 s60, s58, s60
s_cselect_b32 s61, s59, s61
s_and_b32 s61, s61, 0xffff
s_mov_b32 s63, 0x00020000
s_mov_b32 s62, 0x158000
s_movk_i32 s35, 5504
s_and_b32 s38, s20, 2
s_cmp_eq_u32 s38, 0
s_cselect_b32 s62, 0x400000, s62
s_cselect_b32 s35, 0x4000, s35
s_mul_i32 s35, s35, s2
s_and_b32 s39, s20, 1
s_lshl_b32 s39, s39, 13
s_cmp_eq_u32 s38, 0
s_cselect_b32 s39, s39, 0
s_add_u32 s35, s35, s39
s_cmp_ge_u32 s20, 4
s_cselect_b32 s35, 0x7f000000, s35
v_lshlrev_b32 v12, 3, v1
buffer_load_dword v11, v12, s[60:63], s35 offen
""")
        pp("""
s_bfe_u32 s29, s20, 0x10001
s_cmp_eq_u32 s29, 0
s_cselect_b32 s16, s64, s66
s_cselect_b32 s17, s65, s67
s_mov_b32 s18, 0x158000
s_cmp_eq_u32 s25, 0
s_cselect_b32 s16, s68, s16
s_cselect_b32 s17, s69, s17
s_cselect_b32 s18, 0x400000, s18
s_and_b32 s17, s17, 0xffff
s_mov_b32 s19, 0x00020000
s_lshl_b32 s56, s21, 8
s_mul_i32 s38, s21, 96
s_lshl_b32 s58, s26, 12
s_mul_i32 s39, s29, 6272
s_and_b32 s30, s20, 1
s_mul_i32 s30, s30, 3072
s_add_u32 s39, s39, s30
s_add_u32 s39, s39, 16384
s_cmp_eq_u32 s25, 0
s_cselect_b32 s56, s56, s38
s_mov_b32 s57, 0x2b000
s_cselect_b32 s57, 0x80000, s57
s_cselect_b32 s58, s58, s39
s_movk_i32 s59, 2048
s_cselect_b32 s59, 3072, s59
s_add_u32 s59, s59, s58
s_lshl_b32 s60, s27, 15
""")
        if XF_OFF: pp(f's_add_u32 s60, s60, {XF_OFF:#x}')
        return [i.text for i in q.items]
    GX = 128; GW = 192; GT = [48, 64, 80, 96, 112, 160, 176]
    def gdma(sl):
        base = GSL[sl % 4]
        out = []
        for t in range(4):
            out.append([f's_add_u32 m0, s{58 if t < 3 else 59}, {base + (t*1024 if t < 3 else 0)}',
                        's_nop 0',
                        (lambda pp, t=t, sl=sl: pp(f'buffer_load_dwordx4 v{GD+t}, s[16:19], s56 offen lds', f'g{sl}'))])
        out[3].append('s_add_u32 s56, s56, s57')
        return out
    def xload(sl):
        out = []
        b = GX + 16 * (sl & 1)
        for k in range(4):
            out.append(f'buffer_load_dwordx4 {vr(b+4*k,4)}, v{VL16}, s[8:11], s61 offen offset:{k*1024}{LS}')
        return [f's_add_u32 s61, s60, {sl*4096}'] + out

    alt = p.begin_alt(join=True)
    for variant in ('k', 'v'):
        p.alt_branch(alt)
        if variant == 'v': p.label('LF_v')
        for kk in range(3): emit(trread(0, kk))
        pend = []
        for u in range(8):
            sc = u >> 1; kh = u & 1
            bb = []; fl = {}
            def add(slot, items): fl.setdefault(slot, []).extend(items)
            for kk in range(16):
                ks = kh * 16 + kk
                for nt in range(2):
                    w = WF + 8 * (kk % NST) + 4 * nt
                    acc = vr(ACC + 16 * nt, 16); cc = '0' if ks == 0 else acc
                    A = vr(AR + 4 * ks, 4)
                    if variant == 'k': bb.append(f'{MF} {acc}, {vr(w,4)}, {A}, {cc}')
                    else:              bb.append(f'{MF} {acc}, {A}, {vr(w,4)}, {cc}')
            for kk in range(3, 16):
                t = trread(u, kk)
                s0 = min(2 * (kk - 3), 24)
                add(s0, t[:2]); add(s0 + 1, t[2:])
            if u < 2:
                for q4 in range(4):
                    e = 4 * kh + q4; base = 8 * q4
                    if e + 1 < 8:
                        add(base + 1, [lambda pp, e=e: pp.wait_tag(f'a{e+1}')])
                        for k_ in range(4): add(base + 1 + k_ // 2, [aread(e + 1, k_)])
                        if e + 3 < 8:
                            add(base + 5, [lambda pp, e=e: pp.wait_tag(f'ar{e+1}')])
                            for jj in range(4): add(base + 5 + jj // 2, adma(e + 3, jj))
            loads = {0: [2], 2: [3, 4], 3: [5], 4: [6], 5: [7]}.get(u, [])
            grps = [wdma(lu, q) for lu in loads for q in range(4)]
            if grps: spread(add, grps, 2 if u else 10, 25)
            X1 = os.environ.get('XP1', '')
            if u == 1: spread(add, atomic_groups(lns, 3), 1, 25)
            if u == 3: spread(add, atomic_groups(p2_setup(), 4), 10, 26)
            if kh == 0 and sc > 0:
                for nt in range(2):
                    g, st_ = kv_epilogue(sc - 1, nt)
                    fl.setdefault(('pre', nt), []).extend(g)
                    pend.extend(st_)
            if pend:
                a_, b_ = pend.pop(0), pend.pop(0)
                if 'nokvst' not in os.environ.get('XP1', ''): add(12, a_); add(24, b_)
            extra = []; post = []
            if u == (3 if 'latepub' in X1 else 2): extra = [lambda pp: pp.wait_tag('lnst')]; post = publish([32])
            if u == 5 and 'nopoll' not in X1: add(18, ['s_sub_u32 s29, 15, s24', 's_lshl_b32 s29, s29, 2', 's_lshl_b32 s30, s24, 2'] + poll_issue([29, 30]))
            if u == 5 and 'nopoll' not in X1: post = poll_check([(29, 16), (30, 16)])
            if u == 6 and 'nog01' not in X1:
                spread(add, gdma(0) + gdma(1), 1, 25)
            if u == 7 and 'nog01' in X1:
                spread(add, gdma(0) + gdma(1), 1, 25)
            if u == 7:
                xl = xload(0)
                spread(add, [xl[:2], [xl[2]], [xl[3]], [xl[4]]] + gdma(2), 1, 28)
            if u < 7:
                add(27, [lambda pp, u=u: pp.wait_tag(f'w{u+1}'), 's_waitcnt lgkmcnt(0)'] + extra + ['s_barrier'] + post)
                for kk in range(3):
                    t = trread(u + 1, kk)
                    add(min(27 + 2 * kk, 31), t[:2]); add(min(28 + 2 * kk, 31), t[2:])
            interleave(p, bb, fl)
            if os.environ.get('P1ST'): st.i = 2 + u; st.stamp()
        for nt in range(2):
            g, st_ = kv_epilogue(3, nt)
            emit(g); pend.extend(st_)
        if variant == 'k': p('s_branch LF_p2')
        p.end_branch()
    p.label('LF_p2')
    st.stamp()
    VK = 2; VV = 3; VZ = 4; VLS = 5; VM = 6; VTS = 7; VLSAVE = 8
    T0 = 9
    Q = 16; O = 48; S = [112, 128]; PP = [144, 152]; MN = 160; FR = 176; E = 208; TT = 216
    THR = f2u(float(2 ** 20)); NEG = f2u(-1e30); FLOOR1 = f2u(-1e20)
    p(f"""
s_lshl_b32 s44, s21, 19
s_lshl_b32 s46, s20, 11
s_add_u32 s44, s44, s46
s_add_u32 s45, s44, {VF_OFF:#x}
s_add_u32 s44, s44, {KF_OFF:#x}
s_lshl_b32 s47, s24, 1
s_add_u32 s47, s47, 2
""")
    AQ = [T0, T0 + 1, T0 + 2, T0 + 3]; AF_ = T0 + 4
    def set_addr(sl):
        base = GSL[sl % 4]
        out = [f'v_add_u32 v{AQ[0]}, {base}, v6']
        for nt in range(1, 4): out.append(f'v_xor_b32 v{AQ[nt]}, {nt<<6}, v{AQ[0]}')
        out.append(f'v_add_u32 v{AF_}, {base}, v7')
        return out
    assert all((s & 0xff) == 0 for s in GSL)
    def gtr(g):
        kk = g & 3; out = []
        for tl in range(7):
            w = GW + 28 * (g & 1) + 4 * tl
            if tl < 4:
                out.append(f'ds_read_b64_tr_b16 {vr(w,2)}, v{AQ[tl]} offset:{kk*4096}')
                out.append(f'ds_read_b64_tr_b16 {vr(w+2,2)}, v{AQ[tl]} offset:{kk*4096+1024}')
            else:
                o = kk * 1536 + (tl - 4) * 32
                out.append(f'ds_read_b64_tr_b16 {vr(w,2)}, v{AF_} offset:{o}')
                out.append(f'ds_read_b64_tr_b16 {vr(w+2,2)}, v{AF_} offset:{o+384}')
        return out
    def kvcopy(sbase, chunk_off, ldsbase, tag, tmp=43):
        return [f's_add_u32 m0, s46, {ldsbase}',
                f's_add_u32 s{tmp}, s{sbase}, {chunk_off}',
                (lambda pp: pp(f'buffer_load_dwordx4 v{VL16}, s[8:11], s{tmp} offen{LS} lds', tag)),
                (lambda pp: pp(f'buffer_load_dwordx4 v{VL16}, s[8:11], s{tmp} offen offset:1024{LS} lds', tag))]
    PUB_SL = int(os.environ.get('PUB_SL', '4'))
    PFN = 8; PFS = int(os.environ.get('PFS', '0')); PFO = int(os.environ.get('PFO', '0'))
    p.wait_tag('g0')
    p('s_waitcnt lgkmcnt(0)')
    p('s_barrier')
    emit(set_addr(0))
    emit(gtr(0))
    for sl in range(8):
        bb = []; fl = {}
        def add(slot, items): fl.setdefault(slot, []).extend(items)
        for kk in range(4):
            g = sl * 4 + kk
            xb = GX + 16 * (sl & 1) + 4 * kk
            for tl in range(7):
                w = GW + 28 * (g & 1) + 4 * tl
                acc = vr(GT[tl], 16); cc = '0' if g == 0 else acc
                bb.append(f'{MF} {acc}, {vr(w,4)}, {vr(xb,4)}, {cc}')
            ng = g + 1
            if ng < 32:
                if kk == 3: add(7 * kk - 1, set_addr(sl + 1))
                rd = gtr(ng)
                for i in range(7): add(7 * kk + i, rd[2 * i:2 * i + 2])
        if sl + 1 < 8:
            xl = xload(sl + 1)
            add(0, xl[:1])
            for k in range(4): add(1 + k, [xl[1 + k]])
            pre = []; post = []
            if sl < 4: add(10, pend[sl])
            if sl == PUB_SL:
                pre = [lambda pp: pp.wait_tag('kvst')]; post = publish_kv()
            if sl == PUB_SL - 1:
                add(6, poll_issue([101, 101]))
            if sl == 6:
                add(8, [f's_lshr_b32 s29, s21, 1', f's_add_u32 s29, s29, {CNT_KV}', 's_lshl_b32 s29, s29, 2'] + poll_issue([29]))
                post = poll_check([(29, 16)], inv_flag=(94 if os.environ.get('KVINV', 'cond') == 'cond' else -1))

            add(17, [lambda pp, sl=sl: pp.wait_tag(f'g{sl+1}')] + pre + ['s_barrier'] + post)
            if sl + 3 < 8:
                for t, grp in enumerate(gdma(sl + 3)): add(18 + 2 * t if t < 1 else 21 + 2 * (t - 1), grp)
        interleave(p, bb, fl)
    st.stamp()
    p('s_waitcnt lgkmcnt(0)')
    emit(w0_drain())
    p('s_barrier')
    emit(kvcopy(44, 0, KSL, 'k0'))
    emit(kvcopy(44, 16384, KSL + 32768, 'k1'))
    emit(kvcopy(45, 0, VSL, 'v0'))
    p("""
s_load_dwordx2 s[56:57], s[0:1], 40
s_load_dwordx2 s[58:59], s[0:1], 72
s_waitcnt lgkmcnt(0)
s_cmp_ge_u32 s20, 2
s_cselect_b32 s60, s58, s56
s_cselect_b32 s61, s59, s57
s_mov_b32 s62, 0x400000
s_cselect_b32 s62, 0x158000, s62
s_movk_i32 s35, 0x4000
s_cselect_b32 s35, 5504, s35
s_and_b32 s61, s61, 0xffff
s_mov_b32 s63, 0x00020000
s_mul_i32 s35, s35, s2
s_cmp_eq_u32 s20, 1
s_cselect_b32 s39, 0x2000, 0
s_add_u32 s35, s35, s39
s_cmp_ge_u32 s20, 3
s_cselect_b32 s35, 0x7f000000, s35
v_lshlrev_b32 v12, 3, v1
buffer_load_dword v255, v12, s[60:63], s35 offen
s_lshr_b32 s17, s23, 2
s_and_b32 s18, s23, 3
s_cmp_ge_u32 s17, 6
s_cselect_b32 s12, s58, s56
s_cselect_b32 s13, s59, s57
s_mov_b32 s14, 0x400000
s_cselect_b32 s14, 0x158000, s14
s_cselect_b32 s19, 6, 0
s_and_b32 s13, s13, 0xffff
s_mov_b32 s15, 0x00020000
s_sub_u32 s19, s17, s19
s_mul_i32 s16, s19, 43
s_cmp_eq_u32 s17, 5
s_cselect_b32 s19, 1, 0
s_sub_u32 s16, s16, s19
s_lshl_b32 s16, s16, 4
s_mul_i32 s18, s18, 84
s_add_u32 s16, s16, s18
s_mul_i32 s18, s20, PFROWS
s_add_u32 s16, s16, s18
s_lshl_b32 s16, s16, 10
v_lshlrev_b32 v249, 3, v1
""".replace('PFROWS', str(PFN * PFS)))
    CQ = f2u(math.log2(math.e) / math.sqrt(128.0))
    p(f's_mov_b32 s48, {CQ:#x}')
    p(f's_mov_b32 s49, {CQ:#x}')
    for tl in range(4):
        for i in range(8): p(f'v_pk_mul_f32 {vr(GT[tl]+2*i,2)}, {vr(GT[tl]+2*i,2)}, s[48:49]')
        for i in range(8): p(f'v_cvt_pk_bf16_f32 v{Q+8*tl+i}, v{GT[tl]+2*i}, v{GT[tl]+2*i+1}')
    p(f'''
s_lshl_b32 s49, s26, 13
s_add_u32 s49, s49, {QX}
v_add_u32 v9, s49, v{VL16}
s_cmp_lg_u32 s25, 0
s_cbranch_scc1 LF_noqx
@COND
''')
    for ks in range(8): p(f'ds_write_b128 v9, {vr(Q+4*ks,4)} offset:{ks*1024}')
    p('s_waitcnt lgkmcnt(0)')
    p('@ENDCOND')
    p.label('LF_noqx')
    KG = -2.0 * math.sqrt(2.0 / math.pi) * math.log2(math.e)
    p(f's_mov_b32 s50, {f2u(KG*0.044715):#x}')
    p(f's_mov_b32 s51, {f2u(KG*0.044715):#x}')
    p(f'v_mov_b32 v{GW+16}, {f2u(KG):#x}')
    p(f'v_mov_b32 v{GW+17}, {f2u(KG):#x}')
    p(f'''
s_mul_i32 s52, s27, {AF_MT}
s_mul_i32 s53, s21, 3
s_add_u32 s54, s53, 256
s_lshl_b32 s54, s54, 10
s_add_u32 s52, s52, s54
s_add_u32 s52, s52, {AF_OFF:#x}
''')
    for tt in range(3):
        a = GT[4 + tt]; t = GW
        p(f's_add_u32 s54, s53, {tt}')
        p('s_cmp_ge_u32 s54, 86')
        p(f's_cbranch_scc1 LF_ffn_skip{tt}')
        p('@COND')
        P2 = lambda r: vr(r, 2)
        for i in range(0, 8, 2): p(f'v_pk_mul_f32 {P2(t+i)}, {P2(a+i)}, {P2(a+i)}')
        for i in range(0, 8, 2): p(f'v_pk_fma_f32 {P2(t+i)}, {P2(t+i)}, s[50:51], {P2(t+16)}')
        for i in range(0, 8, 2): p(f'v_pk_mul_f32 {P2(t+i)}, {P2(t+i)}, {P2(a+i)}')
        for i in range(8): p(f'v_exp_f32 v{t+i}, v{t+i}')
        for i in range(0, 8, 2): p(f'v_pk_mul_f32 {P2(t+8+i)}, {P2(a+i)}, {P2(a+8+i)}')
        for i in range(0, 8, 2): p(f'v_pk_add_f32 {P2(t+i)}, {P2(t+i)}, 1.0 op_sel_hi:[1,0]')
        for i in range(8): p(f'v_rcp_f32 v{t+i}, v{t+i}')
        for i in range(0, 8, 2): p(f'v_pk_mul_f32 {P2(t+i)}, {P2(t+i)}, {P2(t+8+i)}')
        for i in range(4): p(f'v_cvt_pk_bf16_f32 v{t+20+4*tt+i}, v{t+2*i}, v{t+2*i+1}')
        p(f'buffer_store_dwordx4 {vr(t+20+4*tt,4)}, v{VL16}, s[8:11], s52 offen offset:{tt*1024}{SC}')
        p('@ENDCOND')
        p.label(f'LF_ffn_skip{tt}')
    st.stamp()
    for i in range(0, 64, 2): p(f'v_pk_mov_b32 {vr(O+i,2)}, 0, 0')
    for i in range(0, 16, 2): p(f'v_pk_mov_b32 {vr(MN+i,2)}, 0, 0')
    p(f"""
v_mov_b32 v{VLS}, 0
v_mov_b32 v{VM}, 0
v_mov_b32 v{VLSAVE}, 0
s_mov_b32 s56, {THR:#x}
s_mov_b32 s57, 0xbf800000
s_mov_b32 s58, {FLOOR1:#x}
s_mov_b32 s59, 1
s_mov_b32 s60, 1.0
s_mov_b32 s61, s27
s_mov_b32 s62, 0
s_lshl_b32 s67, s25, 14
v_add_u32 v{VK}, {KSL}, v{VL16}
v_add_u32 v{VV}, {VSL}, v{VL16}
v_and_b32 v10, 63, v0
v_and_b32 v12, 31, v10
v_lshrrev_b32 v11, 5, v10
v_lshlrev_b32 v13, 2, v11
v_sub_u32 v{VZ}, v12, v13
s_mov_b32 s55, 0
s_mov_b32 s63, 16384
s_add_u32 s64, s46, 32768
s_lshl_b32 s49, s47, 1
s_add_u32 s49, s49, 2
s_cmp_eq_u32 s25, 0
s_cselect_b32 s49, 0, s49
s_cselect_b32 s66, 32, s27
s_lshl_b32 s68, s47, 1
s_add_u32 s68, s68, 4
s_min_u32 s68, s68, 32
s_cmp_eq_u32 s20, 0
s_cselect_b32 s66, s68, s66
""")
    p('s_waitcnt vmcnt(0) lgkmcnt(0)')
    p('s_barrier')
    st.stamp()

    def frag_read(f):
        hf = f >> 4; i = f & 15; dst = vr(FR + 4 * (f % 8), 4)
        if i < 8:  return f'ds_read_b128 {dst}, v{VK} offset:{hf*8192 + i*1024}'
        else:      return f'ds_read_b128 {dst}, v{VV} offset:{hf*8192 + (i-8)*1024}'
    def mfma(f):
        hf = f >> 4; i = f & 15; fr = vr(FR + 4 * (f % 8), 4)
        if i < 8:
            s = vr(S[hf], 16); c = vr(MN, 16) if i == 0 else s
            return f'{MF} {s}, {fr}, {vr(Q+4*i,4)}, {c}'
        dt = (i - 8) >> 1; tp = (i - 8) & 1
        o = vr(O + 16 * dt, 16)
        return f'{MF} {o}, {fr}, {vr(PP[hf]+4*tp,4)}, {o}'
    def bstage(hf, nslots):
        c = S[1 - hf]; pp_ = PP[1 - hf]
        groups = [[] for _ in range(nslots)]
        span = nslots - 2
        pos_e = [(kk * span) // 16 for kk in range(16)]
        late = [[] for _ in range(nslots)]
        for k in range(8):
            ea = E + (2 * k) % 8; eb = E + (2 * k + 1) % 8
            groups[pos_e[2 * k]].append(f'v_exp_f32 v{ea}, v{c+2*k}')
            groups[pos_e[2 * k + 1]].append(f'v_exp_f32 v{eb}, v{c+2*k+1}')
            sa = pos_e[2 * k] + 1; sb = pos_e[2 * k + 1] + 1
            if k == 0:
                late[sb].append(f'v_add_f32 v{VTS}, v{ea}, v{eb}')
            else:
                late[sa].append(f'v_add_f32 v{VTS}, v{VTS}, v{ea}')
                late[sb].append(f'v_add_f32 v{VTS}, v{VTS}, v{eb}')
            late[sb].append(f'v_cvt_pk_bf16_f32 v{pp_+k}, v{ea}, v{eb}')
        return [late[i] + groups[i] for i in range(nslots)]
    outl = []
    DIST = int(os.environ.get('DIST', '4'))
    DS_ = int(os.environ.get('DMAS', '2')); D0_ = int(os.environ.get('DMA0', '1')); NTAIL = int(os.environ.get('NTAIL', '0'))

    def step(kind):
        doA = kind != 'drain'
        slots = []
        for f in range(32):
            hf = f >> 4; i = f & 15
            isA = i < 8
            if isA and not doA: continue
            if not isA and kind == 'first': continue
            slots.append(f)
        pos = {f: n for n, f in enumerate(slots)}
        bb = [mfma(f) for f in slots]
        fl = {}
        def add(n, items): fl.setdefault(n, []).extend(items)
        nS = len(slots)
        last_read_slot = nS - DIST - 2
        for n in range(DIST, nS):
            add(min(n - DIST, last_read_slot) if kind != 'drain' else n - DIST, [frag_read(slots[n])])
        for hf in range(2):
            if kind == 'first' and hf == 0: continue
            if kind == 'drain' and hf == 1: continue
            hs = [n for n, f in enumerate(slots) if (f >> 4) == hf]
            groups = bstage(hf, len(hs))
            for gi, g in enumerate(groups): add(hs[gi], g)
            nm = f'{kind}{hf}'
            add(hs[-2], [f'v_cmp_nge_f32 vcc, s{56+hf}, v{VTS}'])
            add(hs[-1], [f's_cbranch_vccnz LF_rare{nm}', f'LF_ret{nm}:', f'v_add_f32 v{VLS}, v{VLS}, v{VTS}'])
            outl.append(('rare', nm, hf))
        for hf in range(2):
            if kind == 'drain' and hf == 1: continue
            nm = f'{kind}{hf}'
            first_slot = [n for n, f in enumerate(slots) if (f >> 4) == hf][0]
            fl.setdefault(('pre', first_slot), []).extend(
                ['s_cmp_ge_u32 s62, s66', f's_cbranch_scc1 LF_evt{nm}', f'LF_eret{nm}:'])
            add(first_slot, ['s_add_u32 s62, s62, 1'])
            outl.append(('evt', nm, hf))
        return bb, fl, add, pos, slots

    def prep_next():
        return [['s_add_u32 s55, s55, 1', 's_and_b32 s50, s55, 1'],
                ['s_lshl_b32 s50, s50, 15', 's_cmp_ge_u32 s55, s47'],
                ['s_cselect_b32 s69, s67, 0', 's_add_u32 s50, s50, s69', f's_add_u32 s50, s50, {KSL}']]
    def barrier_blk():
        return ['s_waitcnt vmcnt(0) lgkmcnt(0)', 's_barrier',
                f'v_add_u32 v{VV}, {(VSL - KSL) & 0xffffffff:#x}, v{VK}',
                f'v_add_u32 v{VK}, s50, v{VL16}']
    def dma_issue(name):
        L = f'buffer_load_dwordx4 v{VL16}, s[8:11], s43 offen{LS} lds'
        L2 = f'buffer_load_dwordx4 v{VL16}, s[8:11], s43 offen offset:1024{LS} lds'
        g = []
        g.append([f's_add_u32 m0, s64, {VSL}', 's_add_u32 s43, s45, s63', L])
        g.append([L2, 's_cmp_lt_u32 s55, s47'])
        g.append([f's_cbranch_scc1 LF_nov2{name}', '@COND', f's_add_u32 m0, s64, {VSL + 16384}', 's_add_u32 s43, s43, 16384', L, L2,
                  's_add_u32 s63, s63, 16384', '@ENDCOND', f'LF_nov2{name}:'])
        g.append(['s_add_u32 s63, s63, 16384', 's_xor_b32 s64, s64, 32768'])
        g.append([f's_add_u32 m0, s64, {KSL}', 's_add_u32 s43, s44, s63', L])
        g.append([L2, 's_add_u32 s65, s55, 1', 's_cmp_lt_u32 s65, s47'])
        g.append([f's_cbranch_scc1 LF_nok{name}', '@COND', f's_add_u32 m0, s64, {KSL + 16384}', 's_add_u32 s43, s43, 16384', L, L2,
                  '@ENDCOND', f'LF_nok{name}:'])
        return g

    PRIO = os.environ.get('PRIO', '1')
    if PRIO:
        p(f's_cmp_eq_u32 s25, {0 if PRIO == "1" else 1}')
        p('s_cbranch_scc1 LF_noprio')
        p('s_setprio 1')
        p.label('LF_noprio')
    bb, fl, add, pos, slots = step('first')
    for n in range(DIST): p(frag_read(slots[n]))
    nS = len(slots)
    for gi, g in enumerate(prep_next()): add(4 + gi, g)
    add(nS - DIST, barrier_blk())
    for n in range(DIST): add(nS - DIST + n, [frag_read(n)])
    if NTAIL:
        add(nS - DIST, [x for g in dma_issue('first')[:NTAIL] for x in g])
    interleave(p, bb, fl)
    p.begin_loop()
    p.label('LF_loop')
    bb, fl, add, pos, slots = step('loop')
    XP = os.environ.get('XP', '')
    if 'nodma' not in XP:
        for gi, g in enumerate(dma_issue('loop')[NTAIL:]): add(D0_ + DS_ * gi, g)
    if PFS:
        blk = [f's_cmp_lt_u32 s55, {17 - PFS - PFO}', 's_cbranch_scc1 LF_nopf', f's_cmp_ge_u32 s55, {17 - PFO}', 's_cbranch_scc1 LF_nopf', '@COND',
               f'buffer_load_dword v248, v249, s[12:15], s16 offen',
               f's_add_u32 s16, s16, 8192', '@ENDCOND', 'LF_nopf:']
        add(2, blk)
    for gi, g in enumerate(prep_next()): add(27 - DIST + gi, g)
    nb_ = barrier_blk()
    if 'nobar' in XP: nb_ = [x for x in nb_ if x != 's_barrier']
    add(32 - DIST, nb_)
    for n in range(DIST): add(min(32 - DIST + n, 30), [frag_read(n)])
    if NTAIL:
        add(32 - DIST, ['s_cmp_ge_u32 s55, 17', 's_cbranch_scc1 LF_notail', '@COND'] + [x for g in dma_issue('tail')[:NTAIL] for x in g] + ['@ENDCOND', 'LF_notail:'])
    add(30, ['s_cmp_lt_u32 s55, 17'])
    if XP:
        for kk_ in fl: fl[kk_] = [x for x in fl[kk_] if not (isinstance(x, str) and x.startswith('s_cbranch_vccnz'))]
    if 'noexp' in XP:
        for kk_ in fl: fl[kk_] = [x.replace('v_exp_f32', 'v_mov_b32') if isinstance(x, str) else x for x in fl[kk_]]
    if 'novalu' in XP:
        for kk_ in fl: fl[kk_] = [x for x in fl[kk_] if not (isinstance(x, str) and x.startswith(('v_exp', 'v_add_f32 v7', 'v_cvt')))]
    if 'nolds' in XP:
        for kk_ in fl: fl[kk_] = [x for x in fl[kk_] if not (isinstance(x, str) and x.startswith('ds_read'))]
    interleave(p, bb, fl)
    p('s_cbranch_scc1 LF_loop')
    p.end_loop()
    st.stamp()
    p('s_waitcnt lgkmcnt(0)')
    bb, fl, add, pos, slots = step('drain')
    for n in range(DIST): p(frag_read(slots[n]))
    interleave(p, bb, fl)
    st.stamp()
    p(f'''
v_mov_b32 v9, v{VLS}
v_permlane32_swap_b32 v{VLS}, v9
v_add_f32 v{VLS}, v{VLS}, v9
s_waitcnt lgkmcnt(0)
s_barrier
''')
    p(f'''
s_mul_i32 s49, s20, 8704
s_xor_b32 s50, s20, 4
s_mul_i32 s50, s50, 8704
v_add_u32 v9, s49, v{VL16}
v_add_u32 v10, s50, v{VL16}
v_lshrrev_b32 v11, 1, v{VL16}
v_add_u32 v12, s49, v11
v_add_u32 v13, s50, v11
v_mov_b32 v14, v{VLS}
v_mov_b32 v15, v{VM}
s_cmp_eq_u32 s25, 0
s_cbranch_scc1 LF_mg0
''')
    X = TT
    alt = p.begin_alt(join=True)
    for g in (1, 0):
        p.alt_branch(alt)
        if g == 0: p.label('LF_mg0')
        keep = O + 32 * g; send = O + 32 * (1 - g)
        for k in range(8): p(f'ds_write_b128 v9, {vr(send+4*k,4)} offset:{k*1024}')
        p('ds_write_b64 v12, v[14:15] offset:8192')
        p('s_waitcnt lgkmcnt(0)')
        p('s_barrier')
        p(f'ds_read_b64 v[{E}:{E+1}], v13 offset:8192')
        for k in range(8): p(f'ds_read_b128 {vr(X+4*k,4)}, v10 offset:{k*1024}')
        p(f'''
v_max_f32 v{E+2}, v{VM}, v{E+1}
v_sub_f32 v{E+4}, v{VM}, v{E+2}
v_sub_f32 v{E+6}, v{E+1}, v{E+2}
v_exp_f32 v{E+4}, v{E+4}
v_exp_f32 v{E+6}, v{E+6}
v_mul_f32 v{E+3}, v{E+4}, v{VLS}
v_fmac_f32 v{E+3}, v{E+6}, v{E}
v_rcp_f32 v{E+3}, v{E+3}
v_mul_f32 v{E+4}, v{E+4}, v{E+3}
v_mul_f32 v{E+6}, v{E+6}, v{E+3}
''')
        for i in range(0, 32, 2):
            p(f'v_pk_mul_f32 {vr(keep+i,2)}, {vr(keep+i,2)}, {vr(E+4,2)} op_sel_hi:[1,0]')
            p(f'v_pk_fma_f32 {vr(keep+i,2)}, {vr(X+i,2)}, {vr(E+6,2)}, {vr(keep+i,2)} op_sel_hi:[1,0,1]')
        for i in range(16): p(f'v_cvt_pk_bf16_f32 v{S[0]+i}, v{keep+2*i}, v{keep+2*i+1}')
        p(f'''
s_mul_i32 s52, s28, {AF_MT}
s_lshl_b32 s54, s21, 13
s_add_u32 s52, s52, s54
s_add_u32 s52, s52, {AF_OFF + g*4096:#x}
''')
        for k in range(4): p(f'buffer_store_dwordx4 {vr(S[0]+4*k,4)}, v{VL16}, s[8:11], s52 offen offset:{k*1024}{SC}')
        if g == 1: p('s_branch LF_p4')
        p.end_branch()
    p.label('LF_p4')
    if PRIO: p('s_setprio 0')
    st.stamp()
    NK = 43; D = int(os.environ.get("K3D", "6"))
    NL = 9; NR = int(os.environ.get("K3R", "12"))
    VA1 = 2; VW = 3; VT = [4, 5]
    ACT = 16; WF4 = 64; ACC4 = 80; WR = 144; XR = 240
    assert D <= 6 and WR + 8 * NR <= XR
    AF_END = AF_OFF + 64 * AF_MT
    p(f"""
s_load_dwordx2 s[28:29], s[0:1], 40
s_load_dwordx4 s[32:35], s[0:1], 72
s_load_dwordx2 s[30:31], s[0:1], 0
s_load_dwordx2 s[36:37], s[0:1], 96
v_and_b32 v10, 63, v0
v_add_u32 v{VA1}, {AF_MT}, v{VL16}
v_lshrrev_b32 v11, 3, v10
v_and_b32 v12, 7, v10
v_bfe_u32 v13, v10, 4, 1
v_lshlrev_b32 v13, 2, v13
v_xor_b32 v12, v12, v13
v_lshlrev_b32 v12, 4, v12
v_lshl_add_u32 v{VW}, v11, 10, v12
v_lshrrev_b32 v11, 5, v10
v_bfe_u32 v12, v10, 2, 2
v_lshl_add_u32 v13, v11, 2, v12
v_lshlrev_b32 v13, 7, v13
v_lshrrev_b32 v12, 1, v12
v_lshl_add_u32 v13, v12, 6, v13
v_bfe_u32 v12, v10, 4, 1
v_lshl_add_u32 v13, v12, 5, v13
v_and_b32 v12, 3, v10
v_lshl_add_u32 v13, v12, 3, v13
s_mul_i32 s25, s20, {NL*2048}
v_add_u32 v{VT[0]}, s25, v13
v_xor_b32 v{VT[1]}, 64, v{VT[0]}
s_mul_i32 s26, s20, 43
s_cmp_ge_u32 s20, 4
s_cselect_b32 s27, 1, 0
s_sub_u32 s26, s26, s27
s_cmp_ge_u32 s20, 5
s_cselect_b32 s27, 1, 0
s_sub_u32 s26, s26, s27
s_and_b32 s44, s23, 7
s_bfe_u32 s45, s23, 0x10003
s_cmp_ge_u32 s24, 4
s_cselect_b32 s46, 8, 0
s_add_u32 s46, s46, s22
s_lshl_b32 s47, s46, 1
s_add_u32 s47, s47, s45
s_sub_u32 s48, 15, s24
s_add_u32 s48, s48, {CNT_CTX}
s_lshl_b32 s48, s48, 2
s_add_u32 s49, s24, {CNT_CTX}
s_lshl_b32 s49, s49, 2
s_add_u32 s50, s46, {CNT_CTX}
s_lshl_b32 s50, s50, 2
""")
    st.stamp()
    p('s_waitcnt vmcnt(0) lgkmcnt(0)')
    st.stamp()
    p('s_barrier')
    st.stamp()
    emit(publish([48]))
    p('s_cmp_lg_u32 s24, 7')
    p('s_cbranch_scc1 LF_nopubS2')
    emit(publish([49]))
    p.label('LF_nopubS2')
    srd(p, 12, 36, 37, AF_END)
    srd(p, 16, 30, 31, 2 << 20)
    srd(p, 36, 34, 35, 2 << 20)
    p(f"""
s_cmp_ge_u32 s20, 6
s_cselect_b32 s4, s32, s28
s_cselect_b32 s5, s33, s29
s_mov_b32 s6, 0x400000
s_cselect_b32 s6, 0x158000, s6
s_and_b32 s5, s5, 0xffff
s_mov_b32 s7, 0x00020000
s_mul_i32 s40, s47, {2*AF_MT}
s_lshl_b32 s43, s26, 10
s_add_u32 s40, s40, s43
s_add_u32 s40, s40, {AF_OFF:#x}
s_cmp_ge_u32 s20, 6
s_cselect_b32 s43, 256, 0
s_sub_u32 s43, s26, s43
s_lshl_b32 s42, s43, 14
s_lshl_b32 s43, s44, 7
s_add_u32 s42, s42, s43
s_sub_u32 s51, s20, 4
s_cmp_lt_u32 s51, 2
s_cselect_b32 s41, 0x7fff0000, s40
s_cselect_b32 s52, 0x4000, 0
s_add_u32 s52, s52, s42
""")
    def wloads(ks):
        sl = ks % NL
        if ks == 0:
            a0 = ['s_mov_b32 s54, s52', 's_add_u32 s53, s52, 0x2000']
        else:
            a0 = [f's_add_u32 s54, s42, {ks*16384}', f's_add_u32 s53, s42, {ks*16384+8192}']
        return [f's_add_u32 m0, s25, {sl*2048}'] + a0 + [
                (lambda pp: pp(f'buffer_load_dwordx4 v{VW}, s[4:7], s54 offen lds', f'x{ks}')),
                f's_add_u32 m0, s25, {sl*2048+1024}', 's_nop 0',
                (lambda pp: pp(f'buffer_load_dwordx4 v{VW}, s[4:7], s53 offen lds', f'x{ks}'))]
    def aloads(ks):
        a = ACT + 8 * (ks % D)
        pre = ['s_mov_b32 s55, s41'] if ks == 0 else [f's_add_u32 s55, s40, {ks*1024}']
        return pre + [f'buffer_load_dwordx4 {vr(a,4)}, v{VL16}, s[12:15], s55 offen{LS}',
                      f'buffer_load_dwordx4 {vr(a+4,4)}, v{VA1}, s[12:15], s55 offen{LS}']
    def wreg(ks, nt):
        return (WR + 8 * ks + 4 * nt) if ks < NR else (WF4 + 8 * (ks & 1) + 4 * nt)
    def trr(ks):
        sl = ks % NL; out = [lambda pp: pp.wait_tag(f'x{ks}')]
        for nt in range(2):
            w = wreg(ks, nt)
            out.append((lambda pp, w=w, nt=nt: pp(f'ds_read_b64_tr_b16 {vr(w,2)}, v{VT[nt]} offset:{sl*2048}', f'r{ks}')))
            out.append((lambda pp, w=w, nt=nt: pp(f'ds_read_b64_tr_b16 {vr(w+2,2)}, v{VT[nt]} offset:{sl*2048+1024}', f'r{ks}')))
        return out
    for ks in range(NL): emit(wloads(ks))
    p(f"""
s_lshr_b32 s56, s20, 2
s_bfe_u32 s57, s20, 0x10001
s_and_b32 s58, s20, 1
s_lshl_b32 s59, s47, 6
s_lshl_b32 s60, s57, 5
s_add_u32 s59, s59, s60
s_lshl_b32 s59, s59, 10
s_lshl_b32 s60, s44, 6
s_lshl_b32 s61, s56, 5
s_add_u32 s60, s60, s61
s_lshl_b32 s61, s58, 4
s_add_u32 s60, s60, s61
s_lshl_b32 s60, s60, 1
s_add_u32 s59, s59, s60
v_and_b32 v11, 31, v10
v_lshrrev_b32 v12, 5, v10
v_lshlrev_b32 v11, 10, v11
v_lshl_add_u32 v9, v12, 3, v11
buffer_load_dwordx2 v[{XR}:{XR+1}], v9, s[16:19], s59 offen
buffer_load_dwordx2 v[{XR+2}:{XR+3}], v9, s[16:19], s59 offen offset:16
""")
    for ks in range(NR):
        emit(trr(ks))
        if ks >= 1:
            p.wait_tag(f'r{ks-1}')
            emit(wloads(ks - 1 + NL))
    p.wait_tag(f'r{NR-1}')
    emit(wloads(NR - 1 + NL))
    st.stamp()
    emit(poll_noinv([(50, 32)]))
    st.stamp()
    p('s_barrier')
    st.stamp()
    for ks in range(D): emit(aloads(ks))
    for ks in range(NK):
        a = ACT + 8 * (ks % D)
        if NR <= ks + 1 < NK: emit(trr(ks + 1))
        for nt in range(2):
            for mt in range(2):
                w = wreg(ks, nt)
                acc = vr(ACC4 + 16 * (2 * nt + mt), 16); cc = '0' if ks == 0 else acc
                p(f'{MF} {acc}, {vr(w,4)}, {vr(a+4*mt,4)}, {cc}')
        if ks + D < NK: emit(aloads(ks + D))
        if ks >= NR and ks + NL < NK:
            p.wait_tag(f'r{ks}')
            emit(wloads(ks + NL))
    p('s_waitcnt lgkmcnt(0)')
    p('s_barrier')
    p('s_lshl_b32 s25, s20, 14')
    p(f'v_add_u32 v6, s25, v{VL16}')
    for b in range(16): p(f'ds_write_b128 v6, {vr(ACC4+4*b,4)} offset:{b*1024}')
    p(f"""
s_lshl_b32 s56, s20, 11
v_add_u32 v7, s56, v{VL16}
v_add_u32 v8, 0x10000, v7
s_waitcnt lgkmcnt(0)
s_barrier
""")
    for src in range(8):
        base = 7 if src < 4 else 8
        for b in range(2):
            p(f'ds_read_b128 {vr(16+8*src+4*b,4)}, v{base} offset:{(src%4)*16384 + b*1024}')
    for i in range(8):
        p(f'v_add_f32 v{16+i}, v{16+i}, v{24+i}')
        p(f'v_add_f32 v{32+i}, v{32+i}, v{40+i}')
        p(f'v_add_f32 v{48+i}, v{48+i}, v{56+i}')
        p(f'v_add_f32 v{64+i}, v{64+i}, v{72+i}')
    for i in range(8):
        p(f'v_add_f32 v{16+i}, v{16+i}, v{32+i}')
        p(f'v_add_f32 v{16+i}, v{16+i}, v{48+i}')
    for i in range(4):
        p(f'v_cvt_pk_bf16_f32 v{24+i}, v{16+2*i}, v{17+2*i}')
        p(f'v_cvt_pk_bf16_f32 v{72+i}, v{64+2*i}, v{65+2*i}')
    for i in range(4):
        p(f'v_lshlrev_b32 v{16+2*i}, 16, v{24+i}')
        p(f'v_and_b32 v{17+2*i}, 0xffff0000, v{24+i}')
        p(f'v_lshlrev_b32 v{64+2*i}, 16, v{72+i}')
        p(f'v_and_b32 v{65+2*i}, 0xffff0000, v{72+i}')
    NL2E = f2u(-math.log2(math.e))
    for i in range(8): p(f'v_mul_f32 v{32+i}, {NL2E:#x}, v{64+i}')
    for i in range(8): p(f'v_exp_f32 v{32+i}, v{32+i}')
    for i in range(8): p(f'v_add_f32 v{32+i}, 1.0, v{32+i}')
    for i in range(8): p(f'v_rcp_f32 v{32+i}, v{32+i}')
    for i in range(8): p(f'v_mul_f32 v{32+i}, v{32+i}, v{64+i}')
    for i in range(4): p(f'v_cvt_pk_bf16_f32 v{40+i}, v{32+2*i}, v{33+2*i}')
    for i in range(4):
        p(f'v_lshlrev_b32 v{32+2*i}, 16, v{40+i}')
        p(f'v_and_b32 v{33+2*i}, 0xffff0000, v{40+i}')
    for i in range(8): p(f'v_mul_f32 v{32+i}, v{32+i}, v{16+i}')
    for i in range(4): p(f'v_cvt_pk_bf16_f32 v{40+i}, v{32+2*i}, v{33+2*i}')
    for i in range(4):
        p(f'v_lshlrev_b32 v{32+2*i}, 16, v{40+i}')
        p(f'v_and_b32 v{33+2*i}, 0xffff0000, v{40+i}')
        p(f'v_lshlrev_b32 v{48+2*i}, 16, v{XR+i}')
        p(f'v_and_b32 v{49+2*i}, 0xffff0000, v{XR+i}')
    for i in range(8): p(f'v_add_f32 v{32+i}, v{32+i}, v{48+i}')
    for i in range(4): p(f'v_cvt_pk_bf16_f32 v{40+i}, v{32+2*i}, v{33+2*i}')
    p('buffer_store_dwordx2 v[40:41], v9, s[36:39], s59 offen')
    p('buffer_store_dwordx2 v[42:43], v9, s[36:39], s59 offen offset:16')
    if PROF: p('s_waitcnt vmcnt(0)')
    st.stamp()
    st.dump(p, 8, 0, 20, 50, 57, 8)
    p('s_endpgm')

    ool = p.begin_alt()
    def routine(name):
        p.alt_branch(ool); p.label(name)
    def fin_code():
        p(f"""
s_nop 15
s_nop 7
v_mov_b32 v9, v{VLSAVE}
v_permlane32_swap_b32 v{VLSAVE}, v9
v_add_f32 v9, v{VLSAVE}, v9
v_rcp_f32 v9, v9
s_mul_i32 s52, s27, {AF_MT}
s_lshl_b32 s54, s21, 13
s_add_u32 s52, s52, s54
s_add_u32 s52, s52, {AF_OFF:#x}
s_add_u32 s53, s52, 4096
""")
        for half in range(2):
            for i in range(32): p(f'v_mul_f32 v{O+32*half+i}, v{O+32*half+i}, v9')
            for i in range(16): p(f'v_cvt_pk_bf16_f32 v{TT+16*half+i}, v{O+32*half+2*i}, v{O+32*half+2*i+1}')
            for k in range(4): p(f'buffer_store_dwordx4 {vr(TT+16*half+4*k,4)}, v{VL16}, s[8:11], s{52+half} offen offset:{k*1024}{SC}')
        for i in range(64): p(f'v_mov_b32 v{O+i}, 0')
    for kind, nm, hf in outl:
        if kind == 'evt':
            routine(f'LF_evt{nm}')
            p('s_lshl_b32 s68, s47, 1')
            if nm in ('loop0', 'drain0'):
                p(f"""
s_add_u32 s69, s68, 2
s_cmp_lg_u32 s62, s69
s_cbranch_scc1 LF_nofin{nm}
s_cmp_eq_u32 s25, 0
s_cbranch_scc1 LF_nofin{nm}
""")
                fin_code()
                p.label(f'LF_nofin{nm}')
            if nm == 'loop0':
                p(f"""
s_add_u32 s69, s68, 4
s_cmp_lg_u32 s62, s69
s_cbranch_scc1 LF_nopubS
s_add_u32 s69, s24, {CNT_CTX}
s_lshl_b32 s69, s69, 2
""")
                emit(publish([69]))
                p(f"""
LF_nopubS:
s_cmp_lg_u32 s62, s68
s_cbranch_scc1 LF_nosw
s_cmp_eq_u32 s25, 0
s_cbranch_scc1 LF_nosw
s_lshl_b32 s69, s26, 13
s_add_u32 s69, s69, {QX}
v_add_u32 v9, s69, v{VL16}
s_nop 7
""")
                for ks in range(8): p(f'ds_read_b128 {vr(Q+4*ks,4)}, v9 offset:{ks*1024}')
                for i in range(16): p(f'v_mov_b32 v{MN+i}, 0')
                p(f"""
v_mov_b32 v{VM}, 0
s_mov_b32 s61, s28
s_mov_b32 s60, 0
s_waitcnt lgkmcnt(0)
LF_nosw:
""")
            if nm == 'loop1':
                p(f"""
s_add_u32 s69, s68, 1
s_cmp_lg_u32 s62, s69
s_cbranch_scc1 LF_nomid
s_cmp_eq_u32 s25, 0
s_cbranch_scc1 LF_nomid
v_mov_b32 v{VLSAVE}, v{VLS}
v_mov_b32 v{VLS}, 0
s_mov_b32 s60, 1.0
s_mov_b32 s57, 0xbf800000
s_mov_b32 s58, {FLOOR1:#x}
s_mov_b32 s59, 1
LF_nomid:
""")
            if nm != 'drain0':
                p(f"""
s_lshr_b32 s68, s62, 1
s_lshl_b32 s69, s68, 1
s_sub_u32 s69, s69, s47
s_add_u32 s69, s69, s25
s_cmp_ge_u32 s68, s47
s_cselect_b32 s68, s69, s68
s_lshl_b32 s68, s68, 1
s_add_u32 s68, s68, {hf}
s_cmp_lt_u32 s68, s61
s_cbranch_scc1 LF_nomask{nm}
s_sub_u32 s68, s61, s68
s_lshl_b32 s68, s68, 5
v_add_u32 v9, s68, v{VZ}
v_mov_b32 v10, {NEG:#x}
""")
                for r in range(16):
                    cr = 8 * (r >> 2) + (r & 3)
                    p(f'v_cmp_gt_i32 vcc, {cr}, v9')
                    p(f'v_cndmask_b32 v{MN+r}, v{MN+r}, v10, vcc')
                p.label(f'LF_nomask{nm}')
            p(f"""
s_add_u32 s68, s62, 1
s_max_u32 s66, s68, 32
s_cmp_le_u32 s68, s49
s_cselect_b32 s66, s68, s66
s_branch LF_eret{nm}
""")
            p.end_branch()
        else:
            routine(f'LF_rare{nm}')
            c = S[1 - hf]; nx = S[hf]; pc = PP[1 - hf]
            p('s_nop 15\ns_nop 7')
            p(f'v_max3_f32 v9, v{c}, v{c+1}, v{c+2}')
            for k in range(3, 15, 2): p(f'v_max3_f32 v9, v9, v{c+k}, v{c+k+1}')
            p(f'v_max_f32 v9, v9, v{c+15}')
            p(f'''
v_mov_b32 v10, v9
v_permlane32_swap_b32 v9, v10
v_max_f32 v9, v9, v10
v_max_f32 v9, s58, v9
v_sub_f32 v10, 0, v9
v_min_f32 v10, 0x42fc0000, v10
v_exp_f32 v10, v10
v_mul_f32 v11, s60, v9
''')
            for k in range(16): p(f'v_sub_f32 v{c+k}, v{c+k}, v9')
            for k in range(16): p(f'v_exp_f32 v{TT+k}, v{c+k}')
            p(f'v_add_f32 v{VTS}, v{TT}, v{TT+1}')
            for k in range(2, 16): p(f'v_add_f32 v{VTS}, v{VTS}, v{TT+k}')
            for k in range(8): p(f'v_cvt_pk_bf16_f32 v{pc+k}, v{TT+2*k}, v{TT+2*k+1}')
            for k in range(16): p(f'v_sub_f32 v{nx+k}, v{nx+k}, v11')
            for k in range(16): p(f'v_sub_f32 v{MN+k}, v{MN+k}, v11')
            p(f'v_add_f32 v{VM}, v{VM}, v11')
            p(f'v_mul_f32 v{VLS}, v{VLS}, v10')
            p('s_cmp_lg_u32 s59, 0')
            p(f's_cbranch_scc1 LF_rskip{nm}')
            for k in range(64): p(f'v_mul_f32 v{O+k}, v{O+k}, v10')
            p.label(f'LF_rskip{nm}')
            p(f'''
s_mov_b32 s{56+hf}, {THR:#x}
''')
            if hf == 1:
                p('s_mov_b32 s58, 0\ns_mov_b32 s59, 0')
            if nm == 'loop1': p('s_cmp_lt_u32 s55, 17')
            p(f's_branch LF_ret{nm}')
            p.end_branch()
    p.alt_branch(ool); emit_slow(); p.end_branch()
    p.label('LF_end')
    p('s_endpgm')
    return ('kf_kernel', p, 256, 512, 163840, 256, 256)
```

```python
from common import *
from k1 import ln_stream
import struct, math

def f2u(x): return struct.unpack('<I', struct.pack('<f', x))[0]
MF = 'v_mfma_f32_32x32x16_bf16'
SC = os.environ.get('FSC', ' sc1')
CNT_LN = 0; CNT_KV = 16; CNT_CTX = 32; CNT_REG = 48
LS = os.environ.get('LS', ' sc1')
SPIN_MAX = 1 << 22

KVSC = os.environ.get('KVSC', '')
KVN = int(os.environ.get('KVN', '0'))
def gen_kf():
    p = Prog()
    st = Stamps(p, 70, 10)
    st.skip = set(int(x) for x in os.environ.get('STSKIP', '').split(',') if x)
    def emit(lst):
        for f in lst:
            if isinstance(f, list): emit(f)
            elif callable(f): f(p)
            else: p(f)
    VL16 = 1
    uid = [0]
    def publish(sreg_idx_list):
        uid[0] += 1; L = f'LF_pub{uid[0]}'
        out = ['s_cmp_lg_u32 s20, 0', f's_cbranch_scc1 {L}', '@COND', 'v_mov_b32 v14, 1', 'v_mov_b32 v15, 0', 's_mov_b64 exec, 1']
        for s in sreg_idx_list:
            out.append(f'buffer_atomic_add v14, v15, s[96:99], s{s} offen sc1')
        out += ['s_mov_b64 exec, -1', '@ENDCOND', f'{L}:']
        return out
    def poll(pairs):
        uid[0] += 1; L = f'LF_poll{uid[0]}'
        out = ['s_cmp_lg_u32 s20, 0', f's_cbranch_scc1 {L}_done', '@COND', 'v_mov_b32 v15, 0', f's_mov_b32 s3, {SPIN_MAX}']
        for n, (s, tgt) in enumerate(pairs):
            out += [f'{L}_{n}:',
                    f'buffer_load_dword v14, v15, s[96:99], s{s} offen sc1',
                    's_waitcnt vmcnt(0)',
                    'v_readfirstlane_b32 s100, v14',
                    's_sub_u32 s3, s3, 1',
                    's_cmp_eq_u32 s3, 0',
                    f's_cbranch_scc1 {L}_acq',
                    f's_cmp_ge_u32 s100, {tgt}',
                    f's_cbranch_scc1 {L}_{n}_ok',
                    's_sleep 2',
                    f's_branch {L}_{n}',
                    f'{L}_{n}_ok:']
        out += [f'{L}_acq:', 'buffer_inv sc1', 's_waitcnt vmcnt(0)', '@ENDCOND', f'{L}_done:']
        return out
    def poll_noinv(pairs):
        out = poll(pairs)
        i = out.index('buffer_inv sc1')
        return out[:i] + out[i + 2:]
    slow = []
    def poll_issue(sregs):
        uid[0] += 1; L = f'LF_pi{uid[0]}'
        out = ['s_cmp_lg_u32 s20, 0', f's_cbranch_scc1 {L}', '@COND', 'v_mov_b32 v8, 0']
        for n, s in enumerate(sregs): out.append(f'buffer_load_dword v{14+n}, v8, s[96:99], s{s} offen sc1')
        out += ['@ENDCOND', f'{L}:']
        return out
    def poll_check(pairs, inv_flag=None):
        uid[0] += 1; L = f'LF_pc{uid[0]}'
        out = ['s_cmp_lg_u32 s20, 0', f's_cbranch_scc1 {L}', '@COND']
        for n, (s, tgt) in enumerate(pairs):
            out += [f'v_readfirstlane_b32 s100, v{14+n}', f's_cmp_lt_u32 s100, {tgt}', f's_cbranch_scc1 {L}_slow']
        out += [f'{L}_ok:']
        if inv_flag is not None and inv_flag >= 0:
            out += [f's_cmp_lg_u32 s{inv_flag}, 0', f's_cbranch_scc1 {L}', (lambda pp: pp('buffer_inv sc1', 'inv'))]
        elif inv_flag is not None:
            out += [(lambda pp: pp('buffer_inv sc1', 'inv'))]
        out += ['@ENDCOND', f'{L}:']
        slow.append((L, pairs))
        return out
    def publish_kv():
        uid[0] += 1; L = f'LF_pkv{uid[0]}'
        return ['s_cmp_lg_u32 s20, 0', f's_cbranch_scc1 {L}', '@COND',
                'v_readfirstlane_b32 s100, v15',
                's_and_b32 s3, s100, 63', 's_bfe_u32 s29, s100, 0x90006', 's_lshr_b32 s30, s100, 15',
                's_mul_i32 s29, s29, s29', 's_lshl_b32 s30, s30, 5',
                's_cmp_eq_u32 s29, s30', 's_cselect_b32 s94, 1, 0',
                's_cmp_eq_u32 s3, 32', 's_cselect_b32 s94, s94, 0',
                's_cmp_lg_u32 s94, 0', f's_cbranch_scc1 {L}_fast',
                'buffer_wbl2 sc1', 's_waitcnt vmcnt(0)',
                f'{L}_fast:',
                'v_mov_b32 v14, 1', 'v_mov_b32 v15, 0', 's_mov_b64 exec, 1',
                'buffer_atomic_add v14, v15, s[96:99], s33 offen sc1',
                's_mov_b64 exec, -1', '@ENDCOND', f'{L}:']
    def w0_drain():
        uid[0] += 1; L = f'LF_dr{uid[0]}'
        return ['s_cmp_lg_u32 s20, 0', f's_cbranch_scc1 {L}', '@COND', (lambda pp: pp.wait_tag('inv')), '@ENDCOND', f'{L}:']
    def emit_slow():
        for L, pairs in slow:
            p.label(f'{L}_slow')
            p(f's_mov_b32 s3, {SPIN_MAX}')
            p('v_mov_b32 v8, 0')
            for n, (s, tgt) in enumerate(pairs):
                p(f"""
{L}_s{n}:
buffer_load_dword v14, v8, s[96:99], s{s} offen sc1
s_waitcnt vmcnt(0)
v_readfirstlane_b32 s100, v14
s_sub_u32 s3, s3, 1
s_cmp_eq_u32 s3, 0
s_cbranch_scc1 {L}_ok
s_cmp_ge_u32 s100, {tgt}
s_cbranch_scc1 {L}_s{n}_ok
s_sleep 2
s_branch {L}_s{n}
{L}_s{n}_ok:
""")
            p(f's_branch {L}_ok')
    p(f'''
s_cmp_ge_u32 s2, 256
s_cbranch_scc1 LF_end
s_load_dwordx4 s[28:31], s[0:1], 0
s_load_dwordx4 s[32:35], s[0:1], 24
s_load_dwordx4 s[36:39], s[0:1], 88
s_load_dwordx4 s[64:67], s[0:1], 56
s_load_dwordx2 s[68:69], s[0:1], 16
s_load_dwordx2 s[56:57], s[0:1], 40
s_load_dwordx2 s[58:59], s[0:1], 72
v_lshrrev_b32 v9, 6, v0
v_and_b32 v10, 63, v0
v_readfirstlane_b32 s20, v9
s_and_b32 s22, s2, 7
s_lshr_b32 s23, s2, 3
''')
    st.stamp()
    p('''
s_and_b32 s48, s23, 1
s_bfe_u32 s49, s23, 0x10001
s_lshr_b32 s50, s23, 2
s_lshl_b32 s51, s22, 9
s_lshl_b32 s3, s48, 8
s_add_u32 s51, s51, s3
''')
    p(f'v_lshlrev_b32 v{VL16}, 4, v10')
    STG = 65536
    p('''
v_lshrrev_b32 v11, 3, v10
v_and_b32 v12, 7, v10
v_lshrrev_b32 v13, 4, v10
v_xor_b32 v14, v12, v13
v_lshlrev_b32 v14, 4, v14
v_lshl_add_u32 v2, v11, 10, v14
v_xor_b32 v3, 64, v2
''')
    p('''
v_and_b32 v13, 1, v13
v_lshlrev_b32 v13, 2, v13
v_xor_b32 v14, v12, v13
v_lshlrev_b32 v14, 4, v14
v_lshl_add_u32 v4, v11, 13, v14
''')
    p(f'''
v_and_b32 v11, 31, v10
v_lshrrev_b32 v12, 5, v10
v_bfe_u32 v13, v11, 1, 3
v_xor_b32 v13, v12, v13
v_lshlrev_b32 v13, 4, v13
v_lshl_add_u32 v13, v11, 7, v13
s_lshl_b32 s52, s20, 13
s_add_u32 s52, s52, {STG}
v_add_u32 v16, s52, v13
v_xor_b32 v17, 32, v16
v_xor_b32 v18, 64, v16
v_xor_b32 v19, 96, v16
''')
    p('''
v_bfe_u32 v11, v10, 2, 2
v_lshl_add_u32 v13, v12, 3, v11
v_lshlrev_b32 v13, 7, v13
v_lshrrev_b32 v11, 1, v11
v_lshl_add_u32 v13, v11, 6, v13
v_bfe_u32 v11, v10, 4, 1
v_lshl_add_u32 v13, v11, 5, v13
v_and_b32 v11, 3, v10
v_lshl_add_u32 v20, v11, 3, v13
v_xor_b32 v21, 64, v20
v_add_u32 v22, 0x8000, v20
v_add_u32 v23, 0x8000, v21
v_add_u32 v24, 0x20000, v20
v_add_u32 v25, 0x20000, v21
v_add_u32 v26, 0x10000, v20
v_add_u32 v27, 0x10000, v21
v_lshlrev_b32 v14, 7, v10
v_lshrrev_b32 v15, 2, v10
v_lshlrev_b32 v15, 13, v15
v_and_b32 v11, 3, v10
v_lshl_add_u32 v15, v11, 7, v15
v_lshrrev_b32 v5, 1, v10
v_lshlrev_b32 v5, 10, v5
v_and_b32 v11, 1, v10
v_lshl_add_u32 v5, v11, 9, v5
''')
    p('s_waitcnt lgkmcnt(0)')
    srd(p, 12, 30, 31, 2 << 20)
    srd(p, 16, 28, 29, 2 << 20)
    srd(p, 8, 38, 39, WS_BYTES)
    srd(p, 96, 36, 37, 256)
    p('''
s_cmp_eq_u32 s49, 0
s_cselect_b32 s4, s32, s34
s_cselect_b32 s5, s33, s35
s_and_b32 s5, s5, 0xffff
s_mov_b32 s6, 0x400000
s_mov_b32 s7, 0x00020000
s_lshl_b32 s40, s50, 8
s_lshl_b32 s41, s20, 5
s_add_u32 s40, s40, s41
s_lshl_b32 s40, s40, 10
s_lshl_b32 s42, s20, 18
s_lshl_b32 s43, s51, 1
s_add_u32 s42, s42, s43
s_lshl_b32 s43, s20, 12
''')
    WS = [0, 32768, 131072, 65536]
    def wdma(u, q):
        sc = u >> 1; kh = u & 1
        return [f's_add_u32 m0, s43, {WS[u % 4] + q*1024}',
                f's_add_u32 s53, s42, {(kh*256 + 8*q)*8192 + sc*128}',
                (lambda pp: pp('buffer_load_dwordx4 v4, s[4:7], s53 offen lds', f'w{u}'))]
    def adma(e, jj):
        return [f's_add_u32 m0, s52, {(e&1)*4096 + jj*1024}',
                f's_add_u32 s54, s40, {8*jj*1024 + e*128}',
                (lambda pp: pp(f'buffer_load_dwordx4 v{2+(jj&1)}, s[12:15], s54 offen lds', f'a{e}'))]
    AR = 128
    def aread(e, k):
        ks = 4 * e + k
        return (lambda pp: pp(f'ds_read_b128 {vr(AR+4*ks,4)}, v{16+k} offset:{(e&1)*4096}', f'ar{e}'))
    for jj in range(4): emit(adma(0, jj))
    for q in range(4): emit(wdma(0, q))
    for jj in range(4): emit(adma(1, jj))
    p('''
s_lshl_b32 s29, s2, 3
s_add_u32 s29, s29, s20
s_lshl_b32 s30, s29, 10
''')
    LNR = 96; LNT = 100
    p(f'buffer_load_dwordx4 {vr(LNR,4)}, v{VL16}, s[16:19], s30 offen')
    if 'pf' in os.environ.get('XP1', '').split('_'):
        p("""
s_cmp_lt_u32 s2, 128
s_cselect_b32 s60, s32, s34
s_cselect_b32 s61, s33, s35
s_mov_b32 s62, 0x400000
s_and_b32 s3, s2, 127
s_lshl_b32 s3, s3, 15
s_lshl_b32 s53, s20, 13
s_add_u32 s3, s3, s53
s_lshl_b32 s53, s2, 13
s_cmp_eq_u32 s20, 4
s_cselect_b32 s60, s12, s60
s_cselect_b32 s61, s13, s61
s_cselect_b32 s62, s14, s62
s_cselect_b32 s3, s53, s3
s_cmp_gt_u32 s20, 4
s_cselect_b32 s3, 0x7f000000, s3
s_and_b32 s61, s61, 0xffff
s_mov_b32 s63, 0x00020000
buffer_load_dword v104, v14, s[60:63], s3 offen
""")
    for q in range(4): emit(wdma(1, q))
    p(f'''
s_lshr_b32 s44, s51, 7
s_lshl_b32 s44, s44, 19
s_lshl_b32 s45, s50, 3
s_add_u32 s45, s45, s20
s_lshl_b32 s45, s45, 13
s_add_u32 s44, s44, s45
s_mov_b32 s45, {KF_OFF:#x}
s_mov_b32 s46, {VF_OFF:#x}
s_cmp_eq_u32 s49, 0
s_cselect_b32 s45, s45, s46
s_add_u32 s41, s44, s45
s_lshr_b32 s31, s29, 5
s_lshl_b32 s31, s31, 15
s_and_b32 s3, s29, 31
s_lshl_b32 s3, s3, 4
s_add_u32 s31, s31, s3
s_lshr_b32 s32, s2, 4
s_lshl_b32 s32, s32, 2
s_lshr_b32 s33, s51, 8
s_add_u32 s33, s33, {CNT_KV}
s_lshl_b32 s33, s33, 2
s_getreg_b32 s3, hwreg(HW_REG_XCC_ID, 0, 4)
s_mul_i32 s53, s3, s3
s_lshl_b32 s53, s53, 15
s_lshl_b32 s3, s3, 6
s_add_u32 s53, s53, s3
s_add_u32 s53, s53, 1
s_add_u32 s101, s22, {CNT_REG}
s_lshl_b32 s101, s101, 2
s_cmp_lg_u32 s20, 0
s_cbranch_scc1 LF_noreg
@COND
v_mov_b32 v8, s53
v_mov_b32 v9, 0
s_mov_b64 exec, 1
buffer_atomic_add v8, v9, s[96:99], s101 offen sc1
s_mov_b64 exec, -1
@ENDCOND
LF_noreg:
''')
    if XF_OFF: p(f's_add_u32 s31, s31, {XF_OFF:#x}')
    p('''
s_and_b32 s3, s23, 3
s_lshl_b32 s21, s22, 2
s_add_u32 s21, s21, s3
s_lshr_b32 s24, s23, 2
s_lshr_b32 s25, s20, 2
s_and_b32 s26, s20, 3
s_sub_u32 s28, 15, s24
s_lshl_b32 s28, s28, 2
s_add_u32 s28, s28, s26
s_lshl_b32 s27, s24, 2
s_add_u32 s27, s27, s26
s_cmp_eq_u32 s25, 0
s_cselect_b32 s27, s28, s27
''')
    p.wait_tag('a0')
    for k in range(4): emit([aread(0, k)])
    p.wait_tag('ar0')
    for jj in range(4): emit(adma(2, jj))
    p.wait_tag('w0')
    p('s_barrier')
    st.stamp()
    p('s_cmp_lg_u32 s49, 0')
    p('s_cbranch_scc1 LF_v')

    WF = 32; NST = 4; ACC = 64; PK = 96
    def trread(u, kk):
        out = []
        for nt in range(2):
            w = WF + 8 * (kk % NST) + 4 * nt
            out.append(f'ds_read_b64_tr_b16 {vr(w,2)}, v{20+2*(u%4)+nt} offset:{kk*2048}')
            out.append(f'ds_read_b64_tr_b16 {vr(w+2,2)}, v{20+2*(u%4)+nt} offset:{kk*2048+512}')
        return out
    def kv_epilogue(sc, nt):
        g = []
        PKB = PK if sc < 3 else 32
        for half in range(2):
            pk = PKB + 8 * nt + 4 * half
            for i in range(4):
                s = ACC + 16 * nt + 8 * half + 2 * i
                g.append(f'v_cvt_pk_bf16_f32 v{pk+i}, v{s}, v{s+1}')
        off = (sc >> 1) * 524288 + (sc & 1) * 4096
        st_ = [[f's_add_u32 s55, s41, {off + nt*2048 + half*1024}',
                (lambda pp, half=half: pp(f'buffer_store_dwordx4 {vr(PKB+8*nt+4*half,4)}, v{VL16}, s[8:11], s55 offen{KVSC if sc >= KVN else SC}', 'kvst'))]
               for half in range(2)]
        return g, st_
    lns = ln_stream(LNR, LNT, LNT + 16)
    lns.append(lambda pp: pp(f'buffer_store_dwordx4 {vr(LNR,4)}, v5, s[8:11], s31 offen{SC}', 'lnst'))
    SLOT = 29184
    GSL = [0, SLOT, 131072, 65536]
    KSL = 0; VSL = 65536; QX = 131072
    GD = 28
    def p2_setup():
        q = Prog(); pp = q
        pp("""
v_and_b32 v10, 63, v0
v_lshrrev_b32 v11, 4, v10
v_bfe_u32 v12, v10, 2, 2
v_and_b32 v13, 3, v11
v_xor_b32 v12, v12, v13
v_lshlrev_b32 v12, 6, v12
v_and_b32 v13, 3, v10
v_lshl_add_u32 v12, v13, 4, v12
v_lshl_add_u32 v12, v11, 13, v12
s_lshl_b32 s29, s26, 17
v_add_u32 v28, s29, v12
v_add_u32 v29, 0x8000, v28
v_add_u32 v30, 0x10000, v28
v_add_u32 v31, 0x18000, v28
s_and_b32 s29, s20, 1
s_mul_i32 s29, s29, 192
s_mov_b32 s30, 43691
s_movk_i32 s34, 2752
s_cmp_eq_u32 s25, 0
s_cselect_b64 s[36:37], -1, 0
""")
        for t in range(3):
            pp(f"""
v_add_u32 v11, s29, v10
v_add_u32 v11, {64*t}, v11
v_mul_lo_u32 v12, v11, s30
v_lshrrev_b32 v12, 18, v12
v_mul_u32_u24 v13, 6, v12
v_sub_u32 v13, v11, v13
v_mul_lo_u32 v12, v12, s34
v_lshl_add_u32 v9, v13, 4, v12
v_cndmask_b32 v{28+t}, v9, v{28+t}, s[36:37]
""")
        pp('v_cndmask_b32 v31, v9, v31, s[36:37]')
        pp("""
v_lshrrev_b32 v11, 5, v10
v_bfe_u32 v12, v10, 2, 2
v_lshl_add_u32 v13, v11, 3, v12
v_lshlrev_b32 v6, 8, v13
v_lshl_add_u32 v6, v12, 6, v6
v_bfe_u32 v7, v10, 4, 1
v_lshl_add_u32 v6, v7, 5, v6
v_and_b32 v9, 3, v10
v_lshl_add_u32 v6, v9, 3, v6
v_mul_u32_u24 v13, 96, v13
v_mul_u32_u24 v7, 6272, v7
v_add_u32 v13, v13, v7
v_lshl_add_u32 v13, v9, 3, v13
v_add_u32 v7, 0x4000, v13
""")
        pp("""
s_mov_b32 s60, s68
s_mov_b32 s61, s69
s_cmp_eq_u32 s20, 2
s_cselect_b32 s60, s64, s60
s_cselect_b32 s61, s65, s61
s_cmp_eq_u32 s20, 3
s_cselect_b32 s60, s66, s60
s_cselect_b32 s61, s67, s61
s_cmp_ge_u32 s20, 4
s_cselect_b32 s60, s56, s60
s_cselect_b32 s61, s57, s61
s_cmp_ge_u32 s20, 6
s_cselect_b32 s60, s58, s60
s_cselect_b32 s61, s59, s61
s_and_b32 s61, s61, 0xffff
s_mov_b32 s63, 0x00020000
s_mov_b32 s62, 0x158000
s_movk_i32 s35, 5504
s_and_b32 s38, s20, 2
s_cmp_eq_u32 s38, 0
s_cselect_b32 s62, 0x400000, s62
s_cselect_b32 s35, 0x4000, s35
s_mul_i32 s35, s35, s2
s_and_b32 s39, s20, 1
s_lshl_b32 s39, s39, 13
s_cmp_eq_u32 s38, 0
s_cselect_b32 s39, s39, 0
s_add_u32 s35, s35, s39
s_cmp_ge_u32 s20, 4
s_cselect_b32 s35, 0x7f000000, s35
v_lshlrev_b32 v12, 3, v1
buffer_load_dword v11, v12, s[60:63], s35 offen
""")
        pp("""
s_bfe_u32 s29, s20, 0x10001
s_cmp_eq_u32 s29, 0
s_cselect_b32 s16, s64, s66
s_cselect_b32 s17, s65, s67
s_mov_b32 s18, 0x158000
s_cmp_eq_u32 s25, 0
s_cselect_b32 s16, s68, s16
s_cselect_b32 s17, s69, s17
s_cselect_b32 s18, 0x400000, s18
s_and_b32 s17, s17, 0xffff
s_mov_b32 s19, 0x00020000
s_lshl_b32 s56, s21, 8
s_mul_i32 s38, s21, 96
s_lshl_b32 s58, s26, 12
s_mul_i32 s39, s29, 6272
s_and_b32 s30, s20, 1
s_mul_i32 s30, s30, 3072
s_add_u32 s39, s39, s30
s_add_u32 s39, s39, 16384
s_cmp_eq_u32 s25, 0
s_cselect_b32 s56, s56, s38
s_mov_b32 s57, 0x2b000
s_cselect_b32 s57, 0x80000, s57
s_cselect_b32 s58, s58, s39
s_movk_i32 s59, 2048
s_cselect_b32 s59, 3072, s59
s_add_u32 s59, s59, s58
s_lshl_b32 s60, s27, 15
""")
        if XF_OFF: pp(f's_add_u32 s60, s60, {XF_OFF:#x}')
        return [i.text for i in q.items]
    GX = 128; GW = 192; GT = [48, 64, 80, 96, 112, 160, 176]
    def gdma(sl):
        base = GSL[sl % 4]
        out = []
        for t in range(4):
            out.append([f's_add_u32 m0, s{58 if t < 3 else 59}, {base + (t*1024 if t < 3 else 0)}',
                        's_nop 0',
                        (lambda pp, t=t, sl=sl: pp(f'buffer_load_dwordx4 v{GD+t}, s[16:19], s56 offen lds', f'g{sl}'))])
        out[3].append('s_add_u32 s56, s56, s57')
        return out
    def xload(sl):
        out = []
        b = GX + 16 * (sl & 1)
        for k in range(4):
            out.append(f'buffer_load_dwordx4 {vr(b+4*k,4)}, v{VL16}, s[8:11], s61 offen offset:{k*1024}{LS}')
        return [f's_add_u32 s61, s60, {sl*4096}'] + out

    alt = p.begin_alt(join=True)
    for variant in ('k', 'v'):
        p.alt_branch(alt)
        if variant == 'v': p.label('LF_v')
        for kk in range(3): emit(trread(0, kk))
        pend = []
        for u in range(8):
            sc = u >> 1; kh = u & 1
            bb = []; fl = {}
            def add(slot, items): fl.setdefault(slot, []).extend(items)
            for kk in range(16):
                ks = kh * 16 + kk
                for nt in range(2):
                    w = WF + 8 * (kk % NST) + 4 * nt
                    acc = vr(ACC + 16 * nt, 16); cc = '0' if ks == 0 else acc
                    A = vr(AR + 4 * ks, 4)
                    if variant == 'k': bb.append(f'{MF} {acc}, {vr(w,4)}, {A}, {cc}')
                    else:              bb.append(f'{MF} {acc}, {A}, {vr(w,4)}, {cc}')
            for kk in range(3, 16):
                t = trread(u, kk)
                s0 = min(2 * (kk - 3), 24)
                add(s0, t[:2]); add(s0 + 1, t[2:])
            if u < 2:
                for q4 in range(4):
                    e = 4 * kh + q4; base = 8 * q4
                    if e + 1 < 8:
                        add(base + 1, [lambda pp, e=e: pp.wait_tag(f'a{e+1}')])
                        for k_ in range(4): add(base + 1 + k_ // 2, [aread(e + 1, k_)])
                        if e + 3 < 8:
                            add(base + 5, [lambda pp, e=e: pp.wait_tag(f'ar{e+1}')])
                            for jj in range(4): add(base + 5 + jj // 2, adma(e + 3, jj))
            loads = {0: [2], 2: [3, 4], 3: [5], 4: [6], 5: [7]}.get(u, [])
            grps = [wdma(lu, q) for lu in loads for q in range(4)]
            if grps: spread(add, grps, 2 if u else 10, 25)
            X1 = os.environ.get('XP1', '')
            if u == 1: spread(add, atomic_groups(lns, 3), 1, 25)
            if u == 3: spread(add, atomic_groups(p2_setup(), 4), 10, 26)
            if kh == 0 and sc > 0:
                for nt in range(2):
                    g, st_ = kv_epilogue(sc - 1, nt)
                    fl.setdefault(('pre', nt), []).extend(g)
                    pend.extend(st_)
            if pend:
                a_, b_ = pend.pop(0), pend.pop(0)
                if 'nokvst' not in os.environ.get('XP1', ''): add(12, a_); add(24, b_)
            extra = []; post = []
            if u == (3 if 'latepub' in X1 else 2): extra = [lambda pp: pp.wait_tag('lnst')]; post = publish([32])
            if u == 5 and 'nopoll' not in X1: add(18, ['s_sub_u32 s29, 15, s24', 's_lshl_b32 s29, s29, 2', 's_lshl_b32 s30, s24, 2'] + poll_issue([29, 30]))
            if u == 5 and 'nopoll' not in X1: post = poll_check([(29, 16), (30, 16)])
            if u == 6 and 'nog01' not in X1:
                spread(add, gdma(0) + gdma(1), 1, 25)
            if u == 7 and 'nog01' in X1:
                spread(add, gdma(0) + gdma(1), 1, 25)
            if u == 7:
                xl = xload(0)
                spread(add, [xl[:2], [xl[2]], [xl[3]], [xl[4]]] + gdma(2), 1, 28)
            if u < 7:
                add(27, [lambda pp, u=u: pp.wait_tag(f'w{u+1}'), 's_waitcnt lgkmcnt(0)'] + extra + ['s_barrier'] + post)
                for kk in range(3):
                    t = trread(u + 1, kk)
                    add(min(27 + 2 * kk, 31), t[:2]); add(min(28 + 2 * kk, 31), t[2:])
            interleave(p, bb, fl)
            if os.environ.get('P1ST'): st.i = 2 + u; st.stamp()
        for nt in range(2):
            g, st_ = kv_epilogue(3, nt)
            emit(g); pend.extend(st_)
        if variant == 'k': p('s_branch LF_p2')
        p.end_branch()
    p.label('LF_p2')
    st.stamp()
    VK = 2; VV = 3; VZ = 4; VLS = 5; VM = 6; VTS = 7; VLSAVE = 8
    T0 = 9
    Q = 16; O = 48; S = [112, 128]; PP = [144, 152]; MN = 160; FR = 176; E = 208; TT = 216
    THR = f2u(float(2 ** 20)); NEG = f2u(-1e30); FLOOR1 = f2u(-1e20)
    p(f"""
s_lshl_b32 s44, s21, 19
s_lshl_b32 s46, s20, 11
s_add_u32 s44, s44, s46
s_add_u32 s45, s44, {VF_OFF:#x}
s_add_u32 s44, s44, {KF_OFF:#x}
s_lshl_b32 s47, s24, 1
s_add_u32 s47, s47, 2
""")
    AQ = [T0, T0 + 1, T0 + 2, T0 + 3]; AF_ = T0 + 4
    def set_addr(sl):
        base = GSL[sl % 4]
        out = [f'v_add_u32 v{AQ[0]}, {base}, v6']
        for nt in range(1, 4): out.append(f'v_xor_b32 v{AQ[nt]}, {nt<<6}, v{AQ[0]}')
        out.append(f'v_add_u32 v{AF_}, {base}, v7')
        return out
    assert all((s & 0xff) == 0 for s in GSL)
    def gtr(g):
        kk = g & 3; out = []
        for tl in range(7):
            w = GW + 28 * (g & 1) + 4 * tl
            if tl < 4:
                out.append(f'ds_read_b64_tr_b16 {vr(w,2)}, v{AQ[tl]} offset:{kk*4096}')
                out.append(f'ds_read_b64_tr_b16 {vr(w+2,2)}, v{AQ[tl]} offset:{kk*4096+1024}')
            else:
                o = kk * 1536 + (tl - 4) * 32
                out.append(f'ds_read_b64_tr_b16 {vr(w,2)}, v{AF_} offset:{o}')
                out.append(f'ds_read_b64_tr_b16 {vr(w+2,2)}, v{AF_} offset:{o+384}')
        return out
    def kvcopy(sbase, chunk_off, ldsbase, tag, tmp=43):
        return [f's_add_u32 m0, s46, {ldsbase}',
                f's_add_u32 s{tmp}, s{sbase}, {chunk_off}',
                (lambda pp: pp(f'buffer_load_dwordx4 v{VL16}, s[8:11], s{tmp} offen{LS} lds', tag)),
                (lambda pp: pp(f'buffer_load_dwordx4 v{VL16}, s[8:11], s{tmp} offen offset:1024{LS} lds', tag))]
    PUB_SL = int(os.environ.get('PUB_SL', '4'))
    PFN = 8; PFS = int(os.environ.get('PFS', '0')); PFO = int(os.environ.get('PFO', '0'))
    p.wait_tag('g0')
    p('s_waitcnt lgkmcnt(0)')
    p('s_barrier')
    emit(set_addr(0))
    emit(gtr(0))
    for sl in range(8):
        bb = []; fl = {}
        def add(slot, items): fl.setdefault(slot, []).extend(items)
        for kk in range(4):
            g = sl * 4 + kk
            xb = GX + 16 * (sl & 1) + 4 * kk
            for tl in range(7):
                w = GW + 28 * (g & 1) + 4 * tl
                acc = vr(GT[tl], 16); cc = '0' if g == 0 else acc
                bb.append(f'{MF} {acc}, {vr(w,4)}, {vr(xb,4)}, {cc}')
            ng = g + 1
            if ng < 32:
                if kk == 3: add(7 * kk - 1, set_addr(sl + 1))
                rd = gtr(ng)
                for i in range(7): add(7 * kk + i, rd[2 * i:2 * i + 2])
        if sl + 1 < 8:
            xl = xload(sl + 1)
            add(0, xl[:1])
            for k in range(4): add(1 + k, [xl[1 + k]])
            pre = []; post = []
            if sl < 4: add(10, pend[sl])
            if sl == PUB_SL:
                pre = [lambda pp: pp.wait_tag('kvst')]; post = publish_kv()
            if sl == PUB_SL - 1:
                add(6, poll_issue([101, 101]))
            if sl == 6:
                add(8, [f's_lshr_b32 s29, s21, 1', f's_add_u32 s29, s29, {CNT_KV}', 's_lshl_b32 s29, s29, 2'] + poll_issue([29]))
                post = poll_check([(29, 16)], inv_flag=(94 if os.environ.get('KVINV', 'cond') == 'cond' else -1))

            add(17, [lambda pp, sl=sl: pp.wait_tag(f'g{sl+1}')] + pre + ['s_barrier'] + post)
            if sl + 3 < 8:
                for t, grp in enumerate(gdma(sl + 3)): add(18 + 2 * t if t < 1 else 21 + 2 * (t - 1), grp)
        interleave(p, bb, fl)
    st.stamp()
    p('s_waitcnt lgkmcnt(0)')
    emit(w0_drain())
    p('s_barrier')
    emit(kvcopy(44, 0, KSL, 'k0'))
    emit(kvcopy(44, 16384, KSL + 32768, 'k1'))
    emit(kvcopy(45, 0, VSL, 'v0'))
    p("""
s_load_dwordx2 s[56:57], s[0:1], 40
s_load_dwordx2 s[58:59], s[0:1], 72
s_waitcnt lgkmcnt(0)
s_cmp_ge_u32 s20, 2
s_cselect_b32 s60, s58, s56
s_cselect_b32 s61, s59, s57
s_mov_b32 s62, 0x400000
s_cselect_b32 s62, 0x158000, s62
s_movk_i32 s35, 0x4000
s_cselect_b32 s35, 5504, s35
s_and_b32 s61, s61, 0xffff
s_mov_b32 s63, 0x00020000
s_mul_i32 s35, s35, s2
s_cmp_eq_u32 s20, 1
s_cselect_b32 s39, 0x2000, 0
s_add_u32 s35, s35, s39
s_cmp_ge_u32 s20, 3
s_cselect_b32 s35, 0x7f000000, s35
v_lshlrev_b32 v12, 3, v1
buffer_load_dword v255, v12, s[60:63], s35 offen
s_lshr_b32 s17, s23, 2
s_and_b32 s18, s23, 3
s_cmp_ge_u32 s17, 6
s_cselect_b32 s12, s58, s56
s_cselect_b32 s13, s59, s57
s_mov_b32 s14, 0x400000
s_cselect_b32 s14, 0x158000, s14
s_cselect_b32 s19, 6, 0
s_and_b32 s13, s13, 0xffff
s_mov_b32 s15, 0x00020000
s_sub_u32 s19, s17, s19
s_mul_i32 s16, s19, 43
s_cmp_eq_u32 s17, 5
s_cselect_b32 s19, 1, 0
s_sub_u32 s16, s16, s19
s_lshl_b32 s16, s16, 4
s_mul_i32 s18, s18, 84
s_add_u32 s16, s16, s18
s_mul_i32 s18, s20, PFROWS
s_add_u32 s16, s16, s18
s_lshl_b32 s16, s16, 10
v_lshlrev_b32 v249, 3, v1
""".replace('PFROWS', str(PFN * PFS)))
    CQ = f2u(math.log2(math.e) / math.sqrt(128.0))
    p(f's_mov_b32 s48, {CQ:#x}')
    p(f's_mov_b32 s49, {CQ:#x}')
    for tl in range(4):
        for i in range(8): p(f'v_pk_mul_f32 {vr(GT[tl]+2*i,2)}, {vr(GT[tl]+2*i,2)}, s[48:49]')
        for i in range(8): p(f'v_cvt_pk_bf16_f32 v{Q+8*tl+i}, v{GT[tl]+2*i}, v{GT[tl]+2*i+1}')
    p(f'''
s_lshl_b32 s49, s26, 13
s_add_u32 s49, s49, {QX}
v_add_u32 v9, s49, v{VL16}
s_cmp_lg_u32 s25, 0
s_cbranch_scc1 LF_noqx
@COND
''')
    for ks in range(8): p(f'ds_write_b128 v9, {vr(Q+4*ks,4)} offset:{ks*1024}')
    p('s_waitcnt lgkmcnt(0)')
    p('@ENDCOND')
    p.label('LF_noqx')
    KG = -2.0 * math.sqrt(2.0 / math.pi) * math.log2(math.e)
    p(f's_mov_b32 s50, {f2u(KG*0.044715):#x}')
    p(f's_mov_b32 s51, {f2u(KG*0.044715):#x}')
    p(f'v_mov_b32 v{GW+16}, {f2u(KG):#x}')
    p(f'v_mov_b32 v{GW+17}, {f2u(KG):#x}')
    p(f'''
s_mul_i32 s52, s27, {AF_MT}
s_mul_i32 s53, s21, 3
s_add_u32 s54, s53, 256
s_lshl_b32 s54, s54, 10
s_add_u32 s52, s52, s54
s_add_u32 s52, s52, {AF_OFF:#x}
''')
    for tt in range(3):
        a = GT[4 + tt]; t = GW
        p(f's_add_u32 s54, s53, {tt}')
        p('s_cmp_ge_u32 s54, 86')
        p(f's_cbranch_scc1 LF_ffn_skip{tt}')
        p('@COND')
        P2 = lambda r: vr(r, 2)
        for i in range(0, 8, 2): p(f'v_pk_mul_f32 {P2(t+i)}, {P2(a+i)}, {P2(a+i)}')
        for i in range(0, 8, 2): p(f'v_pk_fma_f32 {P2(t+i)}, {P2(t+i)}, s[50:51], {P2(t+16)}')
        for i in range(0, 8, 2): p(f'v_pk_mul_f32 {P2(t+i)}, {P2(t+i)}, {P2(a+i)}')
        for i in range(8): p(f'v_exp_f32 v{t+i}, v{t+i}')
        for i in range(0, 8, 2): p(f'v_pk_mul_f32 {P2(t+8+i)}, {P2(a+i)}, {P2(a+8+i)}')
        for i in range(0, 8, 2): p(f'v_pk_add_f32 {P2(t+i)}, {P2(t+i)}, 1.0 op_sel_hi:[1,0]')
        for i in range(8): p(f'v_rcp_f32 v{t+i}, v{t+i}')
        for i in range(0, 8, 2): p(f'v_pk_mul_f32 {P2(t+i)}, {P2(t+i)}, {P2(t+8+i)}')
        for i in range(4): p(f'v_cvt_pk_bf16_f32 v{t+20+4*tt+i}, v{t+2*i}, v{t+2*i+1}')
        p(f'buffer_store_dwordx4 {vr(t+20+4*tt,4)}, v{VL16}, s[8:11], s52 offen offset:{tt*1024}{SC}')
        p('@ENDCOND')
        p.label(f'LF_ffn_skip{tt}')
    st.stamp()
    for i in range(0, 64, 2): p(f'v_pk_mov_b32 {vr(O+i,2)}, 0, 0')
    for i in range(0, 16, 2): p(f'v_pk_mov_b32 {vr(MN+i,2)}, 0, 0')
    p(f"""
v_mov_b32 v{VLS}, 0
v_mov_b32 v{VM}, 0
v_mov_b32 v{VLSAVE}, 0
s_mov_b32 s56, {THR:#x}
s_mov_b32 s57, 0xbf800000
s_mov_b32 s58, {FLOOR1:#x}
s_mov_b32 s59, 1
s_mov_b32 s60, 1.0
s_mov_b32 s61, s27
s_mov_b32 s62, 0
s_lshl_b32 s67, s25, 14
v_add_u32 v{VK}, {KSL}, v{VL16}
v_add_u32 v{VV}, {VSL}, v{VL16}
v_and_b32 v10, 63, v0
v_and_b32 v12, 31, v10
v_lshrrev_b32 v11, 5, v10
v_lshlrev_b32 v13, 2, v11
v_sub_u32 v{VZ}, v12, v13
s_mov_b32 s55, 0
s_mov_b32 s63, 16384
s_add_u32 s64, s46, 32768
s_lshl_b32 s49, s47, 1
s_add_u32 s49, s49, 2
s_cmp_eq_u32 s25, 0
s_cselect_b32 s49, 0, s49
s_cselect_b32 s66, 32, s27
s_lshl_b32 s68, s47, 1
s_add_u32 s68, s68, 4
s_min_u32 s68, s68, 32
s_cmp_eq_u32 s20, 0
s_cselect_b32 s66, s68, s66
""")
    p('s_waitcnt vmcnt(0) lgkmcnt(0)')
    p('s_barrier')
    st.stamp()

    def frag_read(f):
        hf = f >> 4; i = f & 15; dst = vr(FR + 4 * (f % 8), 4)
        if i < 8:  return f'ds_read_b128 {dst}, v{VK} offset:{hf*8192 + i*1024}'
        else:      return f'ds_read_b128 {dst}, v{VV} offset:{hf*8192 + (i-8)*1024}'
    def mfma(f):
        hf = f >> 4; i = f & 15; fr = vr(FR + 4 * (f % 8), 4)
        if i < 8:
            s = vr(S[hf], 16); c = vr(MN, 16) if i == 0 else s
            return f'{MF} {s}, {fr}, {vr(Q+4*i,4)}, {c}'
        dt = (i - 8) >> 1; tp = (i - 8) & 1
        o = vr(O + 16 * dt, 16)
        return f'{MF} {o}, {fr}, {vr(PP[hf]+4*tp,4)}, {o}'
    def bstage(hf, nslots):
        c = S[1 - hf]; pp_ = PP[1 - hf]
        groups = [[] for _ in range(nslots)]
        span = nslots - 2
        pos_e = [(kk * span) // 16 for kk in range(16)]
        late = [[] for _ in range(nslots)]
        for k in range(8):
            ea = E + (2 * k) % 8; eb = E + (2 * k + 1) % 8
            groups[pos_e[2 * k]].append(f'v_exp_f32 v{ea}, v{c+2*k}')
            groups[pos_e[2 * k + 1]].append(f'v_exp_f32 v{eb}, v{c+2*k+1}')
            sa = pos_e[2 * k] + 1; sb = pos_e[2 * k + 1] + 1
            if k == 0:
                late[sb].append(f'v_add_f32 v{VTS}, v{ea}, v{eb}')
            else:
                late[sa].append(f'v_add_f32 v{VTS}, v{VTS}, v{ea}')
                late[sb].append(f'v_add_f32 v{VTS}, v{VTS}, v{eb}')
            late[sb].append(f'v_cvt_pk_bf16_f32 v{pp_+k}, v{ea}, v{eb}')
        return [late[i] + groups[i] for i in range(nslots)]
    outl = []
    DIST = int(os.environ.get('DIST', '4'))

    def step(kind):
        doA = kind != 'drain'
        slots = []
        for f in range(32):
            hf = f >> 4; i = f & 15
            isA = i < 8
            if isA and not doA: continue
            if not isA and kind == 'first': continue
            slots.append(f)
        pos = {f: n for n, f in enumerate(slots)}
        bb = [mfma(f) for f in slots]
        fl = {}
        def add(n, items): fl.setdefault(n, []).extend(items)
        nS = len(slots)
        last_read_slot = nS - DIST - 2
        for n in range(DIST, nS):
            add(min(n - DIST, last_read_slot) if kind != 'drain' else n - DIST, [frag_read(slots[n])])
        for hf in range(2):
            if kind == 'first' and hf == 0: continue
            if kind == 'drain' and hf == 1: continue
            hs = [n for n, f in enumerate(slots) if (f >> 4) == hf]
            groups = bstage(hf, len(hs))
            for gi, g in enumerate(groups): add(hs[gi], g)
            nm = f'{kind}{hf}'
            add(hs[-2], [f'v_cmp_nge_f32 vcc, s{56+hf}, v{VTS}'])
            add(hs[-1], [f's_cbranch_vccnz LF_rare{nm}', f'LF_ret{nm}:', f'v_add_f32 v{VLS}, v{VLS}, v{VTS}'])
            outl.append(('rare', nm, hf))
        for hf in range(2):
            if kind == 'drain' and hf == 1: continue
            nm = f'{kind}{hf}'
            first_slot = [n for n, f in enumerate(slots) if (f >> 4) == hf][0]
            fl.setdefault(('pre', first_slot), []).extend(
                ['s_cmp_ge_u32 s62, s66', f's_cbranch_scc1 LF_evt{nm}', f'LF_eret{nm}:'])
            add(first_slot, ['s_add_u32 s62, s62, 1'])
            outl.append(('evt', nm, hf))
        return bb, fl, add, pos, slots

    def prep_next():
        return [['s_add_u32 s55, s55, 1', 's_and_b32 s50, s55, 1'],
                ['s_lshl_b32 s50, s50, 15', 's_cmp_ge_u32 s55, s47'],
                ['s_cselect_b32 s69, s67, 0', 's_add_u32 s50, s50, s69', f's_add_u32 s50, s50, {KSL}']]
    def barrier_blk():
        return ['s_waitcnt vmcnt(0) lgkmcnt(0)', 's_barrier',
                f'v_add_u32 v{VV}, {(VSL - KSL) & 0xffffffff:#x}, v{VK}',
                f'v_add_u32 v{VK}, s50, v{VL16}']
    def dma_issue(name):
        L = f'buffer_load_dwordx4 v{VL16}, s[8:11], s43 offen{LS} lds'
        L2 = f'buffer_load_dwordx4 v{VL16}, s[8:11], s43 offen offset:1024{LS} lds'
        g = []
        g.append([f's_add_u32 m0, s64, {VSL}', 's_add_u32 s43, s45, s63', L])
        g.append([L2, 's_cmp_lt_u32 s55, s47'])
        g.append([f's_cbranch_scc1 LF_nov2{name}', '@COND', f's_add_u32 m0, s64, {VSL + 16384}', 's_add_u32 s43, s43, 16384', L, L2,
                  's_add_u32 s63, s63, 16384', '@ENDCOND', f'LF_nov2{name}:'])
        g.append(['s_add_u32 s63, s63, 16384', 's_xor_b32 s64, s64, 32768'])
        g.append([f's_add_u32 m0, s64, {KSL}', 's_add_u32 s43, s44, s63', L])
        g.append([L2, 's_add_u32 s65, s55, 1', 's_cmp_lt_u32 s65, s47'])
        g.append([f's_cbranch_scc1 LF_nok{name}', '@COND', f's_add_u32 m0, s64, {KSL + 16384}', 's_add_u32 s43, s43, 16384', L, L2,
                  '@ENDCOND', f'LF_nok{name}:'])
        return g

    PRIO = os.environ.get('PRIO', '1')
    if PRIO:
        p(f's_cmp_eq_u32 s25, {0 if PRIO == "1" else 1}')
        p('s_cbranch_scc1 LF_noprio')
        p('s_setprio 1')
        p.label('LF_noprio')
    bb, fl, add, pos, slots = step('first')
    for n in range(DIST): p(frag_read(slots[n]))
    nS = len(slots)
    for gi, g in enumerate(prep_next()): add(4 + gi, g)
    add(nS - DIST, barrier_blk())
    for n in range(DIST): add(nS - DIST + n, [frag_read(n)])
    interleave(p, bb, fl)
    p.begin_loop()
    p.label('LF_loop')
    bb, fl, add, pos, slots = step('loop')
    XP = os.environ.get('XP', '')
    if 'nodma' not in XP:
        DS_ = int(os.environ.get('DMAS', '3')); D0_ = int(os.environ.get('DMA0', '1'))
        for gi, g in enumerate(dma_issue('loop')): add(D0_ + DS_ * gi, g)
    if PFS:
        blk = [f's_cmp_lt_u32 s55, {17 - PFS - PFO}', 's_cbranch_scc1 LF_nopf', f's_cmp_ge_u32 s55, {17 - PFO}', 's_cbranch_scc1 LF_nopf', '@COND',
               f'buffer_load_dword v248, v249, s[12:15], s16 offen',
               f's_add_u32 s16, s16, 8192', '@ENDCOND', 'LF_nopf:']
        add(2, blk)
    for gi, g in enumerate(prep_next()): add(27 - DIST + gi, g)
    nb_ = barrier_blk()
    if 'nobar' in XP: nb_ = [x for x in nb_ if x != 's_barrier']
    add(32 - DIST, nb_)
    for n in range(DIST): add(min(32 - DIST + n, 30), [frag_read(n)])
    add(30, ['s_cmp_lt_u32 s55, 17'])
    if XP:
        for kk_ in fl: fl[kk_] = [x for x in fl[kk_] if not (isinstance(x, str) and x.startswith('s_cbranch_vccnz'))]
    if 'noexp' in XP:
        for kk_ in fl: fl[kk_] = [x.replace('v_exp_f32', 'v_mov_b32') if isinstance(x, str) else x for x in fl[kk_]]
    if 'novalu' in XP:
        for kk_ in fl: fl[kk_] = [x for x in fl[kk_] if not (isinstance(x, str) and x.startswith(('v_exp', 'v_add_f32 v7', 'v_cvt')))]
    if 'nolds' in XP:
        for kk_ in fl: fl[kk_] = [x for x in fl[kk_] if not (isinstance(x, str) and x.startswith('ds_read'))]
    interleave(p, bb, fl)
    p('s_cbranch_scc1 LF_loop')
    p.end_loop()
    st.stamp()
    p('s_waitcnt lgkmcnt(0)')
    bb, fl, add, pos, slots = step('drain')
    for n in range(DIST): p(frag_read(slots[n]))
    interleave(p, bb, fl)
    st.stamp()
    p(f'''
v_mov_b32 v9, v{VLS}
v_permlane32_swap_b32 v{VLS}, v9
v_add_f32 v{VLS}, v{VLS}, v9
s_waitcnt lgkmcnt(0)
s_barrier
''')
    p(f'''
s_mul_i32 s49, s20, 8704
s_xor_b32 s50, s20, 4
s_mul_i32 s50, s50, 8704
v_add_u32 v9, s49, v{VL16}
v_add_u32 v10, s50, v{VL16}
v_lshrrev_b32 v11, 1, v{VL16}
v_add_u32 v12, s49, v11
v_add_u32 v13, s50, v11
v_mov_b32 v14, v{VLS}
v_mov_b32 v15, v{VM}
s_cmp_eq_u32 s25, 0
s_cbranch_scc1 LF_mg0
''')
    X = TT
    alt = p.begin_alt(join=True)
    for g in (1, 0):
        p.alt_branch(alt)
        if g == 0: p.label('LF_mg0')
        keep = O + 32 * g; send = O + 32 * (1 - g)
        for k in range(8): p(f'ds_write_b128 v9, {vr(send+4*k,4)} offset:{k*1024}')
        p('ds_write_b64 v12, v[14:15] offset:8192')
        p('s_waitcnt lgkmcnt(0)')
        p('s_barrier')
        p(f'ds_read_b64 v[{E}:{E+1}], v13 offset:8192')
        for k in range(8): p(f'ds_read_b128 {vr(X+4*k,4)}, v10 offset:{k*1024}')
        p(f'''
v_max_f32 v{E+2}, v{VM}, v{E+1}
v_sub_f32 v{E+4}, v{VM}, v{E+2}
v_sub_f32 v{E+6}, v{E+1}, v{E+2}
v_exp_f32 v{E+4}, v{E+4}
v_exp_f32 v{E+6}, v{E+6}
v_mul_f32 v{E+3}, v{E+4}, v{VLS}
v_fmac_f32 v{E+3}, v{E+6}, v{E}
v_rcp_f32 v{E+3}, v{E+3}
v_mul_f32 v{E+4}, v{E+4}, v{E+3}
v_mul_f32 v{E+6}, v{E+6}, v{E+3}
''')
        for i in range(0, 32, 2):
            p(f'v_pk_mul_f32 {vr(keep+i,2)}, {vr(keep+i,2)}, {vr(E+4,2)} op_sel_hi:[1,0]')
            p(f'v_pk_fma_f32 {vr(keep+i,2)}, {vr(X+i,2)}, {vr(E+6,2)}, {vr(keep+i,2)} op_sel_hi:[1,0,1]')
        for i in range(16): p(f'v_cvt_pk_bf16_f32 v{S[0]+i}, v{keep+2*i}, v{keep+2*i+1}')
        p(f'''
s_mul_i32 s52, s28, {AF_MT}
s_lshl_b32 s54, s21, 13
s_add_u32 s52, s52, s54
s_add_u32 s52, s52, {AF_OFF + g*4096:#x}
''')
        for k in range(4): p(f'buffer_store_dwordx4 {vr(S[0]+4*k,4)}, v{VL16}, s[8:11], s52 offen offset:{k*1024}{SC}')
        if g == 1: p('s_branch LF_p4')
        p.end_branch()
    p.label('LF_p4')
    if PRIO: p('s_setprio 0')
    st.stamp()
    NK = 43; D = int(os.environ.get("K3D", "6"))
    NL = 9; NR = int(os.environ.get("K3R", "12"))
    VA1 = 2; VW = 3; VT = [4, 5]
    ACT = 16; WF4 = 64; ACC4 = 80; WR = 144; XR = 240
    assert D <= 6 and WR + 8 * NR <= XR
    AF_END = AF_OFF + 64 * AF_MT
    p(f"""
s_load_dwordx2 s[28:29], s[0:1], 40
s_load_dwordx4 s[32:35], s[0:1], 72
s_load_dwordx2 s[30:31], s[0:1], 0
s_load_dwordx2 s[36:37], s[0:1], 96
v_and_b32 v10, 63, v0
v_add_u32 v{VA1}, {AF_MT}, v{VL16}
v_lshrrev_b32 v11, 3, v10
v_and_b32 v12, 7, v10
v_bfe_u32 v13, v10, 4, 1
v_lshlrev_b32 v13, 2, v13
v_xor_b32 v12, v12, v13
v_lshlrev_b32 v12, 4, v12
v_lshl_add_u32 v{VW}, v11, 10, v12
v_lshrrev_b32 v11, 5, v10
v_bfe_u32 v12, v10, 2, 2
v_lshl_add_u32 v13, v11, 2, v12
v_lshlrev_b32 v13, 7, v13
v_lshrrev_b32 v12, 1, v12
v_lshl_add_u32 v13, v12, 6, v13
v_bfe_u32 v12, v10, 4, 1
v_lshl_add_u32 v13, v12, 5, v13
v_and_b32 v12, 3, v10
v_lshl_add_u32 v13, v12, 3, v13
s_mul_i32 s25, s20, {NL*2048}
v_add_u32 v{VT[0]}, s25, v13
v_xor_b32 v{VT[1]}, 64, v{VT[0]}
s_mul_i32 s26, s20, 43
s_cmp_ge_u32 s20, 4
s_cselect_b32 s27, 1, 0
s_sub_u32 s26, s26, s27
s_cmp_ge_u32 s20, 5
s_cselect_b32 s27, 1, 0
s_sub_u32 s26, s26, s27
s_and_b32 s44, s23, 7
s_bfe_u32 s45, s23, 0x10003
s_cmp_ge_u32 s24, 4
s_cselect_b32 s46, 8, 0
s_add_u32 s46, s46, s22
s_lshl_b32 s47, s46, 1
s_add_u32 s47, s47, s45
s_sub_u32 s48, 15, s24
s_add_u32 s48, s48, {CNT_CTX}
s_lshl_b32 s48, s48, 2
s_add_u32 s49, s24, {CNT_CTX}
s_lshl_b32 s49, s49, 2
s_add_u32 s50, s46, {CNT_CTX}
s_lshl_b32 s50, s50, 2
""")
    st.stamp()
    p('s_waitcnt vmcnt(0) lgkmcnt(0)')
    st.stamp()
    p('s_barrier')
    st.stamp()
    emit(publish([48]))
    p('s_cmp_lg_u32 s24, 7')
    p('s_cbranch_scc1 LF_nopubS2')
    emit(publish([49]))
    p.label('LF_nopubS2')
    srd(p, 12, 36, 37, AF_END)
    srd(p, 16, 30, 31, 2 << 20)
    srd(p, 36, 34, 35, 2 << 20)
    p(f"""
s_cmp_ge_u32 s20, 6
s_cselect_b32 s4, s32, s28
s_cselect_b32 s5, s33, s29
s_mov_b32 s6, 0x400000
s_cselect_b32 s6, 0x158000, s6
s_and_b32 s5, s5, 0xffff
s_mov_b32 s7, 0x00020000
s_mul_i32 s40, s47, {2*AF_MT}
s_lshl_b32 s43, s26, 10
s_add_u32 s40, s40, s43
s_add_u32 s40, s40, {AF_OFF:#x}
s_cmp_ge_u32 s20, 6
s_cselect_b32 s43, 256, 0
s_sub_u32 s43, s26, s43
s_lshl_b32 s42, s43, 14
s_lshl_b32 s43, s44, 7
s_add_u32 s42, s42, s43
s_sub_u32 s51, s20, 4
s_cmp_lt_u32 s51, 2
s_cselect_b32 s41, 0x7fff0000, s40
s_cselect_b32 s52, 0x4000, 0
s_add_u32 s52, s52, s42
""")
    def wloads(ks):
        sl = ks % NL
        if ks == 0:
            a0 = ['s_mov_b32 s54, s52', 's_add_u32 s53, s52, 0x2000']
        else:
            a0 = [f's_add_u32 s54, s42, {ks*16384}', f's_add_u32 s53, s42, {ks*16384+8192}']
        return [f's_add_u32 m0, s25, {sl*2048}'] + a0 + [
                (lambda pp: pp(f'buffer_load_dwordx4 v{VW}, s[4:7], s54 offen lds', f'x{ks}')),
                f's_add_u32 m0, s25, {sl*2048+1024}', 's_nop 0',
                (lambda pp: pp(f'buffer_load_dwordx4 v{VW}, s[4:7], s53 offen lds', f'x{ks}'))]
    def aloads(ks):
        a = ACT + 8 * (ks % D)
        pre = ['s_mov_b32 s55, s41'] if ks == 0 else [f's_add_u32 s55, s40, {ks*1024}']
        return pre + [f'buffer_load_dwordx4 {vr(a,4)}, v{VL16}, s[12:15], s55 offen{LS}',
                      f'buffer_load_dwordx4 {vr(a+4,4)}, v{VA1}, s[12:15], s55 offen{LS}']
    def wreg(ks, nt):
        return (WR + 8 * ks + 4 * nt) if ks < NR else (WF4 + 8 * (ks & 1) + 4 * nt)
    def trr(ks):
        sl = ks % NL; out = [lambda pp: pp.wait_tag(f'x{ks}')]
        for nt in range(2):
            w = wreg(ks, nt)
            out.append((lambda pp, w=w, nt=nt: pp(f'ds_read_b64_tr_b16 {vr(w,2)}, v{VT[nt]} offset:{sl*2048}', f'r{ks}')))
            out.append((lambda pp, w=w, nt=nt: pp(f'ds_read_b64_tr_b16 {vr(w+2,2)}, v{VT[nt]} offset:{sl*2048+1024}', f'r{ks}')))
        return out
    for ks in range(NL): emit(wloads(ks))
    p(f"""
s_lshr_b32 s56, s20, 2
s_bfe_u32 s57, s20, 0x10001
s_and_b32 s58, s20, 1
s_lshl_b32 s59, s47, 6
s_lshl_b32 s60, s57, 5
s_add_u32 s59, s59, s60
s_lshl_b32 s59, s59, 10
s_lshl_b32 s60, s44, 6
s_lshl_b32 s61, s56, 5
s_add_u32 s60, s60, s61
s_lshl_b32 s61, s58, 4
s_add_u32 s60, s60, s61
s_lshl_b32 s60, s60, 1
s_add_u32 s59, s59, s60
v_and_b32 v11, 31, v10
v_lshrrev_b32 v12, 5, v10
v_lshlrev_b32 v11, 10, v11
v_lshl_add_u32 v9, v12, 3, v11
buffer_load_dwordx2 v[{XR}:{XR+1}], v9, s[16:19], s59 offen
buffer_load_dwordx2 v[{XR+2}:{XR+3}], v9, s[16:19], s59 offen offset:16
""")
    for ks in range(NR):
        emit(trr(ks))
        if ks >= 1:
            p.wait_tag(f'r{ks-1}')
            emit(wloads(ks - 1 + NL))
    p.wait_tag(f'r{NR-1}')
    emit(wloads(NR - 1 + NL))
    st.stamp()
    emit(poll_noinv([(50, 32)]))
    st.stamp()
    p('s_barrier')
    st.stamp()
    for ks in range(D): emit(aloads(ks))
    for ks in range(NK):
        a = ACT + 8 * (ks % D)
        if NR <= ks + 1 < NK: emit(trr(ks + 1))
        for nt in range(2):
            for mt in range(2):
                w = wreg(ks, nt)
                acc = vr(ACC4 + 16 * (2 * nt + mt), 16); cc = '0' if ks == 0 else acc
                p(f'{MF} {acc}, {vr(w,4)}, {vr(a+4*mt,4)}, {cc}')
        if ks + D < NK: emit(aloads(ks + D))
        if ks >= NR and ks + NL < NK:
            p.wait_tag(f'r{ks}')
            emit(wloads(ks + NL))
    p('s_waitcnt lgkmcnt(0)')
    p('s_barrier')
    p('s_lshl_b32 s25, s20, 14')
    p(f'v_add_u32 v6, s25, v{VL16}')
    for b in range(16): p(f'ds_write_b128 v6, {vr(ACC4+4*b,4)} offset:{b*1024}')
    p(f"""
s_lshl_b32 s56, s20, 11
v_add_u32 v7, s56, v{VL16}
v_add_u32 v8, 0x10000, v7
s_waitcnt lgkmcnt(0)
s_barrier
""")
    for src in range(8):
        base = 7 if src < 4 else 8
        for b in range(2):
            p(f'ds_read_b128 {vr(16+8*src+4*b,4)}, v{base} offset:{(src%4)*16384 + b*1024}')
    for i in range(8):
        p(f'v_add_f32 v{16+i}, v{16+i}, v{24+i}')
        p(f'v_add_f32 v{32+i}, v{32+i}, v{40+i}')
        p(f'v_add_f32 v{48+i}, v{48+i}, v{56+i}')
        p(f'v_add_f32 v{64+i}, v{64+i}, v{72+i}')
    for i in range(8):
        p(f'v_add_f32 v{16+i}, v{16+i}, v{32+i}')
        p(f'v_add_f32 v{16+i}, v{16+i}, v{48+i}')
    for i in range(4):
        p(f'v_cvt_pk_bf16_f32 v{24+i}, v{16+2*i}, v{17+2*i}')
        p(f'v_cvt_pk_bf16_f32 v{72+i}, v{64+2*i}, v{65+2*i}')
    for i in range(4):
        p(f'v_lshlrev_b32 v{16+2*i}, 16, v{24+i}')
        p(f'v_and_b32 v{17+2*i}, 0xffff0000, v{24+i}')
        p(f'v_lshlrev_b32 v{64+2*i}, 16, v{72+i}')
        p(f'v_and_b32 v{65+2*i}, 0xffff0000, v{72+i}')
    NL2E = f2u(-math.log2(math.e))
    for i in range(8): p(f'v_mul_f32 v{32+i}, {NL2E:#x}, v{64+i}')
    for i in range(8): p(f'v_exp_f32 v{32+i}, v{32+i}')
    for i in range(8): p(f'v_add_f32 v{32+i}, 1.0, v{32+i}')
    for i in range(8): p(f'v_rcp_f32 v{32+i}, v{32+i}')
    for i in range(8): p(f'v_mul_f32 v{32+i}, v{32+i}, v{64+i}')
    for i in range(4): p(f'v_cvt_pk_bf16_f32 v{40+i}, v{32+2*i}, v{33+2*i}')
    for i in range(4):
        p(f'v_lshlrev_b32 v{32+2*i}, 16, v{40+i}')
        p(f'v_and_b32 v{33+2*i}, 0xffff0000, v{40+i}')
    for i in range(8): p(f'v_mul_f32 v{32+i}, v{32+i}, v{16+i}')
    for i in range(4): p(f'v_cvt_pk_bf16_f32 v{40+i}, v{32+2*i}, v{33+2*i}')
    for i in range(4):
        p(f'v_lshlrev_b32 v{32+2*i}, 16, v{40+i}')
        p(f'v_and_b32 v{33+2*i}, 0xffff0000, v{40+i}')
        p(f'v_lshlrev_b32 v{48+2*i}, 16, v{XR+i}')
        p(f'v_and_b32 v{49+2*i}, 0xffff0000, v{XR+i}')
    for i in range(8): p(f'v_add_f32 v{32+i}, v{32+i}, v{48+i}')
    for i in range(4): p(f'v_cvt_pk_bf16_f32 v{40+i}, v{32+2*i}, v{33+2*i}')
    p('buffer_store_dwordx2 v[40:41], v9, s[36:39], s59 offen')
    p('buffer_store_dwordx2 v[42:43], v9, s[36:39], s59 offen offset:16')
    if PROF: p('s_waitcnt vmcnt(0)')
    st.stamp()
    st.dump(p, 8, 0, 20, 50, 57, 8)
    p('s_endpgm')

    ool = p.begin_alt()
    def routine(name):
        p.alt_branch(ool); p.label(name)
    def fin_code():
        p(f"""
s_nop 15
s_nop 7
v_mov_b32 v9, v{VLSAVE}
v_permlane32_swap_b32 v{VLSAVE}, v9
v_add_f32 v9, v{VLSAVE}, v9
v_rcp_f32 v9, v9
s_mul_i32 s52, s27, {AF_MT}
s_lshl_b32 s54, s21, 13
s_add_u32 s52, s52, s54
s_add_u32 s52, s52, {AF_OFF:#x}
s_add_u32 s53, s52, 4096
""")
        for half in range(2):
            for i in range(32): p(f'v_mul_f32 v{O+32*half+i}, v{O+32*half+i}, v9')
            for i in range(16): p(f'v_cvt_pk_bf16_f32 v{TT+16*half+i}, v{O+32*half+2*i}, v{O+32*half+2*i+1}')
            for k in range(4): p(f'buffer_store_dwordx4 {vr(TT+16*half+4*k,4)}, v{VL16}, s[8:11], s{52+half} offen offset:{k*1024}{SC}')
        for i in range(64): p(f'v_mov_b32 v{O+i}, 0')
    for kind, nm, hf in outl:
        if kind == 'evt':
            routine(f'LF_evt{nm}')
            p('s_lshl_b32 s68, s47, 1')
            if nm in ('loop0', 'drain0'):
                p(f"""
s_add_u32 s69, s68, 2
s_cmp_lg_u32 s62, s69
s_cbranch_scc1 LF_nofin{nm}
s_cmp_eq_u32 s25, 0
s_cbranch_scc1 LF_nofin{nm}
""")
                fin_code()
                p.label(f'LF_nofin{nm}')
            if nm == 'loop0':
                p(f"""
s_add_u32 s69, s68, 4
s_cmp_lg_u32 s62, s69
s_cbranch_scc1 LF_nopubS
s_add_u32 s69, s24, {CNT_CTX}
s_lshl_b32 s69, s69, 2
""")
                emit(publish([69]))
                p(f"""
LF_nopubS:
s_cmp_lg_u32 s62, s68
s_cbranch_scc1 LF_nosw
s_cmp_eq_u32 s25, 0
s_cbranch_scc1 LF_nosw
s_lshl_b32 s69, s26, 13
s_add_u32 s69, s69, {QX}
v_add_u32 v9, s69, v{VL16}
s_nop 7
""")
                for ks in range(8): p(f'ds_read_b128 {vr(Q+4*ks,4)}, v9 offset:{ks*1024}')
                for i in range(16): p(f'v_mov_b32 v{MN+i}, 0')
                p(f"""
v_mov_b32 v{VM}, 0
s_mov_b32 s61, s28
s_mov_b32 s60, 0
s_waitcnt lgkmcnt(0)
LF_nosw:
""")
            if nm == 'loop1':
                p(f"""
s_add_u32 s69, s68, 1
s_cmp_lg_u32 s62, s69
s_cbranch_scc1 LF_nomid
s_cmp_eq_u32 s25, 0
s_cbranch_scc1 LF_nomid
v_mov_b32 v{VLSAVE}, v{VLS}
v_mov_b32 v{VLS}, 0
s_mov_b32 s60, 1.0
s_mov_b32 s57, 0xbf800000
s_mov_b32 s58, {FLOOR1:#x}
s_mov_b32 s59, 1
LF_nomid:
""")
            if nm != 'drain0':
                p(f"""
s_lshr_b32 s68, s62, 1
s_lshl_b32 s69, s68, 1
s_sub_u32 s69, s69, s47
s_add_u32 s69, s69, s25
s_cmp_ge_u32 s68, s47
s_cselect_b32 s68, s69, s68
s_lshl_b32 s68, s68, 1
s_add_u32 s68, s68, {hf}
s_cmp_lt_u32 s68, s61
s_cbranch_scc1 LF_nomask{nm}
s_sub_u32 s68, s61, s68
s_lshl_b32 s68, s68, 5
v_add_u32 v9, s68, v{VZ}
v_mov_b32 v10, {NEG:#x}
""")
                for r in range(16):
                    cr = 8 * (r >> 2) + (r & 3)
                    p(f'v_cmp_gt_i32 vcc, {cr}, v9')
                    p(f'v_cndmask_b32 v{MN+r}, v{MN+r}, v10, vcc')
                p.label(f'LF_nomask{nm}')
            p(f"""
s_add_u32 s68, s62, 1
s_max_u32 s66, s68, 32
s_cmp_le_u32 s68, s49
s_cselect_b32 s66, s68, s66
s_branch LF_eret{nm}
""")
            p.end_branch()
        else:
            routine(f'LF_rare{nm}')
            c = S[1 - hf]; nx = S[hf]; pc = PP[1 - hf]
            p('s_nop 15\ns_nop 7')
            p(f'v_max3_f32 v9, v{c}, v{c+1}, v{c+2}')
            for k in range(3, 15, 2): p(f'v_max3_f32 v9, v9, v{c+k}, v{c+k+1}')
            p(f'v_max_f32 v9, v9, v{c+15}')
            p(f'''
v_mov_b32 v10, v9
v_permlane32_swap_b32 v9, v10
v_max_f32 v9, v9, v10
v_max_f32 v9, s58, v9
v_sub_f32 v10, 0, v9
v_min_f32 v10, 0x42fc0000, v10
v_exp_f32 v10, v10
v_mul_f32 v11, s60, v9
''')
            for k in range(16): p(f'v_sub_f32 v{c+k}, v{c+k}, v9')
            for k in range(16): p(f'v_exp_f32 v{TT+k}, v{c+k}')
            p(f'v_add_f32 v{VTS}, v{TT}, v{TT+1}')
            for k in range(2, 16): p(f'v_add_f32 v{VTS}, v{VTS}, v{TT+k}')
            for k in range(8): p(f'v_cvt_pk_bf16_f32 v{pc+k}, v{TT+2*k}, v{TT+2*k+1}')
            for k in range(16): p(f'v_sub_f32 v{nx+k}, v{nx+k}, v11')
            for k in range(16): p(f'v_sub_f32 v{MN+k}, v{MN+k}, v11')
            p(f'v_add_f32 v{VM}, v{VM}, v11')
            p(f'v_mul_f32 v{VLS}, v{VLS}, v10')
            p('s_cmp_lg_u32 s59, 0')
            p(f's_cbranch_scc1 LF_rskip{nm}')
            for k in range(64): p(f'v_mul_f32 v{O+k}, v{O+k}, v10')
            p.label(f'LF_rskip{nm}')
            p(f'''
s_mov_b32 s{56+hf}, {THR:#x}
''')
            if hf == 1:
                p('s_mov_b32 s58, 0\ns_mov_b32 s59, 0')
            if nm == 'loop1': p('s_cmp_lt_u32 s55, 17')
            p(f's_branch LF_ret{nm}')
            p.end_branch()
    p.alt_branch(ool); emit_slow(); p.end_branch()
    p.label('LF_end')
    p('s_endpgm')
    return ('kf_kernel', p, 256, 512, 163840, 256, 256)
```

```python
from asmlib import *

NAME = 'recurrent_scan__compressed_kv_cla__geglu_ffn__prompt'
KA = dict(x=0, ckv=8, wq=16, wuk=24, wuv=32, wo=40, bx=48, wg=56, wu=64, wd=72, out=80, dbg=88, ws=96)
import os
WS_BASE = int(os.environ.get('WS_BASE_MB', '0')) << 20
XF_OFF = WS_BASE + 0
KF_OFF = WS_BASE + (2 << 20)
VF_OFF = WS_BASE + (18 << 20)
AF_OFF = WS_BASE + (34 << 20)
AF_MT = 342 * 1024
QX_OFF = 58 << 20
WS_BYTES = 0x10000000

def srd(p, d, lo, hi, nbytes):
    p(f'''s_mov_b32 s{d}, s{lo}
s_and_b32 s{d+1}, s{hi}, 0xffff
s_mov_b32 s{d+2}, {nbytes:#x}
s_mov_b32 s{d+3}, 0x00020000''')

def kd(name, vgpr, accum, sgpr=102):
    return f'''.section .rodata,"a"
.p2align 6
.amdhsa_kernel {name}
  .amdhsa_next_free_vgpr {vgpr}
  .amdhsa_next_free_sgpr {sgpr}
  .amdhsa_accum_offset {accum}
  .amdhsa_group_segment_fixed_size 0
  .amdhsa_kernarg_size 104
  .amdhsa_user_sgpr_count 2
  .amdhsa_user_sgpr_kernarg_segment_ptr 1
  .amdhsa_system_sgpr_workgroup_id_x 1
  .amdhsa_float_denorm_mode_32 3
  .amdhsa_float_denorm_mode_16_64 3
.end_amdhsa_kernel
'''

def vr(b, n=1):
    return f'v{b}' if n == 1 else f'v[{b}:{b+n-1}]'
def ar(b, n=1):
    return f'a{b}' if n == 1 else f'a[{b}:{b+n-1}]'

def wave_reduce_add(p, v, t):
    p(f'v_add_f32_dpp v{v}, v{v}, v{v} quad_perm:[1,0,3,2] row_mask:0xf bank_mask:0xf')
    p(f'v_add_f32_dpp v{v}, v{v}, v{v} quad_perm:[2,3,0,1] row_mask:0xf bank_mask:0xf')
    p(f'v_add_f32_dpp v{v}, v{v}, v{v} row_half_mirror row_mask:0xf bank_mask:0xf')
    p(f'v_add_f32_dpp v{v}, v{v}, v{v} row_mirror row_mask:0xf bank_mask:0xf')
    p(f'v_mov_b32 v{t}, v{v}')
    p(f'v_permlane16_swap_b32 v{v}, v{t}')
    p(f'v_add_f32 v{v}, v{v}, v{t}')
    p(f'v_mov_b32 v{t}, v{v}')
    p(f'v_permlane32_swap_b32 v{v}, v{t}')
    p(f'v_add_f32 v{v}, v{v}, v{t}')

def interleave(p, backbone, fillers):
    for i, b in enumerate(backbone):
        for f in fillers.get(('pre', i), []):
            f(p) if callable(f) else p(f)
        p(b)
        for f in fillers.get(i, []):
            f(p) if callable(f) else p(f)

import os
PROF = int(os.environ.get('PROF', '0'))
PROF_OFF = 128 << 20
class Stamps:
    def __init__(self, p, base, n): self.p = p; self.base = base; self.n = n; self.i = 0
    def stamp(self, pp=None):
        if not PROF: return
        pp = pp or self.p
        self.cnt = getattr(self, 'cnt', -1) + 1
        if self.cnt in getattr(self, 'skip', ()): return
        if self.i >= self.n: return
        b = self.base + 2 * self.i; self.i += 1
        pp(f's_memrealtime s[{b}:{b+1}]' if os.environ.get('RT') else f's_memtime s[{b}:{b+1}]')
        if self.i == 1: pp(f's_memrealtime s[{self.base+2*self.n}:{self.base+2*self.n+1}]')
    def dump(self, pp, srd, kidx, swave, vtmp, stmp, nwaves):
        if not PROF: return
        pp(f's_memrealtime s[{self.base+2*self.n+2}:{self.base+2*self.n+3}]')
        pp('s_waitcnt lgkmcnt(0)')
        pp(f's_mul_i32 s{stmp}, s2, {nwaves}')
        pp(f's_add_u32 s{stmp}, s{stmp}, s{swave}')
        pp(f's_lshl_b32 s{stmp}, s{stmp}, 8')
        pp(f's_add_u32 s{stmp}, s{stmp}, {PROF_OFF + (kidx << 22):#x}')
        pp(f'v_mov_b32 v{vtmp+1}, 0')
        for i in range(self.i):
            pp(f'v_mov_b32 v{vtmp}, s{self.base+2*i}')
            pp(f'buffer_store_dword v{vtmp}, v{vtmp+1}, s[{srd}:{srd+3}], s{stmp} offen offset:{4*i}')
        for i in range(2):
            pp(f'v_mov_b32 v{vtmp}, s{self.base+2*self.n+2*i}')
            pp(f'buffer_store_dword v{vtmp}, v{vtmp+1}, s[{srd}:{srd+3}], s{stmp} offen offset:{248+4*i}')

def atomic_groups(texts, maxlen=3):
    ins = [Inst(t) if isinstance(t, str) and not t.endswith(':') and not t.startswith('@') else None for t in texts]
    n = len(texts)
    live = [False] * (n + 1)
    special = {SCC, VCC[0], VCC[1], M0}
    cur = set()
    for i in range(n - 1, -1, -1):
        if ins[i] is not None:
            cur = (cur - (set(ins[i].writes) & special)) | (set(ins[i].reads) & special)
        live[i] = bool(cur)
    groups = []; g = []
    for i, t in enumerate(texts):
        if g and len(g) >= maxlen and not live[i]:
            groups.append(g); g = []
        g.append(t)
    if g: groups.append(g)
    return groups

def spread(add, groups, lo, hi):
    n = len(groups)
    for i, g in enumerate(groups):
        add(lo + (i * (hi - lo + 1)) // n, g)
```

```python
from common import *
from k1 import ln_stream
import struct, math

def f2u(x): return struct.unpack('<I', struct.pack('<f', x))[0]
MF = 'v_mfma_f32_32x32x16_bf16'
SC = os.environ.get('FSC', ' sc1')
CNT_LN = 0; CNT_KV = 16; CNT_CTX = 32; CNT_REG = 48
LS = os.environ.get('LS', ' sc1')
SPIN_MAX = 1 << 22

KVSC = os.environ.get('KVSC', '')
KVN = int(os.environ.get('KVN', '0'))
def gen_kf():
    p = Prog()
    st = Stamps(p, 70, 10)
    st.skip = set(int(x) for x in os.environ.get('STSKIP', '').split(',') if x)
    def emit(lst):
        for f in lst:
            if isinstance(f, list): emit(f)
            elif callable(f): f(p)
            else: p(f)
    VL16 = 1
    uid = [0]
    def publish(sreg_idx_list):
        uid[0] += 1; L = f'LF_pub{uid[0]}'
        out = ['s_cmp_lg_u32 s20, 0', f's_cbranch_scc1 {L}', '@COND', 'v_mov_b32 v14, 1', 'v_mov_b32 v15, 0', 's_mov_b64 exec, 1']
        for s in sreg_idx_list:
            out.append(f'buffer_atomic_add v14, v15, s[96:99], s{s} offen sc1')
        out += ['s_mov_b64 exec, -1', '@ENDCOND', f'{L}:']
        return out
    def poll(pairs):
        uid[0] += 1; L = f'LF_poll{uid[0]}'
        out = ['s_cmp_lg_u32 s20, 0', f's_cbranch_scc1 {L}_done', '@COND', 'v_mov_b32 v15, 0', f's_mov_b32 s3, {SPIN_MAX}']
        for n, (s, tgt) in enumerate(pairs):
            out += [f'{L}_{n}:',
                    f'buffer_load_dword v14, v15, s[96:99], s{s} offen sc1',
                    's_waitcnt vmcnt(0)',
                    'v_readfirstlane_b32 s100, v14',
                    's_sub_u32 s3, s3, 1',
                    's_cmp_eq_u32 s3, 0',
                    f's_cbranch_scc1 {L}_acq',
                    f's_cmp_ge_u32 s100, {tgt}',
                    f's_cbranch_scc1 {L}_{n}_ok',
                    's_sleep 2',
                    f's_branch {L}_{n}',
                    f'{L}_{n}_ok:']
        out += [f'{L}_acq:', 'buffer_inv sc1', 's_waitcnt vmcnt(0)', '@ENDCOND', f'{L}_done:']
        return out
    def poll_noinv(pairs):
        out = poll(pairs)
        i = out.index('buffer_inv sc1')
        return out[:i] + out[i + 2:]
    slow = []
    def poll_issue(sregs):
        uid[0] += 1; L = f'LF_pi{uid[0]}'
        out = ['s_cmp_lg_u32 s20, 0', f's_cbranch_scc1 {L}', '@COND', 'v_mov_b32 v8, 0']
        for n, s in enumerate(sregs): out.append(f'buffer_load_dword v{14+n}, v8, s[96:99], s{s} offen sc1')
        out += ['@ENDCOND', f'{L}:']
        return out
    def poll_check(pairs, inv_flag=None):
        uid[0] += 1; L = f'LF_pc{uid[0]}'
        out = ['s_cmp_lg_u32 s20, 0', f's_cbranch_scc1 {L}', '@COND']
        for n, (s, tgt) in enumerate(pairs):
            out += [f'v_readfirstlane_b32 s100, v{14+n}', f's_cmp_lt_u32 s100, {tgt}', f's_cbranch_scc1 {L}_slow']
        out += [f'{L}_ok:']
        if inv_flag is not None and inv_flag >= 0:
            out += [f's_cmp_lg_u32 s{inv_flag}, 0', f's_cbranch_scc1 {L}', (lambda pp: pp('buffer_inv sc1', 'inv'))]
        elif inv_flag is not None:
            out += [(lambda pp: pp('buffer_inv sc1', 'inv'))]
        out += ['@ENDCOND', f'{L}:']
        slow.append((L, pairs))
        return out
    def publish_kv():
        uid[0] += 1; L = f'LF_pkv{uid[0]}'
        return ['s_cmp_lg_u32 s20, 0', f's_cbranch_scc1 {L}', '@COND',
                'v_readfirstlane_b32 s100, v15',
                's_and_b32 s3, s100, 63', 's_bfe_u32 s29, s100, 0x90006', 's_lshr_b32 s30, s100, 15',
                's_mul_i32 s29, s29, s29', 's_lshl_b32 s30, s30, 5',
                's_cmp_eq_u32 s29, s30', 's_cselect_b32 s94, 1, 0',
                's_cmp_eq_u32 s3, 32', 's_cselect_b32 s94, s94, 0',
                's_cmp_lg_u32 s94, 0', f's_cbranch_scc1 {L}_fast',
                'buffer_wbl2 sc1', 's_waitcnt vmcnt(0)',
                f'{L}_fast:',
                'v_mov_b32 v14, 1', 'v_mov_b32 v15, 0', 's_mov_b64 exec, 1',
                'buffer_atomic_add v14, v15, s[96:99], s33 offen sc1',
                's_mov_b64 exec, -1', '@ENDCOND', f'{L}:']
    def w0_drain():
        uid[0] += 1; L = f'LF_dr{uid[0]}'
        return ['s_cmp_lg_u32 s20, 0', f's_cbranch_scc1 {L}', '@COND', (lambda pp: pp.wait_tag('inv')), '@ENDCOND', f'{L}:']
    def emit_slow():
        for L, pairs in slow:
            p.label(f'{L}_slow')
            p(f's_mov_b32 s3, {SPIN_MAX}')
            p('v_mov_b32 v8, 0')
            for n, (s, tgt) in enumerate(pairs):
                p(f"""
{L}_s{n}:
buffer_load_dword v14, v8, s[96:99], s{s} offen sc1
s_waitcnt vmcnt(0)
v_readfirstlane_b32 s100, v14
s_sub_u32 s3, s3, 1
s_cmp_eq_u32 s3, 0
s_cbranch_scc1 {L}_ok
s_cmp_ge_u32 s100, {tgt}
s_cbranch_scc1 {L}_s{n}_ok
s_sleep 2
s_branch {L}_s{n}
{L}_s{n}_ok:
""")
            p(f's_branch {L}_ok')
    p(f'''
s_cmp_ge_u32 s2, 256
s_cbranch_scc1 LF_end
s_load_dwordx4 s[28:31], s[0:1], 0
s_load_dwordx4 s[32:35], s[0:1], 24
s_load_dwordx4 s[36:39], s[0:1], 88
s_load_dwordx4 s[64:67], s[0:1], 56
s_load_dwordx2 s[68:69], s[0:1], 16
s_load_dwordx2 s[56:57], s[0:1], 40
s_load_dwordx2 s[58:59], s[0:1], 72
v_lshrrev_b32 v9, 6, v0
v_and_b32 v10, 63, v0
v_readfirstlane_b32 s20, v9
s_and_b32 s22, s2, 7
s_lshr_b32 s23, s2, 3
''')
    st.stamp()
    p('''
s_and_b32 s48, s23, 1
s_bfe_u32 s49, s23, 0x10001
s_lshr_b32 s50, s23, 2
s_lshl_b32 s51, s22, 9
s_lshl_b32 s3, s48, 8
s_add_u32 s51, s51, s3
''')
    p(f'v_lshlrev_b32 v{VL16}, 4, v10')
    STG = 65536
    p('''
v_lshrrev_b32 v11, 3, v10
v_and_b32 v12, 7, v10
v_lshrrev_b32 v13, 4, v10
v_xor_b32 v14, v12, v13
v_lshlrev_b32 v14, 4, v14
v_lshl_add_u32 v2, v11, 10, v14
v_xor_b32 v3, 64, v2
''')
    p('''
v_and_b32 v13, 1, v13
v_lshlrev_b32 v13, 2, v13
v_xor_b32 v14, v12, v13
v_lshlrev_b32 v14, 4, v14
v_lshl_add_u32 v4, v11, 13, v14
''')
    p(f'''
v_and_b32 v11, 31, v10
v_lshrrev_b32 v12, 5, v10
v_bfe_u32 v13, v11, 1, 3
v_xor_b32 v13, v12, v13
v_lshlrev_b32 v13, 4, v13
v_lshl_add_u32 v13, v11, 7, v13
s_lshl_b32 s52, s20, 13
s_add_u32 s52, s52, {STG}
v_add_u32 v16, s52, v13
v_xor_b32 v17, 32, v16
v_xor_b32 v18, 64, v16
v_xor_b32 v19, 96, v16
''')
    p('''
v_bfe_u32 v11, v10, 2, 2
v_lshl_add_u32 v13, v12, 3, v11
v_lshlrev_b32 v13, 7, v13
v_lshrrev_b32 v11, 1, v11
v_lshl_add_u32 v13, v11, 6, v13
v_bfe_u32 v11, v10, 4, 1
v_lshl_add_u32 v13, v11, 5, v13
v_and_b32 v11, 3, v10
v_lshl_add_u32 v20, v11, 3, v13
v_xor_b32 v21, 64, v20
v_add_u32 v22, 0x8000, v20
v_add_u32 v23, 0x8000, v21
v_add_u32 v24, 0x20000, v20
v_add_u32 v25, 0x20000, v21
v_add_u32 v26, 0x10000, v20
v_add_u32 v27, 0x10000, v21
v_lshlrev_b32 v14, 7, v10
v_lshrrev_b32 v15, 2, v10
v_lshlrev_b32 v15, 13, v15
v_and_b32 v11, 3, v10
v_lshl_add_u32 v15, v11, 7, v15
v_lshrrev_b32 v5, 1, v10
v_lshlrev_b32 v5, 10, v5
v_and_b32 v11, 1, v10
v_lshl_add_u32 v5, v11, 9, v5
''')
    p('s_waitcnt lgkmcnt(0)')
    srd(p, 12, 30, 31, 2 << 20)
    srd(p, 16, 28, 29, 2 << 20)
    srd(p, 8, 38, 39, WS_BYTES)
    srd(p, 96, 36, 37, 256)
    p('''
s_cmp_eq_u32 s49, 0
s_cselect_b32 s4, s32, s34
s_cselect_b32 s5, s33, s35
s_and_b32 s5, s5, 0xffff
s_mov_b32 s6, 0x400000
s_mov_b32 s7, 0x00020000
s_lshl_b32 s40, s50, 8
s_lshl_b32 s41, s20, 5
s_add_u32 s40, s40, s41
s_lshl_b32 s40, s40, 10
s_lshl_b32 s42, s20, 18
s_lshl_b32 s43, s51, 1
s_add_u32 s42, s42, s43
s_lshl_b32 s43, s20, 12
''')
    WS = [0, 32768, 131072, 65536]
    def wdma(u, q):
        sc = u >> 1; kh = u & 1
        return [f's_add_u32 m0, s43, {WS[u % 4] + q*1024}',
                f's_add_u32 s53, s42, {(kh*256 + 8*q)*8192 + sc*128}',
                (lambda pp: pp('buffer_load_dwordx4 v4, s[4:7], s53 offen lds', f'w{u}'))]
    def adma(e, jj):
        return [f's_add_u32 m0, s52, {(e&1)*4096 + jj*1024}',
                f's_add_u32 s54, s40, {8*jj*1024 + e*128}',
                (lambda pp: pp(f'buffer_load_dwordx4 v{2+(jj&1)}, s[12:15], s54 offen lds', f'a{e}'))]
    AR = 128
    def aread(e, k):
        ks = 4 * e + k
        return (lambda pp: pp(f'ds_read_b128 {vr(AR+4*ks,4)}, v{16+k} offset:{(e&1)*4096}', f'ar{e}'))
    for jj in range(4): emit(adma(0, jj))
    for q in range(4): emit(wdma(0, q))
    for jj in range(4): emit(adma(1, jj))
    p('''
s_lshl_b32 s29, s2, 3
s_add_u32 s29, s29, s20
s_lshl_b32 s30, s29, 10
''')
    LNR = 96; LNT = 100
    p(f'buffer_load_dwordx4 {vr(LNR,4)}, v{VL16}, s[16:19], s30 offen')
    if 'pf' in os.environ.get('XP1', '').split('_'):
        p("""
s_cmp_lt_u32 s2, 128
s_cselect_b32 s60, s32, s34
s_cselect_b32 s61, s33, s35
s_mov_b32 s62, 0x400000
s_and_b32 s3, s2, 127
s_lshl_b32 s3, s3, 15
s_lshl_b32 s53, s20, 13
s_add_u32 s3, s3, s53
s_lshl_b32 s53, s2, 13
s_cmp_eq_u32 s20, 4
s_cselect_b32 s60, s12, s60
s_cselect_b32 s61, s13, s61
s_cselect_b32 s62, s14, s62
s_cselect_b32 s3, s53, s3
s_cmp_gt_u32 s20, 4
s_cselect_b32 s3, 0x7f000000, s3
s_and_b32 s61, s61, 0xffff
s_mov_b32 s63, 0x00020000
buffer_load_dword v104, v14, s[60:63], s3 offen
""")
    for q in range(4): emit(wdma(1, q))
    p(f'''
s_lshr_b32 s44, s51, 7
s_lshl_b32 s44, s44, 19
s_lshl_b32 s45, s50, 3
s_add_u32 s45, s45, s20
s_lshl_b32 s45, s45, 13
s_add_u32 s44, s44, s45
s_mov_b32 s45, {KF_OFF:#x}
s_mov_b32 s46, {VF_OFF:#x}
s_cmp_eq_u32 s49, 0
s_cselect_b32 s45, s45, s46
s_add_u32 s41, s44, s45
s_lshr_b32 s31, s29, 5
s_lshl_b32 s31, s31, 15
s_and_b32 s3, s29, 31
s_lshl_b32 s3, s3, 4
s_add_u32 s31, s31, s3
s_lshr_b32 s32, s2, 4
s_lshl_b32 s32, s32, 2
s_lshr_b32 s33, s51, 8
s_add_u32 s33, s33, {CNT_KV}
s_lshl_b32 s33, s33, 2
s_getreg_b32 s3, hwreg(HW_REG_XCC_ID, 0, 4)
s_mul_i32 s53, s3, s3
s_lshl_b32 s53, s53, 15
s_lshl_b32 s3, s3, 6
s_add_u32 s53, s53, s3
s_add_u32 s53, s53, 1
s_add_u32 s101, s22, {CNT_REG}
s_lshl_b32 s101, s101, 2
s_cmp_lg_u32 s20, 0
s_cbranch_scc1 LF_noreg
@COND
v_mov_b32 v8, s53
v_mov_b32 v9, 0
s_mov_b64 exec, 1
buffer_atomic_add v8, v9, s[96:99], s101 offen sc1
s_mov_b64 exec, -1
@ENDCOND
LF_noreg:
''')
    if XF_OFF: p(f's_add_u32 s31, s31, {XF_OFF:#x}')
    p('''
s_and_b32 s3, s23, 3
s_lshl_b32 s21, s22, 2
s_add_u32 s21, s21, s3
s_lshr_b32 s24, s23, 2
s_lshr_b32 s25, s20, 2
s_and_b32 s26, s20, 3
s_sub_u32 s28, 15, s24
s_lshl_b32 s28, s28, 2
s_add_u32 s28, s28, s26
s_lshl_b32 s27, s24, 2
s_add_u32 s27, s27, s26
s_cmp_eq_u32 s25, 0
s_cselect_b32 s27, s28, s27
''')
    if os.environ.get('P1P', '1') == '1':
        p('s_cmp_eq_u32 s25, 0')
        p('s_cbranch_scc1 LF_noprio1')
        p('s_setprio 1')
        p.label('LF_noprio1')
    p.wait_tag('a0')
    for k in range(4): emit([aread(0, k)])
    p.wait_tag('ar0')
    for jj in range(4): emit(adma(2, jj))
    p.wait_tag('w0')
    p('s_barrier')
    st.stamp()
    p('s_cmp_lg_u32 s49, 0')
    p('s_cbranch_scc1 LF_v')

    WF = 32; NST = 4; ACC = 64; PK = 96
    def trread(u, kk):
        out = []
        for nt in range(2):
            w = WF + 8 * (kk % NST) + 4 * nt
            out.append(f'ds_read_b64_tr_b16 {vr(w,2)}, v{20+2*(u%4)+nt} offset:{kk*2048}')
            out.append(f'ds_read_b64_tr_b16 {vr(w+2,2)}, v{20+2*(u%4)+nt} offset:{kk*2048+512}')
        return out
    def kv_epilogue(sc, nt):
        g = []
        PKB = PK if sc < 3 else 32
        for half in range(2):
            pk = PKB + 8 * nt + 4 * half
            for i in range(4):
                s = ACC + 16 * nt + 8 * half + 2 * i
                g.append(f'v_cvt_pk_bf16_f32 v{pk+i}, v{s}, v{s+1}')
        off = (sc >> 1) * 524288 + (sc & 1) * 4096
        st_ = [[f's_add_u32 s55, s41, {off + nt*2048 + half*1024}',
                (lambda pp, half=half: pp(f'buffer_store_dwordx4 {vr(PKB+8*nt+4*half,4)}, v{VL16}, s[8:11], s55 offen{KVSC if sc >= KVN else SC}', 'kvst'))]
               for half in range(2)]
        return g, st_
    lns = ln_stream(LNR, LNT, LNT + 16)
    lns.append(lambda pp: pp(f'buffer_store_dwordx4 {vr(LNR,4)}, v5, s[8:11], s31 offen{SC}', 'lnst'))
    SLOT = 29184
    GSL = [0, SLOT, 131072, 65536]
    KSL = 0; VSL = 65536; QX = 131072
    GD = 28
    def p2_setup():
        q = Prog(); pp = q
        pp("""
v_and_b32 v10, 63, v0
v_lshrrev_b32 v11, 4, v10
v_bfe_u32 v12, v10, 2, 2
v_and_b32 v13, 3, v11
v_xor_b32 v12, v12, v13
v_lshlrev_b32 v12, 6, v12
v_and_b32 v13, 3, v10
v_lshl_add_u32 v12, v13, 4, v12
v_lshl_add_u32 v12, v11, 13, v12
s_lshl_b32 s29, s26, 17
v_add_u32 v28, s29, v12
v_add_u32 v29, 0x8000, v28
v_add_u32 v30, 0x10000, v28
v_add_u32 v31, 0x18000, v28
s_and_b32 s29, s20, 1
s_mul_i32 s29, s29, 192
s_mov_b32 s30, 43691
s_movk_i32 s34, 2752
s_cmp_eq_u32 s25, 0
s_cselect_b64 s[36:37], -1, 0
""")
        for t in range(3):
            pp(f"""
v_add_u32 v11, s29, v10
v_add_u32 v11, {64*t}, v11
v_mul_lo_u32 v12, v11, s30
v_lshrrev_b32 v12, 18, v12
v_mul_u32_u24 v13, 6, v12
v_sub_u32 v13, v11, v13
v_mul_lo_u32 v12, v12, s34
v_lshl_add_u32 v9, v13, 4, v12
v_cndmask_b32 v{28+t}, v9, v{28+t}, s[36:37]
""")
        pp('v_cndmask_b32 v31, v9, v31, s[36:37]')
        pp("""
v_lshrrev_b32 v11, 5, v10
v_bfe_u32 v12, v10, 2, 2
v_lshl_add_u32 v13, v11, 3, v12
v_lshlrev_b32 v6, 8, v13
v_lshl_add_u32 v6, v12, 6, v6
v_bfe_u32 v7, v10, 4, 1
v_lshl_add_u32 v6, v7, 5, v6
v_and_b32 v9, 3, v10
v_lshl_add_u32 v6, v9, 3, v6
v_mul_u32_u24 v13, 96, v13
v_mul_u32_u24 v7, 6272, v7
v_add_u32 v13, v13, v7
v_lshl_add_u32 v13, v9, 3, v13
v_add_u32 v7, 0x4000, v13
""")
        pp("""
s_mov_b32 s60, s68
s_mov_b32 s61, s69
s_cmp_eq_u32 s20, 2
s_cselect_b32 s60, s64, s60
s_cselect_b32 s61, s65, s61
s_cmp_eq_u32 s20, 3
s_cselect_b32 s60, s66, s60
s_cselect_b32 s61, s67, s61
s_cmp_ge_u32 s20, 4
s_cselect_b32 s60, s56, s60
s_cselect_b32 s61, s57, s61
s_cmp_ge_u32 s20, 6
s_cselect_b32 s60, s58, s60
s_cselect_b32 s61, s59, s61
s_and_b32 s61, s61, 0xffff
s_mov_b32 s63, 0x00020000
s_mov_b32 s62, 0x158000
s_movk_i32 s35, 5504
s_and_b32 s38, s20, 2
s_cmp_eq_u32 s38, 0
s_cselect_b32 s62, 0x400000, s62
s_cselect_b32 s35, 0x4000, s35
s_mul_i32 s35, s35, s2
s_and_b32 s39, s20, 1
s_lshl_b32 s39, s39, 13
s_cmp_eq_u32 s38, 0
s_cselect_b32 s39, s39, 0
s_add_u32 s35, s35, s39
s_cmp_ge_u32 s20, 4
s_cselect_b32 s35, 0x7f000000, s35
v_lshlrev_b32 v12, 3, v1
buffer_load_dword v11, v12, s[60:63], s35 offen
""")
        pp("""
s_bfe_u32 s29, s20, 0x10001
s_cmp_eq_u32 s29, 0
s_cselect_b32 s16, s64, s66
s_cselect_b32 s17, s65, s67
s_mov_b32 s18, 0x158000
s_cmp_eq_u32 s25, 0
s_cselect_b32 s16, s68, s16
s_cselect_b32 s17, s69, s17
s_cselect_b32 s18, 0x400000, s18
s_and_b32 s17, s17, 0xffff
s_mov_b32 s19, 0x00020000
s_lshl_b32 s56, s21, 8
s_mul_i32 s38, s21, 96
s_lshl_b32 s58, s26, 12
s_mul_i32 s39, s29, 6272
s_and_b32 s30, s20, 1
s_mul_i32 s30, s30, 3072
s_add_u32 s39, s39, s30
s_add_u32 s39, s39, 16384
s_cmp_eq_u32 s25, 0
s_cselect_b32 s56, s56, s38
s_mov_b32 s57, 0x2b000
s_cselect_b32 s57, 0x80000, s57
s_cselect_b32 s58, s58, s39
s_movk_i32 s59, 2048
s_cselect_b32 s59, 3072, s59
s_add_u32 s59, s59, s58
s_lshl_b32 s60, s27, 15
""")
        if XF_OFF: pp(f's_add_u32 s60, s60, {XF_OFF:#x}')
        return [i.text for i in q.items]
    GX = 128; GW = 192; GT = [48, 64, 80, 96, 112, 160, 176]
    def gdma(sl):
        base = GSL[sl % 4]
        out = []
        for t in range(4):
            out.append([f's_add_u32 m0, s{58 if t < 3 else 59}, {base + (t*1024 if t < 3 else 0)}',
                        's_nop 0',
                        (lambda pp, t=t, sl=sl: pp(f'buffer_load_dwordx4 v{GD+t}, s[16:19], s56 offen lds', f'g{sl}'))])
        out[3].append('s_add_u32 s56, s56, s57')
        return out
    def xload(sl):
        out = []
        b = GX + 16 * (sl & 1)
        for k in range(4):
            out.append(f'buffer_load_dwordx4 {vr(b+4*k,4)}, v{VL16}, s[8:11], s61 offen offset:{k*1024}{LS}')
        return [f's_add_u32 s61, s60, {sl*4096}'] + out

    alt = p.begin_alt(join=True)
    for variant in ('k', 'v'):
        p.alt_branch(alt)
        if variant == 'v': p.label('LF_v')
        for kk in range(3): emit(trread(0, kk))
        pend = []
        for u in range(8):
            sc = u >> 1; kh = u & 1
            bb = []; fl = {}
            def add(slot, items): fl.setdefault(slot, []).extend(items)
            for kk in range(16):
                ks = kh * 16 + kk
                for nt in range(2):
                    w = WF + 8 * (kk % NST) + 4 * nt
                    acc = vr(ACC + 16 * nt, 16); cc = '0' if ks == 0 else acc
                    A = vr(AR + 4 * ks, 4)
                    if variant == 'k': bb.append(f'{MF} {acc}, {vr(w,4)}, {A}, {cc}')
                    else:              bb.append(f'{MF} {acc}, {A}, {vr(w,4)}, {cc}')
            for kk in range(3, 16):
                t = trread(u, kk)
                s0 = min(2 * (kk - 3), 24)
                add(s0, t[:2]); add(s0 + 1, t[2:])
            if u < 2:
                for q4 in range(4):
                    e = 4 * kh + q4; base = 8 * q4
                    if e + 1 < 8:
                        add(base + 1, [lambda pp, e=e: pp.wait_tag(f'a{e+1}')])
                        for k_ in range(4): add(base + 1 + k_ // 2, [aread(e + 1, k_)])
                        if e + 3 < 8:
                            add(base + 5, [lambda pp, e=e: pp.wait_tag(f'ar{e+1}')])
                            for jj in range(4): add(base + 5 + jj // 2, adma(e + 3, jj))
            loads = {0: [2], 2: [3, 4], 3: [5], 4: [6], 5: [7]}.get(u, [])
            grps = [wdma(lu, q) for lu in loads for q in range(4)]
            if grps: spread(add, grps, 2 if u else 10, 25)
            X1 = os.environ.get('XP1', '')
            if u == 1: spread(add, atomic_groups(lns, 3), 1, 25)
            if u == 3: spread(add, atomic_groups(p2_setup(), 4), 10, 26)
            if kh == 0 and sc > 0:
                for nt in range(2):
                    g, st_ = kv_epilogue(sc - 1, nt)
                    fl.setdefault(('pre', nt), []).extend(g)
                    pend.extend(st_)
            if pend:
                a_, b_ = pend.pop(0), pend.pop(0)
                if 'nokvst' not in os.environ.get('XP1', ''): add(12, a_); add(24, b_)
            extra = []; post = []
            if u == (3 if 'latepub' in X1 else 2): extra = [lambda pp: pp.wait_tag('lnst')]; post = publish([32])
            if u == 5 and 'nopoll' not in X1: add(18, ['s_sub_u32 s29, 15, s24', 's_lshl_b32 s29, s29, 2', 's_lshl_b32 s30, s24, 2'] + poll_issue([29, 30]))
            if u == 5 and 'nopoll' not in X1: post = poll_check([(29, 16), (30, 16)])
            if u == 6 and 'nog01' not in X1:
                spread(add, gdma(0) + gdma(1), 1, 25)
            if u == 7 and 'nog01' in X1:
                spread(add, gdma(0) + gdma(1), 1, 25)
            if u == 7:
                xl = xload(0)
                spread(add, [xl[:2], [xl[2]], [xl[3]], [xl[4]]] + gdma(2), 1, 28)
            if u < 7:
                add(27, [lambda pp, u=u: pp.wait_tag(f'w{u+1}'), 's_waitcnt lgkmcnt(0)'] + extra + ['s_barrier'] + post)
                for kk in range(3):
                    t = trread(u + 1, kk)
                    add(min(27 + 2 * kk, 31), t[:2]); add(min(28 + 2 * kk, 31), t[2:])
            interleave(p, bb, fl)
            if os.environ.get('P1ST'): st.i = 2 + u; st.stamp()
        for nt in range(2):
            g, st_ = kv_epilogue(3, nt)
            emit(g); pend.extend(st_)
        if variant == 'k': p('s_branch LF_p2')
        p.end_branch()
    p.label('LF_p2')
    st.stamp()
    VK = 2; VV = 3; VZ = 4; VLS = 5; VM = 6; VTS = 7; VLSAVE = 8
    T0 = 9
    Q = 16; O = 48; S = [112, 128]; PP = [144, 152]; MN = 160; FR = 176; E = 208; TT = 216
    THR = f2u(float(2 ** 20)); NEG = f2u(-1e30); FLOOR1 = f2u(-1e20)
    p(f"""
s_lshl_b32 s44, s21, 19
s_lshl_b32 s46, s20, 11
s_add_u32 s44, s44, s46
s_add_u32 s45, s44, {VF_OFF:#x}
s_add_u32 s44, s44, {KF_OFF:#x}
s_lshl_b32 s47, s24, 1
s_add_u32 s47, s47, 2
""")
    AQ = [T0, T0 + 1, T0 + 2, T0 + 3]; AF_ = T0 + 4
    def set_addr(sl):
        base = GSL[sl % 4]
        out = [f'v_add_u32 v{AQ[0]}, {base}, v6']
        for nt in range(1, 4): out.append(f'v_xor_b32 v{AQ[nt]}, {nt<<6}, v{AQ[0]}')
        out.append(f'v_add_u32 v{AF_}, {base}, v7')
        return out
    assert all((s & 0xff) == 0 for s in GSL)
    def gtr(g):
        kk = g & 3; out = []
        for tl in range(7):
            w = GW + 28 * (g & 1) + 4 * tl
            if tl < 4:
                out.append(f'ds_read_b64_tr_b16 {vr(w,2)}, v{AQ[tl]} offset:{kk*4096}')
                out.append(f'ds_read_b64_tr_b16 {vr(w+2,2)}, v{AQ[tl]} offset:{kk*4096+1024}')
            else:
                o = kk * 1536 + (tl - 4) * 32
                out.append(f'ds_read_b64_tr_b16 {vr(w,2)}, v{AF_} offset:{o}')
                out.append(f'ds_read_b64_tr_b16 {vr(w+2,2)}, v{AF_} offset:{o+384}')
        return out
    def kvcopy(sbase, chunk_off, ldsbase, tag, tmp=43):
        return [f's_add_u32 m0, s46, {ldsbase}',
                f's_add_u32 s{tmp}, s{sbase}, {chunk_off}',
                (lambda pp: pp(f'buffer_load_dwordx4 v{VL16}, s[8:11], s{tmp} offen{LS} lds', tag)),
                (lambda pp: pp(f'buffer_load_dwordx4 v{VL16}, s[8:11], s{tmp} offen offset:1024{LS} lds', tag))]
    PUB_SL = int(os.environ.get('PUB_SL', '4'))
    PFN = 8; PFS = int(os.environ.get('PFS', '0')); PFO = int(os.environ.get('PFO', '0'))
    p.wait_tag('g0')
    p('s_waitcnt lgkmcnt(0)')
    p('s_barrier')
    emit(set_addr(0))
    emit(gtr(0))
    for sl in range(8):
        bb = []; fl = {}
        def add(slot, items): fl.setdefault(slot, []).extend(items)
        for kk in range(4):
            g = sl * 4 + kk
            xb = GX + 16 * (sl & 1) + 4 * kk
            for tl in range(7):
                w = GW + 28 * (g & 1) + 4 * tl
                acc = vr(GT[tl], 16); cc = '0' if g == 0 else acc
                bb.append(f'{MF} {acc}, {vr(w,4)}, {vr(xb,4)}, {cc}')
            ng = g + 1
            if ng < 32:
                if kk == 3: add(7 * kk - 1, set_addr(sl + 1))
                rd = gtr(ng)
                for i in range(7): add(7 * kk + i, rd[2 * i:2 * i + 2])
        if sl + 1 < 8:
            xl = xload(sl + 1)
            add(0, xl[:1])
            for k in range(4): add(1 + k, [xl[1 + k]])
            pre = []; post = []
            if sl < 4: add(10, pend[sl])
            if sl == PUB_SL:
                pre = [lambda pp: pp.wait_tag('kvst')]; post = publish_kv()
            if sl == PUB_SL - 1:
                add(6, poll_issue([101, 101]))
            if sl == 6:
                add(8, [f's_lshr_b32 s29, s21, 1', f's_add_u32 s29, s29, {CNT_KV}', 's_lshl_b32 s29, s29, 2'] + poll_issue([29]))
                post = poll_check([(29, 16)], inv_flag=(94 if os.environ.get('KVINV', 'cond') == 'cond' else -1))

            add(17, [lambda pp, sl=sl: pp.wait_tag(f'g{sl+1}')] + pre + ['s_barrier'] + post)
            if sl + 3 < 8:
                for t, grp in enumerate(gdma(sl + 3)): add(18 + 2 * t if t < 1 else 21 + 2 * (t - 1), grp)
        interleave(p, bb, fl)
    st.stamp()
    p('s_waitcnt lgkmcnt(0)')
    emit(w0_drain())
    p('s_barrier')
    emit(kvcopy(44, 0, KSL, 'k0'))
    emit(kvcopy(44, 16384, KSL + 32768, 'k1'))
    emit(kvcopy(45, 0, VSL, 'v0'))
    p("""
s_load_dwordx2 s[56:57], s[0:1], 40
s_load_dwordx2 s[58:59], s[0:1], 72
s_waitcnt lgkmcnt(0)
s_cmp_ge_u32 s20, 2
s_cselect_b32 s60, s58, s56
s_cselect_b32 s61, s59, s57
s_mov_b32 s62, 0x400000
s_cselect_b32 s62, 0x158000, s62
s_movk_i32 s35, 0x4000
s_cselect_b32 s35, 5504, s35
s_and_b32 s61, s61, 0xffff
s_mov_b32 s63, 0x00020000
s_mul_i32 s35, s35, s2
s_cmp_eq_u32 s20, 1
s_cselect_b32 s39, 0x2000, 0
s_add_u32 s35, s35, s39
s_cmp_ge_u32 s20, 3
s_cselect_b32 s35, 0x7f000000, s35
v_lshlrev_b32 v12, 3, v1
buffer_load_dword v255, v12, s[60:63], s35 offen
s_lshr_b32 s17, s23, 2
s_and_b32 s18, s23, 3
s_cmp_ge_u32 s17, 6
s_cselect_b32 s12, s58, s56
s_cselect_b32 s13, s59, s57
s_mov_b32 s14, 0x400000
s_cselect_b32 s14, 0x158000, s14
s_cselect_b32 s19, 6, 0
s_and_b32 s13, s13, 0xffff
s_mov_b32 s15, 0x00020000
s_sub_u32 s19, s17, s19
s_mul_i32 s16, s19, 43
s_cmp_eq_u32 s17, 5
s_cselect_b32 s19, 1, 0
s_sub_u32 s16, s16, s19
s_lshl_b32 s16, s16, 4
s_mul_i32 s18, s18, 84
s_add_u32 s16, s16, s18
s_mul_i32 s18, s20, PFROWS
s_add_u32 s16, s16, s18
s_lshl_b32 s16, s16, 10
v_lshlrev_b32 v249, 3, v1
""".replace('PFROWS', str(PFN * PFS)))
    CQ = f2u(math.log2(math.e) / math.sqrt(128.0))
    p(f's_mov_b32 s48, {CQ:#x}')
    p(f's_mov_b32 s49, {CQ:#x}')
    for tl in range(4):
        for i in range(8): p(f'v_pk_mul_f32 {vr(GT[tl]+2*i,2)}, {vr(GT[tl]+2*i,2)}, s[48:49]')
        for i in range(8): p(f'v_cvt_pk_bf16_f32 v{Q+8*tl+i}, v{GT[tl]+2*i}, v{GT[tl]+2*i+1}')
    p(f'''
s_lshl_b32 s49, s26, 13
s_add_u32 s49, s49, {QX}
v_add_u32 v9, s49, v{VL16}
s_cmp_lg_u32 s25, 0
s_cbranch_scc1 LF_noqx
@COND
''')
    for ks in range(8): p(f'ds_write_b128 v9, {vr(Q+4*ks,4)} offset:{ks*1024}')
    p('s_waitcnt lgkmcnt(0)')
    p('@ENDCOND')
    p.label('LF_noqx')
    KG = -2.0 * math.sqrt(2.0 / math.pi) * math.log2(math.e)
    p(f's_mov_b32 s50, {f2u(KG*0.044715):#x}')
    p(f's_mov_b32 s51, {f2u(KG*0.044715):#x}')
    p(f'v_mov_b32 v{GW+16}, {f2u(KG):#x}')
    p(f'v_mov_b32 v{GW+17}, {f2u(KG):#x}')
    p(f'''
s_mul_i32 s52, s27, {AF_MT}
s_mul_i32 s53, s21, 3
s_add_u32 s54, s53, 256
s_lshl_b32 s54, s54, 10
s_add_u32 s52, s52, s54
s_add_u32 s52, s52, {AF_OFF:#x}
''')
    for tt in range(3):
        a = GT[4 + tt]; t = GW
        p(f's_add_u32 s54, s53, {tt}')
        p('s_cmp_ge_u32 s54, 86')
        p(f's_cbranch_scc1 LF_ffn_skip{tt}')
        p('@COND')
        P2 = lambda r: vr(r, 2)
        for i in range(0, 8, 2): p(f'v_pk_mul_f32 {P2(t+i)}, {P2(a+i)}, {P2(a+i)}')
        for i in range(0, 8, 2): p(f'v_pk_fma_f32 {P2(t+i)}, {P2(t+i)}, s[50:51], {P2(t+16)}')
        for i in range(0, 8, 2): p(f'v_pk_mul_f32 {P2(t+i)}, {P2(t+i)}, {P2(a+i)}')
        for i in range(8): p(f'v_exp_f32 v{t+i}, v{t+i}')
        for i in range(0, 8, 2): p(f'v_pk_mul_f32 {P2(t+8+i)}, {P2(a+i)}, {P2(a+8+i)}')
        for i in range(0, 8, 2): p(f'v_pk_add_f32 {P2(t+i)}, {P2(t+i)}, 1.0 op_sel_hi:[1,0]')
        for i in range(8): p(f'v_rcp_f32 v{t+i}, v{t+i}')
        for i in range(0, 8, 2): p(f'v_pk_mul_f32 {P2(t+i)}, {P2(t+i)}, {P2(t+8+i)}')
        for i in range(4): p(f'v_cvt_pk_bf16_f32 v{t+20+4*tt+i}, v{t+2*i}, v{t+2*i+1}')
        p(f'buffer_store_dwordx4 {vr(t+20+4*tt,4)}, v{VL16}, s[8:11], s52 offen offset:{tt*1024}{SC}')
        p('@ENDCOND')
        p.label(f'LF_ffn_skip{tt}')
    st.stamp()
    for i in range(0, 64, 2): p(f'v_pk_mov_b32 {vr(O+i,2)}, 0, 0')
    for i in range(0, 16, 2): p(f'v_pk_mov_b32 {vr(MN+i,2)}, 0, 0')
    p(f"""
v_mov_b32 v{VLS}, 0
v_mov_b32 v{VM}, 0
v_mov_b32 v{VLSAVE}, 0
s_mov_b32 s56, {THR:#x}
s_mov_b32 s57, 0xbf800000
s_mov_b32 s58, {FLOOR1:#x}
s_mov_b32 s59, 1
s_mov_b32 s60, 1.0
s_mov_b32 s61, s27
s_mov_b32 s62, 0
s_lshl_b32 s67, s25, 14
v_add_u32 v{VK}, {KSL}, v{VL16}
v_add_u32 v{VV}, {VSL}, v{VL16}
v_and_b32 v10, 63, v0
v_and_b32 v12, 31, v10
v_lshrrev_b32 v11, 5, v10
v_lshlrev_b32 v13, 2, v11
v_sub_u32 v{VZ}, v12, v13
s_mov_b32 s55, 0
s_mov_b32 s63, 16384
s_add_u32 s64, s46, 32768
s_lshl_b32 s49, s47, 1
s_add_u32 s49, s49, 2
s_cmp_eq_u32 s25, 0
s_cselect_b32 s49, 0, s49
s_cselect_b32 s66, 32, s27
s_lshl_b32 s68, s47, 1
s_add_u32 s68, s68, 4
s_min_u32 s68, s68, 32
s_cmp_eq_u32 s20, 0
s_cselect_b32 s66, s68, s66
""")
    p('s_waitcnt vmcnt(0) lgkmcnt(0)')
    p('s_barrier')
    st.stamp()

    def frag_read(f):
        hf = f >> 4; i = f & 15; dst = vr(FR + 4 * (f % 8), 4)
        if i < 8:  return f'ds_read_b128 {dst}, v{VK} offset:{hf*8192 + i*1024}'
        else:      return f'ds_read_b128 {dst}, v{VV} offset:{hf*8192 + (i-8)*1024}'
    def mfma(f):
        hf = f >> 4; i = f & 15; fr = vr(FR + 4 * (f % 8), 4)
        if i < 8:
            s = vr(S[hf], 16); c = vr(MN, 16) if i == 0 else s
            return f'{MF} {s}, {fr}, {vr(Q+4*i,4)}, {c}'
        dt = (i - 8) >> 1; tp = (i - 8) & 1
        o = vr(O + 16 * dt, 16)
        return f'{MF} {o}, {fr}, {vr(PP[hf]+4*tp,4)}, {o}'
    def bstage(hf, nslots):
        c = S[1 - hf]; pp_ = PP[1 - hf]
        groups = [[] for _ in range(nslots)]
        span = nslots - 2
        pos_e = [(kk * span) // 16 for kk in range(16)]
        late = [[] for _ in range(nslots)]
        for k in range(8):
            ea = E + (2 * k) % 8; eb = E + (2 * k + 1) % 8
            groups[pos_e[2 * k]].append(f'v_exp_f32 v{ea}, v{c+2*k}')
            groups[pos_e[2 * k + 1]].append(f'v_exp_f32 v{eb}, v{c+2*k+1}')
            sa = pos_e[2 * k] + 1; sb = pos_e[2 * k + 1] + 1
            if k == 0:
                late[sb].append(f'v_add_f32 v{VTS}, v{ea}, v{eb}')
            else:
                late[sa].append(f'v_add_f32 v{VTS}, v{VTS}, v{ea}')
                late[sb].append(f'v_add_f32 v{VTS}, v{VTS}, v{eb}')
            late[sb].append(f'v_cvt_pk_bf16_f32 v{pp_+k}, v{ea}, v{eb}')
        return [late[i] + groups[i] for i in range(nslots)]
    outl = []
    DIST = int(os.environ.get('DIST', '4'))
    DS_ = int(os.environ.get('DMAS', '2')); D0_ = int(os.environ.get('DMA0', '1')); NTAIL = int(os.environ.get('NTAIL', '0'))

    def step(kind):
        doA = kind != 'drain'
        slots = []
        for f in range(32):
            hf = f >> 4; i = f & 15
            isA = i < 8
            if isA and not doA: continue
            if not isA and kind == 'first': continue
            slots.append(f)
        pos = {f: n for n, f in enumerate(slots)}
        bb = [mfma(f) for f in slots]
        fl = {}
        def add(n, items): fl.setdefault(n, []).extend(items)
        nS = len(slots)
        last_read_slot = nS - DIST - 2
        for n in range(DIST, nS):
            add(min(n - DIST, last_read_slot) if kind != 'drain' else n - DIST, [frag_read(slots[n])])
        for hf in range(2):
            if kind == 'first' and hf == 0: continue
            if kind == 'drain' and hf == 1: continue
            hs = [n for n, f in enumerate(slots) if (f >> 4) == hf]
            groups = bstage(hf, len(hs))
            for gi, g in enumerate(groups): add(hs[gi], g)
            nm = f'{kind}{hf}'
            add(hs[-2], [f'v_cmp_nge_f32 vcc, s{56+hf}, v{VTS}'])
            add(hs[-1], [f's_cbranch_vccnz LF_rare{nm}', f'LF_ret{nm}:', f'v_add_f32 v{VLS}, v{VLS}, v{VTS}'])
            outl.append(('rare', nm, hf))
        for hf in range(2):
            if kind == 'drain' and hf == 1: continue
            nm = f'{kind}{hf}'
            first_slot = [n for n, f in enumerate(slots) if (f >> 4) == hf][0]
            fl.setdefault(('pre', first_slot), []).extend(
                ['s_cmp_ge_u32 s62, s66', f's_cbranch_scc1 LF_evt{nm}', f'LF_eret{nm}:'])
            add(first_slot, ['s_add_u32 s62, s62, 1'])
            outl.append(('evt', nm, hf))
        return bb, fl, add, pos, slots

    def prep_next():
        return [['s_add_u32 s55, s55, 1', 's_and_b32 s50, s55, 1'],
                ['s_lshl_b32 s50, s50, 15', 's_cmp_ge_u32 s55, s47'],
                ['s_cselect_b32 s69, s67, 0', 's_add_u32 s50, s50, s69', f's_add_u32 s50, s50, {KSL}']]
    def barrier_blk():
        return ['s_waitcnt vmcnt(0) lgkmcnt(0)', 's_barrier',
                f'v_add_u32 v{VV}, {(VSL - KSL) & 0xffffffff:#x}, v{VK}',
                f'v_add_u32 v{VK}, s50, v{VL16}']
    def dma_issue(name):
        L = f'buffer_load_dwordx4 v{VL16}, s[8:11], s43 offen{LS} lds'
        L2 = f'buffer_load_dwordx4 v{VL16}, s[8:11], s43 offen offset:1024{LS} lds'
        g = []
        g.append([f's_add_u32 m0, s64, {VSL}', 's_add_u32 s43, s45, s63', L])
        g.append([L2, 's_cmp_lt_u32 s55, s47'])
        g.append([f's_cbranch_scc1 LF_nov2{name}', '@COND', f's_add_u32 m0, s64, {VSL + 16384}', 's_add_u32 s43, s43, 16384', L, L2,
                  's_add_u32 s63, s63, 16384', '@ENDCOND', f'LF_nov2{name}:'])
        g.append(['s_add_u32 s63, s63, 16384', 's_xor_b32 s64, s64, 32768'])
        g.append([f's_add_u32 m0, s64, {KSL}', 's_add_u32 s43, s44, s63', L])
        g.append([L2, 's_add_u32 s65, s55, 1', 's_cmp_lt_u32 s65, s47'])
        g.append([f's_cbranch_scc1 LF_nok{name}', '@COND', f's_add_u32 m0, s64, {KSL + 16384}', 's_add_u32 s43, s43, 16384', L, L2,
                  '@ENDCOND', f'LF_nok{name}:'])
        return g

    PRIO = os.environ.get('PRIO', '1')
    if PRIO:
        p(f's_cmp_eq_u32 s25, {0 if PRIO == "1" else 1}')
        p('s_cbranch_scc1 LF_noprio')
        p('s_setprio 1')
        p.label('LF_noprio')
    bb, fl, add, pos, slots = step('first')
    for n in range(DIST): p(frag_read(slots[n]))
    nS = len(slots)
    for gi, g in enumerate(prep_next()): add(4 + gi, g)
    add(nS - DIST, barrier_blk())
    for n in range(DIST): add(nS - DIST + n, [frag_read(n)])
    if NTAIL:
        add(nS - DIST, [x for g in dma_issue('first')[:NTAIL] for x in g])
    interleave(p, bb, fl)
    p.begin_loop()
    p.label('LF_loop')
    bb, fl, add, pos, slots = step('loop')
    XP = os.environ.get('XP', '')
    if 'nodma' not in XP:
        for gi, g in enumerate(dma_issue('loop')[NTAIL:]): add(D0_ + DS_ * gi, g)
    if PFS:
        blk = [f's_cmp_lt_u32 s55, {17 - PFS - PFO}', 's_cbranch_scc1 LF_nopf', f's_cmp_ge_u32 s55, {17 - PFO}', 's_cbranch_scc1 LF_nopf', '@COND',
               f'buffer_load_dword v248, v249, s[12:15], s16 offen',
               f's_add_u32 s16, s16, 8192', '@ENDCOND', 'LF_nopf:']
        add(2, blk)
    for gi, g in enumerate(prep_next()): add(27 - DIST + gi, g)
    nb_ = barrier_blk()
    if 'nobar' in XP: nb_ = [x for x in nb_ if x != 's_barrier']
    add(32 - DIST, nb_)
    for n in range(DIST): add(min(32 - DIST + n, 30), [frag_read(n)])
    if NTAIL:
        add(32 - DIST, ['s_cmp_ge_u32 s55, 17', 's_cbranch_scc1 LF_notail', '@COND'] + [x for g in dma_issue('tail')[:NTAIL] for x in g] + ['@ENDCOND', 'LF_notail:'])
    add(30, ['s_cmp_lt_u32 s55, 17'])
    if XP:
        for kk_ in fl: fl[kk_] = [x for x in fl[kk_] if not (isinstance(x, str) and x.startswith('s_cbranch_vccnz'))]
    if 'noexp' in XP:
        for kk_ in fl: fl[kk_] = [x.replace('v_exp_f32', 'v_mov_b32') if isinstance(x, str) else x for x in fl[kk_]]
    if 'novalu' in XP:
        for kk_ in fl: fl[kk_] = [x for x in fl[kk_] if not (isinstance(x, str) and x.startswith(('v_exp', 'v_add_f32 v7', 'v_cvt')))]
    if 'nolds' in XP:
        for kk_ in fl: fl[kk_] = [x for x in fl[kk_] if not (isinstance(x, str) and x.startswith('ds_read'))]
    interleave(p, bb, fl)
    p('s_cbranch_scc1 LF_loop')
    p.end_loop()
    st.stamp()
    p('s_waitcnt lgkmcnt(0)')
    bb, fl, add, pos, slots = step('drain')
    for n in range(DIST): p(frag_read(slots[n]))
    interleave(p, bb, fl)
    st.stamp()
    p(f'''
v_mov_b32 v9, v{VLS}
v_permlane32_swap_b32 v{VLS}, v9
v_add_f32 v{VLS}, v{VLS}, v9
s_waitcnt lgkmcnt(0)
s_barrier
''')
    p(f'''
s_mul_i32 s49, s20, 8704
s_xor_b32 s50, s20, 4
s_mul_i32 s50, s50, 8704
v_add_u32 v9, s49, v{VL16}
v_add_u32 v10, s50, v{VL16}
v_lshrrev_b32 v11, 1, v{VL16}
v_add_u32 v12, s49, v11
v_add_u32 v13, s50, v11
v_mov_b32 v14, v{VLS}
v_mov_b32 v15, v{VM}
s_cmp_eq_u32 s25, 0
s_cbranch_scc1 LF_mg0
''')
    X = TT
    alt = p.begin_alt(join=True)
    for g in (1, 0):
        p.alt_branch(alt)
        if g == 0: p.label('LF_mg0')
        keep = O + 32 * g; send = O + 32 * (1 - g)
        for k in range(8): p(f'ds_write_b128 v9, {vr(send+4*k,4)} offset:{k*1024}')
        p('ds_write_b64 v12, v[14:15] offset:8192')
        p('s_waitcnt lgkmcnt(0)')
        p('s_barrier')
        p(f'ds_read_b64 v[{E}:{E+1}], v13 offset:8192')
        for k in range(8): p(f'ds_read_b128 {vr(X+4*k,4)}, v10 offset:{k*1024}')
        p(f'''
v_max_f32 v{E+2}, v{VM}, v{E+1}
v_sub_f32 v{E+4}, v{VM}, v{E+2}
v_sub_f32 v{E+6}, v{E+1}, v{E+2}
v_exp_f32 v{E+4}, v{E+4}
v_exp_f32 v{E+6}, v{E+6}
v_mul_f32 v{E+3}, v{E+4}, v{VLS}
v_fmac_f32 v{E+3}, v{E+6}, v{E}
v_rcp_f32 v{E+3}, v{E+3}
v_mul_f32 v{E+4}, v{E+4}, v{E+3}
v_mul_f32 v{E+6}, v{E+6}, v{E+3}
''')
        for i in range(0, 32, 2):
            p(f'v_pk_mul_f32 {vr(keep+i,2)}, {vr(keep+i,2)}, {vr(E+4,2)} op_sel_hi:[1,0]')
            p(f'v_pk_fma_f32 {vr(keep+i,2)}, {vr(X+i,2)}, {vr(E+6,2)}, {vr(keep+i,2)} op_sel_hi:[1,0,1]')
        for i in range(16): p(f'v_cvt_pk_bf16_f32 v{S[0]+i}, v{keep+2*i}, v{keep+2*i+1}')
        p(f'''
s_mul_i32 s52, s28, {AF_MT}
s_lshl_b32 s54, s21, 13
s_add_u32 s52, s52, s54
s_add_u32 s52, s52, {AF_OFF + g*4096:#x}
''')
        for k in range(4): p(f'buffer_store_dwordx4 {vr(S[0]+4*k,4)}, v{VL16}, s[8:11], s52 offen offset:{k*1024}{SC}')
        if g == 1: p('s_branch LF_p4')
        p.end_branch()
    p.label('LF_p4')
    P4P = os.environ.get('P4P', '1')
    if PRIO and P4P == '0': p('s_setprio 0')
    st.stamp()
    NK = 43; D = int(os.environ.get("K3D", "6"))
    NL = 9; NR = int(os.environ.get("K3R", "12"))
    VA1 = 2; VW = 3; VT = [4, 5]
    ACT = 16; WF4 = ACT + 8 * D; ACC4 = max(WF4 + 16, 80); WR = ACC4 + 64; XR = 240
    assert WR + 8 * NR <= XR
    AF_END = AF_OFF + 64 * AF_MT
    p(f"""
s_load_dwordx2 s[28:29], s[0:1], 40
s_load_dwordx4 s[32:35], s[0:1], 72
s_load_dwordx2 s[30:31], s[0:1], 0
s_load_dwordx2 s[36:37], s[0:1], 96
v_and_b32 v10, 63, v0
v_add_u32 v{VA1}, {AF_MT}, v{VL16}
v_lshrrev_b32 v11, 3, v10
v_and_b32 v12, 7, v10
v_bfe_u32 v13, v10, 4, 1
v_lshlrev_b32 v13, 2, v13
v_xor_b32 v12, v12, v13
v_lshlrev_b32 v12, 4, v12
v_lshl_add_u32 v{VW}, v11, 10, v12
v_lshrrev_b32 v11, 5, v10
v_bfe_u32 v12, v10, 2, 2
v_lshl_add_u32 v13, v11, 2, v12
v_lshlrev_b32 v13, 7, v13
v_lshrrev_b32 v12, 1, v12
v_lshl_add_u32 v13, v12, 6, v13
v_bfe_u32 v12, v10, 4, 1
v_lshl_add_u32 v13, v12, 5, v13
v_and_b32 v12, 3, v10
v_lshl_add_u32 v13, v12, 3, v13
s_mul_i32 s25, s20, {NL*2048}
v_add_u32 v{VT[0]}, s25, v13
v_xor_b32 v{VT[1]}, 64, v{VT[0]}
s_mul_i32 s26, s20, 43
s_cmp_ge_u32 s20, 4
s_cselect_b32 s27, 1, 0
s_sub_u32 s26, s26, s27
s_cmp_ge_u32 s20, 5
s_cselect_b32 s27, 1, 0
s_sub_u32 s26, s26, s27
s_and_b32 s44, s23, 7
s_bfe_u32 s45, s23, 0x10003
s_cmp_ge_u32 s24, 4
s_cselect_b32 s46, 8, 0
s_add_u32 s46, s46, s22
s_lshl_b32 s47, s46, 1
s_add_u32 s47, s47, s45
s_sub_u32 s48, 15, s24
s_add_u32 s48, s48, {CNT_CTX}
s_lshl_b32 s48, s48, 2
s_add_u32 s49, s24, {CNT_CTX}
s_lshl_b32 s49, s49, 2
s_add_u32 s50, s46, {CNT_CTX}
s_lshl_b32 s50, s50, 2
""")
    st.stamp()
    p('s_waitcnt vmcnt(0) lgkmcnt(0)')
    st.stamp()
    p('s_barrier')
    st.stamp()
    emit(publish([48]))
    p('s_cmp_lg_u32 s24, 7')
    p('s_cbranch_scc1 LF_nopubS2')
    emit(publish([49]))
    p.label('LF_nopubS2')
    srd(p, 12, 36, 37, AF_END)
    srd(p, 16, 30, 31, 2 << 20)
    srd(p, 36, 34, 35, 2 << 20)
    p(f"""
s_cmp_ge_u32 s20, 6
s_cselect_b32 s4, s32, s28
s_cselect_b32 s5, s33, s29
s_mov_b32 s6, 0x400000
s_cselect_b32 s6, 0x158000, s6
s_and_b32 s5, s5, 0xffff
s_mov_b32 s7, 0x00020000
s_mul_i32 s40, s47, {2*AF_MT}
s_lshl_b32 s43, s26, 10
s_add_u32 s40, s40, s43
s_add_u32 s40, s40, {AF_OFF:#x}
s_cmp_ge_u32 s20, 6
s_cselect_b32 s43, 256, 0
s_sub_u32 s43, s26, s43
s_lshl_b32 s42, s43, 14
s_lshl_b32 s43, s44, 7
s_add_u32 s42, s42, s43
s_sub_u32 s51, s20, 4
s_cmp_lt_u32 s51, 2
s_cselect_b32 s41, 0x7fff0000, s40
s_cselect_b32 s52, 0x4000, 0
s_add_u32 s52, s52, s42
""")
    def wloads(ks):
        sl = ks % NL
        if ks == 0:
            a0 = ['s_mov_b32 s54, s52', 's_add_u32 s53, s52, 0x2000']
        else:
            a0 = [f's_add_u32 s54, s42, {ks*16384}', f's_add_u32 s53, s42, {ks*16384+8192}']
        return [f's_add_u32 m0, s25, {sl*2048}'] + a0 + [
                (lambda pp: pp(f'buffer_load_dwordx4 v{VW}, s[4:7], s54 offen lds', f'x{ks}')),
                f's_add_u32 m0, s25, {sl*2048+1024}', 's_nop 0',
                (lambda pp: pp(f'buffer_load_dwordx4 v{VW}, s[4:7], s53 offen lds', f'x{ks}'))]
    def aloads(ks):
        a = ACT + 8 * (ks % D)
        pre = ['s_mov_b32 s55, s41'] if ks == 0 else [f's_add_u32 s55, s40, {ks*1024}']
        return pre + [f'buffer_load_dwordx4 {vr(a,4)}, v{VL16}, s[12:15], s55 offen{LS}',
                      f'buffer_load_dwordx4 {vr(a+4,4)}, v{VA1}, s[12:15], s55 offen{LS}']
    def wreg(ks, nt):
        return (WR + 8 * ks + 4 * nt) if ks < NR else (WF4 + 8 * (ks & 1) + 4 * nt)
    def trr(ks):
        sl = ks % NL; out = [lambda pp: pp.wait_tag(f'x{ks}')]
        for nt in range(2):
            w = wreg(ks, nt)
            out.append((lambda pp, w=w, nt=nt: pp(f'ds_read_b64_tr_b16 {vr(w,2)}, v{VT[nt]} offset:{sl*2048}', f'r{ks}')))
            out.append((lambda pp, w=w, nt=nt: pp(f'ds_read_b64_tr_b16 {vr(w+2,2)}, v{VT[nt]} offset:{sl*2048+1024}', f'r{ks}')))
        return out
    for ks in range(NL): emit(wloads(ks))
    p(f"""
s_lshr_b32 s56, s20, 2
s_bfe_u32 s57, s20, 0x10001
s_and_b32 s58, s20, 1
s_lshl_b32 s59, s47, 6
s_lshl_b32 s60, s57, 5
s_add_u32 s59, s59, s60
s_lshl_b32 s59, s59, 10
s_lshl_b32 s60, s44, 6
s_lshl_b32 s61, s56, 5
s_add_u32 s60, s60, s61
s_lshl_b32 s61, s58, 4
s_add_u32 s60, s60, s61
s_lshl_b32 s60, s60, 1
s_add_u32 s59, s59, s60
v_and_b32 v11, 31, v10
v_lshrrev_b32 v12, 5, v10
v_lshlrev_b32 v11, 10, v11
v_lshl_add_u32 v9, v12, 3, v11
buffer_load_dwordx2 v[{XR}:{XR+1}], v9, s[16:19], s59 offen
buffer_load_dwordx2 v[{XR+2}:{XR+3}], v9, s[16:19], s59 offen offset:16
""")
    for ks in range(NR):
        emit(trr(ks))
        if ks >= 1:
            p.wait_tag(f'r{ks-1}')
            emit(wloads(ks - 1 + NL))
    p.wait_tag(f'r{NR-1}')
    emit(wloads(NR - 1 + NL))
    st.stamp()
    emit(poll_noinv([(50, 32)]))
    st.stamp()
    p('s_barrier')
    st.stamp()
    for ks in range(D): emit(aloads(ks))
    for ks in range(NK):
        a = ACT + 8 * (ks % D)
        if NR <= ks + 1 < NK: emit(trr(ks + 1))
        for nt in range(2):
            for mt in range(2):
                w = wreg(ks, nt)
                acc = vr(ACC4 + 16 * (2 * nt + mt), 16); cc = '0' if ks == 0 else acc
                p(f'{MF} {acc}, {vr(w,4)}, {vr(a+4*mt,4)}, {cc}')
        if ks + D < NK: emit(aloads(ks + D))
        if ks >= NR and ks + NL < NK:
            p.wait_tag(f'r{ks}')
            emit(wloads(ks + NL))
    p('s_waitcnt lgkmcnt(0)')
    p('s_barrier')
    p('s_lshl_b32 s25, s20, 14')
    p(f'v_add_u32 v6, s25, v{VL16}')
    for b in range(16): p(f'ds_write_b128 v6, {vr(ACC4+4*b,4)} offset:{b*1024}')
    p(f"""
s_lshl_b32 s56, s20, 11
v_add_u32 v7, s56, v{VL16}
v_add_u32 v8, 0x10000, v7
s_waitcnt lgkmcnt(0)
s_barrier
""")
    for src in range(8):
        base = 7 if src < 4 else 8
        for b in range(2):
            p(f'ds_read_b128 {vr(16+8*src+4*b,4)}, v{base} offset:{(src%4)*16384 + b*1024}')
    for i in range(8):
        p(f'v_add_f32 v{16+i}, v{16+i}, v{24+i}')
        p(f'v_add_f32 v{32+i}, v{32+i}, v{40+i}')
        p(f'v_add_f32 v{48+i}, v{48+i}, v{56+i}')
        p(f'v_add_f32 v{64+i}, v{64+i}, v{72+i}')
    for i in range(8):
        p(f'v_add_f32 v{16+i}, v{16+i}, v{32+i}')
        p(f'v_add_f32 v{16+i}, v{16+i}, v{48+i}')
    for i in range(4):
        p(f'v_cvt_pk_bf16_f32 v{24+i}, v{16+2*i}, v{17+2*i}')
        p(f'v_cvt_pk_bf16_f32 v{72+i}, v{64+2*i}, v{65+2*i}')
    for i in range(4):
        p(f'v_lshlrev_b32 v{16+2*i}, 16, v{24+i}')
        p(f'v_and_b32 v{17+2*i}, 0xffff0000, v{24+i}')
        p(f'v_lshlrev_b32 v{64+2*i}, 16, v{72+i}')
        p(f'v_and_b32 v{65+2*i}, 0xffff0000, v{72+i}')
    NL2E = f2u(-math.log2(math.e))
    for i in range(8): p(f'v_mul_f32 v{32+i}, {NL2E:#x}, v{64+i}')
    for i in range(8): p(f'v_exp_f32 v{32+i}, v{32+i}')
    for i in range(8): p(f'v_add_f32 v{32+i}, 1.0, v{32+i}')
    for i in range(8): p(f'v_rcp_f32 v{32+i}, v{32+i}')
    for i in range(8): p(f'v_mul_f32 v{32+i}, v{32+i}, v{64+i}')
    for i in range(4): p(f'v_cvt_pk_bf16_f32 v{40+i}, v{32+2*i}, v{33+2*i}')
    for i in range(4):
        p(f'v_lshlrev_b32 v{32+2*i}, 16, v{40+i}')
        p(f'v_and_b32 v{33+2*i}, 0xffff0000, v{40+i}')
    for i in range(8): p(f'v_mul_f32 v{32+i}, v{32+i}, v{16+i}')
    for i in range(4): p(f'v_cvt_pk_bf16_f32 v{40+i}, v{32+2*i}, v{33+2*i}')
    for i in range(4):
        p(f'v_lshlrev_b32 v{32+2*i}, 16, v{40+i}')
        p(f'v_and_b32 v{33+2*i}, 0xffff0000, v{40+i}')
        p(f'v_lshlrev_b32 v{48+2*i}, 16, v{XR+i}')
        p(f'v_and_b32 v{49+2*i}, 0xffff0000, v{XR+i}')
    for i in range(8): p(f'v_add_f32 v{32+i}, v{32+i}, v{48+i}')
    for i in range(4): p(f'v_cvt_pk_bf16_f32 v{40+i}, v{32+2*i}, v{33+2*i}')
    p('buffer_store_dwordx2 v[40:41], v9, s[36:39], s59 offen')
    p('buffer_store_dwordx2 v[42:43], v9, s[36:39], s59 offen offset:16')
    if PROF: p('s_waitcnt vmcnt(0)')
    st.stamp()
    st.dump(p, 8, 0, 20, 50, 57, 8)
    p('s_endpgm')

    ool = p.begin_alt()
    def routine(name):
        p.alt_branch(ool); p.label(name)
    def fin_code():
        p(f"""
s_nop 15
s_nop 7
v_mov_b32 v9, v{VLSAVE}
v_permlane32_swap_b32 v{VLSAVE}, v9
v_add_f32 v9, v{VLSAVE}, v9
v_rcp_f32 v9, v9
s_mul_i32 s52, s27, {AF_MT}
s_lshl_b32 s54, s21, 13
s_add_u32 s52, s52, s54
s_add_u32 s52, s52, {AF_OFF:#x}
s_add_u32 s53, s52, 4096
""")
        for half in range(2):
            for i in range(32): p(f'v_mul_f32 v{O+32*half+i}, v{O+32*half+i}, v9')
            for i in range(16): p(f'v_cvt_pk_bf16_f32 v{TT+16*half+i}, v{O+32*half+2*i}, v{O+32*half+2*i+1}')
            for k in range(4): p(f'buffer_store_dwordx4 {vr(TT+16*half+4*k,4)}, v{VL16}, s[8:11], s{52+half} offen offset:{k*1024}{SC}')
        for i in range(64): p(f'v_mov_b32 v{O+i}, 0')
    for kind, nm, hf in outl:
        if kind == 'evt':
            routine(f'LF_evt{nm}')
            p('s_lshl_b32 s68, s47, 1')
            if nm in ('loop0', 'drain0'):
                p(f"""
s_add_u32 s69, s68, 2
s_cmp_lg_u32 s62, s69
s_cbranch_scc1 LF_nofin{nm}
s_cmp_eq_u32 s25, 0
s_cbranch_scc1 LF_nofin{nm}
""")
                fin_code()
                p.label(f'LF_nofin{nm}')
            if nm == 'loop0':
                p(f"""
s_add_u32 s69, s68, 4
s_cmp_lg_u32 s62, s69
s_cbranch_scc1 LF_nopubS
s_add_u32 s69, s24, {CNT_CTX}
s_lshl_b32 s69, s69, 2
""")
                emit(publish([69]))
                p(f"""
LF_nopubS:
s_cmp_lg_u32 s62, s68
s_cbranch_scc1 LF_nosw
s_cmp_eq_u32 s25, 0
s_cbranch_scc1 LF_nosw
s_lshl_b32 s69, s26, 13
s_add_u32 s69, s69, {QX}
v_add_u32 v9, s69, v{VL16}
s_nop 7
""")
                for ks in range(8): p(f'ds_read_b128 {vr(Q+4*ks,4)}, v9 offset:{ks*1024}')
                for i in range(16): p(f'v_mov_b32 v{MN+i}, 0')
                p(f"""
v_mov_b32 v{VM}, 0
s_mov_b32 s61, s28
s_mov_b32 s60, 0
s_waitcnt lgkmcnt(0)
LF_nosw:
""")
            if nm == 'loop1':
                p(f"""
s_add_u32 s69, s68, 1
s_cmp_lg_u32 s62, s69
s_cbranch_scc1 LF_nomid
s_cmp_eq_u32 s25, 0
s_cbranch_scc1 LF_nomid
v_mov_b32 v{VLSAVE}, v{VLS}
v_mov_b32 v{VLS}, 0
s_mov_b32 s60, 1.0
s_mov_b32 s57, 0xbf800000
s_mov_b32 s58, {FLOOR1:#x}
s_mov_b32 s59, 1
LF_nomid:
""")
            if nm != 'drain0':
                p(f"""
s_lshr_b32 s68, s62, 1
s_lshl_b32 s69, s68, 1
s_sub_u32 s69, s69, s47
s_add_u32 s69, s69, s25
s_cmp_ge_u32 s68, s47
s_cselect_b32 s68, s69, s68
s_lshl_b32 s68, s68, 1
s_add_u32 s68, s68, {hf}
s_cmp_lt_u32 s68, s61
s_cbranch_scc1 LF_nomask{nm}
s_sub_u32 s68, s61, s68
s_lshl_b32 s68, s68, 5
v_add_u32 v9, s68, v{VZ}
v_mov_b32 v10, {NEG:#x}
""")
                for r in range(16):
                    cr = 8 * (r >> 2) + (r & 3)
                    p(f'v_cmp_gt_i32 vcc, {cr}, v9')
                    p(f'v_cndmask_b32 v{MN+r}, v{MN+r}, v10, vcc')
                p.label(f'LF_nomask{nm}')
            p(f"""
s_add_u32 s68, s62, 1
s_max_u32 s66, s68, 32
s_cmp_le_u32 s68, s49
s_cselect_b32 s66, s68, s66
s_branch LF_eret{nm}
""")
            p.end_branch()
        else:
            routine(f'LF_rare{nm}')
            c = S[1 - hf]; nx = S[hf]; pc = PP[1 - hf]
            p('s_nop 15\ns_nop 7')
            p(f'v_max3_f32 v9, v{c}, v{c+1}, v{c+2}')
            for k in range(3, 15, 2): p(f'v_max3_f32 v9, v9, v{c+k}, v{c+k+1}')
            p(f'v_max_f32 v9, v9, v{c+15}')
            p(f'''
v_mov_b32 v10, v9
v_permlane32_swap_b32 v9, v10
v_max_f32 v9, v9, v10
v_max_f32 v9, s58, v9
v_sub_f32 v10, 0, v9
v_min_f32 v10, 0x42fc0000, v10
v_exp_f32 v10, v10
v_mul_f32 v11, s60, v9
''')
            for k in range(16): p(f'v_sub_f32 v{c+k}, v{c+k}, v9')
            for k in range(16): p(f'v_exp_f32 v{TT+k}, v{c+k}')
            p(f'v_add_f32 v{VTS}, v{TT}, v{TT+1}')
            for k in range(2, 16): p(f'v_add_f32 v{VTS}, v{VTS}, v{TT+k}')
            for k in range(8): p(f'v_cvt_pk_bf16_f32 v{pc+k}, v{TT+2*k}, v{TT+2*k+1}')
            for k in range(16): p(f'v_sub_f32 v{nx+k}, v{nx+k}, v11')
            for k in range(16): p(f'v_sub_f32 v{MN+k}, v{MN+k}, v11')
            p(f'v_add_f32 v{VM}, v{VM}, v11')
            p(f'v_mul_f32 v{VLS}, v{VLS}, v10')
            p('s_cmp_lg_u32 s59, 0')
            p(f's_cbranch_scc1 LF_rskip{nm}')
            for k in range(64): p(f'v_mul_f32 v{O+k}, v{O+k}, v10')
            p.label(f'LF_rskip{nm}')
            p(f'''
s_mov_b32 s{56+hf}, {THR:#x}
''')
            if hf == 1:
                p('s_mov_b32 s58, 0\ns_mov_b32 s59, 0')
            if nm == 'loop1': p('s_cmp_lt_u32 s55, 17')
            p(f's_branch LF_ret{nm}')
            p.end_branch()
    p.alt_branch(ool); emit_slow(); p.end_branch()
    p.label('LF_end')
    p('s_endpgm')
    return ('kf_kernel', p, 256, 512, 163840, 256, 256)
```

```python
from common import *
from k1 import ln_stream
import struct, math

def f2u(x): return struct.unpack('<I', struct.pack('<f', x))[0]
MF = 'v_mfma_f32_32x32x16_bf16'
SC = os.environ.get('FSC', ' sc1')
CNT_LN = 0; CNT_KV = 16; CNT_CTX = 32; CNT_REG = 48
LS = os.environ.get('LS', ' sc1')
SPIN_MAX = 1 << 22

KVSC = os.environ.get('KVSC', '')
KVN = int(os.environ.get('KVN', '0'))
def gen_kf():
    p = Prog()
    st = Stamps(p, 70, 10)
    st.skip = set(int(x) for x in os.environ.get('STSKIP', '').split(',') if x)
    def emit(lst):
        for f in lst:
            if isinstance(f, list): emit(f)
            elif callable(f): f(p)
            else: p(f)
    VL16 = 1
    uid = [0]
    def publish(sreg_idx_list):
        uid[0] += 1; L = f'LF_pub{uid[0]}'
        out = ['s_cmp_lg_u32 s20, 0', f's_cbranch_scc1 {L}', '@COND', 'v_mov_b32 v14, 1', 'v_mov_b32 v15, 0', 's_mov_b64 exec, 1']
        for s in sreg_idx_list:
            out.append(f'buffer_atomic_add v14, v15, s[96:99], s{s} offen sc1')
        out += ['s_mov_b64 exec, -1', '@ENDCOND', f'{L}:']
        return out
    def poll(pairs):
        uid[0] += 1; L = f'LF_poll{uid[0]}'
        out = ['s_cmp_lg_u32 s20, 0', f's_cbranch_scc1 {L}_done', '@COND', 'v_mov_b32 v15, 0', f's_mov_b32 s3, {SPIN_MAX}']
        for n, (s, tgt) in enumerate(pairs):
            out += [f'{L}_{n}:',
                    f'buffer_load_dword v14, v15, s[96:99], s{s} offen sc1',
                    's_waitcnt vmcnt(0)',
                    'v_readfirstlane_b32 s100, v14',
                    's_sub_u32 s3, s3, 1',
                    's_cmp_eq_u32 s3, 0',
                    f's_cbranch_scc1 {L}_acq',
                    f's_cmp_ge_u32 s100, {tgt}',
                    f's_cbranch_scc1 {L}_{n}_ok',
                    's_sleep 2',
                    f's_branch {L}_{n}',
                    f'{L}_{n}_ok:']
        out += [f'{L}_acq:', 'buffer_inv sc1', 's_waitcnt vmcnt(0)', '@ENDCOND', f'{L}_done:']
        return out
    def poll_noinv(pairs):
        out = poll(pairs)
        i = out.index('buffer_inv sc1')
        return out[:i] + out[i + 2:]
    slow = []
    def poll_issue(sregs, vb=14, vz=8):
        uid[0] += 1; L = f'LF_pi{uid[0]}'
        out = ['s_cmp_lg_u32 s20, 0', f's_cbranch_scc1 {L}', '@COND', f'v_mov_b32 v{vz}, 0']
        for n, s in enumerate(sregs): out.append(f'buffer_load_dword v{vb+n}, v{vz}, s[96:99], s{s} offen sc1')
        out += ['@ENDCOND', f'{L}:']
        return out
    def poll_check(pairs, inv_flag=None, vb=14):
        uid[0] += 1; L = f'LF_pc{uid[0]}'
        out = ['s_cmp_lg_u32 s20, 0', f's_cbranch_scc1 {L}', '@COND']
        for n, (s, tgt) in enumerate(pairs):
            out += [f'v_readfirstlane_b32 s100, v{vb+n}', f's_cmp_lt_u32 s100, {tgt}', f's_cbranch_scc1 {L}_slow']
        out += [f'{L}_ok:']
        if inv_flag is not None and inv_flag >= 0:
            out += [f's_cmp_lg_u32 s{inv_flag}, 0', f's_cbranch_scc1 {L}', (lambda pp: pp('buffer_inv sc1', 'inv'))]
        elif inv_flag is not None:
            out += [(lambda pp: pp('buffer_inv sc1', 'inv'))]
        out += ['@ENDCOND', f'{L}:']
        slow.append((L, pairs))
        return out
    def publish_kv():
        uid[0] += 1; L = f'LF_pkv{uid[0]}'
        return ['s_cmp_lg_u32 s20, 0', f's_cbranch_scc1 {L}', '@COND',
                'v_readfirstlane_b32 s100, v15',
                's_and_b32 s3, s100, 63', 's_bfe_u32 s29, s100, 0x90006', 's_lshr_b32 s30, s100, 15',
                's_mul_i32 s29, s29, s29', 's_lshl_b32 s30, s30, 5',
                's_cmp_eq_u32 s29, s30', 's_cselect_b32 s94, 1, 0',
                's_cmp_eq_u32 s3, 32', 's_cselect_b32 s94, s94, 0',
                's_cmp_lg_u32 s94, 0', f's_cbranch_scc1 {L}_fast',
                'buffer_wbl2 sc1', 's_waitcnt vmcnt(0)',
                f'{L}_fast:',
                'v_mov_b32 v14, 1', 'v_mov_b32 v15, 0', 's_mov_b64 exec, 1',
                'buffer_atomic_add v14, v15, s[96:99], s33 offen sc1',
                's_mov_b64 exec, -1', '@ENDCOND', f'{L}:']
    def w0_drain():
        uid[0] += 1; L = f'LF_dr{uid[0]}'
        return ['s_cmp_lg_u32 s20, 0', f's_cbranch_scc1 {L}', '@COND', (lambda pp: pp.wait_tag('inv')), '@ENDCOND', f'{L}:']
    def emit_slow():
        for L, pairs in slow:
            p.label(f'{L}_slow')
            p(f's_mov_b32 s3, {SPIN_MAX}')
            p('v_mov_b32 v8, 0')
            for n, (s, tgt) in enumerate(pairs):
                p(f"""
{L}_s{n}:
buffer_load_dword v14, v8, s[96:99], s{s} offen sc1
s_waitcnt vmcnt(0)
v_readfirstlane_b32 s100, v14
s_sub_u32 s3, s3, 1
s_cmp_eq_u32 s3, 0
s_cbranch_scc1 {L}_ok
s_cmp_ge_u32 s100, {tgt}
s_cbranch_scc1 {L}_s{n}_ok
s_sleep 2
s_branch {L}_s{n}
{L}_s{n}_ok:
""")
            p(f's_branch {L}_ok')
    p(f'''
s_cmp_ge_u32 s2, 256
s_cbranch_scc1 LF_end
s_load_dwordx4 s[28:31], s[0:1], 0
s_load_dwordx4 s[32:35], s[0:1], 24
s_load_dwordx4 s[36:39], s[0:1], 88
s_load_dwordx4 s[64:67], s[0:1], 56
s_load_dwordx2 s[68:69], s[0:1], 16
s_load_dwordx2 s[56:57], s[0:1], 40
s_load_dwordx2 s[58:59], s[0:1], 72
v_lshrrev_b32 v9, 6, v0
v_and_b32 v10, 63, v0
v_readfirstlane_b32 s20, v9
s_and_b32 s22, s2, 7
s_lshr_b32 s23, s2, 3
''')
    st.stamp()
    p('''
s_and_b32 s48, s23, 1
s_bfe_u32 s49, s23, 0x10001
s_lshr_b32 s50, s23, 2
s_lshl_b32 s51, s22, 9
s_lshl_b32 s3, s48, 8
s_add_u32 s51, s51, s3
''')
    p(f'v_lshlrev_b32 v{VL16}, 4, v10')
    STG = 65536
    p('''
v_lshrrev_b32 v11, 3, v10
v_and_b32 v12, 7, v10
v_lshrrev_b32 v13, 4, v10
v_xor_b32 v14, v12, v13
v_lshlrev_b32 v14, 4, v14
v_lshl_add_u32 v2, v11, 10, v14
v_xor_b32 v3, 64, v2
''')
    p('''
v_and_b32 v13, 1, v13
v_lshlrev_b32 v13, 2, v13
v_xor_b32 v14, v12, v13
v_lshlrev_b32 v14, 4, v14
v_lshl_add_u32 v4, v11, 13, v14
''')
    p(f'''
v_and_b32 v11, 31, v10
v_lshrrev_b32 v12, 5, v10
v_bfe_u32 v13, v11, 1, 3
v_xor_b32 v13, v12, v13
v_lshlrev_b32 v13, 4, v13
v_lshl_add_u32 v13, v11, 7, v13
s_lshl_b32 s52, s20, 13
s_add_u32 s52, s52, {STG}
v_add_u32 v16, s52, v13
v_xor_b32 v17, 32, v16
v_xor_b32 v18, 64, v16
v_xor_b32 v19, 96, v16
''')
    p('''
v_bfe_u32 v11, v10, 2, 2
v_lshl_add_u32 v13, v12, 3, v11
v_lshlrev_b32 v13, 7, v13
v_lshrrev_b32 v11, 1, v11
v_lshl_add_u32 v13, v11, 6, v13
v_bfe_u32 v11, v10, 4, 1
v_lshl_add_u32 v13, v11, 5, v13
v_and_b32 v11, 3, v10
v_lshl_add_u32 v20, v11, 3, v13
v_xor_b32 v21, 64, v20
v_add_u32 v22, 0x8000, v20
v_add_u32 v23, 0x8000, v21
v_add_u32 v24, 0x20000, v20
v_add_u32 v25, 0x20000, v21
v_add_u32 v26, 0x10000, v20
v_add_u32 v27, 0x10000, v21
v_lshlrev_b32 v14, 7, v10
v_lshrrev_b32 v15, 2, v10
v_lshlrev_b32 v15, 13, v15
v_and_b32 v11, 3, v10
v_lshl_add_u32 v15, v11, 7, v15
v_lshrrev_b32 v5, 1, v10
v_lshlrev_b32 v5, 10, v5
v_and_b32 v11, 1, v10
v_lshl_add_u32 v5, v11, 9, v5
''')
    p('s_waitcnt lgkmcnt(0)')
    srd(p, 12, 30, 31, 2 << 20)
    srd(p, 16, 28, 29, 2 << 20)
    srd(p, 8, 38, 39, WS_BYTES)
    srd(p, 96, 36, 37, 256)
    p('''
s_cmp_eq_u32 s49, 0
s_cselect_b32 s4, s32, s34
s_cselect_b32 s5, s33, s35
s_and_b32 s5, s5, 0xffff
s_mov_b32 s6, 0x400000
s_mov_b32 s7, 0x00020000
s_lshl_b32 s40, s50, 8
s_lshl_b32 s41, s20, 5
s_add_u32 s40, s40, s41
s_lshl_b32 s40, s40, 10
s_lshl_b32 s42, s20, 18
s_lshl_b32 s43, s51, 1
s_add_u32 s42, s42, s43
s_lshl_b32 s43, s20, 12
''')
    WS = [0, 32768, 131072, 65536]
    def wdma(u, q):
        sc = u >> 1; kh = u & 1
        return [f's_add_u32 m0, s43, {WS[u % 4] + q*1024}',
                f's_add_u32 s53, s42, {(kh*256 + 8*q)*8192 + sc*128}',
                (lambda pp: pp('buffer_load_dwordx4 v4, s[4:7], s53 offen lds', f'w{u}'))]
    def adma(e, jj):
        return [f's_add_u32 m0, s52, {(e&1)*4096 + jj*1024}',
                f's_add_u32 s54, s40, {8*jj*1024 + e*128}',
                (lambda pp: pp(f'buffer_load_dwordx4 v{2+(jj&1)}, s[12:15], s54 offen lds', f'a{e}'))]
    AR = 128
    def aread(e, k):
        ks = 4 * e + k
        return (lambda pp: pp(f'ds_read_b128 {vr(AR+4*ks,4)}, v{16+k} offset:{(e&1)*4096}', f'ar{e}'))
    for jj in range(4): emit(adma(0, jj))
    for q in range(4): emit(wdma(0, q))
    for jj in range(4): emit(adma(1, jj))
    p('''
s_lshl_b32 s29, s2, 3
s_add_u32 s29, s29, s20
s_lshl_b32 s30, s29, 10
''')
    LNR = 96; LNT = 100
    p(f'buffer_load_dwordx4 {vr(LNR,4)}, v{VL16}, s[16:19], s30 offen')
    if 'pf' in os.environ.get('XP1', '').split('_'):
        p("""
s_cmp_lt_u32 s2, 128
s_cselect_b32 s60, s32, s34
s_cselect_b32 s61, s33, s35
s_mov_b32 s62, 0x400000
s_and_b32 s3, s2, 127
s_lshl_b32 s3, s3, 15
s_lshl_b32 s53, s20, 13
s_add_u32 s3, s3, s53
s_lshl_b32 s53, s2, 13
s_cmp_eq_u32 s20, 4
s_cselect_b32 s60, s12, s60
s_cselect_b32 s61, s13, s61
s_cselect_b32 s62, s14, s62
s_cselect_b32 s3, s53, s3
s_cmp_gt_u32 s20, 4
s_cselect_b32 s3, 0x7f000000, s3
s_and_b32 s61, s61, 0xffff
s_mov_b32 s63, 0x00020000
buffer_load_dword v104, v14, s[60:63], s3 offen
""")
    for q in range(4): emit(wdma(1, q))
    p(f'''
s_lshr_b32 s44, s51, 7
s_lshl_b32 s44, s44, 19
s_lshl_b32 s45, s50, 3
s_add_u32 s45, s45, s20
s_lshl_b32 s45, s45, 13
s_add_u32 s44, s44, s45
s_mov_b32 s45, {KF_OFF:#x}
s_mov_b32 s46, {VF_OFF:#x}
s_cmp_eq_u32 s49, 0
s_cselect_b32 s45, s45, s46
s_add_u32 s41, s44, s45
s_lshr_b32 s31, s29, 5
s_lshl_b32 s31, s31, 15
s_and_b32 s3, s29, 31
s_lshl_b32 s3, s3, 4
s_add_u32 s31, s31, s3
s_lshr_b32 s32, s2, 4
s_lshl_b32 s32, s32, 2
s_lshr_b32 s33, s51, 8
s_add_u32 s33, s33, {CNT_KV}
s_lshl_b32 s33, s33, 2
s_getreg_b32 s3, hwreg(HW_REG_XCC_ID, 0, 4)
s_mul_i32 s53, s3, s3
s_lshl_b32 s53, s53, 15
s_lshl_b32 s3, s3, 6
s_add_u32 s53, s53, s3
s_add_u32 s53, s53, 1
s_add_u32 s101, s22, {CNT_REG}
s_lshl_b32 s101, s101, 2
s_cmp_lg_u32 s20, 0
s_cbranch_scc1 LF_noreg
@COND
v_mov_b32 v8, s53
v_mov_b32 v9, 0
s_mov_b64 exec, 1
buffer_atomic_add v8, v9, s[96:99], s101 offen sc1
s_mov_b64 exec, -1
@ENDCOND
LF_noreg:
''')
    if XF_OFF: p(f's_add_u32 s31, s31, {XF_OFF:#x}')
    p('''
s_and_b32 s3, s23, 3
s_lshl_b32 s21, s22, 2
s_add_u32 s21, s21, s3
s_lshr_b32 s24, s23, 2
s_lshr_b32 s25, s20, 2
s_and_b32 s26, s20, 3
s_sub_u32 s28, 15, s24
s_lshl_b32 s28, s28, 2
s_add_u32 s28, s28, s26
s_lshl_b32 s27, s24, 2
s_add_u32 s27, s27, s26
s_cmp_eq_u32 s25, 0
s_cselect_b32 s27, s28, s27
''')
    if os.environ.get('P1P', '1') == '1':
        p('s_cmp_eq_u32 s25, 0')
        p('s_cbranch_scc1 LF_noprio1')
        p('s_setprio 1')
        p.label('LF_noprio1')
    p.wait_tag('a0')
    for k in range(4): emit([aread(0, k)])
    p.wait_tag('ar0')
    for jj in range(4): emit(adma(2, jj))
    p.wait_tag('w0')
    p('s_barrier')
    st.stamp()
    p('s_cmp_lg_u32 s49, 0')
    p('s_cbranch_scc1 LF_v')

    WF = 32; NST = 4; ACC = 64; PK = 96
    def trread(u, kk):
        out = []
        for nt in range(2):
            w = WF + 8 * (kk % NST) + 4 * nt
            out.append(f'ds_read_b64_tr_b16 {vr(w,2)}, v{20+2*(u%4)+nt} offset:{kk*2048}')
            out.append(f'ds_read_b64_tr_b16 {vr(w+2,2)}, v{20+2*(u%4)+nt} offset:{kk*2048+512}')
        return out
    def kv_epilogue(sc, nt):
        g = []
        PKB = PK if sc < 3 else 32
        for half in range(2):
            pk = PKB + 8 * nt + 4 * half
            for i in range(4):
                s = ACC + 16 * nt + 8 * half + 2 * i
                g.append(f'v_cvt_pk_bf16_f32 v{pk+i}, v{s}, v{s+1}')
        off = (sc >> 1) * 524288 + (sc & 1) * 4096
        st_ = [[f's_add_u32 s55, s41, {off + nt*2048 + half*1024}',
                (lambda pp, half=half: pp(f'buffer_store_dwordx4 {vr(PKB+8*nt+4*half,4)}, v{VL16}, s[8:11], s55 offen{KVSC if sc >= KVN else SC}', 'kvst'))]
               for half in range(2)]
        return g, st_
    lns = ln_stream(LNR, LNT, LNT + 16)
    lns.append(lambda pp: pp(f'buffer_store_dwordx4 {vr(LNR,4)}, v5, s[8:11], s31 offen{SC}', 'lnst'))
    SLOT = 29184
    GSL = [0, SLOT, 131072, 65536]
    KSL = 0; VSL = 65536; QX = 131072
    GD = 28
    def p2_setup():
        q = Prog(); pp = q
        pp("""
v_and_b32 v10, 63, v0
v_lshrrev_b32 v11, 4, v10
v_bfe_u32 v12, v10, 2, 2
v_and_b32 v13, 3, v11
v_xor_b32 v12, v12, v13
v_lshlrev_b32 v12, 6, v12
v_and_b32 v13, 3, v10
v_lshl_add_u32 v12, v13, 4, v12
v_lshl_add_u32 v12, v11, 13, v12
s_lshl_b32 s29, s26, 17
v_add_u32 v28, s29, v12
v_add_u32 v29, 0x8000, v28
v_add_u32 v30, 0x10000, v28
v_add_u32 v31, 0x18000, v28
s_and_b32 s29, s20, 1
s_mul_i32 s29, s29, 192
s_mov_b32 s30, 43691
s_movk_i32 s34, 2752
s_cmp_eq_u32 s25, 0
s_cselect_b64 s[36:37], -1, 0
""")
        for t in range(3):
            pp(f"""
v_add_u32 v11, s29, v10
v_add_u32 v11, {64*t}, v11
v_mul_lo_u32 v12, v11, s30
v_lshrrev_b32 v12, 18, v12
v_mul_u32_u24 v13, 6, v12
v_sub_u32 v13, v11, v13
v_mul_lo_u32 v12, v12, s34
v_lshl_add_u32 v9, v13, 4, v12
v_cndmask_b32 v{28+t}, v9, v{28+t}, s[36:37]
""")
        pp('v_cndmask_b32 v31, v9, v31, s[36:37]')
        pp("""
v_lshrrev_b32 v11, 5, v10
v_bfe_u32 v12, v10, 2, 2
v_lshl_add_u32 v13, v11, 3, v12
v_lshlrev_b32 v6, 8, v13
v_lshl_add_u32 v6, v12, 6, v6
v_bfe_u32 v7, v10, 4, 1
v_lshl_add_u32 v6, v7, 5, v6
v_and_b32 v9, 3, v10
v_lshl_add_u32 v6, v9, 3, v6
v_mul_u32_u24 v13, 96, v13
v_mul_u32_u24 v7, 6272, v7
v_add_u32 v13, v13, v7
v_lshl_add_u32 v13, v9, 3, v13
v_add_u32 v7, 0x4000, v13
""")
        pp("""
s_mov_b32 s60, s68
s_mov_b32 s61, s69
s_cmp_eq_u32 s20, 2
s_cselect_b32 s60, s64, s60
s_cselect_b32 s61, s65, s61
s_cmp_eq_u32 s20, 3
s_cselect_b32 s60, s66, s60
s_cselect_b32 s61, s67, s61
s_cmp_ge_u32 s20, 4
s_cselect_b32 s60, s56, s60
s_cselect_b32 s61, s57, s61
s_cmp_ge_u32 s20, 6
s_cselect_b32 s60, s58, s60
s_cselect_b32 s61, s59, s61
s_and_b32 s61, s61, 0xffff
s_mov_b32 s63, 0x00020000
s_mov_b32 s62, 0x158000
s_movk_i32 s35, 5504
s_and_b32 s38, s20, 2
s_cmp_eq_u32 s38, 0
s_cselect_b32 s62, 0x400000, s62
s_cselect_b32 s35, 0x4000, s35
s_mul_i32 s35, s35, s2
s_and_b32 s39, s20, 1
s_lshl_b32 s39, s39, 13
s_cmp_eq_u32 s38, 0
s_cselect_b32 s39, s39, 0
s_add_u32 s35, s35, s39
s_cmp_ge_u32 s20, 4
s_cselect_b32 s35, 0x7f000000, s35
v_lshlrev_b32 v12, 3, v1
buffer_load_dword v11, v12, s[60:63], s35 offen
""")
        pp("""
s_bfe_u32 s29, s20, 0x10001
s_cmp_eq_u32 s29, 0
s_cselect_b32 s16, s64, s66
s_cselect_b32 s17, s65, s67
s_mov_b32 s18, 0x158000
s_cmp_eq_u32 s25, 0
s_cselect_b32 s16, s68, s16
s_cselect_b32 s17, s69, s17
s_cselect_b32 s18, 0x400000, s18
s_and_b32 s17, s17, 0xffff
s_mov_b32 s19, 0x00020000
s_lshl_b32 s56, s21, 8
s_mul_i32 s38, s21, 96
s_lshl_b32 s58, s26, 12
s_mul_i32 s39, s29, 6272
s_and_b32 s30, s20, 1
s_mul_i32 s30, s30, 3072
s_add_u32 s39, s39, s30
s_add_u32 s39, s39, 16384
s_cmp_eq_u32 s25, 0
s_cselect_b32 s56, s56, s38
s_mov_b32 s57, 0x2b000
s_cselect_b32 s57, 0x80000, s57
s_cselect_b32 s58, s58, s39
s_movk_i32 s59, 2048
s_cselect_b32 s59, 3072, s59
s_add_u32 s59, s59, s58
s_lshl_b32 s60, s27, 15
""")
        if XF_OFF: pp(f's_add_u32 s60, s60, {XF_OFF:#x}')
        return [i.text for i in q.items]
    GX = 128; GW = 192; GT = [48, 64, 80, 96, 112, 160, 176]
    def gdma(sl):
        base = GSL[sl % 4]
        out = []
        for t in range(4):
            out.append([f's_add_u32 m0, s{58 if t < 3 else 59}, {base + (t*1024 if t < 3 else 0)}',
                        's_nop 0',
                        (lambda pp, t=t, sl=sl: pp(f'buffer_load_dwordx4 v{GD+t}, s[16:19], s56 offen lds', f'g{sl}'))])
        out[3].append('s_add_u32 s56, s56, s57')
        return out
    def xload(sl):
        out = []
        b = GX + 16 * (sl & 1)
        for k in range(4):
            out.append(f'buffer_load_dwordx4 {vr(b+4*k,4)}, v{VL16}, s[8:11], s61 offen offset:{k*1024}{LS}')
        return [f's_add_u32 s61, s60, {sl*4096}'] + out

    alt = p.begin_alt(join=True)
    for variant in ('k', 'v'):
        p.alt_branch(alt)
        if variant == 'v': p.label('LF_v')
        for kk in range(3): emit(trread(0, kk))
        pend = []
        for u in range(8):
            sc = u >> 1; kh = u & 1
            bb = []; fl = {}
            def add(slot, items): fl.setdefault(slot, []).extend(items)
            for kk in range(16):
                ks = kh * 16 + kk
                for nt in range(2):
                    w = WF + 8 * (kk % NST) + 4 * nt
                    acc = vr(ACC + 16 * nt, 16); cc = '0' if ks == 0 else acc
                    A = vr(AR + 4 * ks, 4)
                    if variant == 'k': bb.append(f'{MF} {acc}, {vr(w,4)}, {A}, {cc}')
                    else:              bb.append(f'{MF} {acc}, {A}, {vr(w,4)}, {cc}')
            for kk in range(3, 16):
                t = trread(u, kk)
                s0 = min(2 * (kk - 3), 24)
                add(s0, t[:2]); add(s0 + 1, t[2:])
            if u < 2:
                for q4 in range(4):
                    e = 4 * kh + q4; base = 8 * q4
                    if e + 1 < 8:
                        add(base + 1, [lambda pp, e=e: pp.wait_tag(f'a{e+1}')])
                        for k_ in range(4): add(base + 1 + k_ // 2, [aread(e + 1, k_)])
                        if e + 3 < 8:
                            add(base + 5, [lambda pp, e=e: pp.wait_tag(f'ar{e+1}')])
                            for jj in range(4): add(base + 5 + jj // 2, adma(e + 3, jj))
            loads = {0: [2], 2: [3, 4], 3: [5], 4: [6], 5: [7]}.get(u, [])
            grps = [wdma(lu, q) for lu in loads for q in range(4)]
            if grps: spread(add, grps, 2 if u else 10, 25)
            X1 = os.environ.get('XP1', '')
            if u == 1: spread(add, atomic_groups(lns, 3), 1, 25)
            if u == 3: spread(add, atomic_groups(p2_setup(), 4), 10, 26)
            if kh == 0 and sc > 0:
                for nt in range(2):
                    g, st_ = kv_epilogue(sc - 1, nt)
                    fl.setdefault(('pre', nt), []).extend(g)
                    pend.extend(st_)
            if pend:
                a_, b_ = pend.pop(0), pend.pop(0)
                if 'nokvst' not in os.environ.get('XP1', ''): add(12, a_); add(24, b_)
            extra = []; post = []
            if u == (3 if 'latepub' in X1 else 2): extra = [lambda pp: pp.wait_tag('lnst')]; post = publish([32])
            if u == 5 and 'nopoll' not in X1: add(18, ['s_sub_u32 s29, 15, s24', 's_lshl_b32 s29, s29, 2', 's_lshl_b32 s30, s24, 2'] + poll_issue([29, 30]))
            if u == 5 and 'nopoll' not in X1: post = poll_check([(29, 16), (30, 16)])
            if u == 6 and 'nog01' not in X1:
                spread(add, gdma(0) + gdma(1), 1, 25)
            if u == 7 and 'nog01' in X1:
                spread(add, gdma(0) + gdma(1), 1, 25)
            if u == 7:
                xl = xload(0)
                spread(add, [xl[:2], [xl[2]], [xl[3]], [xl[4]]] + gdma(2), 1, 28)
            if u < 7:
                add(27, [lambda pp, u=u: pp.wait_tag(f'w{u+1}'), 's_waitcnt lgkmcnt(0)'] + extra + ['s_barrier'] + post)
                for kk in range(3):
                    t = trread(u + 1, kk)
                    add(min(27 + 2 * kk, 31), t[:2]); add(min(28 + 2 * kk, 31), t[2:])
            interleave(p, bb, fl)
            if os.environ.get('P1ST'): st.i = 2 + u; st.stamp()
        for nt in range(2):
            g, st_ = kv_epilogue(3, nt)
            emit(g); pend.extend(st_)
        if variant == 'k': p('s_branch LF_p2')
        p.end_branch()
    p.label('LF_p2')
    st.stamp()
    VK = 2; VV = 3; VZ = 4; VLS = 5; VM = 6; VTS = 7; VLSAVE = 8
    T0 = 9
    Q = 16; O = 48; S = [112, 128]; PP = [144, 152]; MN = 160; FR = 176; E = 208; TT = 216
    THR = f2u(float(2 ** 20)); NEG = f2u(-1e30); FLOOR1 = f2u(-1e20)
    p(f"""
s_lshl_b32 s44, s21, 19
s_lshl_b32 s46, s20, 11
s_add_u32 s44, s44, s46
s_add_u32 s45, s44, {VF_OFF:#x}
s_add_u32 s44, s44, {KF_OFF:#x}
s_lshl_b32 s47, s24, 1
s_add_u32 s47, s47, 2
""")
    AQ = [T0, T0 + 1, T0 + 2, T0 + 3]; AF_ = T0 + 4
    def set_addr(sl):
        base = GSL[sl % 4]
        out = [f'v_add_u32 v{AQ[0]}, {base}, v6']
        for nt in range(1, 4): out.append(f'v_xor_b32 v{AQ[nt]}, {nt<<6}, v{AQ[0]}')
        out.append(f'v_add_u32 v{AF_}, {base}, v7')
        return out
    assert all((s & 0xff) == 0 for s in GSL)
    def gtr(g):
        kk = g & 3; out = []
        for tl in range(7):
            w = GW + 28 * (g & 1) + 4 * tl
            if tl < 4:
                out.append(f'ds_read_b64_tr_b16 {vr(w,2)}, v{AQ[tl]} offset:{kk*4096}')
                out.append(f'ds_read_b64_tr_b16 {vr(w+2,2)}, v{AQ[tl]} offset:{kk*4096+1024}')
            else:
                o = kk * 1536 + (tl - 4) * 32
                out.append(f'ds_read_b64_tr_b16 {vr(w,2)}, v{AF_} offset:{o}')
                out.append(f'ds_read_b64_tr_b16 {vr(w+2,2)}, v{AF_} offset:{o+384}')
        return out
    def kvcopy(sbase, chunk_off, ldsbase, tag, tmp=43):
        return [f's_add_u32 m0, s46, {ldsbase}',
                f's_add_u32 s{tmp}, s{sbase}, {chunk_off}',
                (lambda pp: pp(f'buffer_load_dwordx4 v{VL16}, s[8:11], s{tmp} offen{LS} lds', tag)),
                (lambda pp: pp(f'buffer_load_dwordx4 v{VL16}, s[8:11], s{tmp} offen offset:1024{LS} lds', tag))]
    PUB_SL = int(os.environ.get('PUB_SL', '4'))
    PFN = 8; PFS = int(os.environ.get('PFS', '0')); PFO = int(os.environ.get('PFO', '0'))
    p.wait_tag('g0')
    p('s_waitcnt lgkmcnt(0)')
    p('s_barrier')
    emit(set_addr(0))
    emit(gtr(0))
    for sl in range(8):
        bb = []; fl = {}
        def add(slot, items): fl.setdefault(slot, []).extend(items)
        for kk in range(4):
            g = sl * 4 + kk
            xb = GX + 16 * (sl & 1) + 4 * kk
            for tl in range(7):
                w = GW + 28 * (g & 1) + 4 * tl
                acc = vr(GT[tl], 16); cc = '0' if g == 0 else acc
                bb.append(f'{MF} {acc}, {vr(w,4)}, {vr(xb,4)}, {cc}')
            ng = g + 1
            if ng < 32:
                if kk == 3: add(7 * kk - 1, set_addr(sl + 1))
                rd = gtr(ng)
                for i in range(7): add(7 * kk + i, rd[2 * i:2 * i + 2])
        if sl + 1 < 8:
            xl = xload(sl + 1)
            add(0, xl[:1])
            for k in range(4): add(1 + k, [xl[1 + k]])
            pre = []; post = []
            if sl < 4: add(10, pend[sl])
            if sl == PUB_SL:
                pre = [lambda pp: pp.wait_tag('kvst')]; post = publish_kv()
            if sl == PUB_SL - 1:
                add(6, poll_issue([101, 101]))
            if sl == 6:
                add(8, [f's_lshr_b32 s29, s21, 1', f's_add_u32 s29, s29, {CNT_KV}', 's_lshl_b32 s29, s29, 2'] + poll_issue([29]))
                post = poll_check([(29, 16)], inv_flag=(94 if os.environ.get('KVINV', 'cond') == 'cond' else -1))

            add(17, [lambda pp, sl=sl: pp.wait_tag(f'g{sl+1}')] + pre + ['s_barrier'] + post)
            if sl + 3 < 8:
                for t, grp in enumerate(gdma(sl + 3)): add(18 + 2 * t if t < 1 else 21 + 2 * (t - 1), grp)
        interleave(p, bb, fl)
    st.stamp()
    p('s_waitcnt lgkmcnt(0)')
    emit(w0_drain())
    p('s_barrier')
    emit(kvcopy(44, 0, KSL, 'k0'))
    emit(kvcopy(44, 16384, KSL + 32768, 'k1'))
    emit(kvcopy(45, 0, VSL, 'v0'))
    p("""
s_load_dwordx2 s[56:57], s[0:1], 40
s_load_dwordx2 s[58:59], s[0:1], 72
s_waitcnt lgkmcnt(0)
s_cmp_ge_u32 s20, 2
s_cselect_b32 s60, s58, s56
s_cselect_b32 s61, s59, s57
s_mov_b32 s62, 0x400000
s_cselect_b32 s62, 0x158000, s62
s_movk_i32 s35, 0x4000
s_cselect_b32 s35, 5504, s35
s_and_b32 s61, s61, 0xffff
s_mov_b32 s63, 0x00020000
s_mul_i32 s35, s35, s2
s_cmp_eq_u32 s20, 1
s_cselect_b32 s39, 0x2000, 0
s_add_u32 s35, s35, s39
s_cmp_ge_u32 s20, 3
s_cselect_b32 s35, 0x7f000000, s35
v_lshlrev_b32 v12, 3, v1
buffer_load_dword v255, v12, s[60:63], s35 offen
s_lshr_b32 s17, s23, 2
s_and_b32 s18, s23, 3
s_cmp_ge_u32 s17, 6
s_cselect_b32 s12, s58, s56
s_cselect_b32 s13, s59, s57
s_mov_b32 s14, 0x400000
s_cselect_b32 s14, 0x158000, s14
s_cselect_b32 s19, 6, 0
s_and_b32 s13, s13, 0xffff
s_mov_b32 s15, 0x00020000
s_sub_u32 s19, s17, s19
s_mul_i32 s16, s19, 43
s_cmp_eq_u32 s17, 5
s_cselect_b32 s19, 1, 0
s_sub_u32 s16, s16, s19
s_lshl_b32 s16, s16, 4
s_mul_i32 s18, s18, 84
s_add_u32 s16, s16, s18
s_mul_i32 s18, s20, PFROWS
s_add_u32 s16, s16, s18
s_lshl_b32 s16, s16, 10
v_lshlrev_b32 v249, 3, v1
""".replace('PFROWS', str(PFN * PFS)))
    CQ = f2u(math.log2(math.e) / math.sqrt(128.0))
    p(f's_mov_b32 s48, {CQ:#x}')
    p(f's_mov_b32 s49, {CQ:#x}')
    for tl in range(4):
        for i in range(8): p(f'v_pk_mul_f32 {vr(GT[tl]+2*i,2)}, {vr(GT[tl]+2*i,2)}, s[48:49]')
        for i in range(8): p(f'v_cvt_pk_bf16_f32 v{Q+8*tl+i}, v{GT[tl]+2*i}, v{GT[tl]+2*i+1}')
    p(f'''
s_lshl_b32 s49, s26, 13
s_add_u32 s49, s49, {QX}
v_add_u32 v9, s49, v{VL16}
s_cmp_lg_u32 s25, 0
s_cbranch_scc1 LF_noqx
@COND
''')
    for ks in range(8): p(f'ds_write_b128 v9, {vr(Q+4*ks,4)} offset:{ks*1024}')
    p('s_waitcnt lgkmcnt(0)')
    p('@ENDCOND')
    p.label('LF_noqx')
    KG = -2.0 * math.sqrt(2.0 / math.pi) * math.log2(math.e)
    p(f's_mov_b32 s50, {f2u(KG*0.044715):#x}')
    p(f's_mov_b32 s51, {f2u(KG*0.044715):#x}')
    p(f'v_mov_b32 v{GW+16}, {f2u(KG):#x}')
    p(f'v_mov_b32 v{GW+17}, {f2u(KG):#x}')
    p(f'''
s_mul_i32 s52, s27, {AF_MT}
s_mul_i32 s53, s21, 3
s_add_u32 s54, s53, 256
s_lshl_b32 s54, s54, 10
s_add_u32 s52, s52, s54
s_add_u32 s52, s52, {AF_OFF:#x}
''')
    for tt in range(3):
        a = GT[4 + tt]; t = GW
        p(f's_add_u32 s54, s53, {tt}')
        p('s_cmp_ge_u32 s54, 86')
        p(f's_cbranch_scc1 LF_ffn_skip{tt}')
        p('@COND')
        P2 = lambda r: vr(r, 2)
        for i in range(0, 8, 2): p(f'v_pk_mul_f32 {P2(t+i)}, {P2(a+i)}, {P2(a+i)}')
        for i in range(0, 8, 2): p(f'v_pk_fma_f32 {P2(t+i)}, {P2(t+i)}, s[50:51], {P2(t+16)}')
        for i in range(0, 8, 2): p(f'v_pk_mul_f32 {P2(t+i)}, {P2(t+i)}, {P2(a+i)}')
        for i in range(8): p(f'v_exp_f32 v{t+i}, v{t+i}')
        for i in range(0, 8, 2): p(f'v_pk_mul_f32 {P2(t+8+i)}, {P2(a+i)}, {P2(a+8+i)}')
        for i in range(0, 8, 2): p(f'v_pk_add_f32 {P2(t+i)}, {P2(t+i)}, 1.0 op_sel_hi:[1,0]')
        for i in range(8): p(f'v_rcp_f32 v{t+i}, v{t+i}')
        for i in range(0, 8, 2): p(f'v_pk_mul_f32 {P2(t+i)}, {P2(t+i)}, {P2(t+8+i)}')
        for i in range(4): p(f'v_cvt_pk_bf16_f32 v{t+20+4*tt+i}, v{t+2*i}, v{t+2*i+1}')
        p(f'buffer_store_dwordx4 {vr(t+20+4*tt,4)}, v{VL16}, s[8:11], s52 offen offset:{tt*1024}{SC}')
        p('@ENDCOND')
        p.label(f'LF_ffn_skip{tt}')
    st.stamp()
    for i in range(0, 64, 2): p(f'v_pk_mov_b32 {vr(O+i,2)}, 0, 0')
    for i in range(0, 16, 2): p(f'v_pk_mov_b32 {vr(MN+i,2)}, 0, 0')
    p(f"""
v_mov_b32 v{VLS}, 0
v_mov_b32 v{VM}, 0
v_mov_b32 v{VLSAVE}, 0
s_mov_b32 s56, {THR:#x}
s_mov_b32 s57, 0xbf800000
s_mov_b32 s58, {FLOOR1:#x}
s_mov_b32 s59, 1
s_mov_b32 s60, 1.0
s_mov_b32 s61, s27
s_mov_b32 s62, 0
s_lshl_b32 s67, s25, 14
v_add_u32 v{VK}, {KSL}, v{VL16}
v_add_u32 v{VV}, {VSL}, v{VL16}
v_and_b32 v10, 63, v0
v_and_b32 v12, 31, v10
v_lshrrev_b32 v11, 5, v10
v_lshlrev_b32 v13, 2, v11
v_sub_u32 v{VZ}, v12, v13
s_mov_b32 s55, 0
s_mov_b32 s63, 16384
s_add_u32 s64, s46, 32768
s_lshl_b32 s49, s47, 1
s_add_u32 s49, s49, 2
s_cmp_eq_u32 s25, 0
s_cselect_b32 s49, 0, s49
s_cselect_b32 s66, 32, s27
s_lshl_b32 s68, s47, 1
s_add_u32 s68, s68, 4
s_min_u32 s68, s68, 32
s_cmp_eq_u32 s20, 0
s_cselect_b32 s66, s68, s66
""")
    p('s_waitcnt vmcnt(0) lgkmcnt(0)')
    p('s_barrier')
    st.stamp()

    def frag_read(f):
        hf = f >> 4; i = f & 15; dst = vr(FR + 4 * (f % 8), 4)
        if i < 8:  return f'ds_read_b128 {dst}, v{VK} offset:{hf*8192 + i*1024}'
        else:      return f'ds_read_b128 {dst}, v{VV} offset:{hf*8192 + (i-8)*1024}'
    def mfma(f):
        hf = f >> 4; i = f & 15; fr = vr(FR + 4 * (f % 8), 4)
        if i < 8:
            s = vr(S[hf], 16); c = vr(MN, 16) if i == 0 else s
            return f'{MF} {s}, {fr}, {vr(Q+4*i,4)}, {c}'
        dt = (i - 8) >> 1; tp = (i - 8) & 1
        o = vr(O + 16 * dt, 16)
        return f'{MF} {o}, {fr}, {vr(PP[hf]+4*tp,4)}, {o}'
    def bstage(hf, nslots):
        c = S[1 - hf]; pp_ = PP[1 - hf]
        groups = [[] for _ in range(nslots)]
        span = nslots - 2
        pos_e = [(kk * span) // 16 for kk in range(16)]
        late = [[] for _ in range(nslots)]
        for k in range(8):
            ea = E + (2 * k) % 8; eb = E + (2 * k + 1) % 8
            groups[pos_e[2 * k]].append(f'v_exp_f32 v{ea}, v{c+2*k}')
            groups[pos_e[2 * k + 1]].append(f'v_exp_f32 v{eb}, v{c+2*k+1}')
            sa = pos_e[2 * k] + 1; sb = pos_e[2 * k + 1] + 1
            if k == 0:
                late[sb].append(f'v_add_f32 v{VTS}, v{ea}, v{eb}')
            else:
                late[sa].append(f'v_add_f32 v{VTS}, v{VTS}, v{ea}')
                late[sb].append(f'v_add_f32 v{VTS}, v{VTS}, v{eb}')
            late[sb].append(f'v_cvt_pk_bf16_f32 v{pp_+k}, v{ea}, v{eb}')
        return [late[i] + groups[i] for i in range(nslots)]
    outl = []
    DIST = int(os.environ.get('DIST', '4'))
    DS_ = int(os.environ.get('DMAS', '2')); D0_ = int(os.environ.get('DMA0', '1')); NTAIL = int(os.environ.get('NTAIL', '0'))

    def step(kind):
        doA = kind != 'drain'
        slots = []
        for f in range(32):
            hf = f >> 4; i = f & 15
            isA = i < 8
            if isA and not doA: continue
            if not isA and kind == 'first': continue
            slots.append(f)
        pos = {f: n for n, f in enumerate(slots)}
        bb = [mfma(f) for f in slots]
        fl = {}
        def add(n, items): fl.setdefault(n, []).extend(items)
        nS = len(slots)
        last_read_slot = nS - DIST - 2
        for n in range(DIST, nS):
            add(min(n - DIST, last_read_slot) if kind != 'drain' else n - DIST, [frag_read(slots[n])])
        for hf in range(2):
            if kind == 'first' and hf == 0: continue
            if kind == 'drain' and hf == 1: continue
            hs = [n for n, f in enumerate(slots) if (f >> 4) == hf]
            groups = bstage(hf, len(hs))
            for gi, g in enumerate(groups): add(hs[gi], g)
            nm = f'{kind}{hf}'
            add(hs[-2], [f'v_cmp_nge_f32 vcc, s{56+hf}, v{VTS}'])
            add(hs[-1], [f's_cbranch_vccnz LF_rare{nm}', f'LF_ret{nm}:', f'v_add_f32 v{VLS}, v{VLS}, v{VTS}'])
            outl.append(('rare', nm, hf))
        for hf in range(2):
            if kind == 'drain' and hf == 1: continue
            nm = f'{kind}{hf}'
            first_slot = [n for n, f in enumerate(slots) if (f >> 4) == hf][0]
            fl.setdefault(('pre', first_slot), []).extend(
                ['s_cmp_ge_u32 s62, s66', f's_cbranch_scc1 LF_evt{nm}', f'LF_eret{nm}:'])
            add(first_slot, ['s_add_u32 s62, s62, 1'])
            outl.append(('evt', nm, hf))
        return bb, fl, add, pos, slots

    def prep_next():
        return [['s_add_u32 s55, s55, 1', 's_and_b32 s50, s55, 1'],
                ['s_lshl_b32 s50, s50, 15', 's_cmp_ge_u32 s55, s47'],
                ['s_cselect_b32 s69, s67, 0', 's_add_u32 s50, s50, s69', f's_add_u32 s50, s50, {KSL}']]
    def barrier_blk():
        return ['s_waitcnt vmcnt(0) lgkmcnt(0)', 's_barrier',
                f'v_add_u32 v{VV}, {(VSL - KSL) & 0xffffffff:#x}, v{VK}',
                f'v_add_u32 v{VK}, s50, v{VL16}']
    def dma_issue(name):
        L = f'buffer_load_dwordx4 v{VL16}, s[8:11], s43 offen{LS} lds'
        L2 = f'buffer_load_dwordx4 v{VL16}, s[8:11], s43 offen offset:1024{LS} lds'
        g = []
        g.append([f's_add_u32 m0, s64, {VSL}', 's_add_u32 s43, s45, s63', L])
        g.append([L2, 's_cmp_lt_u32 s55, s47'])
        g.append([f's_cbranch_scc1 LF_nov2{name}', '@COND', f's_add_u32 m0, s64, {VSL + 16384}', 's_add_u32 s43, s43, 16384', L, L2,
                  's_add_u32 s63, s63, 16384', '@ENDCOND', f'LF_nov2{name}:'])
        g.append(['s_add_u32 s63, s63, 16384', 's_xor_b32 s64, s64, 32768'])
        g.append([f's_add_u32 m0, s64, {KSL}', 's_add_u32 s43, s44, s63', L])
        g.append([L2, 's_add_u32 s65, s55, 1', 's_cmp_lt_u32 s65, s47'])
        g.append([f's_cbranch_scc1 LF_nok{name}', '@COND', f's_add_u32 m0, s64, {KSL + 16384}', 's_add_u32 s43, s43, 16384', L, L2,
                  '@ENDCOND', f'LF_nok{name}:'])
        return g

    PRIO = os.environ.get('PRIO', '1')
    if PRIO:
        p(f's_cmp_eq_u32 s25, {0 if PRIO == "1" else 1}')
        p('s_cbranch_scc1 LF_noprio')
        p('s_setprio 1')
        p.label('LF_noprio')
    bb, fl, add, pos, slots = step('first')
    for n in range(DIST): p(frag_read(slots[n]))
    nS = len(slots)
    for gi, g in enumerate(prep_next()): add(4 + gi, g)
    add(nS - DIST, barrier_blk())
    for n in range(DIST): add(nS - DIST + n, [frag_read(n)])
    if NTAIL:
        add(nS - DIST, [x for g in dma_issue('first')[:NTAIL] for x in g])
    interleave(p, bb, fl)
    p.begin_loop()
    p.label('LF_loop')
    bb, fl, add, pos, slots = step('loop')
    XP = os.environ.get('XP', '')
    if 'nodma' not in XP:
        for gi, g in enumerate(dma_issue('loop')[NTAIL:]): add(D0_ + DS_ * gi, g)
    if PFS:
        blk = [f's_cmp_lt_u32 s55, {17 - PFS - PFO}', 's_cbranch_scc1 LF_nopf', f's_cmp_ge_u32 s55, {17 - PFO}', 's_cbranch_scc1 LF_nopf', '@COND',
               f'buffer_load_dword v248, v249, s[12:15], s16 offen',
               f's_add_u32 s16, s16, 8192', '@ENDCOND', 'LF_nopf:']
        add(2, blk)
    for gi, g in enumerate(prep_next()): add(27 - DIST + gi, g)
    nb_ = barrier_blk()
    if 'nobar' in XP: nb_ = [x for x in nb_ if x != 's_barrier']
    add(32 - DIST, nb_)
    for n in range(DIST): add(min(32 - DIST + n, 30), [frag_read(n)])
    if NTAIL:
        add(32 - DIST, ['s_cmp_ge_u32 s55, 17', 's_cbranch_scc1 LF_notail', '@COND'] + [x for g in dma_issue('tail')[:NTAIL] for x in g] + ['@ENDCOND', 'LF_notail:'])
    add(30, ['s_cmp_lt_u32 s55, 17'])
    if XP:
        for kk_ in fl: fl[kk_] = [x for x in fl[kk_] if not (isinstance(x, str) and x.startswith('s_cbranch_vccnz'))]
    if 'noexp' in XP:
        for kk_ in fl: fl[kk_] = [x.replace('v_exp_f32', 'v_mov_b32') if isinstance(x, str) else x for x in fl[kk_]]
    if 'novalu' in XP:
        for kk_ in fl: fl[kk_] = [x for x in fl[kk_] if not (isinstance(x, str) and x.startswith(('v_exp', 'v_add_f32 v7', 'v_cvt')))]
    if 'nolds' in XP:
        for kk_ in fl: fl[kk_] = [x for x in fl[kk_] if not (isinstance(x, str) and x.startswith('ds_read'))]
    interleave(p, bb, fl)
    p('s_cbranch_scc1 LF_loop')
    p.end_loop()
    st.stamp()
    p('s_waitcnt lgkmcnt(0)')
    bb, fl, add, pos, slots = step('drain')
    for n in range(DIST): p(frag_read(slots[n]))
    interleave(p, bb, fl)
    st.stamp()
    p(f"""
s_cmp_ge_u32 s24, 4
s_cselect_b32 s17, 8, 0
s_add_u32 s17, s17, s22
s_add_u32 s17, s17, {CNT_CTX}
s_lshl_b32 s17, s17, 2
""")
    if os.environ.get('P4X', '0') == '1': emit(poll_issue([17], vb=250, vz=251))
    p(f'''
v_mov_b32 v9, v{VLS}
v_permlane32_swap_b32 v{VLS}, v9
v_add_f32 v{VLS}, v{VLS}, v9
s_waitcnt lgkmcnt(0)
s_barrier
''')
    p(f'''
s_mul_i32 s49, s20, 8704
s_xor_b32 s50, s20, 4
s_mul_i32 s50, s50, 8704
v_add_u32 v9, s49, v{VL16}
v_add_u32 v10, s50, v{VL16}
v_lshrrev_b32 v11, 1, v{VL16}
v_add_u32 v12, s49, v11
v_add_u32 v13, s50, v11
v_mov_b32 v14, v{VLS}
v_mov_b32 v15, v{VM}
s_cmp_eq_u32 s25, 0
s_cbranch_scc1 LF_mg0
''')
    X = TT
    alt = p.begin_alt(join=True)
    for g in (1, 0):
        p.alt_branch(alt)
        if g == 0: p.label('LF_mg0')
        keep = O + 32 * g; send = O + 32 * (1 - g)
        for k in range(8): p(f'ds_write_b128 v9, {vr(send+4*k,4)} offset:{k*1024}')
        p('ds_write_b64 v12, v[14:15] offset:8192')
        p('s_waitcnt lgkmcnt(0)')
        p('s_barrier')
        p(f'ds_read_b64 v[{E}:{E+1}], v13 offset:8192')
        for k in range(8): p(f'ds_read_b128 {vr(X+4*k,4)}, v10 offset:{k*1024}')
        p(f'''
v_max_f32 v{E+2}, v{VM}, v{E+1}
v_sub_f32 v{E+4}, v{VM}, v{E+2}
v_sub_f32 v{E+6}, v{E+1}, v{E+2}
v_exp_f32 v{E+4}, v{E+4}
v_exp_f32 v{E+6}, v{E+6}
v_mul_f32 v{E+3}, v{E+4}, v{VLS}
v_fmac_f32 v{E+3}, v{E+6}, v{E}
v_rcp_f32 v{E+3}, v{E+3}
v_mul_f32 v{E+4}, v{E+4}, v{E+3}
v_mul_f32 v{E+6}, v{E+6}, v{E+3}
''')
        for i in range(0, 32, 2):
            p(f'v_pk_mul_f32 {vr(keep+i,2)}, {vr(keep+i,2)}, {vr(E+4,2)} op_sel_hi:[1,0]')
            p(f'v_pk_fma_f32 {vr(keep+i,2)}, {vr(X+i,2)}, {vr(E+6,2)}, {vr(keep+i,2)} op_sel_hi:[1,0,1]')
        for i in range(16): p(f'v_cvt_pk_bf16_f32 v{S[0]+i}, v{keep+2*i}, v{keep+2*i+1}')
        p(f'''
s_mul_i32 s52, s28, {AF_MT}
s_lshl_b32 s54, s21, 13
s_add_u32 s52, s52, s54
s_add_u32 s52, s52, {AF_OFF + g*4096:#x}
''')
        for k in range(4): p(f'buffer_store_dwordx4 {vr(S[0]+4*k,4)}, v{VL16}, s[8:11], s52 offen offset:{k*1024}{SC}')
        if g == 1: p('s_branch LF_p4')
        p.end_branch()
    p.label('LF_p4')
    P4P = os.environ.get('P4P', '1')
    if PRIO and P4P == '0': p('s_setprio 0')
    st.stamp()
    NK = 43; D = int(os.environ.get("K3D", "6"))
    NL = int(os.environ.get("K3L", "9")); NR = int(os.environ.get("K3R", "12"))
    VA1 = 2; VW = 3; VT = [4, 5]
    ACT = 16; WF4 = ACT + 8 * D; ACC4 = WF4 + 16; WR = ACC4 + 64; XR = 240
    assert WR + 8 * NR <= XR
    AF_END = AF_OFF + 64 * AF_MT
    p(f"""
s_load_dwordx2 s[28:29], s[0:1], 40
s_load_dwordx4 s[32:35], s[0:1], 72
s_load_dwordx2 s[30:31], s[0:1], 0
s_load_dwordx2 s[36:37], s[0:1], 96
v_and_b32 v10, 63, v0
v_add_u32 v{VA1}, {AF_MT}, v{VL16}
v_lshrrev_b32 v11, 3, v10
v_and_b32 v12, 7, v10
v_bfe_u32 v13, v10, 4, 1
v_lshlrev_b32 v13, 2, v13
v_xor_b32 v12, v12, v13
v_lshlrev_b32 v12, 4, v12
v_lshl_add_u32 v{VW}, v11, 10, v12
v_lshrrev_b32 v11, 5, v10
v_bfe_u32 v12, v10, 2, 2
v_lshl_add_u32 v13, v11, 2, v12
v_lshlrev_b32 v13, 7, v13
v_lshrrev_b32 v12, 1, v12
v_lshl_add_u32 v13, v12, 6, v13
v_bfe_u32 v12, v10, 4, 1
v_lshl_add_u32 v13, v12, 5, v13
v_and_b32 v12, 3, v10
v_lshl_add_u32 v13, v12, 3, v13
s_mul_i32 s25, s20, {NL*2048}
v_add_u32 v{VT[0]}, s25, v13
v_xor_b32 v{VT[1]}, 64, v{VT[0]}
s_mul_i32 s26, s20, 43
s_cmp_ge_u32 s20, 4
s_cselect_b32 s27, 1, 0
s_sub_u32 s26, s26, s27
s_cmp_ge_u32 s20, 5
s_cselect_b32 s27, 1, 0
s_sub_u32 s26, s26, s27
s_and_b32 s44, s23, 7
s_bfe_u32 s45, s23, 0x10003
s_cmp_ge_u32 s24, 4
s_cselect_b32 s46, 8, 0
s_add_u32 s46, s46, s22
s_lshl_b32 s47, s46, 1
s_add_u32 s47, s47, s45
s_sub_u32 s48, 15, s24
s_add_u32 s48, s48, {CNT_CTX}
s_lshl_b32 s48, s48, 2
s_add_u32 s49, s24, {CNT_CTX}
s_lshl_b32 s49, s49, 2
s_add_u32 s50, s46, {CNT_CTX}
s_lshl_b32 s50, s50, 2
""")
    st.stamp()
    p('s_waitcnt vmcnt(0) lgkmcnt(0)')
    st.stamp()
    p('s_barrier')
    st.stamp()
    emit(publish([48]))
    p('s_cmp_lg_u32 s24, 7')
    p('s_cbranch_scc1 LF_nopubS2')
    emit(publish([49]))
    p.label('LF_nopubS2')
    srd(p, 12, 36, 37, AF_END)
    srd(p, 16, 30, 31, 2 << 20)
    srd(p, 36, 34, 35, 2 << 20)
    p(f"""
s_cmp_ge_u32 s20, 6
s_cselect_b32 s4, s32, s28
s_cselect_b32 s5, s33, s29
s_mov_b32 s6, 0x400000
s_cselect_b32 s6, 0x158000, s6
s_and_b32 s5, s5, 0xffff
s_mov_b32 s7, 0x00020000
s_mul_i32 s40, s47, {2*AF_MT}
s_lshl_b32 s43, s26, 10
s_add_u32 s40, s40, s43
s_add_u32 s40, s40, {AF_OFF:#x}
s_cmp_ge_u32 s20, 6
s_cselect_b32 s43, 256, 0
s_sub_u32 s43, s26, s43
s_lshl_b32 s42, s43, 14
s_lshl_b32 s43, s44, 7
s_add_u32 s42, s42, s43
s_sub_u32 s51, s20, 4
s_cmp_lt_u32 s51, 2
s_cselect_b32 s41, 0x7fff0000, s40
s_cselect_b32 s52, 0x4000, 0
s_add_u32 s52, s52, s42
""")
    def wloads(ks):
        sl = ks % NL
        if ks == 0:
            a0 = ['s_mov_b32 s54, s52', 's_add_u32 s53, s52, 0x2000']
        else:
            a0 = [f's_add_u32 s54, s42, {ks*16384}', f's_add_u32 s53, s42, {ks*16384+8192}']
        return [f's_add_u32 m0, s25, {sl*2048}'] + a0 + [
                (lambda pp: pp(f'buffer_load_dwordx4 v{VW}, s[4:7], s54 offen lds', f'x{ks}')),
                f's_add_u32 m0, s25, {sl*2048+1024}', 's_nop 0',
                (lambda pp: pp(f'buffer_load_dwordx4 v{VW}, s[4:7], s53 offen lds', f'x{ks}'))]
    def aloads(ks):
        a = ACT + 8 * (ks % D)
        pre = ['s_mov_b32 s55, s41'] if ks == 0 else [f's_add_u32 s55, s40, {ks*1024}']
        return pre + [f'buffer_load_dwordx4 {vr(a,4)}, v{VL16}, s[12:15], s55 offen{LS}',
                      f'buffer_load_dwordx4 {vr(a+4,4)}, v{VA1}, s[12:15], s55 offen{LS}']
    p(f"""
s_lshr_b32 s56, s20, 2
s_bfe_u32 s57, s20, 0x10001
s_and_b32 s58, s20, 1
s_lshl_b32 s59, s47, 6
s_lshl_b32 s60, s57, 5
s_add_u32 s59, s59, s60
s_lshl_b32 s59, s59, 10
s_lshl_b32 s60, s44, 6
s_lshl_b32 s61, s56, 5
s_add_u32 s60, s60, s61
s_lshl_b32 s61, s58, 4
s_add_u32 s60, s60, s61
s_lshl_b32 s60, s60, 1
s_add_u32 s59, s59, s60
v_and_b32 v11, 31, v10
v_lshrrev_b32 v12, 5, v10
v_lshlrev_b32 v11, 10, v11
v_lshl_add_u32 v9, v12, 3, v11
buffer_load_dwordx2 v[{XR}:{XR+1}], v9, s[16:19], s59 offen
buffer_load_dwordx2 v[{XR+2}:{XR+3}], v9, s[16:19], s59 offen offset:16
""")
    def p4_main(NR_, early):
        def wreg(ks, nt):
            return (WR + 8 * ks + 4 * nt) if ks < NR_ else (WF4 + 8 * (ks & 1) + 4 * nt)
        def trr(ks):
            sl = ks % NL; out = [lambda pp: pp.wait_tag(f'x{ks}')]
            for nt in range(2):
                w = wreg(ks, nt)
                out.append((lambda pp, w=w, nt=nt: pp(f'ds_read_b64_tr_b16 {vr(w,2)}, v{VT[nt]} offset:{sl*2048}', f'r{ks}')))
                out.append((lambda pp, w=w, nt=nt: pp(f'ds_read_b64_tr_b16 {vr(w+2,2)}, v{VT[nt]} offset:{sl*2048+1024}', f'r{ks}')))
            return out
        if early:
            emit(poll_check([(50, 32)], vb=250))
            p('s_barrier')
            for ks in range(NL):
                emit(wloads(ks))
                if ks < D: emit(aloads(ks))
            emit(trr(0))
        else:
            for ks in range(NL): emit(wloads(ks))
            for ks in range(NR_):
                emit(trr(ks))
                if ks >= 1:
                    p.wait_tag(f'r{ks-1}')
                    emit(wloads(ks - 1 + NL))
            p.wait_tag(f'r{NR_-1}')
            emit(wloads(NR_ - 1 + NL))
            emit(poll_noinv([(50, 32)]))
            p('s_barrier')
            for ks in range(D): emit(aloads(ks))
        for ks in range(NK):
            a = ACT + 8 * (ks % D)
            if NR_ <= ks + 1 < NK: emit(trr(ks + 1))
            for nt in range(2):
                for mt in range(2):
                    w = wreg(ks, nt)
                    acc = vr(ACC4 + 16 * (2 * nt + mt), 16); cc = '0' if ks == 0 else acc
                    p(f'{MF} {acc}, {vr(w,4)}, {vr(a+4*mt,4)}, {cc}')
            if ks + D < NK: emit(aloads(ks + D))
            if ks >= NR_ and ks + NL < NK:
                p.wait_tag(f'r{ks}')
                emit(wloads(ks + NL))
        p('s_waitcnt vmcnt(0)')
    if os.environ.get('P4X', '0') == '1':
        p('s_cmp_ge_u32 s24, 4')
        p('s_cbranch_scc1 LF_p4y')
        alt4 = p.begin_alt(join=True)
        p.alt_branch(alt4); p4_main(0, True); p('s_waitcnt lgkmcnt(0)'); p('s_branch LF_p4j'); p.end_branch()
        p.alt_branch(alt4); p.label('LF_p4y'); p4_main(NR, False); p('s_waitcnt lgkmcnt(0)'); p.end_branch()
        p.label('LF_p4j')
    else:
        p4_main(NR, False)
    p('s_waitcnt lgkmcnt(0)')
    p('s_barrier')
    p('s_lshl_b32 s25, s20, 14')
    p(f'v_add_u32 v6, s25, v{VL16}')
    for b in range(16): p(f'ds_write_b128 v6, {vr(ACC4+4*b,4)} offset:{b*1024}')
    p(f"""
s_lshl_b32 s56, s20, 11
v_add_u32 v7, s56, v{VL16}
v_add_u32 v8, 0x10000, v7
s_waitcnt lgkmcnt(0)
s_barrier
""")
    for src in range(8):
        base = 7 if src < 4 else 8
        for b in range(2):
            p(f'ds_read_b128 {vr(16+8*src+4*b,4)}, v{base} offset:{(src%4)*16384 + b*1024}')
    for i in range(8):
        p(f'v_add_f32 v{16+i}, v{16+i}, v{24+i}')
        p(f'v_add_f32 v{32+i}, v{32+i}, v{40+i}')
        p(f'v_add_f32 v{48+i}, v{48+i}, v{56+i}')
        p(f'v_add_f32 v{64+i}, v{64+i}, v{72+i}')
    for i in range(8):
        p(f'v_add_f32 v{16+i}, v{16+i}, v{32+i}')
        p(f'v_add_f32 v{16+i}, v{16+i}, v{48+i}')
    for i in range(4):
        p(f'v_cvt_pk_bf16_f32 v{24+i}, v{16+2*i}, v{17+2*i}')
        p(f'v_cvt_pk_bf16_f32 v{72+i}, v{64+2*i}, v{65+2*i}')
    for i in range(4):
        p(f'v_lshlrev_b32 v{16+2*i}, 16, v{24+i}')
        p(f'v_and_b32 v{17+2*i}, 0xffff0000, v{24+i}')
        p(f'v_lshlrev_b32 v{64+2*i}, 16, v{72+i}')
        p(f'v_and_b32 v{65+2*i}, 0xffff0000, v{72+i}')
    NL2E = f2u(-math.log2(math.e))
    for i in range(8): p(f'v_mul_f32 v{32+i}, {NL2E:#x}, v{64+i}')
    for i in range(8): p(f'v_exp_f32 v{32+i}, v{32+i}')
    for i in range(8): p(f'v_add_f32 v{32+i}, 1.0, v{32+i}')
    for i in range(8): p(f'v_rcp_f32 v{32+i}, v{32+i}')
    for i in range(8): p(f'v_mul_f32 v{32+i}, v{32+i}, v{64+i}')
    for i in range(4): p(f'v_cvt_pk_bf16_f32 v{40+i}, v{32+2*i}, v{33+2*i}')
    for i in range(4):
        p(f'v_lshlrev_b32 v{32+2*i}, 16, v{40+i}')
        p(f'v_and_b32 v{33+2*i}, 0xffff0000, v{40+i}')
    for i in range(8): p(f'v_mul_f32 v{32+i}, v{32+i}, v{16+i}')
    for i in range(4): p(f'v_cvt_pk_bf16_f32 v{40+i}, v{32+2*i}, v{33+2*i}')
    for i in range(4):
        p(f'v_lshlrev_b32 v{32+2*i}, 16, v{40+i}')
        p(f'v_and_b32 v{33+2*i}, 0xffff0000, v{40+i}')
        p(f'v_lshlrev_b32 v{48+2*i}, 16, v{XR+i}')
        p(f'v_and_b32 v{49+2*i}, 0xffff0000, v{XR+i}')
    for i in range(8): p(f'v_add_f32 v{32+i}, v{32+i}, v{48+i}')
    for i in range(4): p(f'v_cvt_pk_bf16_f32 v{40+i}, v{32+2*i}, v{33+2*i}')
    p('buffer_store_dwordx2 v[40:41], v9, s[36:39], s59 offen')
    p('buffer_store_dwordx2 v[42:43], v9, s[36:39], s59 offen offset:16')
    if PROF: p('s_waitcnt vmcnt(0)')
    st.stamp()
    st.dump(p, 8, 0, 20, 50, 57, 8)
    p('s_endpgm')

    ool = p.begin_alt()
    def routine(name):
        p.alt_branch(ool); p.label(name)
    def fin_code():
        p(f"""
s_nop 15
s_nop 7
v_mov_b32 v9, v{VLSAVE}
v_permlane32_swap_b32 v{VLSAVE}, v9
v_add_f32 v9, v{VLSAVE}, v9
v_rcp_f32 v9, v9
s_mul_i32 s52, s27, {AF_MT}
s_lshl_b32 s54, s21, 13
s_add_u32 s52, s52, s54
s_add_u32 s52, s52, {AF_OFF:#x}
s_add_u32 s53, s52, 4096
""")
        for half in range(2):
            for i in range(32): p(f'v_mul_f32 v{O+32*half+i}, v{O+32*half+i}, v9')
            for i in range(16): p(f'v_cvt_pk_bf16_f32 v{TT+16*half+i}, v{O+32*half+2*i}, v{O+32*half+2*i+1}')
            for k in range(4): p(f'buffer_store_dwordx4 {vr(TT+16*half+4*k,4)}, v{VL16}, s[8:11], s{52+half} offen offset:{k*1024}{SC}')
        for i in range(64): p(f'v_mov_b32 v{O+i}, 0')
    for kind, nm, hf in outl:
        if kind == 'evt':
            routine(f'LF_evt{nm}')
            p('s_lshl_b32 s68, s47, 1')
            if nm in ('loop0', 'drain0'):
                p(f"""
s_add_u32 s69, s68, 2
s_cmp_lg_u32 s62, s69
s_cbranch_scc1 LF_nofin{nm}
s_cmp_eq_u32 s25, 0
s_cbranch_scc1 LF_nofin{nm}
""")
                fin_code()
                p.label(f'LF_nofin{nm}')
            if nm == 'loop0':
                p(f"""
s_add_u32 s69, s68, 4
s_cmp_lg_u32 s62, s69
s_cbranch_scc1 LF_nopubS
s_add_u32 s69, s24, {CNT_CTX}
s_lshl_b32 s69, s69, 2
""")
                emit(publish([69]))
                p(f"""
LF_nopubS:
s_cmp_lg_u32 s62, s68
s_cbranch_scc1 LF_nosw
s_cmp_eq_u32 s25, 0
s_cbranch_scc1 LF_nosw
s_lshl_b32 s69, s26, 13
s_add_u32 s69, s69, {QX}
v_add_u32 v9, s69, v{VL16}
s_nop 7
""")
                for ks in range(8): p(f'ds_read_b128 {vr(Q+4*ks,4)}, v9 offset:{ks*1024}')
                for i in range(16): p(f'v_mov_b32 v{MN+i}, 0')
                p(f"""
v_mov_b32 v{VM}, 0
s_mov_b32 s61, s28
s_mov_b32 s60, 0
s_waitcnt lgkmcnt(0)
LF_nosw:
""")
            if nm == 'loop1':
                p(f"""
s_add_u32 s69, s68, 1
s_cmp_lg_u32 s62, s69
s_cbranch_scc1 LF_nomid
s_cmp_eq_u32 s25, 0
s_cbranch_scc1 LF_nomid
v_mov_b32 v{VLSAVE}, v{VLS}
v_mov_b32 v{VLS}, 0
s_mov_b32 s60, 1.0
s_mov_b32 s57, 0xbf800000
s_mov_b32 s58, {FLOOR1:#x}
s_mov_b32 s59, 1
LF_nomid:
""")
            if nm != 'drain0':
                p(f"""
s_lshr_b32 s68, s62, 1
s_lshl_b32 s69, s68, 1
s_sub_u32 s69, s69, s47
s_add_u32 s69, s69, s25
s_cmp_ge_u32 s68, s47
s_cselect_b32 s68, s69, s68
s_lshl_b32 s68, s68, 1
s_add_u32 s68, s68, {hf}
s_cmp_lt_u32 s68, s61
s_cbranch_scc1 LF_nomask{nm}
s_sub_u32 s68, s61, s68
s_lshl_b32 s68, s68, 5
v_add_u32 v9, s68, v{VZ}
v_mov_b32 v10, {NEG:#x}
""")
                for r in range(16):
                    cr = 8 * (r >> 2) + (r & 3)
                    p(f'v_cmp_gt_i32 vcc, {cr}, v9')
                    p(f'v_cndmask_b32 v{MN+r}, v{MN+r}, v10, vcc')
                p.label(f'LF_nomask{nm}')
            p(f"""
s_add_u32 s68, s62, 1
s_max_u32 s66, s68, 32
s_cmp_le_u32 s68, s49
s_cselect_b32 s66, s68, s66
s_branch LF_eret{nm}
""")
            p.end_branch()
        else:
            routine(f'LF_rare{nm}')
            c = S[1 - hf]; nx = S[hf]; pc = PP[1 - hf]
            p('s_nop 15\ns_nop 7')
            p(f'v_max3_f32 v9, v{c}, v{c+1}, v{c+2}')
            for k in range(3, 15, 2): p(f'v_max3_f32 v9, v9, v{c+k}, v{c+k+1}')
            p(f'v_max_f32 v9, v9, v{c+15}')
            p(f'''
v_mov_b32 v10, v9
v_permlane32_swap_b32 v9, v10
v_max_f32 v9, v9, v10
v_max_f32 v9, s58, v9
v_sub_f32 v10, 0, v9
v_min_f32 v10, 0x42fc0000, v10
v_exp_f32 v10, v10
v_mul_f32 v11, s60, v9
''')
            for k in range(16): p(f'v_sub_f32 v{c+k}, v{c+k}, v9')
            for k in range(16): p(f'v_exp_f32 v{TT+k}, v{c+k}')
            p(f'v_add_f32 v{VTS}, v{TT}, v{TT+1}')
            for k in range(2, 16): p(f'v_add_f32 v{VTS}, v{VTS}, v{TT+k}')
            for k in range(8): p(f'v_cvt_pk_bf16_f32 v{pc+k}, v{TT+2*k}, v{TT+2*k+1}')
            for k in range(16): p(f'v_sub_f32 v{nx+k}, v{nx+k}, v11')
            for k in range(16): p(f'v_sub_f32 v{MN+k}, v{MN+k}, v11')
            p(f'v_add_f32 v{VM}, v{VM}, v11')
            p(f'v_mul_f32 v{VLS}, v{VLS}, v10')
            p('s_cmp_lg_u32 s59, 0')
            p(f's_cbranch_scc1 LF_rskip{nm}')
            for k in range(64): p(f'v_mul_f32 v{O+k}, v{O+k}, v10')
            p.label(f'LF_rskip{nm}')
            p(f'''
s_mov_b32 s{56+hf}, {THR:#x}
''')
            if hf == 1:
                p('s_mov_b32 s58, 0\ns_mov_b32 s59, 0')
            if nm == 'loop1': p('s_cmp_lt_u32 s55, 17')
            p(f's_branch LF_ret{nm}')
            p.end_branch()
    p.alt_branch(ool); emit_slow(); p.end_branch()
    p.label('LF_end')
    p('s_endpgm')
    return ('kf_kernel', p, 256, 512, 163840, 256, 256)
```

```python
from common import *
from k1 import ln_stream
import struct, math

def f2u(x): return struct.unpack('<I', struct.pack('<f', x))[0]
MF = 'v_mfma_f32_32x32x16_bf16'
SC = os.environ.get('FSC', ' sc1')
CNT_LN = 0; CNT_KV = 16; CNT_CTX = 32; CNT_REG = 48
LS = os.environ.get('LS', ' sc1')
SPIN_MAX = 1 << 22

KVSC = os.environ.get('KVSC', '')
KVN = int(os.environ.get('KVN', '0'))
def gen_kf():
    p = Prog()
    st = Stamps(p, 70, 10)
    st.skip = set(int(x) for x in os.environ.get('STSKIP', '').split(',') if x)
    def emit(lst):
        for f in lst:
            if isinstance(f, list): emit(f)
            elif callable(f): f(p)
            else: p(f)
    VL16 = 1
    uid = [0]
    def publish(sreg_idx_list):
        uid[0] += 1; L = f'LF_pub{uid[0]}'
        out = ['s_cmp_lg_u32 s20, 0', f's_cbranch_scc1 {L}', '@COND', 'v_mov_b32 v14, 1', 'v_mov_b32 v15, 0', 's_mov_b64 exec, 1']
        for s in sreg_idx_list:
            out.append(f'buffer_atomic_add v14, v15, s[96:99], s{s} offen sc1')
        out += ['s_mov_b64 exec, -1', '@ENDCOND', f'{L}:']
        return out
    def poll(pairs):
        uid[0] += 1; L = f'LF_poll{uid[0]}'
        out = ['s_cmp_lg_u32 s20, 0', f's_cbranch_scc1 {L}_done', '@COND', 'v_mov_b32 v15, 0', f's_mov_b32 s3, {SPIN_MAX}']
        for n, (s, tgt) in enumerate(pairs):
            out += [f'{L}_{n}:',
                    f'buffer_load_dword v14, v15, s[96:99], s{s} offen sc1',
                    's_waitcnt vmcnt(0)',
                    'v_readfirstlane_b32 s100, v14',
                    's_sub_u32 s3, s3, 1',
                    's_cmp_eq_u32 s3, 0',
                    f's_cbranch_scc1 {L}_acq',
                    f's_cmp_ge_u32 s100, {tgt}',
                    f's_cbranch_scc1 {L}_{n}_ok',
                    's_sleep 2',
                    f's_branch {L}_{n}',
                    f'{L}_{n}_ok:']
        out += [f'{L}_acq:', 'buffer_inv sc1', 's_waitcnt vmcnt(0)', '@ENDCOND', f'{L}_done:']
        return out
    def poll_noinv(pairs):
        out = poll(pairs)
        i = out.index('buffer_inv sc1')
        return out[:i] + out[i + 2:]
    slow = []
    def poll_issue(sregs, vb=14, vz=8):
        uid[0] += 1; L = f'LF_pi{uid[0]}'
        out = ['s_cmp_lg_u32 s20, 0', f's_cbranch_scc1 {L}', '@COND', f'v_mov_b32 v{vz}, 0']
        for n, s in enumerate(sregs): out.append(f'buffer_load_dword v{vb+n}, v{vz}, s[96:99], s{s} offen sc1')
        out += ['@ENDCOND', f'{L}:']
        return out
    def poll_check(pairs, inv_flag=None, vb=14):
        uid[0] += 1; L = f'LF_pc{uid[0]}'
        out = ['s_cmp_lg_u32 s20, 0', f's_cbranch_scc1 {L}', '@COND']
        for n, (s, tgt) in enumerate(pairs):
            out += [f'v_readfirstlane_b32 s100, v{vb+n}', f's_cmp_lt_u32 s100, {tgt}', f's_cbranch_scc1 {L}_slow']
        out += [f'{L}_ok:']
        if inv_flag is not None and inv_flag >= 0:
            out += [f's_cmp_lg_u32 s{inv_flag}, 0', f's_cbranch_scc1 {L}', (lambda pp: pp('buffer_inv sc1', 'inv'))]
        elif inv_flag is not None:
            out += [(lambda pp: pp('buffer_inv sc1', 'inv'))]
        out += ['@ENDCOND', f'{L}:']
        slow.append((L, pairs))
        return out
    def publish_kv():
        uid[0] += 1; L = f'LF_pkv{uid[0]}'
        return ['s_cmp_lg_u32 s20, 0', f's_cbranch_scc1 {L}', '@COND',
                'v_readfirstlane_b32 s100, v15',
                's_and_b32 s3, s100, 63', 's_bfe_u32 s29, s100, 0x90006', 's_lshr_b32 s30, s100, 15',
                's_mul_i32 s29, s29, s29', 's_lshl_b32 s30, s30, 5',
                's_cmp_eq_u32 s29, s30', 's_cselect_b32 s94, 1, 0',
                's_cmp_eq_u32 s3, 32', 's_cselect_b32 s94, s94, 0',
                's_cmp_lg_u32 s94, 0', f's_cbranch_scc1 {L}_fast',
                'buffer_wbl2 sc1', 's_waitcnt vmcnt(0)',
                f'{L}_fast:',
                'v_mov_b32 v14, 1', 'v_mov_b32 v15, 0', 's_mov_b64 exec, 1',
                'buffer_atomic_add v14, v15, s[96:99], s33 offen sc1',
                's_mov_b64 exec, -1', '@ENDCOND', f'{L}:']
    def w0_drain():
        uid[0] += 1; L = f'LF_dr{uid[0]}'
        return ['s_cmp_lg_u32 s20, 0', f's_cbranch_scc1 {L}', '@COND', (lambda pp: pp.wait_tag('inv')), '@ENDCOND', f'{L}:']
    def emit_slow():
        for L, pairs in slow:
            p.label(f'{L}_slow')
            p(f's_mov_b32 s3, {SPIN_MAX}')
            p('v_mov_b32 v8, 0')
            for n, (s, tgt) in enumerate(pairs):
                p(f"""
{L}_s{n}:
buffer_load_dword v14, v8, s[96:99], s{s} offen sc1
s_waitcnt vmcnt(0)
v_readfirstlane_b32 s100, v14
s_sub_u32 s3, s3, 1
s_cmp_eq_u32 s3, 0
s_cbranch_scc1 {L}_ok
s_cmp_ge_u32 s100, {tgt}
s_cbranch_scc1 {L}_s{n}_ok
s_sleep 2
s_branch {L}_s{n}
{L}_s{n}_ok:
""")
            p(f's_branch {L}_ok')
    p(f'''
s_cmp_ge_u32 s2, 256
s_cbranch_scc1 LF_end
s_load_dwordx4 s[28:31], s[0:1], 0
s_load_dwordx4 s[32:35], s[0:1], 24
s_load_dwordx4 s[36:39], s[0:1], 88
s_load_dwordx4 s[64:67], s[0:1], 56
s_load_dwordx2 s[68:69], s[0:1], 16
s_load_dwordx2 s[56:57], s[0:1], 40
s_load_dwordx2 s[58:59], s[0:1], 72
v_lshrrev_b32 v9, 6, v0
v_and_b32 v10, 63, v0
v_readfirstlane_b32 s20, v9
s_and_b32 s22, s2, 7
s_lshr_b32 s23, s2, 3
''')
    st.stamp()
    p('''
s_and_b32 s48, s23, 1
s_bfe_u32 s49, s23, 0x10001
s_lshr_b32 s50, s23, 2
s_lshl_b32 s51, s22, 9
s_lshl_b32 s3, s48, 8
s_add_u32 s51, s51, s3
''')
    p(f'v_lshlrev_b32 v{VL16}, 4, v10')
    STG = 65536
    p('''
v_lshrrev_b32 v11, 3, v10
v_and_b32 v12, 7, v10
v_lshrrev_b32 v13, 4, v10
v_xor_b32 v14, v12, v13
v_lshlrev_b32 v14, 4, v14
v_lshl_add_u32 v2, v11, 10, v14
v_xor_b32 v3, 64, v2
''')
    p('''
v_and_b32 v13, 1, v13
v_lshlrev_b32 v13, 2, v13
v_xor_b32 v14, v12, v13
v_lshlrev_b32 v14, 4, v14
v_lshl_add_u32 v4, v11, 13, v14
''')
    p(f'''
v_and_b32 v11, 31, v10
v_lshrrev_b32 v12, 5, v10
v_bfe_u32 v13, v11, 1, 3
v_xor_b32 v13, v12, v13
v_lshlrev_b32 v13, 4, v13
v_lshl_add_u32 v13, v11, 7, v13
s_lshl_b32 s52, s20, 13
s_add_u32 s52, s52, {STG}
v_add_u32 v16, s52, v13
v_xor_b32 v17, 32, v16
v_xor_b32 v18, 64, v16
v_xor_b32 v19, 96, v16
''')
    p('''
v_bfe_u32 v11, v10, 2, 2
v_lshl_add_u32 v13, v12, 3, v11
v_lshlrev_b32 v13, 7, v13
v_lshrrev_b32 v11, 1, v11
v_lshl_add_u32 v13, v11, 6, v13
v_bfe_u32 v11, v10, 4, 1
v_lshl_add_u32 v13, v11, 5, v13
v_and_b32 v11, 3, v10
v_lshl_add_u32 v20, v11, 3, v13
v_xor_b32 v21, 64, v20
v_add_u32 v22, 0x8000, v20
v_add_u32 v23, 0x8000, v21
v_add_u32 v24, 0x20000, v20
v_add_u32 v25, 0x20000, v21
v_add_u32 v26, 0x10000, v20
v_add_u32 v27, 0x10000, v21
v_lshlrev_b32 v14, 7, v10
v_lshrrev_b32 v15, 2, v10
v_lshlrev_b32 v15, 13, v15
v_and_b32 v11, 3, v10
v_lshl_add_u32 v15, v11, 7, v15
v_lshrrev_b32 v5, 1, v10
v_lshlrev_b32 v5, 10, v5
v_and_b32 v11, 1, v10
v_lshl_add_u32 v5, v11, 9, v5
''')
    p('s_waitcnt lgkmcnt(0)')
    srd(p, 12, 30, 31, 2 << 20)
    srd(p, 16, 28, 29, 2 << 20)
    srd(p, 8, 38, 39, WS_BYTES)
    srd(p, 96, 36, 37, 256)
    p('''
s_cmp_eq_u32 s49, 0
s_cselect_b32 s4, s32, s34
s_cselect_b32 s5, s33, s35
s_and_b32 s5, s5, 0xffff
s_mov_b32 s6, 0x400000
s_mov_b32 s7, 0x00020000
s_lshl_b32 s40, s50, 8
s_lshl_b32 s41, s20, 5
s_add_u32 s40, s40, s41
s_lshl_b32 s40, s40, 10
s_lshl_b32 s42, s20, 18
s_lshl_b32 s43, s51, 1
s_add_u32 s42, s42, s43
s_lshl_b32 s43, s20, 12
''')
    WS = [0, 32768, 131072, 65536]
    def wdma(u, q):
        sc = u >> 1; kh = u & 1
        return [f's_add_u32 m0, s43, {WS[u % 4] + q*1024}',
                f's_add_u32 s53, s42, {(kh*256 + 8*q)*8192 + sc*128}',
                (lambda pp: pp('buffer_load_dwordx4 v4, s[4:7], s53 offen lds', f'w{u}'))]
    def adma(e, jj):
        return [f's_add_u32 m0, s52, {(e&1)*4096 + jj*1024}',
                f's_add_u32 s54, s40, {8*jj*1024 + e*128}',
                (lambda pp: pp(f'buffer_load_dwordx4 v{2+(jj&1)}, s[12:15], s54 offen lds', f'a{e}'))]
    AR = 128
    def aread(e, k):
        ks = 4 * e + k
        return (lambda pp: pp(f'ds_read_b128 {vr(AR+4*ks,4)}, v{16+k} offset:{(e&1)*4096}', f'ar{e}'))
    for jj in range(4): emit(adma(0, jj))
    for q in range(4): emit(wdma(0, q))
    for jj in range(4): emit(adma(1, jj))
    p('''
s_lshl_b32 s29, s2, 3
s_add_u32 s29, s29, s20
s_lshl_b32 s30, s29, 10
''')
    LNR = 96; LNT = 100
    p(f'buffer_load_dwordx4 {vr(LNR,4)}, v{VL16}, s[16:19], s30 offen')
    if 'pf' in os.environ.get('XP1', '').split('_'):
        p("""
s_cmp_lt_u32 s2, 128
s_cselect_b32 s60, s32, s34
s_cselect_b32 s61, s33, s35
s_mov_b32 s62, 0x400000
s_and_b32 s3, s2, 127
s_lshl_b32 s3, s3, 15
s_lshl_b32 s53, s20, 13
s_add_u32 s3, s3, s53
s_lshl_b32 s53, s2, 13
s_cmp_eq_u32 s20, 4
s_cselect_b32 s60, s12, s60
s_cselect_b32 s61, s13, s61
s_cselect_b32 s62, s14, s62
s_cselect_b32 s3, s53, s3
s_cmp_gt_u32 s20, 4
s_cselect_b32 s3, 0x7f000000, s3
s_and_b32 s61, s61, 0xffff
s_mov_b32 s63, 0x00020000
buffer_load_dword v104, v14, s[60:63], s3 offen
""")
    for q in range(4): emit(wdma(1, q))
    p(f'''
s_lshr_b32 s44, s51, 7
s_lshl_b32 s44, s44, 19
s_lshl_b32 s45, s50, 3
s_add_u32 s45, s45, s20
s_lshl_b32 s45, s45, 13
s_add_u32 s44, s44, s45
s_mov_b32 s45, {KF_OFF:#x}
s_mov_b32 s46, {VF_OFF:#x}
s_cmp_eq_u32 s49, 0
s_cselect_b32 s45, s45, s46
s_add_u32 s41, s44, s45
s_lshr_b32 s31, s29, 5
s_lshl_b32 s31, s31, 15
s_and_b32 s3, s29, 31
s_lshl_b32 s3, s3, 4
s_add_u32 s31, s31, s3
s_lshr_b32 s32, s2, 4
s_lshl_b32 s32, s32, 2
s_lshr_b32 s33, s51, 8
s_add_u32 s33, s33, {CNT_KV}
s_lshl_b32 s33, s33, 2
s_getreg_b32 s3, hwreg(HW_REG_XCC_ID, 0, 4)
s_mul_i32 s53, s3, s3
s_lshl_b32 s53, s53, 15
s_lshl_b32 s3, s3, 6
s_add_u32 s53, s53, s3
s_add_u32 s53, s53, 1
s_add_u32 s101, s22, {CNT_REG}
s_lshl_b32 s101, s101, 2
s_cmp_lg_u32 s20, 0
s_cbranch_scc1 LF_noreg
@COND
v_mov_b32 v8, s53
v_mov_b32 v9, 0
s_mov_b64 exec, 1
buffer_atomic_add v8, v9, s[96:99], s101 offen sc1
s_mov_b64 exec, -1
@ENDCOND
LF_noreg:
''')
    if XF_OFF: p(f's_add_u32 s31, s31, {XF_OFF:#x}')
    p('''
s_and_b32 s3, s23, 3
s_lshl_b32 s21, s22, 2
s_add_u32 s21, s21, s3
s_lshr_b32 s24, s23, 2
s_lshr_b32 s25, s20, 2
s_and_b32 s26, s20, 3
s_sub_u32 s28, 15, s24
s_lshl_b32 s28, s28, 2
s_add_u32 s28, s28, s26
s_lshl_b32 s27, s24, 2
s_add_u32 s27, s27, s26
s_cmp_eq_u32 s25, 0
s_cselect_b32 s27, s28, s27
''')
    if os.environ.get('P1P', '1') == '1':
        p('s_cmp_eq_u32 s25, 0')
        p('s_cbranch_scc1 LF_noprio1')
        p('s_setprio 1')
        p.label('LF_noprio1')
    p.wait_tag('a0')
    for k in range(4): emit([aread(0, k)])
    p.wait_tag('ar0')
    for jj in range(4): emit(adma(2, jj))
    p.wait_tag('w0')
    p('s_barrier')
    st.stamp()
    p('s_cmp_lg_u32 s49, 0')
    p('s_cbranch_scc1 LF_v')

    WF = 32; NST = 4; ACC = 64; PK = 96
    def trread(u, kk):
        out = []
        for nt in range(2):
            w = WF + 8 * (kk % NST) + 4 * nt
            out.append(f'ds_read_b64_tr_b16 {vr(w,2)}, v{20+2*(u%4)+nt} offset:{kk*2048}')
            out.append(f'ds_read_b64_tr_b16 {vr(w+2,2)}, v{20+2*(u%4)+nt} offset:{kk*2048+512}')
        return out
    def kv_epilogue(sc, nt):
        g = []
        PKB = PK if sc < 3 else 32
        for half in range(2):
            pk = PKB + 8 * nt + 4 * half
            for i in range(4):
                s = ACC + 16 * nt + 8 * half + 2 * i
                g.append(f'v_cvt_pk_bf16_f32 v{pk+i}, v{s}, v{s+1}')
        off = (sc >> 1) * 524288 + (sc & 1) * 4096
        st_ = [[f's_add_u32 s55, s41, {off + nt*2048 + half*1024}',
                (lambda pp, half=half: pp(f'buffer_store_dwordx4 {vr(PKB+8*nt+4*half,4)}, v{VL16}, s[8:11], s55 offen{KVSC if sc >= KVN else SC}', 'kvst'))]
               for half in range(2)]
        return g, st_
    lns = ln_stream(LNR, LNT, LNT + 16)
    lns.append(lambda pp: pp(f'buffer_store_dwordx4 {vr(LNR,4)}, v5, s[8:11], s31 offen{SC}', 'lnst'))
    SLOT = 29184
    GSL = [0, SLOT, 131072, 65536]
    KSL = 0; VSL = 65536; QX = 131072
    GD = 28
    def p2_setup():
        q = Prog(); pp = q
        pp("""
v_and_b32 v10, 63, v0
v_lshrrev_b32 v11, 4, v10
v_bfe_u32 v12, v10, 2, 2
v_and_b32 v13, 3, v11
v_xor_b32 v12, v12, v13
v_lshlrev_b32 v12, 6, v12
v_and_b32 v13, 3, v10
v_lshl_add_u32 v12, v13, 4, v12
v_lshl_add_u32 v12, v11, 13, v12
s_lshl_b32 s29, s26, 17
v_add_u32 v28, s29, v12
v_add_u32 v29, 0x8000, v28
v_add_u32 v30, 0x10000, v28
v_add_u32 v31, 0x18000, v28
s_and_b32 s29, s20, 1
s_mul_i32 s29, s29, 192
s_mov_b32 s30, 43691
s_movk_i32 s34, 2752
s_cmp_eq_u32 s25, 0
s_cselect_b64 s[36:37], -1, 0
""")
        for t in range(3):
            pp(f"""
v_add_u32 v11, s29, v10
v_add_u32 v11, {64*t}, v11
v_mul_lo_u32 v12, v11, s30
v_lshrrev_b32 v12, 18, v12
v_mul_u32_u24 v13, 6, v12
v_sub_u32 v13, v11, v13
v_mul_lo_u32 v12, v12, s34
v_lshl_add_u32 v9, v13, 4, v12
v_cndmask_b32 v{28+t}, v9, v{28+t}, s[36:37]
""")
        pp('v_cndmask_b32 v31, v9, v31, s[36:37]')
        pp("""
v_lshrrev_b32 v11, 5, v10
v_bfe_u32 v12, v10, 2, 2
v_lshl_add_u32 v13, v11, 3, v12
v_lshlrev_b32 v6, 8, v13
v_lshl_add_u32 v6, v12, 6, v6
v_bfe_u32 v7, v10, 4, 1
v_lshl_add_u32 v6, v7, 5, v6
v_and_b32 v9, 3, v10
v_lshl_add_u32 v6, v9, 3, v6
v_mul_u32_u24 v13, 96, v13
v_mul_u32_u24 v7, 6272, v7
v_add_u32 v13, v13, v7
v_lshl_add_u32 v13, v9, 3, v13
v_add_u32 v7, 0x4000, v13
""")
        pp("""
s_mov_b32 s60, s68
s_mov_b32 s61, s69
s_cmp_eq_u32 s20, 2
s_cselect_b32 s60, s64, s60
s_cselect_b32 s61, s65, s61
s_cmp_eq_u32 s20, 3
s_cselect_b32 s60, s66, s60
s_cselect_b32 s61, s67, s61
s_cmp_ge_u32 s20, 4
s_cselect_b32 s60, s56, s60
s_cselect_b32 s61, s57, s61
s_cmp_ge_u32 s20, 6
s_cselect_b32 s60, s58, s60
s_cselect_b32 s61, s59, s61
s_and_b32 s61, s61, 0xffff
s_mov_b32 s63, 0x00020000
s_mov_b32 s62, 0x158000
s_movk_i32 s35, 5504
s_and_b32 s38, s20, 2
s_cmp_eq_u32 s38, 0
s_cselect_b32 s62, 0x400000, s62
s_cselect_b32 s35, 0x4000, s35
s_mul_i32 s35, s35, s2
s_and_b32 s39, s20, 1
s_lshl_b32 s39, s39, 13
s_cmp_eq_u32 s38, 0
s_cselect_b32 s39, s39, 0
s_add_u32 s35, s35, s39
s_cmp_ge_u32 s20, 4
s_cselect_b32 s35, 0x7f000000, s35
v_lshlrev_b32 v12, 3, v1
buffer_load_dword v11, v12, s[60:63], s35 offen
""")
        pp("""
s_bfe_u32 s29, s20, 0x10001
s_cmp_eq_u32 s29, 0
s_cselect_b32 s16, s64, s66
s_cselect_b32 s17, s65, s67
s_mov_b32 s18, 0x158000
s_cmp_eq_u32 s25, 0
s_cselect_b32 s16, s68, s16
s_cselect_b32 s17, s69, s17
s_cselect_b32 s18, 0x400000, s18
s_and_b32 s17, s17, 0xffff
s_mov_b32 s19, 0x00020000
s_lshl_b32 s56, s21, 8
s_mul_i32 s38, s21, 96
s_lshl_b32 s58, s26, 12
s_mul_i32 s39, s29, 6272
s_and_b32 s30, s20, 1
s_mul_i32 s30, s30, 3072
s_add_u32 s39, s39, s30
s_add_u32 s39, s39, 16384
s_cmp_eq_u32 s25, 0
s_cselect_b32 s56, s56, s38
s_mov_b32 s57, 0x2b000
s_cselect_b32 s57, 0x80000, s57
s_cselect_b32 s58, s58, s39
s_movk_i32 s59, 2048
s_cselect_b32 s59, 3072, s59
s_add_u32 s59, s59, s58
s_lshl_b32 s60, s27, 15
""")
        if XF_OFF: pp(f's_add_u32 s60, s60, {XF_OFF:#x}')
        return [i.text for i in q.items]
    GX = 128; GW = 192; GT = [48, 64, 80, 96, 112, 160, 176]
    def gdma(sl):
        base = GSL[sl % 4]
        out = []
        for t in range(4):
            out.append([f's_add_u32 m0, s{58 if t < 3 else 59}, {base + (t*1024 if t < 3 else 0)}',
                        's_nop 0',
                        (lambda pp, t=t, sl=sl: pp(f'buffer_load_dwordx4 v{GD+t}, s[16:19], s56 offen lds', f'g{sl}'))])
        out[3].append('s_add_u32 s56, s56, s57')
        return out
    def xload(sl):
        out = []
        b = GX + 16 * (sl & 1)
        for k in range(4):
            out.append(f'buffer_load_dwordx4 {vr(b+4*k,4)}, v{VL16}, s[8:11], s61 offen offset:{k*1024}{LS}')
        return [f's_add_u32 s61, s60, {sl*4096}'] + out

    alt = p.begin_alt(join=True)
    for variant in ('k', 'v'):
        p.alt_branch(alt)
        if variant == 'v': p.label('LF_v')
        for kk in range(3): emit(trread(0, kk))
        pend = []
        for u in range(8):
            sc = u >> 1; kh = u & 1
            bb = []; fl = {}
            def add(slot, items): fl.setdefault(slot, []).extend(items)
            for kk in range(16):
                ks = kh * 16 + kk
                for nt in range(2):
                    w = WF + 8 * (kk % NST) + 4 * nt
                    acc = vr(ACC + 16 * nt, 16); cc = '0' if ks == 0 else acc
                    A = vr(AR + 4 * ks, 4)
                    if variant == 'k': bb.append(f'{MF} {acc}, {vr(w,4)}, {A}, {cc}')
                    else:              bb.append(f'{MF} {acc}, {A}, {vr(w,4)}, {cc}')
            for kk in range(3, 16):
                t = trread(u, kk)
                s0 = min(2 * (kk - 3), 24)
                add(s0, t[:2]); add(s0 + 1, t[2:])
            if u < 2:
                for q4 in range(4):
                    e = 4 * kh + q4; base = 8 * q4
                    if e + 1 < 8:
                        add(base + 1, [lambda pp, e=e: pp.wait_tag(f'a{e+1}')])
                        for k_ in range(4): add(base + 1 + k_ // 2, [aread(e + 1, k_)])
                        if e + 3 < 8:
                            add(base + 5, [lambda pp, e=e: pp.wait_tag(f'ar{e+1}')])
                            for jj in range(4): add(base + 5 + jj // 2, adma(e + 3, jj))
            loads = {0: [2], 2: [3, 4], 3: [5], 4: [6], 5: [7]}.get(u, [])
            grps = [wdma(lu, q) for lu in loads for q in range(4)]
            if grps: spread(add, grps, 2 if u else 10, 25)
            X1 = os.environ.get('XP1', '')
            if u == 1: spread(add, atomic_groups(lns, 3), 1, 25)
            if u == 3: spread(add, atomic_groups(p2_setup(), 4), 10, 26)
            if kh == 0 and sc > 0:
                for nt in range(2):
                    g, st_ = kv_epilogue(sc - 1, nt)
                    fl.setdefault(('pre', nt), []).extend(g)
                    pend.extend(st_)
            if pend:
                a_, b_ = pend.pop(0), pend.pop(0)
                if 'nokvst' not in os.environ.get('XP1', ''): add(12, a_); add(24, b_)
            extra = []; post = []
            if u == (3 if 'latepub' in X1 else 2): extra = [lambda pp: pp.wait_tag('lnst')]; post = publish([32])
            if u == 5 and 'nopoll' not in X1: add(18, ['s_sub_u32 s29, 15, s24', 's_lshl_b32 s29, s29, 2', 's_lshl_b32 s30, s24, 2'] + poll_issue([29, 30]))
            if u == 5 and 'nopoll' not in X1: post = poll_check([(29, 16), (30, 16)])
            if u == 6 and 'nog01' not in X1:
                spread(add, gdma(0) + gdma(1), 1, 25)
            if u == 7 and 'nog01' in X1:
                spread(add, gdma(0) + gdma(1), 1, 25)
            if u == 7:
                xl = xload(0)
                spread(add, [xl[:2], [xl[2]], [xl[3]], [xl[4]]] + gdma(2), 1, 28)
            if u < 7:
                add(27, [lambda pp, u=u: pp.wait_tag(f'w{u+1}'), 's_waitcnt lgkmcnt(0)'] + extra + ['s_barrier'] + post)
                for kk in range(3):
                    t = trread(u + 1, kk)
                    add(min(27 + 2 * kk, 31), t[:2]); add(min(28 + 2 * kk, 31), t[2:])
            interleave(p, bb, fl)
            if os.environ.get('P1ST'): st.i = 2 + u; st.stamp()
        for nt in range(2):
            g, st_ = kv_epilogue(3, nt)
            emit(g); pend.extend(st_)
        if variant == 'k': p('s_branch LF_p2')
        p.end_branch()
    p.label('LF_p2')
    st.stamp()
    VK = 2; VV = 3; VZ = 4; VLS = 5; VM = 6; VTS = 7; VLSAVE = 8
    T0 = 9
    Q = 16; O = 48; S = [112, 128]; PP = [144, 152]; MN = 160; FR = 176; E = 208; TT = 216
    THR = f2u(float(2 ** 20)); NEG = f2u(-1e30); FLOOR1 = f2u(-1e20)
    p(f"""
s_lshl_b32 s44, s21, 19
s_lshl_b32 s46, s20, 11
s_add_u32 s44, s44, s46
s_add_u32 s45, s44, {VF_OFF:#x}
s_add_u32 s44, s44, {KF_OFF:#x}
s_lshl_b32 s47, s24, 1
s_add_u32 s47, s47, 2
""")
    AQ = [T0, T0 + 1, T0 + 2, T0 + 3]; AF_ = T0 + 4
    def set_addr(sl):
        base = GSL[sl % 4]
        out = [f'v_add_u32 v{AQ[0]}, {base}, v6']
        for nt in range(1, 4): out.append(f'v_xor_b32 v{AQ[nt]}, {nt<<6}, v{AQ[0]}')
        out.append(f'v_add_u32 v{AF_}, {base}, v7')
        return out
    assert all((s & 0xff) == 0 for s in GSL)
    def gtr(g):
        kk = g & 3; out = []
        for tl in range(7):
            w = GW + 28 * (g & 1) + 4 * tl
            if tl < 4:
                out.append(f'ds_read_b64_tr_b16 {vr(w,2)}, v{AQ[tl]} offset:{kk*4096}')
                out.append(f'ds_read_b64_tr_b16 {vr(w+2,2)}, v{AQ[tl]} offset:{kk*4096+1024}')
            else:
                o = kk * 1536 + (tl - 4) * 32
                out.append(f'ds_read_b64_tr_b16 {vr(w,2)}, v{AF_} offset:{o}')
                out.append(f'ds_read_b64_tr_b16 {vr(w+2,2)}, v{AF_} offset:{o+384}')
        return out
    def kvcopy(sbase, chunk_off, ldsbase, tag, tmp=43):
        return [f's_add_u32 m0, s46, {ldsbase}',
                f's_add_u32 s{tmp}, s{sbase}, {chunk_off}',
                (lambda pp: pp(f'buffer_load_dwordx4 v{VL16}, s[8:11], s{tmp} offen{LS} lds', tag)),
                (lambda pp: pp(f'buffer_load_dwordx4 v{VL16}, s[8:11], s{tmp} offen offset:1024{LS} lds', tag))]
    PUB_SL = int(os.environ.get('PUB_SL', '4'))
    PFN = 8; PFS = int(os.environ.get('PFS', '0')); PFO = int(os.environ.get('PFO', '0'))
    p.wait_tag('g0')
    p('s_waitcnt lgkmcnt(0)')
    p('s_barrier')
    emit(set_addr(0))
    emit(gtr(0))
    for sl in range(8):
        bb = []; fl = {}
        def add(slot, items): fl.setdefault(slot, []).extend(items)
        for kk in range(4):
            g = sl * 4 + kk
            xb = GX + 16 * (sl & 1) + 4 * kk
            for tl in range(7):
                w = GW + 28 * (g & 1) + 4 * tl
                acc = vr(GT[tl], 16); cc = '0' if g == 0 else acc
                bb.append(f'{MF} {acc}, {vr(w,4)}, {vr(xb,4)}, {cc}')
            ng = g + 1
            if ng < 32:
                if kk == 3: add(7 * kk - 1, set_addr(sl + 1))
                rd = gtr(ng)
                for i in range(7): add(7 * kk + i, rd[2 * i:2 * i + 2])
        if sl + 1 < 8:
            xl = xload(sl + 1)
            add(0, xl[:1])
            for k in range(4): add(1 + k, [xl[1 + k]])
            pre = []; post = []
            if sl < 4: add(10, pend[sl])
            if sl == PUB_SL:
                pre = [lambda pp: pp.wait_tag('kvst')]; post = publish_kv()
            if sl == PUB_SL - 1:
                add(6, poll_issue([101, 101]))
            if sl == 6:
                add(8, [f's_lshr_b32 s29, s21, 1', f's_add_u32 s29, s29, {CNT_KV}', 's_lshl_b32 s29, s29, 2'] + poll_issue([29]))
                post = poll_check([(29, 16)], inv_flag=(94 if os.environ.get('KVINV', 'cond') == 'cond' else -1))

            add(17, [lambda pp, sl=sl: pp.wait_tag(f'g{sl+1}')] + pre + ['s_barrier'] + post)
            if sl + 3 < 8:
                for t, grp in enumerate(gdma(sl + 3)): add(18 + 2 * t if t < 1 else 21 + 2 * (t - 1), grp)
        interleave(p, bb, fl)
    st.stamp()
    p('s_waitcnt lgkmcnt(0)')
    emit(w0_drain())
    p('s_barrier')
    emit(kvcopy(44, 0, KSL, 'k0'))
    emit(kvcopy(44, 16384, KSL + 32768, 'k1'))
    emit(kvcopy(45, 0, VSL, 'v0'))
    p("""
s_load_dwordx2 s[56:57], s[0:1], 40
s_load_dwordx2 s[58:59], s[0:1], 72
s_waitcnt lgkmcnt(0)
s_cmp_ge_u32 s20, 2
s_cselect_b32 s60, s58, s56
s_cselect_b32 s61, s59, s57
s_mov_b32 s62, 0x400000
s_cselect_b32 s62, 0x158000, s62
s_movk_i32 s35, 0x4000
s_cselect_b32 s35, 5504, s35
s_and_b32 s61, s61, 0xffff
s_mov_b32 s63, 0x00020000
s_mul_i32 s35, s35, s2
s_cmp_eq_u32 s20, 1
s_cselect_b32 s39, 0x2000, 0
s_add_u32 s35, s35, s39
s_cmp_ge_u32 s20, 3
s_cselect_b32 s35, 0x7f000000, s35
v_lshlrev_b32 v12, 3, v1
buffer_load_dword v255, v12, s[60:63], s35 offen
s_lshr_b32 s17, s23, 2
s_and_b32 s18, s23, 3
s_cmp_ge_u32 s17, 6
s_cselect_b32 s12, s58, s56
s_cselect_b32 s13, s59, s57
s_mov_b32 s14, 0x400000
s_cselect_b32 s14, 0x158000, s14
s_cselect_b32 s19, 6, 0
s_and_b32 s13, s13, 0xffff
s_mov_b32 s15, 0x00020000
s_sub_u32 s19, s17, s19
s_mul_i32 s16, s19, 43
s_cmp_eq_u32 s17, 5
s_cselect_b32 s19, 1, 0
s_sub_u32 s16, s16, s19
s_lshl_b32 s16, s16, 4
s_mul_i32 s18, s18, 84
s_add_u32 s16, s16, s18
s_mul_i32 s18, s20, PFROWS
s_add_u32 s16, s16, s18
s_lshl_b32 s16, s16, 10
v_lshlrev_b32 v249, 3, v1
""".replace('PFROWS', str(PFN * PFS)))
    CQ = f2u(math.log2(math.e) / math.sqrt(128.0))
    p(f's_mov_b32 s48, {CQ:#x}')
    p(f's_mov_b32 s49, {CQ:#x}')
    for tl in range(4):
        for i in range(8): p(f'v_pk_mul_f32 {vr(GT[tl]+2*i,2)}, {vr(GT[tl]+2*i,2)}, s[48:49]')
        for i in range(8): p(f'v_cvt_pk_bf16_f32 v{Q+8*tl+i}, v{GT[tl]+2*i}, v{GT[tl]+2*i+1}')
    p(f'''
s_lshl_b32 s49, s26, 13
s_add_u32 s49, s49, {QX}
v_add_u32 v9, s49, v{VL16}
s_cmp_lg_u32 s25, 0
s_cbranch_scc1 LF_noqx
@COND
''')
    for ks in range(8): p(f'ds_write_b128 v9, {vr(Q+4*ks,4)} offset:{ks*1024}')
    p('s_waitcnt lgkmcnt(0)')
    p('@ENDCOND')
    p.label('LF_noqx')
    KG = -2.0 * math.sqrt(2.0 / math.pi) * math.log2(math.e)
    p(f's_mov_b32 s50, {f2u(KG*0.044715):#x}')
    p(f's_mov_b32 s51, {f2u(KG*0.044715):#x}')
    p(f'v_mov_b32 v{GW+16}, {f2u(KG):#x}')
    p(f'v_mov_b32 v{GW+17}, {f2u(KG):#x}')
    p(f'''
s_mul_i32 s52, s27, {AF_MT}
s_mul_i32 s53, s21, 3
s_add_u32 s54, s53, 256
s_lshl_b32 s54, s54, 10
s_add_u32 s52, s52, s54
s_add_u32 s52, s52, {AF_OFF:#x}
''')
    for tt in range(3):
        a = GT[4 + tt]; t = GW
        p(f's_add_u32 s54, s53, {tt}')
        p('s_cmp_ge_u32 s54, 86')
        p(f's_cbranch_scc1 LF_ffn_skip{tt}')
        p('@COND')
        P2 = lambda r: vr(r, 2)
        for i in range(0, 8, 2): p(f'v_pk_mul_f32 {P2(t+i)}, {P2(a+i)}, {P2(a+i)}')
        for i in range(0, 8, 2): p(f'v_pk_fma_f32 {P2(t+i)}, {P2(t+i)}, s[50:51], {P2(t+16)}')
        for i in range(0, 8, 2): p(f'v_pk_mul_f32 {P2(t+i)}, {P2(t+i)}, {P2(a+i)}')
        for i in range(8): p(f'v_exp_f32 v{t+i}, v{t+i}')
        for i in range(0, 8, 2): p(f'v_pk_mul_f32 {P2(t+8+i)}, {P2(a+i)}, {P2(a+8+i)}')
        for i in range(0, 8, 2): p(f'v_pk_add_f32 {P2(t+i)}, {P2(t+i)}, 1.0 op_sel_hi:[1,0]')
        for i in range(8): p(f'v_rcp_f32 v{t+i}, v{t+i}')
        for i in range(0, 8, 2): p(f'v_pk_mul_f32 {P2(t+i)}, {P2(t+i)}, {P2(t+8+i)}')
        for i in range(4): p(f'v_cvt_pk_bf16_f32 v{t+20+4*tt+i}, v{t+2*i}, v{t+2*i+1}')
        p(f'buffer_store_dwordx4 {vr(t+20+4*tt,4)}, v{VL16}, s[8:11], s52 offen offset:{tt*1024}{SC}')
        p('@ENDCOND')
        p.label(f'LF_ffn_skip{tt}')
    st.stamp()
    for i in range(0, 64, 2): p(f'v_pk_mov_b32 {vr(O+i,2)}, 0, 0')
    for i in range(0, 16, 2): p(f'v_pk_mov_b32 {vr(MN+i,2)}, 0, 0')
    p(f"""
v_mov_b32 v{VLS}, 0
v_mov_b32 v{VM}, 0
v_mov_b32 v{VLSAVE}, 0
s_mov_b32 s56, {THR:#x}
s_mov_b32 s57, 0xbf800000
s_mov_b32 s58, {FLOOR1:#x}
s_mov_b32 s59, 1
s_mov_b32 s60, 1.0
s_mov_b32 s61, s27
s_mov_b32 s62, 0
s_lshl_b32 s67, s25, 14
v_add_u32 v{VK}, {KSL}, v{VL16}
v_add_u32 v{VV}, {VSL}, v{VL16}
v_and_b32 v10, 63, v0
v_and_b32 v12, 31, v10
v_lshrrev_b32 v11, 5, v10
v_lshlrev_b32 v13, 2, v11
v_sub_u32 v{VZ}, v12, v13
s_mov_b32 s55, 0
s_mov_b32 s63, 16384
s_add_u32 s64, s46, 32768
s_lshl_b32 s49, s47, 1
s_add_u32 s49, s49, 2
s_cmp_eq_u32 s25, 0
s_cselect_b32 s49, 0, s49
s_cselect_b32 s66, 32, s27
s_lshl_b32 s68, s47, 1
s_add_u32 s68, s68, 4
s_min_u32 s68, s68, 32
s_cmp_eq_u32 s20, 0
s_cselect_b32 s66, s68, s66
""")
    p('s_waitcnt vmcnt(0) lgkmcnt(0)')
    p('s_barrier')
    st.stamp()

    def frag_read(f):
        hf = f >> 4; i = f & 15; dst = vr(FR + 4 * (f % 8), 4)
        if i < 8:  return f'ds_read_b128 {dst}, v{VK} offset:{hf*8192 + i*1024}'
        else:      return f'ds_read_b128 {dst}, v{VV} offset:{hf*8192 + (i-8)*1024}'
    def mfma(f):
        hf = f >> 4; i = f & 15; fr = vr(FR + 4 * (f % 8), 4)
        if i < 8:
            s = vr(S[hf], 16); c = vr(MN, 16) if i == 0 else s
            return f'{MF} {s}, {fr}, {vr(Q+4*i,4)}, {c}'
        dt = (i - 8) >> 1; tp = (i - 8) & 1
        o = vr(O + 16 * dt, 16)
        return f'{MF} {o}, {fr}, {vr(PP[hf]+4*tp,4)}, {o}'
    def bstage(hf, nslots):
        c = S[1 - hf]; pp_ = PP[1 - hf]
        groups = [[] for _ in range(nslots)]
        span = nslots - 2
        pos_e = [(kk * span) // 16 for kk in range(16)]
        late = [[] for _ in range(nslots)]
        for k in range(8):
            ea = E + (2 * k) % 8; eb = E + (2 * k + 1) % 8
            groups[pos_e[2 * k]].append(f'v_exp_f32 v{ea}, v{c+2*k}')
            groups[pos_e[2 * k + 1]].append(f'v_exp_f32 v{eb}, v{c+2*k+1}')
            sa = pos_e[2 * k] + 1; sb = pos_e[2 * k + 1] + 1
            if k == 0:
                late[sb].append(f'v_add_f32 v{VTS}, v{ea}, v{eb}')
            else:
                late[sa].append(f'v_add_f32 v{VTS}, v{VTS}, v{ea}')
                late[sb].append(f'v_add_f32 v{VTS}, v{VTS}, v{eb}')
            late[sb].append(f'v_cvt_pk_bf16_f32 v{pp_+k}, v{ea}, v{eb}')
        return [late[i] + groups[i] for i in range(nslots)]
    outl = []
    DIST = int(os.environ.get('DIST', '4'))
    DS_ = int(os.environ.get('DMAS', '2')); D0_ = int(os.environ.get('DMA0', '1')); NTAIL = int(os.environ.get('NTAIL', '0'))

    def step(kind):
        doA = kind != 'drain'
        slots = []
        for f in range(32):
            hf = f >> 4; i = f & 15
            isA = i < 8
            if isA and not doA: continue
            if not isA and kind == 'first': continue
            slots.append(f)
        pos = {f: n for n, f in enumerate(slots)}
        bb = [mfma(f) for f in slots]
        fl = {}
        def add(n, items): fl.setdefault(n, []).extend(items)
        nS = len(slots)
        last_read_slot = nS - DIST - 2
        for n in range(DIST, nS):
            add(min(n - DIST, last_read_slot) if kind != 'drain' else n - DIST, [frag_read(slots[n])])
        for hf in range(2):
            if kind == 'first' and hf == 0: continue
            if kind == 'drain' and hf == 1: continue
            hs = [n for n, f in enumerate(slots) if (f >> 4) == hf]
            groups = bstage(hf, len(hs))
            for gi, g in enumerate(groups): add(hs[gi], g)
            nm = f'{kind}{hf}'
            add(hs[-2], [f'v_cmp_nge_f32 vcc, s{56+hf}, v{VTS}'])
            add(hs[-1], [f's_cbranch_vccnz LF_rare{nm}', f'LF_ret{nm}:', f'v_add_f32 v{VLS}, v{VLS}, v{VTS}'])
            outl.append(('rare', nm, hf))
        for hf in range(2):
            if kind == 'drain' and hf == 1: continue
            nm = f'{kind}{hf}'
            first_slot = [n for n, f in enumerate(slots) if (f >> 4) == hf][0]
            fl.setdefault(('pre', first_slot), []).extend(
                ['s_cmp_ge_u32 s62, s66', f's_cbranch_scc1 LF_evt{nm}', f'LF_eret{nm}:'])
            add(first_slot, ['s_add_u32 s62, s62, 1'])
            outl.append(('evt', nm, hf))
        return bb, fl, add, pos, slots

    def prep_next():
        return [['s_add_u32 s55, s55, 1', 's_and_b32 s50, s55, 1'],
                ['s_lshl_b32 s50, s50, 15', 's_cmp_ge_u32 s55, s47'],
                ['s_cselect_b32 s69, s67, 0', 's_add_u32 s50, s50, s69', f's_add_u32 s50, s50, {KSL}']]
    def barrier_blk():
        return ['s_waitcnt vmcnt(0) lgkmcnt(0)', 's_barrier',
                f'v_add_u32 v{VV}, {(VSL - KSL) & 0xffffffff:#x}, v{VK}',
                f'v_add_u32 v{VK}, s50, v{VL16}']
    def dma_issue(name):
        L = f'buffer_load_dwordx4 v{VL16}, s[8:11], s43 offen{LS} lds'
        L2 = f'buffer_load_dwordx4 v{VL16}, s[8:11], s43 offen offset:1024{LS} lds'
        g = []
        g.append([f's_add_u32 m0, s64, {VSL}', 's_add_u32 s43, s45, s63', L])
        g.append([L2, 's_cmp_lt_u32 s55, s47'])
        g.append([f's_cbranch_scc1 LF_nov2{name}', '@COND', f's_add_u32 m0, s64, {VSL + 16384}', 's_add_u32 s43, s43, 16384', L, L2,
                  's_add_u32 s63, s63, 16384', '@ENDCOND', f'LF_nov2{name}:'])
        g.append(['s_add_u32 s63, s63, 16384', 's_xor_b32 s64, s64, 32768'])
        g.append([f's_add_u32 m0, s64, {KSL}', 's_add_u32 s43, s44, s63', L])
        g.append([L2, 's_add_u32 s65, s55, 1', 's_cmp_lt_u32 s65, s47'])
        g.append([f's_cbranch_scc1 LF_nok{name}', '@COND', f's_add_u32 m0, s64, {KSL + 16384}', 's_add_u32 s43, s43, 16384', L, L2,
                  '@ENDCOND', f'LF_nok{name}:'])
        return g

    PRIO = os.environ.get('PRIO', '1')
    if PRIO:
        p(f's_cmp_eq_u32 s25, {0 if PRIO == "1" else 1}')
        p('s_cbranch_scc1 LF_noprio')
        p('s_setprio 1')
        p.label('LF_noprio')
    bb, fl, add, pos, slots = step('first')
    for n in range(DIST): p(frag_read(slots[n]))
    nS = len(slots)
    for gi, g in enumerate(prep_next()): add(4 + gi, g)
    add(nS - DIST, barrier_blk())
    for n in range(DIST): add(nS - DIST + n, [frag_read(n)])
    if NTAIL:
        add(nS - DIST, [x for g in dma_issue('first')[:NTAIL] for x in g])
    interleave(p, bb, fl)
    p.begin_loop()
    p.label('LF_loop')
    bb, fl, add, pos, slots = step('loop')
    XP = os.environ.get('XP', '')
    if 'nodma' not in XP:
        for gi, g in enumerate(dma_issue('loop')[NTAIL:]): add(D0_ + DS_ * gi, g)
    if PFS:
        blk = [f's_cmp_lt_u32 s55, {17 - PFS - PFO}', 's_cbranch_scc1 LF_nopf', f's_cmp_ge_u32 s55, {17 - PFO}', 's_cbranch_scc1 LF_nopf', '@COND',
               f'buffer_load_dword v248, v249, s[12:15], s16 offen',
               f's_add_u32 s16, s16, 8192', '@ENDCOND', 'LF_nopf:']
        add(2, blk)
    for gi, g in enumerate(prep_next()): add(27 - DIST + gi, g)
    nb_ = barrier_blk()
    if 'nobar' in XP: nb_ = [x for x in nb_ if x != 's_barrier']
    add(32 - DIST, nb_)
    for n in range(DIST): add(min(32 - DIST + n, 30), [frag_read(n)])
    if NTAIL:
        add(32 - DIST, ['s_cmp_ge_u32 s55, 17', 's_cbranch_scc1 LF_notail', '@COND'] + [x for g in dma_issue('tail')[:NTAIL] for x in g] + ['@ENDCOND', 'LF_notail:'])
    add(30, ['s_cmp_lt_u32 s55, 17'])
    if XP:
        for kk_ in fl: fl[kk_] = [x for x in fl[kk_] if not (isinstance(x, str) and x.startswith('s_cbranch_vccnz'))]
    if 'noexp' in XP:
        for kk_ in fl: fl[kk_] = [x.replace('v_exp_f32', 'v_mov_b32') if isinstance(x, str) else x for x in fl[kk_]]
    if 'novalu' in XP:
        for kk_ in fl: fl[kk_] = [x for x in fl[kk_] if not (isinstance(x, str) and x.startswith(('v_exp', 'v_add_f32 v7', 'v_cvt')))]
    if 'nolds' in XP:
        for kk_ in fl: fl[kk_] = [x for x in fl[kk_] if not (isinstance(x, str) and x.startswith('ds_read'))]
    interleave(p, bb, fl)
    p('s_cbranch_scc1 LF_loop')
    p.end_loop()
    st.stamp()
    p('s_waitcnt lgkmcnt(0)')
    bb, fl, add, pos, slots = step('drain')
    for n in range(DIST): p(frag_read(slots[n]))
    interleave(p, bb, fl)
    st.stamp()
    p(f"""
s_cmp_ge_u32 s24, 4
s_cselect_b32 s17, 8, 0
s_add_u32 s17, s17, s22
s_add_u32 s17, s17, {CNT_CTX}
s_lshl_b32 s17, s17, 2
""")
    if os.environ.get('P4X', '0') == '1': emit(poll_issue([17], vb=250, vz=251))
    p(f'''
v_mov_b32 v9, v{VLS}
v_permlane32_swap_b32 v{VLS}, v9
v_add_f32 v{VLS}, v{VLS}, v9
s_waitcnt lgkmcnt(0)
s_barrier
''')
    p(f'''
s_mul_i32 s49, s20, 8704
s_xor_b32 s50, s20, 4
s_mul_i32 s50, s50, 8704
v_add_u32 v9, s49, v{VL16}
v_add_u32 v10, s50, v{VL16}
v_lshrrev_b32 v11, 1, v{VL16}
v_add_u32 v12, s49, v11
v_add_u32 v13, s50, v11
v_mov_b32 v14, v{VLS}
v_mov_b32 v15, v{VM}
s_cmp_eq_u32 s25, 0
s_cbranch_scc1 LF_mg0
''')
    X = TT
    alt = p.begin_alt(join=True)
    for g in (1, 0):
        p.alt_branch(alt)
        if g == 0: p.label('LF_mg0')
        keep = O + 32 * g; send = O + 32 * (1 - g)
        for k in range(8): p(f'ds_write_b128 v9, {vr(send+4*k,4)} offset:{k*1024}')
        p('ds_write_b64 v12, v[14:15] offset:8192')
        p('s_waitcnt lgkmcnt(0)')
        p('s_barrier')
        p(f'ds_read_b64 v[{E}:{E+1}], v13 offset:8192')
        for k in range(8): p(f'ds_read_b128 {vr(X+4*k,4)}, v10 offset:{k*1024}')
        p(f'''
v_max_f32 v{E+2}, v{VM}, v{E+1}
v_sub_f32 v{E+4}, v{VM}, v{E+2}
v_sub_f32 v{E+6}, v{E+1}, v{E+2}
v_exp_f32 v{E+4}, v{E+4}
v_exp_f32 v{E+6}, v{E+6}
v_mul_f32 v{E+3}, v{E+4}, v{VLS}
v_fmac_f32 v{E+3}, v{E+6}, v{E}
v_rcp_f32 v{E+3}, v{E+3}
v_mul_f32 v{E+4}, v{E+4}, v{E+3}
v_mul_f32 v{E+6}, v{E+6}, v{E+3}
''')
        for i in range(0, 32, 2):
            p(f'v_pk_mul_f32 {vr(keep+i,2)}, {vr(keep+i,2)}, {vr(E+4,2)} op_sel_hi:[1,0]')
            p(f'v_pk_fma_f32 {vr(keep+i,2)}, {vr(X+i,2)}, {vr(E+6,2)}, {vr(keep+i,2)} op_sel_hi:[1,0,1]')
        for i in range(16): p(f'v_cvt_pk_bf16_f32 v{S[0]+i}, v{keep+2*i}, v{keep+2*i+1}')
        p(f'''
s_mul_i32 s52, s28, {AF_MT}
s_lshl_b32 s54, s21, 13
s_add_u32 s52, s52, s54
s_add_u32 s52, s52, {AF_OFF + g*4096:#x}
''')
        for k in range(4): p(f'buffer_store_dwordx4 {vr(S[0]+4*k,4)}, v{VL16}, s[8:11], s52 offen offset:{k*1024}{SC}')
        if g == 1: p('s_branch LF_p4')
        p.end_branch()
    p.label('LF_p4')
    P4P = os.environ.get('P4P', '1')
    if PRIO and P4P == '0': p('s_setprio 0')
    st.stamp()
    NK = 43; D = int(os.environ.get("K3D", "6"))
    NL = int(os.environ.get("K3L", "9")); NR = int(os.environ.get("K3R", "12"))
    VA1 = 2; VW = 3; VT = [4, 5]
    ACT = 16; WF4 = ACT + 8 * D; ACC4 = WF4 + 16; WR = ACC4 + 64; XR = 240
    assert WR + 8 * NR <= XR
    AF_END = AF_OFF + 64 * AF_MT
    p(f"""
s_load_dwordx2 s[28:29], s[0:1], 40
s_load_dwordx4 s[32:35], s[0:1], 72
s_load_dwordx2 s[30:31], s[0:1], 0
s_load_dwordx2 s[36:37], s[0:1], 96
v_and_b32 v10, 63, v0
v_add_u32 v{VA1}, {AF_MT}, v{VL16}
v_lshrrev_b32 v11, 3, v10
v_and_b32 v12, 7, v10
v_bfe_u32 v13, v10, 4, 1
v_lshlrev_b32 v13, 2, v13
v_xor_b32 v12, v12, v13
v_lshlrev_b32 v12, 4, v12
v_lshl_add_u32 v{VW}, v11, 10, v12
v_lshrrev_b32 v11, 5, v10
v_bfe_u32 v12, v10, 2, 2
v_lshl_add_u32 v13, v11, 2, v12
v_lshlrev_b32 v13, 7, v13
v_lshrrev_b32 v12, 1, v12
v_lshl_add_u32 v13, v12, 6, v13
v_bfe_u32 v12, v10, 4, 1
v_lshl_add_u32 v13, v12, 5, v13
v_and_b32 v12, 3, v10
v_lshl_add_u32 v13, v12, 3, v13
s_mul_i32 s25, s20, {NL*2048}
v_add_u32 v{VT[0]}, s25, v13
v_xor_b32 v{VT[1]}, 64, v{VT[0]}
s_mul_i32 s26, s20, 43
s_cmp_ge_u32 s20, 4
s_cselect_b32 s27, 1, 0
s_sub_u32 s26, s26, s27
s_cmp_ge_u32 s20, 5
s_cselect_b32 s27, 1, 0
s_sub_u32 s26, s26, s27
s_and_b32 s44, s23, 7
s_bfe_u32 s45, s23, 0x10003
s_cmp_ge_u32 s24, 4
s_cselect_b32 s46, 8, 0
s_add_u32 s46, s46, s22
s_lshl_b32 s47, s46, 1
s_add_u32 s47, s47, s45
s_sub_u32 s48, 15, s24
s_add_u32 s48, s48, {CNT_CTX}
s_lshl_b32 s48, s48, 2
s_add_u32 s49, s24, {CNT_CTX}
s_lshl_b32 s49, s49, 2
s_add_u32 s50, s46, {CNT_CTX}
s_lshl_b32 s50, s50, 2
""")
    st.stamp()
    p('s_waitcnt vmcnt(0) lgkmcnt(0)')
    st.stamp()
    p('s_barrier')
    st.stamp()
    emit(publish([48]))
    p('s_cmp_lg_u32 s24, 7')
    p('s_cbranch_scc1 LF_nopubS2')
    emit(publish([49]))
    p.label('LF_nopubS2')
    srd(p, 12, 36, 37, AF_END)
    srd(p, 16, 30, 31, 2 << 20)
    srd(p, 36, 34, 35, 2 << 20)
    p(f"""
s_cmp_ge_u32 s20, 6
s_cselect_b32 s4, s32, s28
s_cselect_b32 s5, s33, s29
s_mov_b32 s6, 0x400000
s_cselect_b32 s6, 0x158000, s6
s_and_b32 s5, s5, 0xffff
s_mov_b32 s7, 0x00020000
s_mul_i32 s40, s47, {2*AF_MT}
s_lshl_b32 s43, s26, 10
s_add_u32 s40, s40, s43
s_add_u32 s40, s40, {AF_OFF:#x}
s_cmp_ge_u32 s20, 6
s_cselect_b32 s43, 256, 0
s_sub_u32 s43, s26, s43
s_lshl_b32 s42, s43, 14
s_lshl_b32 s43, s44, 7
s_add_u32 s42, s42, s43
s_sub_u32 s51, s20, 4
s_cmp_lt_u32 s51, 2
s_cselect_b32 s41, 0x7fff0000, s40
s_cselect_b32 s52, 0x4000, 0
s_add_u32 s52, s52, s42
""")
    def wloads(ks):
        sl = ks % NL
        if ks == 0:
            a0 = ['s_mov_b32 s54, s52', 's_add_u32 s53, s52, 0x2000']
        else:
            a0 = [f's_add_u32 s54, s42, {ks*16384}', f's_add_u32 s53, s42, {ks*16384+8192}']
        return [f's_add_u32 m0, s25, {sl*2048}'] + a0 + [
                (lambda pp: pp(f'buffer_load_dwordx4 v{VW}, s[4:7], s54 offen lds', f'x{ks}')),
                f's_add_u32 m0, s25, {sl*2048+1024}', 's_nop 0',
                (lambda pp: pp(f'buffer_load_dwordx4 v{VW}, s[4:7], s53 offen lds', f'x{ks}'))]
    def aloads(ks):
        a = ACT + 8 * (ks % D)
        pre = ['s_mov_b32 s55, s41'] if ks == 0 else [f's_add_u32 s55, s40, {ks*1024}']
        return pre + [f'buffer_load_dwordx4 {vr(a,4)}, v{VL16}, s[12:15], s55 offen{LS}',
                      f'buffer_load_dwordx4 {vr(a+4,4)}, v{VA1}, s[12:15], s55 offen{LS}']
    p(f"""
s_lshr_b32 s56, s20, 2
s_bfe_u32 s57, s20, 0x10001
s_and_b32 s58, s20, 1
s_lshl_b32 s59, s47, 6
s_lshl_b32 s60, s57, 5
s_add_u32 s59, s59, s60
s_lshl_b32 s59, s59, 10
s_lshl_b32 s60, s44, 6
s_lshl_b32 s61, s56, 5
s_add_u32 s60, s60, s61
s_lshl_b32 s61, s58, 4
s_add_u32 s60, s60, s61
s_lshl_b32 s60, s60, 1
s_add_u32 s59, s59, s60
v_and_b32 v11, 31, v10
v_lshrrev_b32 v12, 5, v10
v_lshlrev_b32 v11, 10, v11
v_lshl_add_u32 v9, v12, 3, v11
buffer_load_dwordx2 v[{XR}:{XR+1}], v9, s[16:19], s59 offen
buffer_load_dwordx2 v[{XR+2}:{XR+3}], v9, s[16:19], s59 offen offset:16
""")
    def p4_main(NR_, early):
        def wreg(ks, nt):
            return (WR + 8 * ks + 4 * nt) if ks < NR_ else (WF4 + 8 * (ks & 1) + 4 * nt)
        def trr(ks):
            sl = ks % NL; out = [lambda pp: pp.wait_tag(f'x{ks}')]
            for nt in range(2):
                w = wreg(ks, nt)
                out.append((lambda pp, w=w, nt=nt: pp(f'ds_read_b64_tr_b16 {vr(w,2)}, v{VT[nt]} offset:{sl*2048}', f'r{ks}')))
                out.append((lambda pp, w=w, nt=nt: pp(f'ds_read_b64_tr_b16 {vr(w+2,2)}, v{VT[nt]} offset:{sl*2048+1024}', f'r{ks}')))
            return out
        if early:
            emit(poll_check([(50, 32)], vb=250))
            p('s_barrier')
            for ks in range(NL):
                emit(wloads(ks))
                if ks < D: emit(aloads(ks))
            emit(trr(0))
        else:
            for ks in range(NL): emit(wloads(ks))
            for ks in range(NR_):
                emit(trr(ks))
                if ks >= 1:
                    p.wait_tag(f'r{ks-1}')
                    emit(wloads(ks - 1 + NL))
            p.wait_tag(f'r{NR_-1}')
            emit(wloads(NR_ - 1 + NL))
            emit(poll_noinv([(50, 32)]))
            p('s_barrier')
            if os.environ.get('DIAG_STAG'):
                p(f"""
s_lshr_b32 s3, s23, 3
s_lshl_b32 s3, s3, 1
s_add_u32 s3, s3, s44
s_and_b32 s3, s3, 7
LF_stag:
s_cmp_eq_u32 s3, 0
s_cbranch_scc1 LF_stag_e
s_sleep {os.environ['DIAG_STAG']}
s_sub_u32 s3, s3, 1
s_branch LF_stag
LF_stag_e:
""")
            for ks in range(D): emit(aloads(ks))
        for ks in range(NK):
            a = ACT + 8 * (ks % D)
            if NR_ <= ks + 1 < NK: emit(trr(ks + 1))
            for nt in range(2):
                for mt in range(2):
                    w = wreg(ks, nt)
                    acc = vr(ACC4 + 16 * (2 * nt + mt), 16); cc = '0' if ks == 0 else acc
                    p(f'{MF} {acc}, {vr(w,4)}, {vr(a+4*mt,4)}, {cc}')
            if ks + D < NK: emit(aloads(ks + D))
            if ks >= NR_ and ks + NL < NK:
                p.wait_tag(f'r{ks}')
                emit(wloads(ks + NL))
        p('s_waitcnt vmcnt(0)')
    if os.environ.get('P4X', '0') == '1':
        p('s_cmp_ge_u32 s24, 4')
        p('s_cbranch_scc1 LF_p4y')
        alt4 = p.begin_alt(join=True)
        p.alt_branch(alt4); p4_main(0, True); p('s_waitcnt lgkmcnt(0)'); p('s_branch LF_p4j'); p.end_branch()
        p.alt_branch(alt4); p.label('LF_p4y'); p4_main(NR, False); p('s_waitcnt lgkmcnt(0)'); p.end_branch()
        p.label('LF_p4j')
    else:
        p4_main(NR, False)
    p('s_waitcnt lgkmcnt(0)')
    p('s_barrier')
    p('s_lshl_b32 s25, s20, 14')
    p(f'v_add_u32 v6, s25, v{VL16}')
    for b in range(16): p(f'ds_write_b128 v6, {vr(ACC4+4*b,4)} offset:{b*1024}')
    p(f"""
s_lshl_b32 s56, s20, 11
v_add_u32 v7, s56, v{VL16}
v_add_u32 v8, 0x10000, v7
s_waitcnt lgkmcnt(0)
s_barrier
""")
    for src in range(8):
        base = 7 if src < 4 else 8
        for b in range(2):
            p(f'ds_read_b128 {vr(16+8*src+4*b,4)}, v{base} offset:{(src%4)*16384 + b*1024}')
    for i in range(8):
        p(f'v_add_f32 v{16+i}, v{16+i}, v{24+i}')
        p(f'v_add_f32 v{32+i}, v{32+i}, v{40+i}')
        p(f'v_add_f32 v{48+i}, v{48+i}, v{56+i}')
        p(f'v_add_f32 v{64+i}, v{64+i}, v{72+i}')
    for i in range(8):
        p(f'v_add_f32 v{16+i}, v{16+i}, v{32+i}')
        p(f'v_add_f32 v{16+i}, v{16+i}, v{48+i}')
    for i in range(4):
        p(f'v_cvt_pk_bf16_f32 v{24+i}, v{16+2*i}, v{17+2*i}')
        p(f'v_cvt_pk_bf16_f32 v{72+i}, v{64+2*i}, v{65+2*i}')
    for i in range(4):
        p(f'v_lshlrev_b32 v{16+2*i}, 16, v{24+i}')
        p(f'v_and_b32 v{17+2*i}, 0xffff0000, v{24+i}')
        p(f'v_lshlrev_b32 v{64+2*i}, 16, v{72+i}')
        p(f'v_and_b32 v{65+2*i}, 0xffff0000, v{72+i}')
    NL2E = f2u(-math.log2(math.e))
    for i in range(8): p(f'v_mul_f32 v{32+i}, {NL2E:#x}, v{64+i}')
    for i in range(8): p(f'v_exp_f32 v{32+i}, v{32+i}')
    for i in range(8): p(f'v_add_f32 v{32+i}, 1.0, v{32+i}')
    for i in range(8): p(f'v_rcp_f32 v{32+i}, v{32+i}')
    for i in range(8): p(f'v_mul_f32 v{32+i}, v{32+i}, v{64+i}')
    for i in range(4): p(f'v_cvt_pk_bf16_f32 v{40+i}, v{32+2*i}, v{33+2*i}')
    for i in range(4):
        p(f'v_lshlrev_b32 v{32+2*i}, 16, v{40+i}')
        p(f'v_and_b32 v{33+2*i}, 0xffff0000, v{40+i}')
    for i in range(8): p(f'v_mul_f32 v{32+i}, v{32+i}, v{16+i}')
    for i in range(4): p(f'v_cvt_pk_bf16_f32 v{40+i}, v{32+2*i}, v{33+2*i}')
    for i in range(4):
        p(f'v_lshlrev_b32 v{32+2*i}, 16, v{40+i}')
        p(f'v_and_b32 v{33+2*i}, 0xffff0000, v{40+i}')
        p(f'v_lshlrev_b32 v{48+2*i}, 16, v{XR+i}')
        p(f'v_and_b32 v{49+2*i}, 0xffff0000, v{XR+i}')
    for i in range(8): p(f'v_add_f32 v{32+i}, v{32+i}, v{48+i}')
    for i in range(4): p(f'v_cvt_pk_bf16_f32 v{40+i}, v{32+2*i}, v{33+2*i}')
    p('buffer_store_dwordx2 v[40:41], v9, s[36:39], s59 offen')
    p('buffer_store_dwordx2 v[42:43], v9, s[36:39], s59 offen offset:16')
    if PROF: p('s_waitcnt vmcnt(0)')
    st.stamp()
    st.dump(p, 8, 0, 20, 50, 57, 8)
    p('s_endpgm')

    ool = p.begin_alt()
    def routine(name):
        p.alt_branch(ool); p.label(name)
    def fin_code():
        p(f"""
s_nop 15
s_nop 7
v_mov_b32 v9, v{VLSAVE}
v_permlane32_swap_b32 v{VLSAVE}, v9
v_add_f32 v9, v{VLSAVE}, v9
v_rcp_f32 v9, v9
s_mul_i32 s52, s27, {AF_MT}
s_lshl_b32 s54, s21, 13
s_add_u32 s52, s52, s54
s_add_u32 s52, s52, {AF_OFF:#x}
s_add_u32 s53, s52, 4096
""")
        for half in range(2):
            for i in range(32): p(f'v_mul_f32 v{O+32*half+i}, v{O+32*half+i}, v9')
            for i in range(16): p(f'v_cvt_pk_bf16_f32 v{TT+16*half+i}, v{O+32*half+2*i}, v{O+32*half+2*i+1}')
            for k in range(4): p(f'buffer_store_dwordx4 {vr(TT+16*half+4*k,4)}, v{VL16}, s[8:11], s{52+half} offen offset:{k*1024}{SC}')
        for i in range(64): p(f'v_mov_b32 v{O+i}, 0')
    for kind, nm, hf in outl:
        if kind == 'evt':
            routine(f'LF_evt{nm}')
            p('s_lshl_b32 s68, s47, 1')
            if nm in ('loop0', 'drain0'):
                p(f"""
s_add_u32 s69, s68, 2
s_cmp_lg_u32 s62, s69
s_cbranch_scc1 LF_nofin{nm}
s_cmp_eq_u32 s25, 0
s_cbranch_scc1 LF_nofin{nm}
""")
                fin_code()
                p.label(f'LF_nofin{nm}')
            if nm == 'loop0':
                p(f"""
s_add_u32 s69, s68, 4
s_cmp_lg_u32 s62, s69
s_cbranch_scc1 LF_nopubS
s_add_u32 s69, s24, {CNT_CTX}
s_lshl_b32 s69, s69, 2
""")
                emit(publish([69]))
                p(f"""
LF_nopubS:
s_cmp_lg_u32 s62, s68
s_cbranch_scc1 LF_nosw
s_cmp_eq_u32 s25, 0
s_cbranch_scc1 LF_nosw
s_lshl_b32 s69, s26, 13
s_add_u32 s69, s69, {QX}
v_add_u32 v9, s69, v{VL16}
s_nop 7
""")
                for ks in range(8): p(f'ds_read_b128 {vr(Q+4*ks,4)}, v9 offset:{ks*1024}')
                for i in range(16): p(f'v_mov_b32 v{MN+i}, 0')
                p(f"""
v_mov_b32 v{VM}, 0
s_mov_b32 s61, s28
s_mov_b32 s60, 0
s_waitcnt lgkmcnt(0)
LF_nosw:
""")
            if nm == 'loop1':
                p(f"""
s_add_u32 s69, s68, 1
s_cmp_lg_u32 s62, s69
s_cbranch_scc1 LF_nomid
s_cmp_eq_u32 s25, 0
s_cbranch_scc1 LF_nomid
v_mov_b32 v{VLSAVE}, v{VLS}
v_mov_b32 v{VLS}, 0
s_mov_b32 s60, 1.0
s_mov_b32 s57, 0xbf800000
s_mov_b32 s58, {FLOOR1:#x}
s_mov_b32 s59, 1
LF_nomid:
""")
            if nm != 'drain0':
                p(f"""
s_lshr_b32 s68, s62, 1
s_lshl_b32 s69, s68, 1
s_sub_u32 s69, s69, s47
s_add_u32 s69, s69, s25
s_cmp_ge_u32 s68, s47
s_cselect_b32 s68, s69, s68
s_lshl_b32 s68, s68, 1
s_add_u32 s68, s68, {hf}
s_cmp_lt_u32 s68, s61
s_cbranch_scc1 LF_nomask{nm}
s_sub_u32 s68, s61, s68
s_lshl_b32 s68, s68, 5
v_add_u32 v9, s68, v{VZ}
v_mov_b32 v10, {NEG:#x}
""")
                for r in range(16):
                    cr = 8 * (r >> 2) + (r & 3)
                    p(f'v_cmp_gt_i32 vcc, {cr}, v9')
                    p(f'v_cndmask_b32 v{MN+r}, v{MN+r}, v10, vcc')
                p.label(f'LF_nomask{nm}')
            p(f"""
s_add_u32 s68, s62, 1
s_max_u32 s66, s68, 32
s_cmp_le_u32 s68, s49
s_cselect_b32 s66, s68, s66
s_branch LF_eret{nm}
""")
            p.end_branch()
        else:
            routine(f'LF_rare{nm}')
            c = S[1 - hf]; nx = S[hf]; pc = PP[1 - hf]
            p('s_nop 15\ns_nop 7')
            p(f'v_max3_f32 v9, v{c}, v{c+1}, v{c+2}')
            for k in range(3, 15, 2): p(f'v_max3_f32 v9, v9, v{c+k}, v{c+k+1}')
            p(f'v_max_f32 v9, v9, v{c+15}')
            p(f'''
v_mov_b32 v10, v9
v_permlane32_swap_b32 v9, v10
v_max_f32 v9, v9, v10
v_max_f32 v9, s58, v9
v_sub_f32 v10, 0, v9
v_min_f32 v10, 0x42fc0000, v10
v_exp_f32 v10, v10
v_mul_f32 v11, s60, v9
''')
            for k in range(16): p(f'v_sub_f32 v{c+k}, v{c+k}, v9')
            for k in range(16): p(f'v_exp_f32 v{TT+k}, v{c+k}')
            p(f'v_add_f32 v{VTS}, v{TT}, v{TT+1}')
            for k in range(2, 16): p(f'v_add_f32 v{VTS}, v{VTS}, v{TT+k}')
            for k in range(8): p(f'v_cvt_pk_bf16_f32 v{pc+k}, v{TT+2*k}, v{TT+2*k+1}')
            for k in range(16): p(f'v_sub_f32 v{nx+k}, v{nx+k}, v11')
            for k in range(16): p(f'v_sub_f32 v{MN+k}, v{MN+k}, v11')
            p(f'v_add_f32 v{VM}, v{VM}, v11')
            p(f'v_mul_f32 v{VLS}, v{VLS}, v10')
            p('s_cmp_lg_u32 s59, 0')
            p(f's_cbranch_scc1 LF_rskip{nm}')
            for k in range(64): p(f'v_mul_f32 v{O+k}, v{O+k}, v10')
            p.label(f'LF_rskip{nm}')
            p(f'''
s_mov_b32 s{56+hf}, {THR:#x}
''')
            if hf == 1:
                p('s_mov_b32 s58, 0\ns_mov_b32 s59, 0')
            if nm == 'loop1': p('s_cmp_lt_u32 s55, 17')
            p(f's_branch LF_ret{nm}')
            p.end_branch()
    p.alt_branch(ool); emit_slow(); p.end_branch()
    p.label('LF_end')
    p('s_endpgm')
    return ('kf_kernel', p, 256, 512, 163840, 256, 256)
```

```python
from common import *
from k1 import ln_stream
import struct, math

def f2u(x): return struct.unpack('<I', struct.pack('<f', x))[0]
MF = 'v_mfma_f32_32x32x16_bf16'
SC = os.environ.get('FSC', ' sc1')
CNT_LN = 0; CNT_KV = 16; CNT_CTX = 32; CNT_REG = 48
LS = os.environ.get('LS', ' sc1')
SPIN_MAX = 1 << 22

KVSC = os.environ.get('KVSC', '')
KVN = int(os.environ.get('KVN', '0'))
def gen_kf():
    p = Prog()
    st = Stamps(p, 70, 10)
    st.skip = set(int(x) for x in os.environ.get('STSKIP', '').split(',') if x)
    def emit(lst):
        for f in lst:
            if isinstance(f, list): emit(f)
            elif callable(f): f(p)
            else: p(f)
    VL16 = 1
    uid = [0]
    def publish(sreg_idx_list):
        uid[0] += 1; L = f'LF_pub{uid[0]}'
        out = ['s_cmp_lg_u32 s20, 0', f's_cbranch_scc1 {L}', '@COND', 'v_mov_b32 v14, 1', 'v_mov_b32 v15, 0', 's_mov_b64 exec, 1']
        for s in sreg_idx_list:
            out.append(f'buffer_atomic_add v14, v15, s[96:99], s{s} offen sc1')
        out += ['s_mov_b64 exec, -1', '@ENDCOND', f'{L}:']
        return out
    def poll(pairs):
        uid[0] += 1; L = f'LF_poll{uid[0]}'
        out = ['s_cmp_lg_u32 s20, 0', f's_cbranch_scc1 {L}_done', '@COND', 'v_mov_b32 v15, 0', f's_mov_b32 s3, {SPIN_MAX}']
        for n, (s, tgt) in enumerate(pairs):
            out += [f'{L}_{n}:',
                    f'buffer_load_dword v14, v15, s[96:99], s{s} offen sc1',
                    's_waitcnt vmcnt(0)',
                    'v_readfirstlane_b32 s100, v14',
                    's_sub_u32 s3, s3, 1',
                    's_cmp_eq_u32 s3, 0',
                    f's_cbranch_scc1 {L}_acq',
                    f's_cmp_ge_u32 s100, {tgt}',
                    f's_cbranch_scc1 {L}_{n}_ok',
                    's_sleep 2',
                    f's_branch {L}_{n}',
                    f'{L}_{n}_ok:']
        out += [f'{L}_acq:', 'buffer_inv sc1', 's_waitcnt vmcnt(0)', '@ENDCOND', f'{L}_done:']
        return out
    def poll_noinv(pairs):
        out = poll(pairs)
        i = out.index('buffer_inv sc1')
        return out[:i] + out[i + 2:]
    slow = []
    def poll_issue(sregs, vb=14, vz=8):
        uid[0] += 1; L = f'LF_pi{uid[0]}'
        out = ['s_cmp_lg_u32 s20, 0', f's_cbranch_scc1 {L}', '@COND', f'v_mov_b32 v{vz}, 0']
        for n, s in enumerate(sregs): out.append(f'buffer_load_dword v{vb+n}, v{vz}, s[96:99], s{s} offen sc1')
        out += ['@ENDCOND', f'{L}:']
        return out
    def poll_check(pairs, inv_flag=None, vb=14):
        uid[0] += 1; L = f'LF_pc{uid[0]}'
        out = ['s_cmp_lg_u32 s20, 0', f's_cbranch_scc1 {L}', '@COND']
        for n, (s, tgt) in enumerate(pairs):
            out += [f'v_readfirstlane_b32 s100, v{vb+n}', f's_cmp_lt_u32 s100, {tgt}', f's_cbranch_scc1 {L}_slow']
        out += [f'{L}_ok:']
        if inv_flag is not None and inv_flag >= 0:
            out += [f's_cmp_lg_u32 s{inv_flag}, 0', f's_cbranch_scc1 {L}', (lambda pp: pp('buffer_inv sc1', 'inv'))]
        elif inv_flag is not None:
            out += [(lambda pp: pp('buffer_inv sc1', 'inv'))]
        out += ['@ENDCOND', f'{L}:']
        slow.append((L, pairs))
        return out
    def publish_kv():
        uid[0] += 1; L = f'LF_pkv{uid[0]}'
        return ['s_cmp_lg_u32 s20, 0', f's_cbranch_scc1 {L}', '@COND',
                'v_readfirstlane_b32 s100, v15',
                's_and_b32 s3, s100, 63', 's_bfe_u32 s29, s100, 0x90006', 's_lshr_b32 s30, s100, 15',
                's_mul_i32 s29, s29, s29', 's_lshl_b32 s30, s30, 5',
                's_cmp_eq_u32 s29, s30', 's_cselect_b32 s94, 1, 0',
                's_cmp_eq_u32 s3, 32', 's_cselect_b32 s94, s94, 0',
                's_cmp_lg_u32 s94, 0', f's_cbranch_scc1 {L}_fast',
                'buffer_wbl2 sc1', 's_waitcnt vmcnt(0)',
                f'{L}_fast:',
                'v_mov_b32 v14, 1', 'v_mov_b32 v15, 0', 's_mov_b64 exec, 1',
                'buffer_atomic_add v14, v15, s[96:99], s33 offen sc1',
                's_mov_b64 exec, -1', '@ENDCOND', f'{L}:']
    def w0_drain():
        uid[0] += 1; L = f'LF_dr{uid[0]}'
        return ['s_cmp_lg_u32 s20, 0', f's_cbranch_scc1 {L}', '@COND', (lambda pp: pp.wait_tag('inv')), '@ENDCOND', f'{L}:']
    def emit_slow():
        for L, pairs in slow:
            p.label(f'{L}_slow')
            p(f's_mov_b32 s3, {SPIN_MAX}')
            p('v_mov_b32 v8, 0')
            for n, (s, tgt) in enumerate(pairs):
                p(f"""
{L}_s{n}:
buffer_load_dword v14, v8, s[96:99], s{s} offen sc1
s_waitcnt vmcnt(0)
v_readfirstlane_b32 s100, v14
s_sub_u32 s3, s3, 1
s_cmp_eq_u32 s3, 0
s_cbranch_scc1 {L}_ok
s_cmp_ge_u32 s100, {tgt}
s_cbranch_scc1 {L}_s{n}_ok
s_sleep 2
s_branch {L}_s{n}
{L}_s{n}_ok:
""")
            p(f's_branch {L}_ok')
    p(f'''
s_cmp_ge_u32 s2, 256
s_cbranch_scc1 LF_end
s_load_dwordx4 s[28:31], s[0:1], 0
s_load_dwordx4 s[32:35], s[0:1], 24
s_load_dwordx4 s[36:39], s[0:1], 88
s_load_dwordx4 s[64:67], s[0:1], 56
s_load_dwordx2 s[68:69], s[0:1], 16
s_load_dwordx2 s[56:57], s[0:1], 40
s_load_dwordx2 s[58:59], s[0:1], 72
v_lshrrev_b32 v9, 6, v0
v_and_b32 v10, 63, v0
v_readfirstlane_b32 s20, v9
s_and_b32 s22, s2, 7
s_lshr_b32 s23, s2, 3
''')
    st.stamp()
    p('''
s_and_b32 s48, s23, 1
s_bfe_u32 s49, s23, 0x10001
s_lshr_b32 s50, s23, 2
s_lshl_b32 s51, s22, 9
s_lshl_b32 s3, s48, 8
s_add_u32 s51, s51, s3
''')
    p(f'v_lshlrev_b32 v{VL16}, 4, v10')
    STG = 65536
    p('''
v_lshrrev_b32 v11, 3, v10
v_and_b32 v12, 7, v10
v_lshrrev_b32 v13, 4, v10
v_xor_b32 v14, v12, v13
v_lshlrev_b32 v14, 4, v14
v_lshl_add_u32 v2, v11, 10, v14
v_xor_b32 v3, 64, v2
''')
    p('''
v_and_b32 v13, 1, v13
v_lshlrev_b32 v13, 2, v13
v_xor_b32 v14, v12, v13
v_lshlrev_b32 v14, 4, v14
v_lshl_add_u32 v4, v11, 13, v14
''')
    p(f'''
v_and_b32 v11, 31, v10
v_lshrrev_b32 v12, 5, v10
v_bfe_u32 v13, v11, 1, 3
v_xor_b32 v13, v12, v13
v_lshlrev_b32 v13, 4, v13
v_lshl_add_u32 v13, v11, 7, v13
s_lshl_b32 s52, s20, 13
s_add_u32 s52, s52, {STG}
v_add_u32 v16, s52, v13
v_xor_b32 v17, 32, v16
v_xor_b32 v18, 64, v16
v_xor_b32 v19, 96, v16
''')
    p('''
v_bfe_u32 v11, v10, 2, 2
v_lshl_add_u32 v13, v12, 3, v11
v_lshlrev_b32 v13, 7, v13
v_lshrrev_b32 v11, 1, v11
v_lshl_add_u32 v13, v11, 6, v13
v_bfe_u32 v11, v10, 4, 1
v_lshl_add_u32 v13, v11, 5, v13
v_and_b32 v11, 3, v10
v_lshl_add_u32 v20, v11, 3, v13
v_xor_b32 v21, 64, v20
v_add_u32 v22, 0x8000, v20
v_add_u32 v23, 0x8000, v21
v_add_u32 v24, 0x20000, v20
v_add_u32 v25, 0x20000, v21
v_add_u32 v26, 0x10000, v20
v_add_u32 v27, 0x10000, v21
v_lshlrev_b32 v14, 7, v10
v_lshrrev_b32 v15, 2, v10
v_lshlrev_b32 v15, 13, v15
v_and_b32 v11, 3, v10
v_lshl_add_u32 v15, v11, 7, v15
v_lshrrev_b32 v5, 1, v10
v_lshlrev_b32 v5, 10, v5
v_and_b32 v11, 1, v10
v_lshl_add_u32 v5, v11, 9, v5
''')
    p('s_waitcnt lgkmcnt(0)')
    srd(p, 12, 30, 31, 2 << 20)
    srd(p, 16, 28, 29, 2 << 20)
    srd(p, 8, 38, 39, WS_BYTES)
    srd(p, 96, 36, 37, 256)
    p('''
s_cmp_eq_u32 s49, 0
s_cselect_b32 s4, s32, s34
s_cselect_b32 s5, s33, s35
s_and_b32 s5, s5, 0xffff
s_mov_b32 s6, 0x400000
s_mov_b32 s7, 0x00020000
s_lshl_b32 s40, s50, 8
s_lshl_b32 s41, s20, 5
s_add_u32 s40, s40, s41
s_lshl_b32 s40, s40, 10
s_lshl_b32 s42, s20, 18
s_lshl_b32 s43, s51, 1
s_add_u32 s42, s42, s43
s_lshl_b32 s43, s20, 12
''')
    WS = [0, 32768, 131072, 65536]
    def wdma(u, q):
        sc = u >> 1; kh = u & 1
        return [f's_add_u32 m0, s43, {WS[u % 4] + q*1024}',
                f's_add_u32 s53, s42, {(kh*256 + 8*q)*8192 + sc*128}',
                (lambda pp: pp('buffer_load_dwordx4 v4, s[4:7], s53 offen lds', f'w{u}'))]
    def adma(e, jj):
        return [f's_add_u32 m0, s52, {(e&1)*4096 + jj*1024}',
                f's_add_u32 s54, s40, {8*jj*1024 + e*128}',
                (lambda pp: pp(f'buffer_load_dwordx4 v{2+(jj&1)}, s[12:15], s54 offen lds', f'a{e}'))]
    AR = 128
    def aread(e, k):
        ks = 4 * e + k
        return (lambda pp: pp(f'ds_read_b128 {vr(AR+4*ks,4)}, v{16+k} offset:{(e&1)*4096}', f'ar{e}'))
    for jj in range(4): emit(adma(0, jj))
    for q in range(4): emit(wdma(0, q))
    for jj in range(4): emit(adma(1, jj))
    p('''
s_lshl_b32 s29, s2, 3
s_add_u32 s29, s29, s20
s_lshl_b32 s30, s29, 10
''')
    LNR = 96; LNT = 100
    p(f'buffer_load_dwordx4 {vr(LNR,4)}, v{VL16}, s[16:19], s30 offen')
    if 'pf' in os.environ.get('XP1', '').split('_'):
        p("""
s_cmp_lt_u32 s2, 128
s_cselect_b32 s60, s32, s34
s_cselect_b32 s61, s33, s35
s_mov_b32 s62, 0x400000
s_and_b32 s3, s2, 127
s_lshl_b32 s3, s3, 15
s_lshl_b32 s53, s20, 13
s_add_u32 s3, s3, s53
s_lshl_b32 s53, s2, 13
s_cmp_eq_u32 s20, 4
s_cselect_b32 s60, s12, s60
s_cselect_b32 s61, s13, s61
s_cselect_b32 s62, s14, s62
s_cselect_b32 s3, s53, s3
s_cmp_gt_u32 s20, 4
s_cselect_b32 s3, 0x7f000000, s3
s_and_b32 s61, s61, 0xffff
s_mov_b32 s63, 0x00020000
buffer_load_dword v104, v14, s[60:63], s3 offen
""")
    for q in range(4): emit(wdma(1, q))
    if os.environ.get('W2P'):
        for q in range(4): emit(wdma(2, q))
    p(f'''
s_lshr_b32 s44, s51, 7
s_lshl_b32 s44, s44, 19
s_lshl_b32 s45, s50, 3
s_add_u32 s45, s45, s20
s_lshl_b32 s45, s45, 13
s_add_u32 s44, s44, s45
s_mov_b32 s45, {KF_OFF:#x}
s_mov_b32 s46, {VF_OFF:#x}
s_cmp_eq_u32 s49, 0
s_cselect_b32 s45, s45, s46
s_add_u32 s41, s44, s45
s_lshr_b32 s31, s29, 5
s_lshl_b32 s31, s31, 15
s_and_b32 s3, s29, 31
s_lshl_b32 s3, s3, 4
s_add_u32 s31, s31, s3
s_lshr_b32 s32, s2, 4
s_lshl_b32 s32, s32, 2
s_lshr_b32 s33, s51, 8
s_add_u32 s33, s33, {CNT_KV}
s_lshl_b32 s33, s33, 2
s_getreg_b32 s3, hwreg(HW_REG_XCC_ID, 0, 4)
s_mul_i32 s53, s3, s3
s_lshl_b32 s53, s53, 15
s_lshl_b32 s3, s3, 6
s_add_u32 s53, s53, s3
s_add_u32 s53, s53, 1
s_add_u32 s101, s22, {CNT_REG}
s_lshl_b32 s101, s101, 2
s_cmp_lg_u32 s20, 0
s_cbranch_scc1 LF_noreg
@COND
v_mov_b32 v8, s53
v_mov_b32 v9, 0
s_mov_b64 exec, 1
buffer_atomic_add v8, v9, s[96:99], s101 offen sc1
s_mov_b64 exec, -1
@ENDCOND
LF_noreg:
''')
    if XF_OFF: p(f's_add_u32 s31, s31, {XF_OFF:#x}')
    p('''
s_and_b32 s3, s23, 3
s_lshl_b32 s21, s22, 2
s_add_u32 s21, s21, s3
s_lshr_b32 s24, s23, 2
s_lshr_b32 s25, s20, 2
s_and_b32 s26, s20, 3
s_sub_u32 s28, 15, s24
s_lshl_b32 s28, s28, 2
s_add_u32 s28, s28, s26
s_lshl_b32 s27, s24, 2
s_add_u32 s27, s27, s26
s_cmp_eq_u32 s25, 0
s_cselect_b32 s27, s28, s27
''')
    if os.environ.get('P1P', '1') == '1':
        p('s_cmp_eq_u32 s25, 0')
        p('s_cbranch_scc1 LF_noprio1')
        p('s_setprio 1')
        p.label('LF_noprio1')
    p.wait_tag('a0')
    for k in range(4): emit([aread(0, k)])
    p.wait_tag('ar0')
    for jj in range(4): emit(adma(2, jj))
    p.wait_tag('w0')
    p('s_barrier')
    st.stamp()
    p('s_cmp_lg_u32 s49, 0')
    p('s_cbranch_scc1 LF_v')

    WF = 32; NST = 4; ACC = 64; PK = 96
    def trread(u, kk):
        out = []
        for nt in range(2):
            w = WF + 8 * (kk % NST) + 4 * nt
            out.append(f'ds_read_b64_tr_b16 {vr(w,2)}, v{20+2*(u%4)+nt} offset:{kk*2048}')
            out.append(f'ds_read_b64_tr_b16 {vr(w+2,2)}, v{20+2*(u%4)+nt} offset:{kk*2048+512}')
        return out
    def kv_epilogue(sc, nt):
        g = []
        PKB = PK if sc < 3 else 32
        for half in range(2):
            pk = PKB + 8 * nt + 4 * half
            for i in range(4):
                s = ACC + 16 * nt + 8 * half + 2 * i
                g.append(f'v_cvt_pk_bf16_f32 v{pk+i}, v{s}, v{s+1}')
        off = (sc >> 1) * 524288 + (sc & 1) * 4096
        st_ = [[f's_add_u32 s55, s41, {off + nt*2048 + half*1024}',
                (lambda pp, half=half: pp(f'buffer_store_dwordx4 {vr(PKB+8*nt+4*half,4)}, v{VL16}, s[8:11], s55 offen{KVSC if sc >= KVN else SC}', 'kvst'))]
               for half in range(2)]
        return g, st_
    lns = ln_stream(LNR, LNT, LNT + 16)
    lns.append(lambda pp: pp(f'buffer_store_dwordx4 {vr(LNR,4)}, v5, s[8:11], s31 offen{SC}', 'lnst'))
    SLOT = 29184
    GSL = [0, SLOT, 131072, 65536]
    KSL = 0; VSL = 65536; QX = 131072
    GD = 28
    def p2_setup():
        q = Prog(); pp = q
        pp("""
v_and_b32 v10, 63, v0
v_lshrrev_b32 v11, 4, v10
v_bfe_u32 v12, v10, 2, 2
v_and_b32 v13, 3, v11
v_xor_b32 v12, v12, v13
v_lshlrev_b32 v12, 6, v12
v_and_b32 v13, 3, v10
v_lshl_add_u32 v12, v13, 4, v12
v_lshl_add_u32 v12, v11, 13, v12
s_lshl_b32 s29, s26, 17
v_add_u32 v28, s29, v12
v_add_u32 v29, 0x8000, v28
v_add_u32 v30, 0x10000, v28
v_add_u32 v31, 0x18000, v28
s_and_b32 s29, s20, 1
s_mul_i32 s29, s29, 192
s_mov_b32 s30, 43691
s_movk_i32 s34, 2752
s_cmp_eq_u32 s25, 0
s_cselect_b64 s[36:37], -1, 0
""")
        for t in range(3):
            pp(f"""
v_add_u32 v11, s29, v10
v_add_u32 v11, {64*t}, v11
v_mul_lo_u32 v12, v11, s30
v_lshrrev_b32 v12, 18, v12
v_mul_u32_u24 v13, 6, v12
v_sub_u32 v13, v11, v13
v_mul_lo_u32 v12, v12, s34
v_lshl_add_u32 v9, v13, 4, v12
v_cndmask_b32 v{28+t}, v9, v{28+t}, s[36:37]
""")
        pp('v_cndmask_b32 v31, v9, v31, s[36:37]')
        pp("""
v_lshrrev_b32 v11, 5, v10
v_bfe_u32 v12, v10, 2, 2
v_lshl_add_u32 v13, v11, 3, v12
v_lshlrev_b32 v6, 8, v13
v_lshl_add_u32 v6, v12, 6, v6
v_bfe_u32 v7, v10, 4, 1
v_lshl_add_u32 v6, v7, 5, v6
v_and_b32 v9, 3, v10
v_lshl_add_u32 v6, v9, 3, v6
v_mul_u32_u24 v13, 96, v13
v_mul_u32_u24 v7, 6272, v7
v_add_u32 v13, v13, v7
v_lshl_add_u32 v13, v9, 3, v13
v_add_u32 v7, 0x4000, v13
""")
        pp("""
s_mov_b32 s60, s68
s_mov_b32 s61, s69
s_cmp_eq_u32 s20, 2
s_cselect_b32 s60, s64, s60
s_cselect_b32 s61, s65, s61
s_cmp_eq_u32 s20, 3
s_cselect_b32 s60, s66, s60
s_cselect_b32 s61, s67, s61
s_cmp_ge_u32 s20, 4
s_cselect_b32 s60, s56, s60
s_cselect_b32 s61, s57, s61
s_cmp_ge_u32 s20, 6
s_cselect_b32 s60, s58, s60
s_cselect_b32 s61, s59, s61
s_and_b32 s61, s61, 0xffff
s_mov_b32 s63, 0x00020000
s_mov_b32 s62, 0x158000
s_movk_i32 s35, 5504
s_and_b32 s38, s20, 2
s_cmp_eq_u32 s38, 0
s_cselect_b32 s62, 0x400000, s62
s_cselect_b32 s35, 0x4000, s35
s_mul_i32 s35, s35, s2
s_and_b32 s39, s20, 1
s_lshl_b32 s39, s39, 13
s_cmp_eq_u32 s38, 0
s_cselect_b32 s39, s39, 0
s_add_u32 s35, s35, s39
s_cmp_ge_u32 s20, 4
s_cselect_b32 s35, 0x7f000000, s35
v_lshlrev_b32 v12, 3, v1
buffer_load_dword v11, v12, s[60:63], s35 offen
""")
        pp("""
s_bfe_u32 s29, s20, 0x10001
s_cmp_eq_u32 s29, 0
s_cselect_b32 s16, s64, s66
s_cselect_b32 s17, s65, s67
s_mov_b32 s18, 0x158000
s_cmp_eq_u32 s25, 0
s_cselect_b32 s16, s68, s16
s_cselect_b32 s17, s69, s17
s_cselect_b32 s18, 0x400000, s18
s_and_b32 s17, s17, 0xffff
s_mov_b32 s19, 0x00020000
s_lshl_b32 s56, s21, 8
s_mul_i32 s38, s21, 96
s_lshl_b32 s58, s26, 12
s_mul_i32 s39, s29, 6272
s_and_b32 s30, s20, 1
s_mul_i32 s30, s30, 3072
s_add_u32 s39, s39, s30
s_add_u32 s39, s39, 16384
s_cmp_eq_u32 s25, 0
s_cselect_b32 s56, s56, s38
s_mov_b32 s57, 0x2b000
s_cselect_b32 s57, 0x80000, s57
s_cselect_b32 s58, s58, s39
s_movk_i32 s59, 2048
s_cselect_b32 s59, 3072, s59
s_add_u32 s59, s59, s58
s_lshl_b32 s60, s27, 15
""")
        if XF_OFF: pp(f's_add_u32 s60, s60, {XF_OFF:#x}')
        return [i.text for i in q.items]
    GX = 128; GW = 192; GT = [48, 64, 80, 96, 112, 160, 176]
    def gdma(sl):
        base = GSL[sl % 4]
        out = []
        for t in range(4):
            out.append([f's_add_u32 m0, s{58 if t < 3 else 59}, {base + (t*1024 if t < 3 else 0)}',
                        's_nop 0',
                        (lambda pp, t=t, sl=sl: pp(f'buffer_load_dwordx4 v{GD+t}, s[16:19], s56 offen lds', f'g{sl}'))])
        out[3].append('s_add_u32 s56, s56, s57')
        return out
    def xload(sl):
        out = []
        b = GX + 16 * (sl & 1)
        for k in range(4):
            out.append(f'buffer_load_dwordx4 {vr(b+4*k,4)}, v{VL16}, s[8:11], s61 offen offset:{k*1024}{LS}')
        return [f's_add_u32 s61, s60, {sl*4096}'] + out

    alt = p.begin_alt(join=True)
    for variant in ('k', 'v'):
        p.alt_branch(alt)
        if variant == 'v': p.label('LF_v')
        for kk in range(3): emit(trread(0, kk))
        pend = []
        for u in range(8):
            sc = u >> 1; kh = u & 1
            bb = []; fl = {}
            def add(slot, items): fl.setdefault(slot, []).extend(items)
            for kk in range(16):
                ks = kh * 16 + kk
                for nt in range(2):
                    w = WF + 8 * (kk % NST) + 4 * nt
                    acc = vr(ACC + 16 * nt, 16); cc = '0' if ks == 0 else acc
                    A = vr(AR + 4 * ks, 4)
                    if variant == 'k': bb.append(f'{MF} {acc}, {vr(w,4)}, {A}, {cc}')
                    else:              bb.append(f'{MF} {acc}, {A}, {vr(w,4)}, {cc}')
            for kk in range(3, 16):
                t = trread(u, kk)
                s0 = min(2 * (kk - 3), 24)
                add(s0, t[:2]); add(s0 + 1, t[2:])
            if u < 2:
                for q4 in range(4):
                    e = 4 * kh + q4; base = 8 * q4
                    if e + 1 < 8:
                        add(base + 1, [lambda pp, e=e: pp.wait_tag(f'a{e+1}')])
                        for k_ in range(4): add(base + 1 + k_ // 2, [aread(e + 1, k_)])
                        if e + 3 < 8:
                            add(base + 5, [lambda pp, e=e: pp.wait_tag(f'ar{e+1}')])
                            for jj in range(4): add(base + 5 + jj // 2, adma(e + 3, jj))
            loads = {0: [2], 2: [3, 4], 3: [5], 4: [6], 5: [7]}.get(u, [])
            if os.environ.get('W2P') and u == 0: loads = []
            grps = [wdma(lu, q) for lu in loads for q in range(4)]
            if grps: spread(add, grps, 2 if u else 10, 25)
            X1 = os.environ.get('XP1', '')
            if u == 1: spread(add, atomic_groups(lns, 3), 1, 25)
            if u == int(os.environ.get('P2U', '3')): spread(add, atomic_groups(p2_setup(), 4), 10, 26)
            if kh == 0 and sc > 0:
                for nt in range(2):
                    g, st_ = kv_epilogue(sc - 1, nt)
                    fl.setdefault(('pre', nt), []).extend(g)
                    pend.extend(st_)
            if pend:
                a_, b_ = pend.pop(0), pend.pop(0)
                if 'nokvst' not in os.environ.get('XP1', ''): add(12, a_); add(24, b_)
            extra = []; post = []
            if u == (3 if 'latepub' in X1 else 2): extra = [lambda pp: pp.wait_tag('lnst')]; post = publish([32])
            if u == 5 and 'nopoll' not in X1: add(18, ['s_sub_u32 s29, 15, s24', 's_lshl_b32 s29, s29, 2', 's_lshl_b32 s30, s24, 2'] + poll_issue([29, 30]))
            if u == 5 and 'nopoll' not in X1: post = poll_check([(29, 16), (30, 16)])
            if u == 6 and 'nog01' not in X1:
                spread(add, gdma(0) + gdma(1), 1, 25)
            if u == 7 and 'nog01' in X1:
                spread(add, gdma(0) + gdma(1), 1, 25)
            if u == 7:
                xl = xload(0)
                spread(add, [xl[:2], [xl[2]], [xl[3]], [xl[4]]] + gdma(2), 1, 28)
            if u < 7:
                add(27, [lambda pp, u=u: pp.wait_tag(f'w{u+1}'), 's_waitcnt lgkmcnt(0)'] + extra + ['s_barrier'] + post)
                for kk in range(3):
                    t = trread(u + 1, kk)
                    add(min(27 + 2 * kk, 31), t[:2]); add(min(28 + 2 * kk, 31), t[2:])
            interleave(p, bb, fl)
            if os.environ.get('P1ST'): st.i = 2 + u; st.stamp()
        for nt in range(2):
            g, st_ = kv_epilogue(3, nt)
            emit(g); pend.extend(st_)
        if variant == 'k': p('s_branch LF_p2')
        p.end_branch()
    p.label('LF_p2')
    st.stamp()
    VK = 2; VV = 3; VZ = 4; VLS = 5; VM = 6; VTS = 7; VLSAVE = 8
    T0 = 9
    Q = 16; O = 48; S = [112, 128]; PP = [144, 152]; MN = 160; FR = 176; E = 208; TT = 216
    THR = f2u(float(2 ** 20)); NEG = f2u(-1e30); FLOOR1 = f2u(-1e20)
    p(f"""
s_lshl_b32 s44, s21, 19
s_lshl_b32 s46, s20, 11
s_add_u32 s44, s44, s46
s_add_u32 s45, s44, {VF_OFF:#x}
s_add_u32 s44, s44, {KF_OFF:#x}
s_lshl_b32 s47, s24, 1
s_add_u32 s47, s47, 2
""")
    AQ = [T0, T0 + 1, T0 + 2, T0 + 3]; AF_ = T0 + 4
    def set_addr(sl):
        base = GSL[sl % 4]
        out = [f'v_add_u32 v{AQ[0]}, {base}, v6']
        for nt in range(1, 4): out.append(f'v_xor_b32 v{AQ[nt]}, {nt<<6}, v{AQ[0]}')
        out.append(f'v_add_u32 v{AF_}, {base}, v7')
        return out
    assert all((s & 0xff) == 0 for s in GSL)
    def gtr(g):
        kk = g & 3; out = []
        for tl in range(7):
            w = GW + 28 * (g & 1) + 4 * tl
            if tl < 4:
                out.append(f'ds_read_b64_tr_b16 {vr(w,2)}, v{AQ[tl]} offset:{kk*4096}')
                out.append(f'ds_read_b64_tr_b16 {vr(w+2,2)}, v{AQ[tl]} offset:{kk*4096+1024}')
            else:
                o = kk * 1536 + (tl - 4) * 32
                out.append(f'ds_read_b64_tr_b16 {vr(w,2)}, v{AF_} offset:{o}')
                out.append(f'ds_read_b64_tr_b16 {vr(w+2,2)}, v{AF_} offset:{o+384}')
        return out
    def kvcopy(sbase, chunk_off, ldsbase, tag, tmp=43):
        return [f's_add_u32 m0, s46, {ldsbase}',
                f's_add_u32 s{tmp}, s{sbase}, {chunk_off}',
                (lambda pp: pp(f'buffer_load_dwordx4 v{VL16}, s[8:11], s{tmp} offen{LS} lds', tag)),
                (lambda pp: pp(f'buffer_load_dwordx4 v{VL16}, s[8:11], s{tmp} offen offset:1024{LS} lds', tag))]
    PUB_SL = int(os.environ.get('PUB_SL', '4'))
    PFN = 8; PFS = int(os.environ.get('PFS', '0')); PFO = int(os.environ.get('PFO', '0'))
    p.wait_tag('g0')
    p('s_waitcnt lgkmcnt(0)')
    p('s_barrier')
    emit(set_addr(0))
    emit(gtr(0))
    for sl in range(8):
        bb = []; fl = {}
        def add(slot, items): fl.setdefault(slot, []).extend(items)
        for kk in range(4):
            g = sl * 4 + kk
            xb = GX + 16 * (sl & 1) + 4 * kk
            for tl in range(7):
                w = GW + 28 * (g & 1) + 4 * tl
                acc = vr(GT[tl], 16); cc = '0' if g == 0 else acc
                bb.append(f'{MF} {acc}, {vr(w,4)}, {vr(xb,4)}, {cc}')
            ng = g + 1
            if ng < 32:
                if kk == 3: add(7 * kk - 1, set_addr(sl + 1))
                rd = gtr(ng)
                for i in range(7): add(7 * kk + i, rd[2 * i:2 * i + 2])
        if sl + 1 < 8:
            xl = xload(sl + 1)
            add(0, xl[:1])
            for k in range(4): add(1 + k, [xl[1 + k]])
            pre = []; post = []
            if sl < 4: add(10, pend[sl])
            if sl == PUB_SL:
                pre = [lambda pp: pp.wait_tag('kvst')]; post = publish_kv()
            if sl == PUB_SL - 1:
                add(6, poll_issue([101, 101]))
            if sl == 6:
                add(8, [f's_lshr_b32 s29, s21, 1', f's_add_u32 s29, s29, {CNT_KV}', 's_lshl_b32 s29, s29, 2'] + poll_issue([29]))
                post = poll_check([(29, 16)], inv_flag=(94 if os.environ.get('KVINV', 'cond') == 'cond' else -1))

            add(17, [lambda pp, sl=sl: pp.wait_tag(f'g{sl+1}')] + pre + ['s_barrier'] + post)
            if sl + 3 < 8:
                for t, grp in enumerate(gdma(sl + 3)): add(18 + 2 * t if t < 1 else 21 + 2 * (t - 1), grp)
        interleave(p, bb, fl)
    st.stamp()
    p('s_waitcnt lgkmcnt(0)')
    emit(w0_drain())
    p('s_barrier')
    emit(kvcopy(44, 0, KSL, 'k0'))
    emit(kvcopy(44, 16384, KSL + 32768, 'k1'))
    emit(kvcopy(45, 0, VSL, 'v0'))
    p("""
s_load_dwordx2 s[56:57], s[0:1], 40
s_load_dwordx2 s[58:59], s[0:1], 72
s_waitcnt lgkmcnt(0)
s_cmp_ge_u32 s20, 2
s_cselect_b32 s60, s58, s56
s_cselect_b32 s61, s59, s57
s_mov_b32 s62, 0x400000
s_cselect_b32 s62, 0x158000, s62
s_movk_i32 s35, 0x4000
s_cselect_b32 s35, 5504, s35
s_and_b32 s61, s61, 0xffff
s_mov_b32 s63, 0x00020000
s_mul_i32 s35, s35, s2
s_cmp_eq_u32 s20, 1
s_cselect_b32 s39, 0x2000, 0
s_add_u32 s35, s35, s39
s_cmp_ge_u32 s20, 3
s_cselect_b32 s35, 0x7f000000, s35
v_lshlrev_b32 v12, 3, v1
buffer_load_dword v255, v12, s[60:63], s35 offen
s_lshr_b32 s17, s23, 2
s_and_b32 s18, s23, 3
s_cmp_ge_u32 s17, 6
s_cselect_b32 s12, s58, s56
s_cselect_b32 s13, s59, s57
s_mov_b32 s14, 0x400000
s_cselect_b32 s14, 0x158000, s14
s_cselect_b32 s19, 6, 0
s_and_b32 s13, s13, 0xffff
s_mov_b32 s15, 0x00020000
s_sub_u32 s19, s17, s19
s_mul_i32 s16, s19, 43
s_cmp_eq_u32 s17, 5
s_cselect_b32 s19, 1, 0
s_sub_u32 s16, s16, s19
s_lshl_b32 s16, s16, 4
s_mul_i32 s18, s18, 84
s_add_u32 s16, s16, s18
s_mul_i32 s18, s20, PFROWS
s_add_u32 s16, s16, s18
s_lshl_b32 s16, s16, 10
v_lshlrev_b32 v249, 3, v1
""".replace('PFROWS', str(PFN * PFS)))
    CQ = f2u(math.log2(math.e) / math.sqrt(128.0))
    p(f's_mov_b32 s48, {CQ:#x}')
    p(f's_mov_b32 s49, {CQ:#x}')
    for tl in range(4):
        for i in range(8): p(f'v_pk_mul_f32 {vr(GT[tl]+2*i,2)}, {vr(GT[tl]+2*i,2)}, s[48:49]')
        for i in range(8): p(f'v_cvt_pk_bf16_f32 v{Q+8*tl+i}, v{GT[tl]+2*i}, v{GT[tl]+2*i+1}')
    p(f'''
s_lshl_b32 s49, s26, 13
s_add_u32 s49, s49, {QX}
v_add_u32 v9, s49, v{VL16}
s_cmp_lg_u32 s25, 0
s_cbranch_scc1 LF_noqx
@COND
''')
    for ks in range(8): p(f'ds_write_b128 v9, {vr(Q+4*ks,4)} offset:{ks*1024}')
    p('s_waitcnt lgkmcnt(0)')
    p('@ENDCOND')
    p.label('LF_noqx')
    KG = -2.0 * math.sqrt(2.0 / math.pi) * math.log2(math.e)
    p(f's_mov_b32 s50, {f2u(KG*0.044715):#x}')
    p(f's_mov_b32 s51, {f2u(KG*0.044715):#x}')
    p(f'v_mov_b32 v{GW+16}, {f2u(KG):#x}')
    p(f'v_mov_b32 v{GW+17}, {f2u(KG):#x}')
    p(f'''
s_mul_i32 s52, s27, {AF_MT}
s_mul_i32 s53, s21, 3
s_add_u32 s54, s53, 256
s_lshl_b32 s54, s54, 10
s_add_u32 s52, s52, s54
s_add_u32 s52, s52, {AF_OFF:#x}
''')
    for tt in range(3):
        a = GT[4 + tt]; t = GW
        p(f's_add_u32 s54, s53, {tt}')
        p('s_cmp_ge_u32 s54, 86')
        p(f's_cbranch_scc1 LF_ffn_skip{tt}')
        p('@COND')
        P2 = lambda r: vr(r, 2)
        for i in range(0, 8, 2): p(f'v_pk_mul_f32 {P2(t+i)}, {P2(a+i)}, {P2(a+i)}')
        for i in range(0, 8, 2): p(f'v_pk_fma_f32 {P2(t+i)}, {P2(t+i)}, s[50:51], {P2(t+16)}')
        for i in range(0, 8, 2): p(f'v_pk_mul_f32 {P2(t+i)}, {P2(t+i)}, {P2(a+i)}')
        for i in range(8): p(f'v_exp_f32 v{t+i}, v{t+i}')
        for i in range(0, 8, 2): p(f'v_pk_mul_f32 {P2(t+8+i)}, {P2(a+i)}, {P2(a+8+i)}')
        for i in range(0, 8, 2): p(f'v_pk_add_f32 {P2(t+i)}, {P2(t+i)}, 1.0 op_sel_hi:[1,0]')
        for i in range(8): p(f'v_rcp_f32 v{t+i}, v{t+i}')
        for i in range(0, 8, 2): p(f'v_pk_mul_f32 {P2(t+i)}, {P2(t+i)}, {P2(t+8+i)}')
        for i in range(4): p(f'v_cvt_pk_bf16_f32 v{t+20+4*tt+i}, v{t+2*i}, v{t+2*i+1}')
        p(f'buffer_store_dwordx4 {vr(t+20+4*tt,4)}, v{VL16}, s[8:11], s52 offen offset:{tt*1024}{SC}')
        p('@ENDCOND')
        p.label(f'LF_ffn_skip{tt}')
    st.stamp()
    for i in range(0, 64, 2): p(f'v_pk_mov_b32 {vr(O+i,2)}, 0, 0')
    for i in range(0, 16, 2): p(f'v_pk_mov_b32 {vr(MN+i,2)}, 0, 0')
    p(f"""
v_mov_b32 v{VLS}, 0
v_mov_b32 v{VM}, 0
v_mov_b32 v{VLSAVE}, 0
s_mov_b32 s56, {THR:#x}
s_mov_b32 s57, 0xbf800000
s_mov_b32 s58, {FLOOR1:#x}
s_mov_b32 s59, 1
s_mov_b32 s60, 1.0
s_mov_b32 s61, s27
s_mov_b32 s62, 0
s_lshl_b32 s67, s25, 14
v_add_u32 v{VK}, {KSL}, v{VL16}
v_add_u32 v{VV}, {VSL}, v{VL16}
v_and_b32 v10, 63, v0
v_and_b32 v12, 31, v10
v_lshrrev_b32 v11, 5, v10
v_lshlrev_b32 v13, 2, v11
v_sub_u32 v{VZ}, v12, v13
s_mov_b32 s55, 0
s_mov_b32 s63, 16384
s_add_u32 s64, s46, 32768
s_lshl_b32 s49, s47, 1
s_add_u32 s49, s49, 2
s_cmp_eq_u32 s25, 0
s_cselect_b32 s49, 0, s49
s_cselect_b32 s66, 32, s27
s_lshl_b32 s68, s47, 1
s_add_u32 s68, s68, 4
s_min_u32 s68, s68, 32
s_cmp_eq_u32 s20, 0
s_cselect_b32 s66, s68, s66
""")
    p('s_waitcnt vmcnt(0) lgkmcnt(0)')
    p('s_barrier')
    st.stamp()

    def frag_read(f):
        hf = f >> 4; i = f & 15; dst = vr(FR + 4 * (f % 8), 4)
        if i < 8:  return f'ds_read_b128 {dst}, v{VK} offset:{hf*8192 + i*1024}'
        else:      return f'ds_read_b128 {dst}, v{VV} offset:{hf*8192 + (i-8)*1024}'
    def mfma(f):
        hf = f >> 4; i = f & 15; fr = vr(FR + 4 * (f % 8), 4)
        if i < 8:
            s = vr(S[hf], 16); c = vr(MN, 16) if i == 0 else s
            return f'{MF} {s}, {fr}, {vr(Q+4*i,4)}, {c}'
        dt = (i - 8) >> 1; tp = (i - 8) & 1
        o = vr(O + 16 * dt, 16)
        return f'{MF} {o}, {fr}, {vr(PP[hf]+4*tp,4)}, {o}'
    def bstage(hf, nslots):
        c = S[1 - hf]; pp_ = PP[1 - hf]
        groups = [[] for _ in range(nslots)]
        span = nslots - 2
        pos_e = [(kk * span) // 16 for kk in range(16)]
        late = [[] for _ in range(nslots)]
        for k in range(8):
            ea = E + (2 * k) % 8; eb = E + (2 * k + 1) % 8
            groups[pos_e[2 * k]].append(f'v_exp_f32 v{ea}, v{c+2*k}')
            groups[pos_e[2 * k + 1]].append(f'v_exp_f32 v{eb}, v{c+2*k+1}')
            sa = pos_e[2 * k] + 1; sb = pos_e[2 * k + 1] + 1
            if k == 0:
                late[sb].append(f'v_add_f32 v{VTS}, v{ea}, v{eb}')
            else:
                late[sa].append(f'v_add_f32 v{VTS}, v{VTS}, v{ea}')
                late[sb].append(f'v_add_f32 v{VTS}, v{VTS}, v{eb}')
            late[sb].append(f'v_cvt_pk_bf16_f32 v{pp_+k}, v{ea}, v{eb}')
        return [late[i] + groups[i] for i in range(nslots)]
    outl = []
    DIST = int(os.environ.get('DIST', '4'))
    DS_ = int(os.environ.get('DMAS', '2')); D0_ = int(os.environ.get('DMA0', '1')); NTAIL = int(os.environ.get('NTAIL', '0'))

    def step(kind):
        doA = kind != 'drain'
        slots = []
        for f in range(32):
            hf = f >> 4; i = f & 15
            isA = i < 8
            if isA and not doA: continue
            if not isA and kind == 'first': continue
            slots.append(f)
        pos = {f: n for n, f in enumerate(slots)}
        bb = [mfma(f) for f in slots]
        fl = {}
        def add(n, items): fl.setdefault(n, []).extend(items)
        nS = len(slots)
        last_read_slot = nS - DIST - 2
        for n in range(DIST, nS):
            add(min(n - DIST, last_read_slot) if kind != 'drain' else n - DIST, [frag_read(slots[n])])
        for hf in range(2):
            if kind == 'first' and hf == 0: continue
            if kind == 'drain' and hf == 1: continue
            hs = [n for n, f in enumerate(slots) if (f >> 4) == hf]
            groups = bstage(hf, len(hs))
            for gi, g in enumerate(groups): add(hs[gi], g)
            nm = f'{kind}{hf}'
            add(hs[-2], [f'v_cmp_nge_f32 vcc, s{56+hf}, v{VTS}'])
            add(hs[-1], [f's_cbranch_vccnz LF_rare{nm}', f'LF_ret{nm}:', f'v_add_f32 v{VLS}, v{VLS}, v{VTS}'])
            outl.append(('rare', nm, hf))
        for hf in range(2):
            if kind == 'drain' and hf == 1: continue
            nm = f'{kind}{hf}'
            first_slot = [n for n, f in enumerate(slots) if (f >> 4) == hf][0]
            fl.setdefault(('pre', first_slot), []).extend(
                ['s_cmp_ge_u32 s62, s66', f's_cbranch_scc1 LF_evt{nm}', f'LF_eret{nm}:'])
            add(first_slot, ['s_add_u32 s62, s62, 1'])
            outl.append(('evt', nm, hf))
        return bb, fl, add, pos, slots

    def prep_next():
        return [['s_add_u32 s55, s55, 1', 's_and_b32 s50, s55, 1'],
                ['s_lshl_b32 s50, s50, 15', 's_cmp_ge_u32 s55, s47'],
                ['s_cselect_b32 s69, s67, 0', 's_add_u32 s50, s50, s69', f's_add_u32 s50, s50, {KSL}']]
    def barrier_blk():
        return ['s_waitcnt vmcnt(0) lgkmcnt(0)', 's_barrier',
                f'v_add_u32 v{VV}, {(VSL - KSL) & 0xffffffff:#x}, v{VK}',
                f'v_add_u32 v{VK}, s50, v{VL16}']
    def dma_issue(name):
        L = f'buffer_load_dwordx4 v{VL16}, s[8:11], s43 offen{LS} lds'
        L2 = f'buffer_load_dwordx4 v{VL16}, s[8:11], s43 offen offset:1024{LS} lds'
        g = []
        g.append([f's_add_u32 m0, s64, {VSL}', 's_add_u32 s43, s45, s63', L])
        g.append([L2, 's_cmp_lt_u32 s55, s47'])
        g.append([f's_cbranch_scc1 LF_nov2{name}', '@COND', f's_add_u32 m0, s64, {VSL + 16384}', 's_add_u32 s43, s43, 16384', L, L2,
                  's_add_u32 s63, s63, 16384', '@ENDCOND', f'LF_nov2{name}:'])
        g.append(['s_add_u32 s63, s63, 16384', 's_xor_b32 s64, s64, 32768'])
        g.append([f's_add_u32 m0, s64, {KSL}', 's_add_u32 s43, s44, s63', L])
        g.append([L2, 's_add_u32 s65, s55, 1', 's_cmp_lt_u32 s65, s47'])
        g.append([f's_cbranch_scc1 LF_nok{name}', '@COND', f's_add_u32 m0, s64, {KSL + 16384}', 's_add_u32 s43, s43, 16384', L, L2,
                  '@ENDCOND', f'LF_nok{name}:'])
        return g

    PRIO = os.environ.get('PRIO', '1')
    if PRIO:
        p(f's_cmp_eq_u32 s25, {0 if PRIO == "1" else 1}')
        p('s_cbranch_scc1 LF_noprio')
        p('s_setprio 1')
        p.label('LF_noprio')
    bb, fl, add, pos, slots = step('first')
    for n in range(DIST): p(frag_read(slots[n]))
    nS = len(slots)
    for gi, g in enumerate(prep_next()): add(4 + gi, g)
    add(nS - DIST, barrier_blk())
    for n in range(DIST): add(nS - DIST + n, [frag_read(n)])
    if NTAIL:
        add(nS - DIST, [x for g in dma_issue('first')[:NTAIL] for x in g])
    interleave(p, bb, fl)
    p.begin_loop()
    p.label('LF_loop')
    bb, fl, add, pos, slots = step('loop')
    XP = os.environ.get('XP', '')
    if 'nodma' not in XP:
        for gi, g in enumerate(dma_issue('loop')[NTAIL:]): add(D0_ + DS_ * gi, g)
    if PFS:
        blk = [f's_cmp_lt_u32 s55, {17 - PFS - PFO}', 's_cbranch_scc1 LF_nopf', f's_cmp_ge_u32 s55, {17 - PFO}', 's_cbranch_scc1 LF_nopf', '@COND',
               f'buffer_load_dword v248, v249, s[12:15], s16 offen',
               f's_add_u32 s16, s16, 8192', '@ENDCOND', 'LF_nopf:']
        add(2, blk)
    for gi, g in enumerate(prep_next()): add(27 - DIST + gi, g)
    nb_ = barrier_blk()
    if 'nobar' in XP: nb_ = [x for x in nb_ if x != 's_barrier']
    add(32 - DIST, nb_)
    for n in range(DIST): add(min(32 - DIST + n, 30), [frag_read(n)])
    if NTAIL:
        add(32 - DIST, ['s_cmp_ge_u32 s55, 17', 's_cbranch_scc1 LF_notail', '@COND'] + [x for g in dma_issue('tail')[:NTAIL] for x in g] + ['@ENDCOND', 'LF_notail:'])
    add(30, ['s_cmp_lt_u32 s55, 17'])
    if XP:
        for kk_ in fl: fl[kk_] = [x for x in fl[kk_] if not (isinstance(x, str) and x.startswith('s_cbranch_vccnz'))]
    if 'noexp' in XP:
        for kk_ in fl: fl[kk_] = [x.replace('v_exp_f32', 'v_mov_b32') if isinstance(x, str) else x for x in fl[kk_]]
    if 'novalu' in XP:
        for kk_ in fl: fl[kk_] = [x for x in fl[kk_] if not (isinstance(x, str) and x.startswith(('v_exp', 'v_add_f32 v7', 'v_cvt')))]
    if 'nolds' in XP:
        for kk_ in fl: fl[kk_] = [x for x in fl[kk_] if not (isinstance(x, str) and x.startswith('ds_read'))]
    interleave(p, bb, fl)
    p('s_cbranch_scc1 LF_loop')
    p.end_loop()
    st.stamp()
    p('s_waitcnt lgkmcnt(0)')
    bb, fl, add, pos, slots = step('drain')
    for n in range(DIST): p(frag_read(slots[n]))
    interleave(p, bb, fl)
    st.stamp()
    p(f"""
s_cmp_ge_u32 s24, 4
s_cselect_b32 s17, 8, 0
s_add_u32 s17, s17, s22
s_add_u32 s17, s17, {CNT_CTX}
s_lshl_b32 s17, s17, 2
""")
    if os.environ.get('P4X', '0') == '1': emit(poll_issue([17], vb=250, vz=251))
    p(f'''
v_mov_b32 v9, v{VLS}
v_permlane32_swap_b32 v{VLS}, v9
v_add_f32 v{VLS}, v{VLS}, v9
s_waitcnt lgkmcnt(0)
s_barrier
''')
    p(f'''
s_mul_i32 s49, s20, 8704
s_xor_b32 s50, s20, 4
s_mul_i32 s50, s50, 8704
v_add_u32 v9, s49, v{VL16}
v_add_u32 v10, s50, v{VL16}
v_lshrrev_b32 v11, 1, v{VL16}
v_add_u32 v12, s49, v11
v_add_u32 v13, s50, v11
v_mov_b32 v14, v{VLS}
v_mov_b32 v15, v{VM}
s_cmp_eq_u32 s25, 0
s_cbranch_scc1 LF_mg0
''')
    X = TT
    alt = p.begin_alt(join=True)
    for g in (1, 0):
        p.alt_branch(alt)
        if g == 0: p.label('LF_mg0')
        keep = O + 32 * g; send = O + 32 * (1 - g)
        for k in range(8): p(f'ds_write_b128 v9, {vr(send+4*k,4)} offset:{k*1024}')
        p('ds_write_b64 v12, v[14:15] offset:8192')
        p('s_waitcnt lgkmcnt(0)')
        p('s_barrier')
        p(f'ds_read_b64 v[{E}:{E+1}], v13 offset:8192')
        for k in range(8): p(f'ds_read_b128 {vr(X+4*k,4)}, v10 offset:{k*1024}')
        p(f'''
v_max_f32 v{E+2}, v{VM}, v{E+1}
v_sub_f32 v{E+4}, v{VM}, v{E+2}
v_sub_f32 v{E+6}, v{E+1}, v{E+2}
v_exp_f32 v{E+4}, v{E+4}
v_exp_f32 v{E+6}, v{E+6}
v_mul_f32 v{E+3}, v{E+4}, v{VLS}
v_fmac_f32 v{E+3}, v{E+6}, v{E}
v_rcp_f32 v{E+3}, v{E+3}
v_mul_f32 v{E+4}, v{E+4}, v{E+3}
v_mul_f32 v{E+6}, v{E+6}, v{E+3}
''')
        for i in range(0, 32, 2):
            p(f'v_pk_mul_f32 {vr(keep+i,2)}, {vr(keep+i,2)}, {vr(E+4,2)} op_sel_hi:[1,0]')
            p(f'v_pk_fma_f32 {vr(keep+i,2)}, {vr(X+i,2)}, {vr(E+6,2)}, {vr(keep+i,2)} op_sel_hi:[1,0,1]')
        for i in range(16): p(f'v_cvt_pk_bf16_f32 v{S[0]+i}, v{keep+2*i}, v{keep+2*i+1}')
        p(f'''
s_mul_i32 s52, s28, {AF_MT}
s_lshl_b32 s54, s21, 13
s_add_u32 s52, s52, s54
s_add_u32 s52, s52, {AF_OFF + g*4096:#x}
''')
        for k in range(4): p(f'buffer_store_dwordx4 {vr(S[0]+4*k,4)}, v{VL16}, s[8:11], s52 offen offset:{k*1024}{SC}')
        if g == 1: p('s_branch LF_p4')
        p.end_branch()
    p.label('LF_p4')
    P4P = os.environ.get('P4P', '1')
    if PRIO and P4P == '0': p('s_setprio 0')
    st.stamp()
    NK = 43; D = int(os.environ.get("K3D", "6"))
    NL = int(os.environ.get("K3L", "9")); NR = int(os.environ.get("K3R", "12"))
    VA1 = 2; VW = 3; VT = [4, 5]
    ACT = 16; WF4 = ACT + 8 * D; ACC4 = WF4 + 16; WR = ACC4 + 64; XR = 240
    assert WR + 8 * NR <= XR
    AF_END = AF_OFF + 64 * AF_MT
    p(f"""
s_load_dwordx2 s[28:29], s[0:1], 40
s_load_dwordx4 s[32:35], s[0:1], 72
s_load_dwordx2 s[30:31], s[0:1], 0
s_load_dwordx2 s[36:37], s[0:1], 96
v_and_b32 v10, 63, v0
v_add_u32 v{VA1}, {AF_MT}, v{VL16}
v_lshrrev_b32 v11, 3, v10
v_and_b32 v12, 7, v10
v_bfe_u32 v13, v10, 4, 1
v_lshlrev_b32 v13, 2, v13
v_xor_b32 v12, v12, v13
v_lshlrev_b32 v12, 4, v12
v_lshl_add_u32 v{VW}, v11, 10, v12
v_lshrrev_b32 v11, 5, v10
v_bfe_u32 v12, v10, 2, 2
v_lshl_add_u32 v13, v11, 2, v12
v_lshlrev_b32 v13, 7, v13
v_lshrrev_b32 v12, 1, v12
v_lshl_add_u32 v13, v12, 6, v13
v_bfe_u32 v12, v10, 4, 1
v_lshl_add_u32 v13, v12, 5, v13
v_and_b32 v12, 3, v10
v_lshl_add_u32 v13, v12, 3, v13
s_mul_i32 s25, s20, {NL*2048}
v_add_u32 v{VT[0]}, s25, v13
v_xor_b32 v{VT[1]}, 64, v{VT[0]}
s_mul_i32 s26, s20, 43
s_cmp_ge_u32 s20, 4
s_cselect_b32 s27, 1, 0
s_sub_u32 s26, s26, s27
s_cmp_ge_u32 s20, 5
s_cselect_b32 s27, 1, 0
s_sub_u32 s26, s26, s27
s_and_b32 s44, s23, 7
s_bfe_u32 s45, s23, 0x10003
s_cmp_ge_u32 s24, 4
s_cselect_b32 s46, 8, 0
s_add_u32 s46, s46, s22
s_lshl_b32 s47, s46, 1
s_add_u32 s47, s47, s45
s_sub_u32 s48, 15, s24
s_add_u32 s48, s48, {CNT_CTX}
s_lshl_b32 s48, s48, 2
s_add_u32 s49, s24, {CNT_CTX}
s_lshl_b32 s49, s49, 2
s_add_u32 s50, s46, {CNT_CTX}
s_lshl_b32 s50, s50, 2
""")
    st.stamp()
    p('s_waitcnt vmcnt(0) lgkmcnt(0)')
    st.stamp()
    p('s_barrier')
    st.stamp()
    emit(publish([48]))
    p('s_cmp_lg_u32 s24, 7')
    p('s_cbranch_scc1 LF_nopubS2')
    emit(publish([49]))
    p.label('LF_nopubS2')
    srd(p, 12, 36, 37, AF_END)
    srd(p, 16, 30, 31, 2 << 20)
    srd(p, 36, 34, 35, 2 << 20)
    p(f"""
s_cmp_ge_u32 s20, 6
s_cselect_b32 s4, s32, s28
s_cselect_b32 s5, s33, s29
s_mov_b32 s6, 0x400000
s_cselect_b32 s6, 0x158000, s6
s_and_b32 s5, s5, 0xffff
s_mov_b32 s7, 0x00020000
s_mul_i32 s40, s47, {2*AF_MT}
s_lshl_b32 s43, s26, 10
s_add_u32 s40, s40, s43
s_add_u32 s40, s40, {AF_OFF:#x}
s_cmp_ge_u32 s20, 6
s_cselect_b32 s43, 256, 0
s_sub_u32 s43, s26, s43
s_lshl_b32 s42, s43, 14
s_lshl_b32 s43, s44, 7
s_add_u32 s42, s42, s43
s_sub_u32 s51, s20, 4
s_cmp_lt_u32 s51, 2
s_cselect_b32 s41, 0x7fff0000, s40
s_cselect_b32 s52, 0x4000, 0
s_add_u32 s52, s52, s42
""")
    def wloads(ks):
        sl = ks % NL
        if ks == 0:
            a0 = ['s_mov_b32 s54, s52', 's_add_u32 s53, s52, 0x2000']
        else:
            a0 = [f's_add_u32 s54, s42, {ks*16384}', f's_add_u32 s53, s42, {ks*16384+8192}']
        return [f's_add_u32 m0, s25, {sl*2048}'] + a0 + [
                (lambda pp: pp(f'buffer_load_dwordx4 v{VW}, s[4:7], s54 offen lds', f'x{ks}')),
                f's_add_u32 m0, s25, {sl*2048+1024}', 's_nop 0',
                (lambda pp: pp(f'buffer_load_dwordx4 v{VW}, s[4:7], s53 offen lds', f'x{ks}'))]
    def aloads(ks):
        a = ACT + 8 * (ks % D)
        pre = ['s_mov_b32 s55, s41'] if ks == 0 else [f's_add_u32 s55, s40, {ks*1024}']
        return pre + [f'buffer_load_dwordx4 {vr(a,4)}, v{VL16}, s[12:15], s55 offen{LS}',
                      f'buffer_load_dwordx4 {vr(a+4,4)}, v{VA1}, s[12:15], s55 offen{LS}']
    p(f"""
s_lshr_b32 s56, s20, 2
s_bfe_u32 s57, s20, 0x10001
s_and_b32 s58, s20, 1
s_lshl_b32 s59, s47, 6
s_lshl_b32 s60, s57, 5
s_add_u32 s59, s59, s60
s_lshl_b32 s59, s59, 10
s_lshl_b32 s60, s44, 6
s_lshl_b32 s61, s56, 5
s_add_u32 s60, s60, s61
s_lshl_b32 s61, s58, 4
s_add_u32 s60, s60, s61
s_lshl_b32 s60, s60, 1
s_add_u32 s59, s59, s60
v_and_b32 v11, 31, v10
v_lshrrev_b32 v12, 5, v10
v_lshlrev_b32 v11, 10, v11
v_lshl_add_u32 v9, v12, 3, v11
buffer_load_dwordx2 v[{XR}:{XR+1}], v9, s[16:19], s59 offen
buffer_load_dwordx2 v[{XR+2}:{XR+3}], v9, s[16:19], s59 offen offset:16
""")
    def p4_main(NR_, early):
        def wreg(ks, nt):
            return (WR + 8 * ks + 4 * nt) if ks < NR_ else (WF4 + 8 * (ks & 1) + 4 * nt)
        def trr(ks):
            sl = ks % NL; out = [lambda pp: pp.wait_tag(f'x{ks}')]
            for nt in range(2):
                w = wreg(ks, nt)
                out.append((lambda pp, w=w, nt=nt: pp(f'ds_read_b64_tr_b16 {vr(w,2)}, v{VT[nt]} offset:{sl*2048}', f'r{ks}')))
                out.append((lambda pp, w=w, nt=nt: pp(f'ds_read_b64_tr_b16 {vr(w+2,2)}, v{VT[nt]} offset:{sl*2048+1024}', f'r{ks}')))
            return out
        if early:
            emit(poll_check([(50, 32)], vb=250))
            p('s_barrier')
            for ks in range(NL):
                emit(wloads(ks))
                if ks < D: emit(aloads(ks))
            emit(trr(0))
        else:
            for ks in range(NL): emit(wloads(ks))
            for ks in range(NR_):
                emit(trr(ks))
                if ks >= 1:
                    p.wait_tag(f'r{ks-1}')
                    emit(wloads(ks - 1 + NL))
            p.wait_tag(f'r{NR_-1}')
            emit(wloads(NR_ - 1 + NL))
            emit(poll_noinv([(50, 32)]))
            p('s_barrier')
            if os.environ.get('DIAG_STAG'):
                p(f"""
s_lshr_b32 s3, s23, 3
s_lshl_b32 s3, s3, 1
s_add_u32 s3, s3, s44
s_and_b32 s3, s3, 7
LF_stag:
s_cmp_eq_u32 s3, 0
s_cbranch_scc1 LF_stag_e
s_sleep {os.environ['DIAG_STAG']}
s_sub_u32 s3, s3, 1
s_branch LF_stag
LF_stag_e:
""")
            for ks in range(D): emit(aloads(ks))
        for ks in range(NK):
            a = ACT + 8 * (ks % D)
            if NR_ <= ks + 1 < NK: emit(trr(ks + 1))
            for nt in range(2):
                for mt in range(2):
                    w = wreg(ks, nt)
                    acc = vr(ACC4 + 16 * (2 * nt + mt), 16); cc = '0' if ks == 0 else acc
                    p(f'{MF} {acc}, {vr(w,4)}, {vr(a+4*mt,4)}, {cc}')
            if ks + D < NK: emit(aloads(ks + D))
            if ks >= NR_ and ks + NL < NK:
                p.wait_tag(f'r{ks}')
                emit(wloads(ks + NL))
        p('s_waitcnt vmcnt(0)')
    if os.environ.get('P4X', '0') == '1':
        p('s_cmp_ge_u32 s24, 4')
        p('s_cbranch_scc1 LF_p4y')
        alt4 = p.begin_alt(join=True)
        p.alt_branch(alt4); p4_main(0, True); p('s_waitcnt lgkmcnt(0)'); p('s_branch LF_p4j'); p.end_branch()
        p.alt_branch(alt4); p.label('LF_p4y'); p4_main(NR, False); p('s_waitcnt lgkmcnt(0)'); p.end_branch()
        p.label('LF_p4j')
    else:
        p4_main(NR, False)
    p('s_waitcnt lgkmcnt(0)')
    p('s_barrier')
    p('s_lshl_b32 s25, s20, 14')
    p(f'v_add_u32 v6, s25, v{VL16}')
    for b in range(16): p(f'ds_write_b128 v6, {vr(ACC4+4*b,4)} offset:{b*1024}')
    p(f"""
s_lshl_b32 s56, s20, 11
v_add_u32 v7, s56, v{VL16}
v_add_u32 v8, 0x10000, v7
s_waitcnt lgkmcnt(0)
s_barrier
""")
    for src in range(8):
        base = 7 if src < 4 else 8
        for b in range(2):
            p(f'ds_read_b128 {vr(16+8*src+4*b,4)}, v{base} offset:{(src%4)*16384 + b*1024}')
    for i in range(8):
        p(f'v_add_f32 v{16+i}, v{16+i}, v{24+i}')
        p(f'v_add_f32 v{32+i}, v{32+i}, v{40+i}')
        p(f'v_add_f32 v{48+i}, v{48+i}, v{56+i}')
        p(f'v_add_f32 v{64+i}, v{64+i}, v{72+i}')
    for i in range(8):
        p(f'v_add_f32 v{16+i}, v{16+i}, v{32+i}')
        p(f'v_add_f32 v{16+i}, v{16+i}, v{48+i}')
    for i in range(4):
        p(f'v_cvt_pk_bf16_f32 v{24+i}, v{16+2*i}, v{17+2*i}')
        p(f'v_cvt_pk_bf16_f32 v{72+i}, v{64+2*i}, v{65+2*i}')
    for i in range(4):
        p(f'v_lshlrev_b32 v{16+2*i}, 16, v{24+i}')
        p(f'v_and_b32 v{17+2*i}, 0xffff0000, v{24+i}')
        p(f'v_lshlrev_b32 v{64+2*i}, 16, v{72+i}')
        p(f'v_and_b32 v{65+2*i}, 0xffff0000, v{72+i}')
    NL2E = f2u(-math.log2(math.e))
    for i in range(8): p(f'v_mul_f32 v{32+i}, {NL2E:#x}, v{64+i}')
    for i in range(8): p(f'v_exp_f32 v{32+i}, v{32+i}')
    for i in range(8): p(f'v_add_f32 v{32+i}, 1.0, v{32+i}')
    for i in range(8): p(f'v_rcp_f32 v{32+i}, v{32+i}')
    for i in range(8): p(f'v_mul_f32 v{32+i}, v{32+i}, v{64+i}')
    for i in range(4): p(f'v_cvt_pk_bf16_f32 v{40+i}, v{32+2*i}, v{33+2*i}')
    for i in range(4):
        p(f'v_lshlrev_b32 v{32+2*i}, 16, v{40+i}')
        p(f'v_and_b32 v{33+2*i}, 0xffff0000, v{40+i}')
    for i in range(8): p(f'v_mul_f32 v{32+i}, v{32+i}, v{16+i}')
    for i in range(4): p(f'v_cvt_pk_bf16_f32 v{40+i}, v{32+2*i}, v{33+2*i}')
    for i in range(4):
        p(f'v_lshlrev_b32 v{32+2*i}, 16, v{40+i}')
        p(f'v_and_b32 v{33+2*i}, 0xffff0000, v{40+i}')
        p(f'v_lshlrev_b32 v{48+2*i}, 16, v{XR+i}')
        p(f'v_and_b32 v{49+2*i}, 0xffff0000, v{XR+i}')
    for i in range(8): p(f'v_add_f32 v{32+i}, v{32+i}, v{48+i}')
    for i in range(4): p(f'v_cvt_pk_bf16_f32 v{40+i}, v{32+2*i}, v{33+2*i}')
    p('buffer_store_dwordx2 v[40:41], v9, s[36:39], s59 offen')
    p('buffer_store_dwordx2 v[42:43], v9, s[36:39], s59 offen offset:16')
    if PROF: p('s_waitcnt vmcnt(0)')
    st.stamp()
    st.dump(p, 8, 0, 20, 50, 57, 8)
    p('s_endpgm')

    ool = p.begin_alt()
    def routine(name):
        p.alt_branch(ool); p.label(name)
    def fin_code():
        p(f"""
s_nop 15
s_nop 7
v_mov_b32 v9, v{VLSAVE}
v_permlane32_swap_b32 v{VLSAVE}, v9
v_add_f32 v9, v{VLSAVE}, v9
v_rcp_f32 v9, v9
s_mul_i32 s52, s27, {AF_MT}
s_lshl_b32 s54, s21, 13
s_add_u32 s52, s52, s54
s_add_u32 s52, s52, {AF_OFF:#x}
s_add_u32 s53, s52, 4096
""")
        for half in range(2):
            for i in range(32): p(f'v_mul_f32 v{O+32*half+i}, v{O+32*half+i}, v9')
            for i in range(16): p(f'v_cvt_pk_bf16_f32 v{TT+16*half+i}, v{O+32*half+2*i}, v{O+32*half+2*i+1}')
            for k in range(4): p(f'buffer_store_dwordx4 {vr(TT+16*half+4*k,4)}, v{VL16}, s[8:11], s{52+half} offen offset:{k*1024}{SC}')
        for i in range(64): p(f'v_mov_b32 v{O+i}, 0')
    for kind, nm, hf in outl:
        if kind == 'evt':
            routine(f'LF_evt{nm}')
            p('s_lshl_b32 s68, s47, 1')
            if nm in ('loop0', 'drain0'):
                p(f"""
s_add_u32 s69, s68, 2
s_cmp_lg_u32 s62, s69
s_cbranch_scc1 LF_nofin{nm}
s_cmp_eq_u32 s25, 0
s_cbranch_scc1 LF_nofin{nm}
""")
                fin_code()
                p.label(f'LF_nofin{nm}')
            if nm == 'loop0':
                p(f"""
s_add_u32 s69, s68, 4
s_cmp_lg_u32 s62, s69
s_cbranch_scc1 LF_nopubS
s_add_u32 s69, s24, {CNT_CTX}
s_lshl_b32 s69, s69, 2
""")
                emit(publish([69]))
                p(f"""
LF_nopubS:
s_cmp_lg_u32 s62, s68
s_cbranch_scc1 LF_nosw
s_cmp_eq_u32 s25, 0
s_cbranch_scc1 LF_nosw
s_lshl_b32 s69, s26, 13
s_add_u32 s69, s69, {QX}
v_add_u32 v9, s69, v{VL16}
s_nop 7
""")
                for ks in range(8): p(f'ds_read_b128 {vr(Q+4*ks,4)}, v9 offset:{ks*1024}')
                for i in range(16): p(f'v_mov_b32 v{MN+i}, 0')
                p(f"""
v_mov_b32 v{VM}, 0
s_mov_b32 s61, s28
s_mov_b32 s60, 0
s_waitcnt lgkmcnt(0)
LF_nosw:
""")
            if nm == 'loop1':
                p(f"""
s_add_u32 s69, s68, 1
s_cmp_lg_u32 s62, s69
s_cbranch_scc1 LF_nomid
s_cmp_eq_u32 s25, 0
s_cbranch_scc1 LF_nomid
v_mov_b32 v{VLSAVE}, v{VLS}
v_mov_b32 v{VLS}, 0
s_mov_b32 s60, 1.0
s_mov_b32 s57, 0xbf800000
s_mov_b32 s58, {FLOOR1:#x}
s_mov_b32 s59, 1
LF_nomid:
""")
            if nm != 'drain0':
                p(f"""
s_lshr_b32 s68, s62, 1
s_lshl_b32 s69, s68, 1
s_sub_u32 s69, s69, s47
s_add_u32 s69, s69, s25
s_cmp_ge_u32 s68, s47
s_cselect_b32 s68, s69, s68
s_lshl_b32 s68, s68, 1
s_add_u32 s68, s68, {hf}
s_cmp_lt_u32 s68, s61
s_cbranch_scc1 LF_nomask{nm}
s_sub_u32 s68, s61, s68
s_lshl_b32 s68, s68, 5
v_add_u32 v9, s68, v{VZ}
v_mov_b32 v10, {NEG:#x}
""")
                for r in range(16):
                    cr = 8 * (r >> 2) + (r & 3)
                    p(f'v_cmp_gt_i32 vcc, {cr}, v9')
                    p(f'v_cndmask_b32 v{MN+r}, v{MN+r}, v10, vcc')
                p.label(f'LF_nomask{nm}')
            p(f"""
s_add_u32 s68, s62, 1
s_max_u32 s66, s68, 32
s_cmp_le_u32 s68, s49
s_cselect_b32 s66, s68, s66
s_branch LF_eret{nm}
""")
            p.end_branch()
        else:
            routine(f'LF_rare{nm}')
            c = S[1 - hf]; nx = S[hf]; pc = PP[1 - hf]
            p('s_nop 15\ns_nop 7')
            p(f'v_max3_f32 v9, v{c}, v{c+1}, v{c+2}')
            for k in range(3, 15, 2): p(f'v_max3_f32 v9, v9, v{c+k}, v{c+k+1}')
            p(f'v_max_f32 v9, v9, v{c+15}')
            p(f'''
v_mov_b32 v10, v9
v_permlane32_swap_b32 v9, v10
v_max_f32 v9, v9, v10
v_max_f32 v9, s58, v9
v_sub_f32 v10, 0, v9
v_min_f32 v10, 0x42fc0000, v10
v_exp_f32 v10, v10
v_mul_f32 v11, s60, v9
''')
            for k in range(16): p(f'v_sub_f32 v{c+k}, v{c+k}, v9')
            for k in range(16): p(f'v_exp_f32 v{TT+k}, v{c+k}')
            p(f'v_add_f32 v{VTS}, v{TT}, v{TT+1}')
            for k in range(2, 16): p(f'v_add_f32 v{VTS}, v{VTS}, v{TT+k}')
            for k in range(8): p(f'v_cvt_pk_bf16_f32 v{pc+k}, v{TT+2*k}, v{TT+2*k+1}')
            for k in range(16): p(f'v_sub_f32 v{nx+k}, v{nx+k}, v11')
            for k in range(16): p(f'v_sub_f32 v{MN+k}, v{MN+k}, v11')
            p(f'v_add_f32 v{VM}, v{VM}, v11')
            p(f'v_mul_f32 v{VLS}, v{VLS}, v10')
            p('s_cmp_lg_u32 s59, 0')
            p(f's_cbranch_scc1 LF_rskip{nm}')
            for k in range(64): p(f'v_mul_f32 v{O+k}, v{O+k}, v10')
            p.label(f'LF_rskip{nm}')
            p(f'''
s_mov_b32 s{56+hf}, {THR:#x}
''')
            if hf == 1:
                p('s_mov_b32 s58, 0\ns_mov_b32 s59, 0')
            if nm == 'loop1': p('s_cmp_lt_u32 s55, 17')
            p(f's_branch LF_ret{nm}')
            p.end_branch()
    p.alt_branch(ool); emit_slow(); p.end_branch()
    p.label('LF_end')
    p('s_endpgm')
    return ('kf_kernel', p, 256, 512, 163840, 256, 256)
```

```python
from common import *
from k1 import ln_stream
import struct, math

def f2u(x): return struct.unpack('<I', struct.pack('<f', x))[0]
MF = 'v_mfma_f32_32x32x16_bf16'
SC = os.environ.get('FSC', ' sc1')
CNT_LN = 0; CNT_KV = 16; CNT_CTX = 32; CNT_REG = 48
LS = os.environ.get('LS', ' sc1')
SPIN_MAX = 1 << 22

KVSC = os.environ.get('KVSC', '')
KVN = int(os.environ.get('KVN', '0'))
def gen_kf():
    p = Prog()
    st = Stamps(p, 70, 10)
    st.skip = set(int(x) for x in os.environ.get('STSKIP', '').split(',') if x)
    def emit(lst):
        for f in lst:
            if isinstance(f, list): emit(f)
            elif callable(f): f(p)
            else: p(f)
    VL16 = 1
    uid = [0]
    def publish(sreg_idx_list):
        uid[0] += 1; L = f'LF_pub{uid[0]}'
        out = ['s_cmp_lg_u32 s20, 0', f's_cbranch_scc1 {L}', '@COND', 'v_mov_b32 v14, 1', 'v_mov_b32 v15, 0', 's_mov_b64 exec, 1']
        for s in sreg_idx_list:
            out.append(f'buffer_atomic_add v14, v15, s[96:99], s{s} offen sc1')
        out += ['s_mov_b64 exec, -1', '@ENDCOND', f'{L}:']
        return out
    def poll(pairs):
        uid[0] += 1; L = f'LF_poll{uid[0]}'
        out = ['s_cmp_lg_u32 s20, 0', f's_cbranch_scc1 {L}_done', '@COND', 'v_mov_b32 v15, 0', f's_mov_b32 s3, {SPIN_MAX}']
        for n, (s, tgt) in enumerate(pairs):
            out += [f'{L}_{n}:',
                    f'buffer_load_dword v14, v15, s[96:99], s{s} offen sc1',
                    's_waitcnt vmcnt(0)',
                    'v_readfirstlane_b32 s100, v14',
                    's_sub_u32 s3, s3, 1',
                    's_cmp_eq_u32 s3, 0',
                    f's_cbranch_scc1 {L}_acq',
                    f's_cmp_ge_u32 s100, {tgt}',
                    f's_cbranch_scc1 {L}_{n}_ok',
                    's_sleep 2',
                    f's_branch {L}_{n}',
                    f'{L}_{n}_ok:']
        out += [f'{L}_acq:', 'buffer_inv sc1', 's_waitcnt vmcnt(0)', '@ENDCOND', f'{L}_done:']
        return out
    def poll_noinv(pairs):
        out = poll(pairs)
        i = out.index('buffer_inv sc1')
        return out[:i] + out[i + 2:]
    slow = []
    def poll_issue(sregs, vb=14, vz=8):
        uid[0] += 1; L = f'LF_pi{uid[0]}'
        out = ['s_cmp_lg_u32 s20, 0', f's_cbranch_scc1 {L}', '@COND', f'v_mov_b32 v{vz}, 0']
        for n, s in enumerate(sregs): out.append(f'buffer_load_dword v{vb+n}, v{vz}, s[96:99], s{s} offen sc1')
        out += ['@ENDCOND', f'{L}:']
        return out
    def poll_check(pairs, inv_flag=None, vb=14):
        uid[0] += 1; L = f'LF_pc{uid[0]}'
        out = ['s_cmp_lg_u32 s20, 0', f's_cbranch_scc1 {L}', '@COND']
        for n, (s, tgt) in enumerate(pairs):
            out += [f'v_readfirstlane_b32 s100, v{vb+n}', f's_cmp_lt_u32 s100, {tgt}', f's_cbranch_scc1 {L}_slow']
        out += [f'{L}_ok:']
        if inv_flag is not None and inv_flag >= 0:
            out += [f's_cmp_lg_u32 s{inv_flag}, 0', f's_cbranch_scc1 {L}', (lambda pp: pp('buffer_inv sc1', 'inv'))]
        elif inv_flag is not None:
            out += [(lambda pp: pp('buffer_inv sc1', 'inv'))]
        out += ['@ENDCOND', f'{L}:']
        slow.append((L, pairs))
        return out
    def publish_kv():
        uid[0] += 1; L = f'LF_pkv{uid[0]}'
        return ['s_cmp_lg_u32 s20, 0', f's_cbranch_scc1 {L}', '@COND',
                'v_readfirstlane_b32 s100, v15',
                's_and_b32 s3, s100, 63', 's_bfe_u32 s29, s100, 0x90006', 's_lshr_b32 s30, s100, 15',
                's_mul_i32 s29, s29, s29', 's_lshl_b32 s30, s30, 5',
                's_cmp_eq_u32 s29, s30', 's_cselect_b32 s94, 1, 0',
                's_cmp_eq_u32 s3, 32', 's_cselect_b32 s94, s94, 0',
                's_cmp_lg_u32 s94, 0', f's_cbranch_scc1 {L}_fast',
                'buffer_wbl2 sc1', 's_waitcnt vmcnt(0)',
                f'{L}_fast:',
                'v_mov_b32 v14, 1', 'v_mov_b32 v15, 0', 's_mov_b64 exec, 1',
                'buffer_atomic_add v14, v15, s[96:99], s33 offen sc1',
                's_mov_b64 exec, -1', '@ENDCOND', f'{L}:']
    def w0_drain():
        uid[0] += 1; L = f'LF_dr{uid[0]}'
        return ['s_cmp_lg_u32 s20, 0', f's_cbranch_scc1 {L}', '@COND', (lambda pp: pp.wait_tag('inv')), '@ENDCOND', f'{L}:']
    def emit_slow():
        for L, pairs in slow:
            p.label(f'{L}_slow')
            p(f's_mov_b32 s3, {SPIN_MAX}')
            p('v_mov_b32 v8, 0')
            for n, (s, tgt) in enumerate(pairs):
                p(f"""
{L}_s{n}:
buffer_load_dword v14, v8, s[96:99], s{s} offen sc1
s_waitcnt vmcnt(0)
v_readfirstlane_b32 s100, v14
s_sub_u32 s3, s3, 1
s_cmp_eq_u32 s3, 0
s_cbranch_scc1 {L}_ok
s_cmp_ge_u32 s100, {tgt}
s_cbranch_scc1 {L}_s{n}_ok
s_sleep 2
s_branch {L}_s{n}
{L}_s{n}_ok:
""")
            p(f's_branch {L}_ok')
    p(f'''
s_cmp_ge_u32 s2, 256
s_cbranch_scc1 LF_end
s_load_dwordx4 s[28:31], s[0:1], 0
s_load_dwordx4 s[32:35], s[0:1], 24
s_load_dwordx4 s[36:39], s[0:1], 88
s_load_dwordx4 s[64:67], s[0:1], 56
s_load_dwordx2 s[68:69], s[0:1], 16
s_load_dwordx2 s[56:57], s[0:1], 40
s_load_dwordx2 s[58:59], s[0:1], 72
v_lshrrev_b32 v9, 6, v0
v_and_b32 v10, 63, v0
v_readfirstlane_b32 s20, v9
s_and_b32 s22, s2, 7
s_lshr_b32 s23, s2, 3
''')
    st.stamp()
    p('''
s_and_b32 s48, s23, 1
s_bfe_u32 s49, s23, 0x10001
s_lshr_b32 s50, s23, 2
s_lshl_b32 s51, s22, 9
s_lshl_b32 s3, s48, 8
s_add_u32 s51, s51, s3
''')
    p(f'v_lshlrev_b32 v{VL16}, 4, v10')
    STG = 65536
    p('''
v_lshrrev_b32 v11, 3, v10
v_and_b32 v12, 7, v10
v_lshrrev_b32 v13, 4, v10
v_xor_b32 v14, v12, v13
v_lshlrev_b32 v14, 4, v14
v_lshl_add_u32 v2, v11, 10, v14
v_xor_b32 v3, 64, v2
''')
    p('''
v_and_b32 v13, 1, v13
v_lshlrev_b32 v13, 2, v13
v_xor_b32 v14, v12, v13
v_lshlrev_b32 v14, 4, v14
v_lshl_add_u32 v4, v11, 13, v14
''')
    p(f'''
v_and_b32 v11, 31, v10
v_lshrrev_b32 v12, 5, v10
v_bfe_u32 v13, v11, 1, 3
v_xor_b32 v13, v12, v13
v_lshlrev_b32 v13, 4, v13
v_lshl_add_u32 v13, v11, 7, v13
s_lshl_b32 s52, s20, 13
s_add_u32 s52, s52, {STG}
v_add_u32 v16, s52, v13
v_xor_b32 v17, 32, v16
v_xor_b32 v18, 64, v16
v_xor_b32 v19, 96, v16
''')
    p('''
v_bfe_u32 v11, v10, 2, 2
v_lshl_add_u32 v13, v12, 3, v11
v_lshlrev_b32 v13, 7, v13
v_lshrrev_b32 v11, 1, v11
v_lshl_add_u32 v13, v11, 6, v13
v_bfe_u32 v11, v10, 4, 1
v_lshl_add_u32 v13, v11, 5, v13
v_and_b32 v11, 3, v10
v_lshl_add_u32 v20, v11, 3, v13
v_xor_b32 v21, 64, v20
v_add_u32 v22, 0x8000, v20
v_add_u32 v23, 0x8000, v21
v_add_u32 v24, 0x20000, v20
v_add_u32 v25, 0x20000, v21
v_add_u32 v26, 0x10000, v20
v_add_u32 v27, 0x10000, v21
v_lshlrev_b32 v14, 7, v10
v_lshrrev_b32 v15, 2, v10
v_lshlrev_b32 v15, 13, v15
v_and_b32 v11, 3, v10
v_lshl_add_u32 v15, v11, 7, v15
v_lshrrev_b32 v5, 1, v10
v_lshlrev_b32 v5, 10, v5
v_and_b32 v11, 1, v10
v_lshl_add_u32 v5, v11, 9, v5
''')
    p('s_waitcnt lgkmcnt(0)')
    srd(p, 12, 30, 31, 2 << 20)
    srd(p, 16, 28, 29, 2 << 20)
    srd(p, 8, 38, 39, WS_BYTES)
    srd(p, 96, 36, 37, 256)
    p('''
s_cmp_eq_u32 s49, 0
s_cselect_b32 s4, s32, s34
s_cselect_b32 s5, s33, s35
s_and_b32 s5, s5, 0xffff
s_mov_b32 s6, 0x400000
s_mov_b32 s7, 0x00020000
s_lshl_b32 s40, s50, 8
s_lshl_b32 s41, s20, 5
s_add_u32 s40, s40, s41
s_lshl_b32 s40, s40, 10
s_lshl_b32 s42, s20, 18
s_lshl_b32 s43, s51, 1
s_add_u32 s42, s42, s43
s_lshl_b32 s43, s20, 12
''')
    WS = [0, 32768, 131072, 65536]
    def wdma(u, q):
        sc = u >> 1; kh = u & 1
        return [f's_add_u32 m0, s43, {WS[u % 4] + q*1024}',
                f's_add_u32 s53, s42, {(kh*256 + 8*q)*8192 + sc*128}',
                (lambda pp: pp('buffer_load_dwordx4 v4, s[4:7], s53 offen lds', f'w{u}'))]
    def adma(e, jj):
        return [f's_add_u32 m0, s52, {(e&1)*4096 + jj*1024}',
                f's_add_u32 s54, s40, {8*jj*1024 + e*128}',
                (lambda pp: pp(f'buffer_load_dwordx4 v{2+(jj&1)}, s[12:15], s54 offen lds', f'a{e}'))]
    AR = 128
    def aread(e, k):
        ks = 4 * e + k
        return (lambda pp: pp(f'ds_read_b128 {vr(AR+4*ks,4)}, v{16+k} offset:{(e&1)*4096}', f'ar{e}'))
    for jj in range(4): emit(adma(0, jj))
    for q in range(4): emit(wdma(0, q))
    for jj in range(4): emit(adma(1, jj))
    p('''
s_lshl_b32 s29, s2, 3
s_add_u32 s29, s29, s20
s_lshl_b32 s30, s29, 10
''')
    LNR = 96; LNT = 100
    p(f'buffer_load_dwordx4 {vr(LNR,4)}, v{VL16}, s[16:19], s30 offen')
    if 'pf' in os.environ.get('XP1', '').split('_'):
        p("""
s_cmp_lt_u32 s2, 128
s_cselect_b32 s60, s32, s34
s_cselect_b32 s61, s33, s35
s_mov_b32 s62, 0x400000
s_and_b32 s3, s2, 127
s_lshl_b32 s3, s3, 15
s_lshl_b32 s53, s20, 13
s_add_u32 s3, s3, s53
s_lshl_b32 s53, s2, 13
s_cmp_eq_u32 s20, 4
s_cselect_b32 s60, s12, s60
s_cselect_b32 s61, s13, s61
s_cselect_b32 s62, s14, s62
s_cselect_b32 s3, s53, s3
s_cmp_gt_u32 s20, 4
s_cselect_b32 s3, 0x7f000000, s3
s_and_b32 s61, s61, 0xffff
s_mov_b32 s63, 0x00020000
buffer_load_dword v104, v14, s[60:63], s3 offen
""")
    for q in range(4): emit(wdma(1, q))
    if os.environ.get('W2P', '1') == '1':
        for q in range(4): emit(wdma(2, q))
    p(f'''
s_lshr_b32 s44, s51, 7
s_lshl_b32 s44, s44, 19
s_lshl_b32 s45, s50, 3
s_add_u32 s45, s45, s20
s_lshl_b32 s45, s45, 13
s_add_u32 s44, s44, s45
s_mov_b32 s45, {KF_OFF:#x}
s_mov_b32 s46, {VF_OFF:#x}
s_cmp_eq_u32 s49, 0
s_cselect_b32 s45, s45, s46
s_add_u32 s41, s44, s45
s_lshr_b32 s31, s29, 5
s_lshl_b32 s31, s31, 15
s_and_b32 s3, s29, 31
s_lshl_b32 s3, s3, 4
s_add_u32 s31, s31, s3
s_lshr_b32 s32, s2, 4
s_lshl_b32 s32, s32, 2
s_lshr_b32 s33, s51, 8
s_add_u32 s33, s33, {CNT_KV}
s_lshl_b32 s33, s33, 2
s_getreg_b32 s3, hwreg(HW_REG_XCC_ID, 0, 4)
s_mul_i32 s53, s3, s3
s_lshl_b32 s53, s53, 15
s_lshl_b32 s3, s3, 6
s_add_u32 s53, s53, s3
s_add_u32 s53, s53, 1
s_add_u32 s101, s22, {CNT_REG}
s_lshl_b32 s101, s101, 2
s_cmp_lg_u32 s20, 0
s_cbranch_scc1 LF_noreg
@COND
v_mov_b32 v8, s53
v_mov_b32 v9, 0
s_mov_b64 exec, 1
buffer_atomic_add v8, v9, s[96:99], s101 offen sc1
s_mov_b64 exec, -1
@ENDCOND
LF_noreg:
''')
    if XF_OFF: p(f's_add_u32 s31, s31, {XF_OFF:#x}')
    p('''
s_and_b32 s3, s23, 3
s_lshl_b32 s21, s22, 2
s_add_u32 s21, s21, s3
s_lshr_b32 s24, s23, 2
s_lshr_b32 s25, s20, 2
s_and_b32 s26, s20, 3
s_sub_u32 s28, 15, s24
s_lshl_b32 s28, s28, 2
s_add_u32 s28, s28, s26
s_lshl_b32 s27, s24, 2
s_add_u32 s27, s27, s26
s_cmp_eq_u32 s25, 0
s_cselect_b32 s27, s28, s27
''')
    if os.environ.get('P1P', '1') == '1':
        p('s_cmp_eq_u32 s25, 0')
        p('s_cbranch_scc1 LF_noprio1')
        p('s_setprio 1')
        p.label('LF_noprio1')
    p.wait_tag('a0')
    for k in range(4): emit([aread(0, k)])
    p.wait_tag('ar0')
    for jj in range(4): emit(adma(2, jj))
    p.wait_tag('w0')
    p('s_barrier')
    st.stamp()
    p('s_cmp_lg_u32 s49, 0')
    p('s_cbranch_scc1 LF_v')

    WF = 32; NST = 4; ACC = 64; PK = 96
    def trread(u, kk):
        out = []
        for nt in range(2):
            w = WF + 8 * (kk % NST) + 4 * nt
            out.append(f'ds_read_b64_tr_b16 {vr(w,2)}, v{20+2*(u%4)+nt} offset:{kk*2048}')
            out.append(f'ds_read_b64_tr_b16 {vr(w+2,2)}, v{20+2*(u%4)+nt} offset:{kk*2048+512}')
        return out
    def kv_epilogue(sc, nt):
        g = []
        PKB = PK if sc < 3 else 32
        for half in range(2):
            pk = PKB + 8 * nt + 4 * half
            for i in range(4):
                s = ACC + 16 * nt + 8 * half + 2 * i
                g.append(f'v_cvt_pk_bf16_f32 v{pk+i}, v{s}, v{s+1}')
        off = (sc >> 1) * 524288 + (sc & 1) * 4096
        st_ = [[f's_add_u32 s55, s41, {off + nt*2048 + half*1024}',
                (lambda pp, half=half: pp(f'buffer_store_dwordx4 {vr(PKB+8*nt+4*half,4)}, v{VL16}, s[8:11], s55 offen{KVSC if sc >= KVN else SC}', 'kvst'))]
               for half in range(2)]
        return g, st_
    lns = ln_stream(LNR, LNT, LNT + 16)
    lns.append(lambda pp: pp(f'buffer_store_dwordx4 {vr(LNR,4)}, v5, s[8:11], s31 offen{SC}', 'lnst'))
    SLOT = 29184
    GSL = [0, SLOT, 131072, 65536]
    KSL = 0; VSL = 65536; QX = 131072
    GD = 28
    def p2_setup():
        q = Prog(); pp = q
        pp("""
v_and_b32 v10, 63, v0
v_lshrrev_b32 v11, 4, v10
v_bfe_u32 v12, v10, 2, 2
v_and_b32 v13, 3, v11
v_xor_b32 v12, v12, v13
v_lshlrev_b32 v12, 6, v12
v_and_b32 v13, 3, v10
v_lshl_add_u32 v12, v13, 4, v12
v_lshl_add_u32 v12, v11, 13, v12
s_lshl_b32 s29, s26, 17
v_add_u32 v28, s29, v12
v_add_u32 v29, 0x8000, v28
v_add_u32 v30, 0x10000, v28
v_add_u32 v31, 0x18000, v28
s_and_b32 s29, s20, 1
s_mul_i32 s29, s29, 192
s_mov_b32 s30, 43691
s_movk_i32 s34, 2752
s_cmp_eq_u32 s25, 0
s_cselect_b64 s[36:37], -1, 0
""")
        for t in range(3):
            pp(f"""
v_add_u32 v11, s29, v10
v_add_u32 v11, {64*t}, v11
v_mul_lo_u32 v12, v11, s30
v_lshrrev_b32 v12, 18, v12
v_mul_u32_u24 v13, 6, v12
v_sub_u32 v13, v11, v13
v_mul_lo_u32 v12, v12, s34
v_lshl_add_u32 v9, v13, 4, v12
v_cndmask_b32 v{28+t}, v9, v{28+t}, s[36:37]
""")
        pp('v_cndmask_b32 v31, v9, v31, s[36:37]')
        pp("""
v_lshrrev_b32 v11, 5, v10
v_bfe_u32 v12, v10, 2, 2
v_lshl_add_u32 v13, v11, 3, v12
v_lshlrev_b32 v6, 8, v13
v_lshl_add_u32 v6, v12, 6, v6
v_bfe_u32 v7, v10, 4, 1
v_lshl_add_u32 v6, v7, 5, v6
v_and_b32 v9, 3, v10
v_lshl_add_u32 v6, v9, 3, v6
v_mul_u32_u24 v13, 96, v13
v_mul_u32_u24 v7, 6272, v7
v_add_u32 v13, v13, v7
v_lshl_add_u32 v13, v9, 3, v13
v_add_u32 v7, 0x4000, v13
""")
        pp("""
s_mov_b32 s60, s68
s_mov_b32 s61, s69
s_cmp_eq_u32 s20, 2
s_cselect_b32 s60, s64, s60
s_cselect_b32 s61, s65, s61
s_cmp_eq_u32 s20, 3
s_cselect_b32 s60, s66, s60
s_cselect_b32 s61, s67, s61
s_cmp_ge_u32 s20, 4
s_cselect_b32 s60, s56, s60
s_cselect_b32 s61, s57, s61
s_cmp_ge_u32 s20, 6
s_cselect_b32 s60, s58, s60
s_cselect_b32 s61, s59, s61
s_and_b32 s61, s61, 0xffff
s_mov_b32 s63, 0x00020000
s_mov_b32 s62, 0x158000
s_movk_i32 s35, 5504
s_and_b32 s38, s20, 2
s_cmp_eq_u32 s38, 0
s_cselect_b32 s62, 0x400000, s62
s_cselect_b32 s35, 0x4000, s35
s_mul_i32 s35, s35, s2
s_and_b32 s39, s20, 1
s_lshl_b32 s39, s39, 13
s_cmp_eq_u32 s38, 0
s_cselect_b32 s39, s39, 0
s_add_u32 s35, s35, s39
s_cmp_ge_u32 s20, 4
s_cselect_b32 s35, 0x7f000000, s35
v_lshlrev_b32 v12, 3, v1
buffer_load_dword v11, v12, s[60:63], s35 offen
""")
        pp("""
s_bfe_u32 s29, s20, 0x10001
s_cmp_eq_u32 s29, 0
s_cselect_b32 s16, s64, s66
s_cselect_b32 s17, s65, s67
s_mov_b32 s18, 0x158000
s_cmp_eq_u32 s25, 0
s_cselect_b32 s16, s68, s16
s_cselect_b32 s17, s69, s17
s_cselect_b32 s18, 0x400000, s18
s_and_b32 s17, s17, 0xffff
s_mov_b32 s19, 0x00020000
s_lshl_b32 s56, s21, 8
s_mul_i32 s38, s21, 96
s_lshl_b32 s58, s26, 12
s_mul_i32 s39, s29, 6272
s_and_b32 s30, s20, 1
s_mul_i32 s30, s30, 3072
s_add_u32 s39, s39, s30
s_add_u32 s39, s39, 16384
s_cmp_eq_u32 s25, 0
s_cselect_b32 s56, s56, s38
s_mov_b32 s57, 0x2b000
s_cselect_b32 s57, 0x80000, s57
s_cselect_b32 s58, s58, s39
s_movk_i32 s59, 2048
s_cselect_b32 s59, 3072, s59
s_add_u32 s59, s59, s58
s_lshl_b32 s60, s27, 15
""")
        if XF_OFF: pp(f's_add_u32 s60, s60, {XF_OFF:#x}')
        return [i.text for i in q.items]
    GX = 128; GW = 192; GT = [48, 64, 80, 96, 112, 160, 176]
    def gdma(sl):
        base = GSL[sl % 4]
        out = []
        for t in range(4):
            out.append([f's_add_u32 m0, s{58 if t < 3 else 59}, {base + (t*1024 if t < 3 else 0)}',
                        's_nop 0',
                        (lambda pp, t=t, sl=sl: pp(f'buffer_load_dwordx4 v{GD+t}, s[16:19], s56 offen lds', f'g{sl}'))])
        out[3].append('s_add_u32 s56, s56, s57')
        return out
    def xload(sl):
        out = []
        b = GX + 16 * (sl & 1)
        for k in range(4):
            out.append(f'buffer_load_dwordx4 {vr(b+4*k,4)}, v{VL16}, s[8:11], s61 offen offset:{k*1024}{LS}')
        return [f's_add_u32 s61, s60, {sl*4096}'] + out

    alt = p.begin_alt(join=True)
    for variant in ('k', 'v'):
        p.alt_branch(alt)
        if variant == 'v': p.label('LF_v')
        for kk in range(3): emit(trread(0, kk))
        pend = []
        for u in range(8):
            sc = u >> 1; kh = u & 1
            bb = []; fl = {}
            def add(slot, items): fl.setdefault(slot, []).extend(items)
            for kk in range(16):
                ks = kh * 16 + kk
                for nt in range(2):
                    w = WF + 8 * (kk % NST) + 4 * nt
                    acc = vr(ACC + 16 * nt, 16); cc = '0' if ks == 0 else acc
                    A = vr(AR + 4 * ks, 4)
                    if variant == 'k': bb.append(f'{MF} {acc}, {vr(w,4)}, {A}, {cc}')
                    else:              bb.append(f'{MF} {acc}, {A}, {vr(w,4)}, {cc}')
            for kk in range(3, 16):
                t = trread(u, kk)
                s0 = min(2 * (kk - 3), 24)
                add(s0, t[:2]); add(s0 + 1, t[2:])
            if u < 2:
                for q4 in range(4):
                    e = 4 * kh + q4; base = 8 * q4
                    if e + 1 < 8:
                        add(base + 1, [lambda pp, e=e: pp.wait_tag(f'a{e+1}')])
                        for k_ in range(4): add(base + 1 + k_ // 2, [aread(e + 1, k_)])
                        if e + 3 < 8:
                            add(base + 5, [lambda pp, e=e: pp.wait_tag(f'ar{e+1}')])
                            for jj in range(4): add(base + 5 + jj // 2, adma(e + 3, jj))
            loads = {0: [2], 2: [3, 4], 3: [5], 4: [6], 5: [7]}.get(u, [])
            if os.environ.get('W2P', '1') == '1' and u == 0: loads = []
            grps = [wdma(lu, q) for lu in loads for q in range(4)]
            if grps: spread(add, grps, 2 if u else 10, 25)
            X1 = os.environ.get('XP1', '')
            WT = os.environ.get('WT', '0,4')
            AT = os.environ.get('AT', '')
            if AT and u == 0:
                add(int(AT), ['v_and_b32 v126, 63, v0', 'v_lshrrev_b32 v125, 2, v126', 'v_and_b32 v126, 3, v126', 'v_lshlrev_b32 v125, 10, v125',
                       'v_lshl_add_u32 v125, v126, 7, v125',
                       's_and_b32 s3, s23, 3', 's_lshl_b32 s3, s3, 6', 's_lshl_b32 s54, s50, 8', 's_add_u32 s3, s3, s54', 's_and_b32 s54, s20, 3', 's_lshl_b32 s54, s54, 4',
                       's_add_u32 s3, s3, s54', 's_lshl_b32 s3, s3, 10', 's_add_u32 s3, s3, 512', 's_cmp_lt_u32 s20, 4', 's_cselect_b32 s3, 0x7f000000, s3',
                       'buffer_load_dword v126, v125, s[12:15], s3 offen'])
            QT = os.environ.get('QT', '')
            if QT and u == int(QT):
                add(6, ['v_and_b32 v126, 63, v0', 'v_lshrrev_b32 v125, 1, v126', 'v_and_b32 v126, 1, v126', 'v_lshlrev_b32 v125, 13, v125',
                       'v_lshl_add_u32 v125, v126, 7, v125',
                       's_lshl_b32 s3, s24, 6', 's_lshl_b32 s54, s20, 5', 's_add_u32 s3, s3, s54', 's_lshl_b32 s3, s3, 13', 's_lshl_b32 s54, s21, 8',
                       's_add_u32 s3, s3, s54', 's_cmp_ge_u32 s20, 2', 's_cselect_b32 s3, 0x7f000000, s3',
                       'buffer_load_dword v126, v125, s[16:19], s3 offen'])
            if WT and u == int(WT.split(',')[0]):
                add(int(WT.split(',')[1]), ['s_lshl_b32 s3, s50, 6', 's_lshl_b32 s54, s20, 4', 's_add_u32 s3, s3, s54', 's_lshl_b32 s3, s3, 13',
                       's_lshl_b32 s54, s51, 1', 's_add_u32 s3, s3, s54', 's_cmp_ge_u32 s20, 4', 's_cselect_b32 s3, 0x7f000000, s3',
                       'buffer_load_dword v127, v15, s[4:7], s3 offen'])
            if u == 1: spread(add, atomic_groups(lns, 3), 1, 25)
            if u == int(os.environ.get('P2U', '2')): spread(add, atomic_groups(p2_setup(), 4), 10, 26)
            if kh == 0 and sc > 0:
                for nt in range(2):
                    g, st_ = kv_epilogue(sc - 1, nt)
                    fl.setdefault(('pre', nt), []).extend(g)
                    pend.extend(st_)
            if pend:
                a_, b_ = pend.pop(0), pend.pop(0)
                if 'nokvst' not in os.environ.get('XP1', ''): add(12, a_); add(24, b_)
            extra = []; post = []
            if u == (3 if 'latepub' in X1 else 2): extra = [lambda pp: pp.wait_tag('lnst')]; post = publish([32])
            if u == 5 and 'nopoll' not in X1: add(18, ['s_sub_u32 s29, 15, s24', 's_lshl_b32 s29, s29, 2', 's_lshl_b32 s30, s24, 2'] + poll_issue([29, 30]))
            if u == 5 and 'nopoll' not in X1: post = poll_check([(29, 16), (30, 16)])
            if u == 6 and 'nog01' not in X1:
                spread(add, gdma(0) + gdma(1), 1, 25)
            if u == 7 and 'nog01' in X1:
                spread(add, gdma(0) + gdma(1), 1, 25)
            if u == 7:
                xl = xload(0)
                spread(add, [xl[:2], [xl[2]], [xl[3]], [xl[4]]] + gdma(2), 1, 28)
            if u < 7:
                add(27, [lambda pp, u=u: pp.wait_tag(f'w{u+1}'), 's_waitcnt lgkmcnt(0)'] + extra + ['s_barrier'] + post)
                for kk in range(3):
                    t = trread(u + 1, kk)
                    add(min(27 + 2 * kk, 31), t[:2]); add(min(28 + 2 * kk, 31), t[2:])
            interleave(p, bb, fl)
            if os.environ.get('P1ST'): st.i = 2 + u; st.stamp()
        for nt in range(2):
            g, st_ = kv_epilogue(3, nt)
            emit(g); pend.extend(st_)
        if variant == 'k': p('s_branch LF_p2')
        p.end_branch()
    p.label('LF_p2')
    st.stamp()
    VK = 2; VV = 3; VZ = 4; VLS = 5; VM = 6; VTS = 7; VLSAVE = 8
    T0 = 9
    Q = 16; O = 48; S = [112, 128]; PP = [144, 152]; MN = 160; FR = 176; E = 208; TT = 216
    THR = f2u(float(2 ** 20)); NEG = f2u(-1e30); FLOOR1 = f2u(-1e20)
    p(f"""
s_lshl_b32 s44, s21, 19
s_lshl_b32 s46, s20, 11
s_add_u32 s44, s44, s46
s_add_u32 s45, s44, {VF_OFF:#x}
s_add_u32 s44, s44, {KF_OFF:#x}
s_lshl_b32 s47, s24, 1
s_add_u32 s47, s47, 2
""")
    AQ = [T0, T0 + 1, T0 + 2, T0 + 3]; AF_ = T0 + 4
    def set_addr(sl):
        base = GSL[sl % 4]
        out = [f'v_add_u32 v{AQ[0]}, {base}, v6']
        for nt in range(1, 4): out.append(f'v_xor_b32 v{AQ[nt]}, {nt<<6}, v{AQ[0]}')
        out.append(f'v_add_u32 v{AF_}, {base}, v7')
        return out
    assert all((s & 0xff) == 0 for s in GSL)
    def gtr(g):
        kk = g & 3; out = []
        for tl in range(7):
            w = GW + 28 * (g & 1) + 4 * tl
            if tl < 4:
                out.append(f'ds_read_b64_tr_b16 {vr(w,2)}, v{AQ[tl]} offset:{kk*4096}')
                out.append(f'ds_read_b64_tr_b16 {vr(w+2,2)}, v{AQ[tl]} offset:{kk*4096+1024}')
            else:
                o = kk * 1536 + (tl - 4) * 32
                out.append(f'ds_read_b64_tr_b16 {vr(w,2)}, v{AF_} offset:{o}')
                out.append(f'ds_read_b64_tr_b16 {vr(w+2,2)}, v{AF_} offset:{o+384}')
        return out
    def kvcopy(sbase, chunk_off, ldsbase, tag, tmp=43):
        return [f's_add_u32 m0, s46, {ldsbase}',
                f's_add_u32 s{tmp}, s{sbase}, {chunk_off}',
                (lambda pp: pp(f'buffer_load_dwordx4 v{VL16}, s[8:11], s{tmp} offen{LS} lds', tag)),
                (lambda pp: pp(f'buffer_load_dwordx4 v{VL16}, s[8:11], s{tmp} offen offset:1024{LS} lds', tag))]
    PUB_SL = int(os.environ.get('PUB_SL', '4'))
    PFN = 8; PFS = int(os.environ.get('PFS', '0')); PFO = int(os.environ.get('PFO', '0'))
    p.wait_tag('g0')
    p('s_waitcnt lgkmcnt(0)')
    p('s_barrier')
    emit(set_addr(0))
    emit(gtr(0))
    for sl in range(8):
        bb = []; fl = {}
        def add(slot, items): fl.setdefault(slot, []).extend(items)
        for kk in range(4):
            g = sl * 4 + kk
            xb = GX + 16 * (sl & 1) + 4 * kk
            for tl in range(7):
                w = GW + 28 * (g & 1) + 4 * tl
                acc = vr(GT[tl], 16); cc = '0' if g == 0 else acc
                bb.append(f'{MF} {acc}, {vr(w,4)}, {vr(xb,4)}, {cc}')
            ng = g + 1
            if ng < 32:
                if kk == 3: add(7 * kk - 1, set_addr(sl + 1))
                rd = gtr(ng)
                for i in range(7): add(7 * kk + i, rd[2 * i:2 * i + 2])
        if sl + 1 < 8:
            xl = xload(sl + 1)
            add(0, xl[:1])
            for k in range(4): add(1 + k, [xl[1 + k]])
            pre = []; post = []
            if sl < 4: add(10, pend[sl])
            if sl == PUB_SL:
                pre = [lambda pp: pp.wait_tag('kvst')]; post = publish_kv()
            if sl == PUB_SL - 1:
                add(6, poll_issue([101, 101]))
            if sl == 6:
                add(8, [f's_lshr_b32 s29, s21, 1', f's_add_u32 s29, s29, {CNT_KV}', 's_lshl_b32 s29, s29, 2'] + poll_issue([29]))
                post = poll_check([(29, 16)], inv_flag=(94 if os.environ.get('KVINV', 'cond') == 'cond' else -1))

            add(17, [lambda pp, sl=sl: pp.wait_tag(f'g{sl+1}')] + pre + ['s_barrier'] + post)
            if sl + 3 < 8:
                for t, grp in enumerate(gdma(sl + 3)): add(18 + 2 * t if t < 1 else 21 + 2 * (t - 1), grp)
        interleave(p, bb, fl)
    st.stamp()
    p('s_waitcnt lgkmcnt(0)')
    emit(w0_drain())
    p('s_barrier')
    emit(kvcopy(44, 0, KSL, 'k0'))
    emit(kvcopy(44, 16384, KSL + 32768, 'k1'))
    emit(kvcopy(45, 0, VSL, 'v0'))
    p("""
s_load_dwordx2 s[56:57], s[0:1], 40
s_load_dwordx2 s[58:59], s[0:1], 72
s_waitcnt lgkmcnt(0)
s_cmp_ge_u32 s20, 2
s_cselect_b32 s60, s58, s56
s_cselect_b32 s61, s59, s57
s_mov_b32 s62, 0x400000
s_cselect_b32 s62, 0x158000, s62
s_movk_i32 s35, 0x4000
s_cselect_b32 s35, 5504, s35
s_and_b32 s61, s61, 0xffff
s_mov_b32 s63, 0x00020000
s_mul_i32 s35, s35, s2
s_cmp_eq_u32 s20, 1
s_cselect_b32 s39, 0x2000, 0
s_add_u32 s35, s35, s39
s_cmp_ge_u32 s20, 3
s_cselect_b32 s35, 0x7f000000, s35
v_lshlrev_b32 v12, 3, v1
buffer_load_dword v255, v12, s[60:63], s35 offen
s_lshr_b32 s17, s23, 2
s_and_b32 s18, s23, 3
s_cmp_ge_u32 s17, 6
s_cselect_b32 s12, s58, s56
s_cselect_b32 s13, s59, s57
s_mov_b32 s14, 0x400000
s_cselect_b32 s14, 0x158000, s14
s_cselect_b32 s19, 6, 0
s_and_b32 s13, s13, 0xffff
s_mov_b32 s15, 0x00020000
s_sub_u32 s19, s17, s19
s_mul_i32 s16, s19, 43
s_cmp_eq_u32 s17, 5
s_cselect_b32 s19, 1, 0
s_sub_u32 s16, s16, s19
s_lshl_b32 s16, s16, 4
s_mul_i32 s18, s18, 84
s_add_u32 s16, s16, s18
s_mul_i32 s18, s20, PFROWS
s_add_u32 s16, s16, s18
s_lshl_b32 s16, s16, 10
v_lshlrev_b32 v249, 3, v1
""".replace('PFROWS', str(PFN * PFS)))
    CQ = f2u(math.log2(math.e) / math.sqrt(128.0))
    p(f's_mov_b32 s48, {CQ:#x}')
    p(f's_mov_b32 s49, {CQ:#x}')
    for tl in range(4):
        for i in range(8): p(f'v_pk_mul_f32 {vr(GT[tl]+2*i,2)}, {vr(GT[tl]+2*i,2)}, s[48:49]')
        for i in range(8): p(f'v_cvt_pk_bf16_f32 v{Q+8*tl+i}, v{GT[tl]+2*i}, v{GT[tl]+2*i+1}')
    p(f'''
s_lshl_b32 s49, s26, 13
s_add_u32 s49, s49, {QX}
v_add_u32 v9, s49, v{VL16}
s_cmp_lg_u32 s25, 0
s_cbranch_scc1 LF_noqx
@COND
''')
    for ks in range(8): p(f'ds_write_b128 v9, {vr(Q+4*ks,4)} offset:{ks*1024}')
    p('s_waitcnt lgkmcnt(0)')
    p('@ENDCOND')
    p.label('LF_noqx')
    KG = -2.0 * math.sqrt(2.0 / math.pi) * math.log2(math.e)
    p(f's_mov_b32 s50, {f2u(KG*0.044715):#x}')
    p(f's_mov_b32 s51, {f2u(KG*0.044715):#x}')
    p(f'v_mov_b32 v{GW+16}, {f2u(KG):#x}')
    p(f'v_mov_b32 v{GW+17}, {f2u(KG):#x}')
    p(f'''
s_mul_i32 s52, s27, {AF_MT}
s_mul_i32 s53, s21, 3
s_add_u32 s54, s53, 256
s_lshl_b32 s54, s54, 10
s_add_u32 s52, s52, s54
s_add_u32 s52, s52, {AF_OFF:#x}
''')
    for tt in range(3):
        a = GT[4 + tt]; t = GW
        p(f's_add_u32 s54, s53, {tt}')
        p('s_cmp_ge_u32 s54, 86')
        p(f's_cbranch_scc1 LF_ffn_skip{tt}')
        p('@COND')
        P2 = lambda r: vr(r, 2)
        for i in range(0, 8, 2): p(f'v_pk_mul_f32 {P2(t+i)}, {P2(a+i)}, {P2(a+i)}')
        for i in range(0, 8, 2): p(f'v_pk_fma_f32 {P2(t+i)}, {P2(t+i)}, s[50:51], {P2(t+16)}')
        for i in range(0, 8, 2): p(f'v_pk_mul_f32 {P2(t+i)}, {P2(t+i)}, {P2(a+i)}')
        for i in range(8): p(f'v_exp_f32 v{t+i}, v{t+i}')
        for i in range(0, 8, 2): p(f'v_pk_mul_f32 {P2(t+8+i)}, {P2(a+i)}, {P2(a+8+i)}')
        for i in range(0, 8, 2): p(f'v_pk_add_f32 {P2(t+i)}, {P2(t+i)}, 1.0 op_sel_hi:[1,0]')
        for i in range(8): p(f'v_rcp_f32 v{t+i}, v{t+i}')
        for i in range(0, 8, 2): p(f'v_pk_mul_f32 {P2(t+i)}, {P2(t+i)}, {P2(t+8+i)}')
        for i in range(4): p(f'v_cvt_pk_bf16_f32 v{t+20+4*tt+i}, v{t+2*i}, v{t+2*i+1}')
        p(f'buffer_store_dwordx4 {vr(t+20+4*tt,4)}, v{VL16}, s[8:11], s52 offen offset:{tt*1024}{SC}')
        p('@ENDCOND')
        p.label(f'LF_ffn_skip{tt}')
    st.stamp()
    for i in range(0, 64, 2): p(f'v_pk_mov_b32 {vr(O+i,2)}, 0, 0')
    for i in range(0, 16, 2): p(f'v_pk_mov_b32 {vr(MN+i,2)}, 0, 0')
    p(f"""
v_mov_b32 v{VLS}, 0
v_mov_b32 v{VM}, 0
v_mov_b32 v{VLSAVE}, 0
s_mov_b32 s56, {THR:#x}
s_mov_b32 s57, 0xbf800000
s_mov_b32 s58, {FLOOR1:#x}
s_mov_b32 s59, 1
s_mov_b32 s60, 1.0
s_mov_b32 s61, s27
s_mov_b32 s62, 0
s_lshl_b32 s67, s25, 14
v_add_u32 v{VK}, {KSL}, v{VL16}
v_add_u32 v{VV}, {VSL}, v{VL16}
v_and_b32 v10, 63, v0
v_and_b32 v12, 31, v10
v_lshrrev_b32 v11, 5, v10
v_lshlrev_b32 v13, 2, v11
v_sub_u32 v{VZ}, v12, v13
s_mov_b32 s55, 0
s_mov_b32 s63, 16384
s_add_u32 s64, s46, 32768
s_lshl_b32 s49, s47, 1
s_add_u32 s49, s49, 2
s_cmp_eq_u32 s25, 0
s_cselect_b32 s49, 0, s49
s_cselect_b32 s66, 32, s27
s_lshl_b32 s68, s47, 1
s_add_u32 s68, s68, 4
s_min_u32 s68, s68, 32
s_cmp_eq_u32 s20, 0
s_cselect_b32 s66, s68, s66
""")
    p('s_waitcnt vmcnt(0) lgkmcnt(0)')
    p('s_barrier')
    st.stamp()

    def frag_read(f):
        hf = f >> 4; i = f & 15; dst = vr(FR + 4 * (f % 8), 4)
        if i < 8:  return f'ds_read_b128 {dst}, v{VK} offset:{hf*8192 + i*1024}'
        else:      return f'ds_read_b128 {dst}, v{VV} offset:{hf*8192 + (i-8)*1024}'
    def mfma(f):
        hf = f >> 4; i = f & 15; fr = vr(FR + 4 * (f % 8), 4)
        if i < 8:
            s = vr(S[hf], 16); c = vr(MN, 16) if i == 0 else s
            return f'{MF} {s}, {fr}, {vr(Q+4*i,4)}, {c}'
        dt = (i - 8) >> 1; tp = (i - 8) & 1
        o = vr(O + 16 * dt, 16)
        return f'{MF} {o}, {fr}, {vr(PP[hf]+4*tp,4)}, {o}'
    def bstage(hf, nslots):
        c = S[1 - hf]; pp_ = PP[1 - hf]
        groups = [[] for _ in range(nslots)]
        span = nslots - 2
        pos_e = [(kk * span) // 16 for kk in range(16)]
        late = [[] for _ in range(nslots)]
        for k in range(8):
            ea = E + (2 * k) % 8; eb = E + (2 * k + 1) % 8
            groups[pos_e[2 * k]].append(f'v_exp_f32 v{ea}, v{c+2*k}')
            groups[pos_e[2 * k + 1]].append(f'v_exp_f32 v{eb}, v{c+2*k+1}')
            sa = pos_e[2 * k] + 1; sb = pos_e[2 * k + 1] + 1
            if k == 0:
                late[sb].append(f'v_add_f32 v{VTS}, v{ea}, v{eb}')
            else:
                late[sa].append(f'v_add_f32 v{VTS}, v{VTS}, v{ea}')
                late[sb].append(f'v_add_f32 v{VTS}, v{VTS}, v{eb}')
            late[sb].append(f'v_cvt_pk_bf16_f32 v{pp_+k}, v{ea}, v{eb}')
        return [late[i] + groups[i] for i in range(nslots)]
    outl = []
    DIST = int(os.environ.get('DIST', '4'))
    DS_ = int(os.environ.get('DMAS', '2')); D0_ = int(os.environ.get('DMA0', '1')); NTAIL = int(os.environ.get('NTAIL', '0'))

    def step(kind):
        doA = kind != 'drain'
        slots = []
        for f in range(32):
            hf = f >> 4; i = f & 15
            isA = i < 8
            if isA and not doA: continue
            if not isA and kind == 'first': continue
            slots.append(f)
        pos = {f: n for n, f in enumerate(slots)}
        bb = [mfma(f) for f in slots]
        fl = {}
        def add(n, items): fl.setdefault(n, []).extend(items)
        nS = len(slots)
        last_read_slot = nS - DIST - 2
        for n in range(DIST, nS):
            add(min(n - DIST, last_read_slot) if kind != 'drain' else n - DIST, [frag_read(slots[n])])
        for hf in range(2):
            if kind == 'first' and hf == 0: continue
            if kind == 'drain' and hf == 1: continue
            hs = [n for n, f in enumerate(slots) if (f >> 4) == hf]
            groups = bstage(hf, len(hs))
            for gi, g in enumerate(groups): add(hs[gi], g)
            nm = f'{kind}{hf}'
            add(hs[-2], [f'v_cmp_nge_f32 vcc, s{56+hf}, v{VTS}'])
            add(hs[-1], [f's_cbranch_vccnz LF_rare{nm}', f'LF_ret{nm}:', f'v_add_f32 v{VLS}, v{VLS}, v{VTS}'])
            outl.append(('rare', nm, hf))
        for hf in range(2):
            if kind == 'drain' and hf == 1: continue
            nm = f'{kind}{hf}'
            first_slot = [n for n, f in enumerate(slots) if (f >> 4) == hf][0]
            fl.setdefault(('pre', first_slot), []).extend(
                ['s_cmp_ge_u32 s62, s66', f's_cbranch_scc1 LF_evt{nm}', f'LF_eret{nm}:'])
            add(first_slot, ['s_add_u32 s62, s62, 1'])
            outl.append(('evt', nm, hf))
        return bb, fl, add, pos, slots

    def prep_next():
        return [['s_add_u32 s55, s55, 1', 's_and_b32 s50, s55, 1'],
                ['s_lshl_b32 s50, s50, 15', 's_cmp_ge_u32 s55, s47'],
                ['s_cselect_b32 s69, s67, 0', 's_add_u32 s50, s50, s69', f's_add_u32 s50, s50, {KSL}']]
    def barrier_blk():
        return ['s_waitcnt vmcnt(0) lgkmcnt(0)', 's_barrier',
                f'v_add_u32 v{VV}, {(VSL - KSL) & 0xffffffff:#x}, v{VK}',
                f'v_add_u32 v{VK}, s50, v{VL16}']
    def dma_issue(name):
        L = f'buffer_load_dwordx4 v{VL16}, s[8:11], s43 offen{LS} lds'
        L2 = f'buffer_load_dwordx4 v{VL16}, s[8:11], s43 offen offset:1024{LS} lds'
        g = []
        g.append([f's_add_u32 m0, s64, {VSL}', 's_add_u32 s43, s45, s63', L])
        g.append([L2, 's_cmp_lt_u32 s55, s47'])
        g.append([f's_cbranch_scc1 LF_nov2{name}', '@COND', f's_add_u32 m0, s64, {VSL + 16384}', 's_add_u32 s43, s43, 16384', L, L2,
                  's_add_u32 s63, s63, 16384', '@ENDCOND', f'LF_nov2{name}:'])
        g.append(['s_add_u32 s63, s63, 16384', 's_xor_b32 s64, s64, 32768'])
        g.append([f's_add_u32 m0, s64, {KSL}', 's_add_u32 s43, s44, s63', L])
        g.append([L2, 's_add_u32 s65, s55, 1', 's_cmp_lt_u32 s65, s47'])
        g.append([f's_cbranch_scc1 LF_nok{name}', '@COND', f's_add_u32 m0, s64, {KSL + 16384}', 's_add_u32 s43, s43, 16384', L, L2,
                  '@ENDCOND', f'LF_nok{name}:'])
        return g

    PRIO = os.environ.get('PRIO', '1')
    if PRIO:
        p(f's_cmp_eq_u32 s25, {0 if PRIO == "1" else 1}')
        p('s_cbranch_scc1 LF_noprio')
        p('s_setprio 1')
        p.label('LF_noprio')
    bb, fl, add, pos, slots = step('first')
    for n in range(DIST): p(frag_read(slots[n]))
    nS = len(slots)
    for gi, g in enumerate(prep_next()): add(4 + gi, g)
    add(nS - DIST, barrier_blk())
    for n in range(DIST): add(nS - DIST + n, [frag_read(n)])
    if NTAIL:
        add(nS - DIST, [x for g in dma_issue('first')[:NTAIL] for x in g])
    interleave(p, bb, fl)
    p.begin_loop()
    p.label('LF_loop')
    bb, fl, add, pos, slots = step('loop')
    XP = os.environ.get('XP', '')
    if 'nodma' not in XP:
        for gi, g in enumerate(dma_issue('loop')[NTAIL:]): add(D0_ + DS_ * gi, g)
    if PFS:
        blk = [f's_cmp_lt_u32 s55, {17 - PFS - PFO}', 's_cbranch_scc1 LF_nopf', f's_cmp_ge_u32 s55, {17 - PFO}', 's_cbranch_scc1 LF_nopf', '@COND',
               f'buffer_load_dword v248, v249, s[12:15], s16 offen',
               f's_add_u32 s16, s16, 8192', '@ENDCOND', 'LF_nopf:']
        add(2, blk)
    for gi, g in enumerate(prep_next()): add(27 - DIST + gi, g)
    nb_ = barrier_blk()
    if 'nobar' in XP: nb_ = [x for x in nb_ if x != 's_barrier']
    add(32 - DIST, nb_)
    for n in range(DIST): add(min(32 - DIST + n, 30), [frag_read(n)])
    if NTAIL:
        add(32 - DIST, ['s_cmp_ge_u32 s55, 17', 's_cbranch_scc1 LF_notail', '@COND'] + [x for g in dma_issue('tail')[:NTAIL] for x in g] + ['@ENDCOND', 'LF_notail:'])
    add(30, ['s_cmp_lt_u32 s55, 17'])
    if XP:
        for kk_ in fl: fl[kk_] = [x for x in fl[kk_] if not (isinstance(x, str) and x.startswith('s_cbranch_vccnz'))]
    if 'noexp' in XP:
        for kk_ in fl: fl[kk_] = [x.replace('v_exp_f32', 'v_mov_b32') if isinstance(x, str) else x for x in fl[kk_]]
    if 'novalu' in XP:
        for kk_ in fl: fl[kk_] = [x for x in fl[kk_] if not (isinstance(x, str) and x.startswith(('v_exp', 'v_add_f32 v7', 'v_cvt')))]
    if 'nolds' in XP:
        for kk_ in fl: fl[kk_] = [x for x in fl[kk_] if not (isinstance(x, str) and x.startswith('ds_read'))]
    interleave(p, bb, fl)
    p('s_cbranch_scc1 LF_loop')
    p.end_loop()
    st.stamp()
    p('s_waitcnt lgkmcnt(0)')
    bb, fl, add, pos, slots = step('drain')
    for n in range(DIST): p(frag_read(slots[n]))
    interleave(p, bb, fl)
    st.stamp()
    p(f"""
s_cmp_ge_u32 s24, 4
s_cselect_b32 s17, 8, 0
s_add_u32 s17, s17, s22
s_add_u32 s17, s17, {CNT_CTX}
s_lshl_b32 s17, s17, 2
""")
    if os.environ.get('P4X', '0') == '1': emit(poll_issue([17], vb=250, vz=251))
    p(f'''
v_mov_b32 v9, v{VLS}
v_permlane32_swap_b32 v{VLS}, v9
v_add_f32 v{VLS}, v{VLS}, v9
s_waitcnt lgkmcnt(0)
s_barrier
''')
    p(f'''
s_mul_i32 s49, s20, 8704
s_xor_b32 s50, s20, 4
s_mul_i32 s50, s50, 8704
v_add_u32 v9, s49, v{VL16}
v_add_u32 v10, s50, v{VL16}
v_lshrrev_b32 v11, 1, v{VL16}
v_add_u32 v12, s49, v11
v_add_u32 v13, s50, v11
v_mov_b32 v14, v{VLS}
v_mov_b32 v15, v{VM}
s_cmp_eq_u32 s25, 0
s_cbranch_scc1 LF_mg0
''')
    X = TT
    alt = p.begin_alt(join=True)
    for g in (1, 0):
        p.alt_branch(alt)
        if g == 0: p.label('LF_mg0')
        keep = O + 32 * g; send = O + 32 * (1 - g)
        for k in range(8): p(f'ds_write_b128 v9, {vr(send+4*k,4)} offset:{k*1024}')
        p('ds_write_b64 v12, v[14:15] offset:8192')
        p('s_waitcnt lgkmcnt(0)')
        p('s_barrier')
        p(f'ds_read_b64 v[{E}:{E+1}], v13 offset:8192')
        for k in range(8): p(f'ds_read_b128 {vr(X+4*k,4)}, v10 offset:{k*1024}')
        p(f'''
v_max_f32 v{E+2}, v{VM}, v{E+1}
v_sub_f32 v{E+4}, v{VM}, v{E+2}
v_sub_f32 v{E+6}, v{E+1}, v{E+2}
v_exp_f32 v{E+4}, v{E+4}
v_exp_f32 v{E+6}, v{E+6}
v_mul_f32 v{E+3}, v{E+4}, v{VLS}
v_fmac_f32 v{E+3}, v{E+6}, v{E}
v_rcp_f32 v{E+3}, v{E+3}
v_mul_f32 v{E+4}, v{E+4}, v{E+3}
v_mul_f32 v{E+6}, v{E+6}, v{E+3}
''')
        for i in range(0, 32, 2):
            p(f'v_pk_mul_f32 {vr(keep+i,2)}, {vr(keep+i,2)}, {vr(E+4,2)} op_sel_hi:[1,0]')
            p(f'v_pk_fma_f32 {vr(keep+i,2)}, {vr(X+i,2)}, {vr(E+6,2)}, {vr(keep+i,2)} op_sel_hi:[1,0,1]')
        for i in range(16): p(f'v_cvt_pk_bf16_f32 v{S[0]+i}, v{keep+2*i}, v{keep+2*i+1}')
        p(f'''
s_mul_i32 s52, s28, {AF_MT}
s_lshl_b32 s54, s21, 13
s_add_u32 s52, s52, s54
s_add_u32 s52, s52, {AF_OFF + g*4096:#x}
''')
        for k in range(4): p(f'buffer_store_dwordx4 {vr(S[0]+4*k,4)}, v{VL16}, s[8:11], s52 offen offset:{k*1024}{SC}')
        if g == 1: p('s_branch LF_p4')
        p.end_branch()
    p.label('LF_p4')
    P4P = os.environ.get('P4P', '1')
    if PRIO and P4P == '0': p('s_setprio 0')
    st.stamp()
    NK = 43; D = int(os.environ.get("K3D", "6"))
    NL = int(os.environ.get("K3L", "9")); NR = int(os.environ.get("K3R", "12"))
    VA1 = 2; VW = 3; VT = [4, 5]
    ACT = 16; WF4 = ACT + 8 * D; ACC4 = WF4 + 16; WR = ACC4 + 64; XR = 240
    assert WR + 8 * NR <= XR
    AF_END = AF_OFF + 64 * AF_MT
    p(f"""
s_load_dwordx2 s[28:29], s[0:1], 40
s_load_dwordx4 s[32:35], s[0:1], 72
s_load_dwordx2 s[30:31], s[0:1], 0
s_load_dwordx2 s[36:37], s[0:1], 96
v_and_b32 v10, 63, v0
v_add_u32 v{VA1}, {AF_MT}, v{VL16}
v_lshrrev_b32 v11, 3, v10
v_and_b32 v12, 7, v10
v_bfe_u32 v13, v10, 4, 1
v_lshlrev_b32 v13, 2, v13
v_xor_b32 v12, v12, v13
v_lshlrev_b32 v12, 4, v12
v_lshl_add_u32 v{VW}, v11, 10, v12
v_lshrrev_b32 v11, 5, v10
v_bfe_u32 v12, v10, 2, 2
v_lshl_add_u32 v13, v11, 2, v12
v_lshlrev_b32 v13, 7, v13
v_lshrrev_b32 v12, 1, v12
v_lshl_add_u32 v13, v12, 6, v13
v_bfe_u32 v12, v10, 4, 1
v_lshl_add_u32 v13, v12, 5, v13
v_and_b32 v12, 3, v10
v_lshl_add_u32 v13, v12, 3, v13
s_mul_i32 s25, s20, {NL*2048}
v_add_u32 v{VT[0]}, s25, v13
v_xor_b32 v{VT[1]}, 64, v{VT[0]}
s_mul_i32 s26, s20, 43
s_cmp_ge_u32 s20, 4
s_cselect_b32 s27, 1, 0
s_sub_u32 s26, s26, s27
s_cmp_ge_u32 s20, 5
s_cselect_b32 s27, 1, 0
s_sub_u32 s26, s26, s27
s_and_b32 s44, s23, 7
s_bfe_u32 s45, s23, 0x10003
s_cmp_ge_u32 s24, 4
s_cselect_b32 s46, 8, 0
s_add_u32 s46, s46, s22
s_lshl_b32 s47, s46, 1
s_add_u32 s47, s47, s45
s_sub_u32 s48, 15, s24
s_add_u32 s48, s48, {CNT_CTX}
s_lshl_b32 s48, s48, 2
s_add_u32 s49, s24, {CNT_CTX}
s_lshl_b32 s49, s49, 2
s_add_u32 s50, s46, {CNT_CTX}
s_lshl_b32 s50, s50, 2
""")
    st.stamp()
    p('s_waitcnt vmcnt(0) lgkmcnt(0)')
    st.stamp()
    p('s_barrier')
    st.stamp()
    emit(publish([48]))
    p('s_cmp_lg_u32 s24, 7')
    p('s_cbranch_scc1 LF_nopubS2')
    emit(publish([49]))
    p.label('LF_nopubS2')
    srd(p, 12, 36, 37, AF_END)
    srd(p, 16, 30, 31, 2 << 20)
    srd(p, 36, 34, 35, 2 << 20)
    p(f"""
s_cmp_ge_u32 s20, 6
s_cselect_b32 s4, s32, s28
s_cselect_b32 s5, s33, s29
s_mov_b32 s6, 0x400000
s_cselect_b32 s6, 0x158000, s6
s_and_b32 s5, s5, 0xffff
s_mov_b32 s7, 0x00020000
s_mul_i32 s40, s47, {2*AF_MT}
s_lshl_b32 s43, s26, 10
s_add_u32 s40, s40, s43
s_add_u32 s40, s40, {AF_OFF:#x}
s_cmp_ge_u32 s20, 6
s_cselect_b32 s43, 256, 0
s_sub_u32 s43, s26, s43
s_lshl_b32 s42, s43, 14
s_lshl_b32 s43, s44, 7
s_add_u32 s42, s42, s43
s_sub_u32 s51, s20, 4
s_cmp_lt_u32 s51, 2
s_cselect_b32 s41, 0x7fff0000, s40
s_cselect_b32 s52, 0x4000, 0
s_add_u32 s52, s52, s42
""")
    def wloads(ks):
        sl = ks % NL
        if ks == 0:
            a0 = ['s_mov_b32 s54, s52', 's_add_u32 s53, s52, 0x2000']
        else:
            a0 = [f's_add_u32 s54, s42, {ks*16384}', f's_add_u32 s53, s42, {ks*16384+8192}']
        return [f's_add_u32 m0, s25, {sl*2048}'] + a0 + [
                (lambda pp: pp(f'buffer_load_dwordx4 v{VW}, s[4:7], s54 offen lds', f'x{ks}')),
                f's_add_u32 m0, s25, {sl*2048+1024}', 's_nop 0',
                (lambda pp: pp(f'buffer_load_dwordx4 v{VW}, s[4:7], s53 offen lds', f'x{ks}'))]
    def aloads(ks):
        a = ACT + 8 * (ks % D)
        pre = ['s_mov_b32 s55, s41'] if ks == 0 else [f's_add_u32 s55, s40, {ks*1024}']
        return pre + [f'buffer_load_dwordx4 {vr(a,4)}, v{VL16}, s[12:15], s55 offen{LS}',
                      f'buffer_load_dwordx4 {vr(a+4,4)}, v{VA1}, s[12:15], s55 offen{LS}']
    p(f"""
s_lshr_b32 s56, s20, 2
s_bfe_u32 s57, s20, 0x10001
s_and_b32 s58, s20, 1
s_lshl_b32 s59, s47, 6
s_lshl_b32 s60, s57, 5
s_add_u32 s59, s59, s60
s_lshl_b32 s59, s59, 10
s_lshl_b32 s60, s44, 6
s_lshl_b32 s61, s56, 5
s_add_u32 s60, s60, s61
s_lshl_b32 s61, s58, 4
s_add_u32 s60, s60, s61
s_lshl_b32 s60, s60, 1
s_add_u32 s59, s59, s60
v_and_b32 v11, 31, v10
v_lshrrev_b32 v12, 5, v10
v_lshlrev_b32 v11, 10, v11
v_lshl_add_u32 v9, v12, 3, v11
buffer_load_dwordx2 v[{XR}:{XR+1}], v9, s[16:19], s59 offen
buffer_load_dwordx2 v[{XR+2}:{XR+3}], v9, s[16:19], s59 offen offset:16
""")
    def p4_main(NR_, early):
        def wreg(ks, nt):
            return (WR + 8 * ks + 4 * nt) if ks < NR_ else (WF4 + 8 * (ks & 1) + 4 * nt)
        def trr(ks):
            sl = ks % NL; out = [lambda pp: pp.wait_tag(f'x{ks}')]
            for nt in range(2):
                w = wreg(ks, nt)
                out.append((lambda pp, w=w, nt=nt: pp(f'ds_read_b64_tr_b16 {vr(w,2)}, v{VT[nt]} offset:{sl*2048}', f'r{ks}')))
                out.append((lambda pp, w=w, nt=nt: pp(f'ds_read_b64_tr_b16 {vr(w+2,2)}, v{VT[nt]} offset:{sl*2048+1024}', f'r{ks}')))
            return out
        if early:
            emit(poll_check([(50, 32)], vb=250))
            p('s_barrier')
            for ks in range(NL):
                emit(wloads(ks))
                if ks < D: emit(aloads(ks))
            emit(trr(0))
        else:
            for ks in range(NL): emit(wloads(ks))
            for ks in range(NR_):
                emit(trr(ks))
                if ks >= 1:
                    p.wait_tag(f'r{ks-1}')
                    emit(wloads(ks - 1 + NL))
            p.wait_tag(f'r{NR_-1}')
            emit(wloads(NR_ - 1 + NL))
            emit(poll_noinv([(50, 32)]))
            p('s_barrier')
            if os.environ.get('DIAG_STAG'):
                p(f"""
s_lshr_b32 s3, s23, 3
s_lshl_b32 s3, s3, 1
s_add_u32 s3, s3, s44
s_and_b32 s3, s3, 7
LF_stag:
s_cmp_eq_u32 s3, 0
s_cbranch_scc1 LF_stag_e
s_sleep {os.environ['DIAG_STAG']}
s_sub_u32 s3, s3, 1
s_branch LF_stag
LF_stag_e:
""")
            for ks in range(D): emit(aloads(ks))
        for ks in range(NK):
            a = ACT + 8 * (ks % D)
            if NR_ <= ks + 1 < NK: emit(trr(ks + 1))
            for nt in range(2):
                for mt in range(2):
                    w = wreg(ks, nt)
                    acc = vr(ACC4 + 16 * (2 * nt + mt), 16); cc = '0' if ks == 0 else acc
                    p(f'{MF} {acc}, {vr(w,4)}, {vr(a+4*mt,4)}, {cc}')
            if ks + D < NK: emit(aloads(ks + D))
            if ks >= NR_ and ks + NL < NK:
                p.wait_tag(f'r{ks}')
                emit(wloads(ks + NL))
        p('s_waitcnt vmcnt(0)')
    if os.environ.get('P4X', '0') == '1':
        p('s_cmp_ge_u32 s24, 4')
        p('s_cbranch_scc1 LF_p4y')
        alt4 = p.begin_alt(join=True)
        p.alt_branch(alt4); p4_main(0, True); p('s_waitcnt lgkmcnt(0)'); p('s_branch LF_p4j'); p.end_branch()
        p.alt_branch(alt4); p.label('LF_p4y'); p4_main(NR, False); p('s_waitcnt lgkmcnt(0)'); p.end_branch()
        p.label('LF_p4j')
    else:
        p4_main(NR, False)
    p('s_waitcnt lgkmcnt(0)')
    p('s_barrier')
    p('s_lshl_b32 s25, s20, 14')
    p(f'v_add_u32 v6, s25, v{VL16}')
    for b in range(16): p(f'ds_write_b128 v6, {vr(ACC4+4*b,4)} offset:{b*1024}')
    p(f"""
s_lshl_b32 s56, s20, 11
v_add_u32 v7, s56, v{VL16}
v_add_u32 v8, 0x10000, v7
s_waitcnt lgkmcnt(0)
s_barrier
""")
    for src in range(8):
        base = 7 if src < 4 else 8
        for b in range(2):
            p(f'ds_read_b128 {vr(16+8*src+4*b,4)}, v{base} offset:{(src%4)*16384 + b*1024}')
    for i in range(8):
        p(f'v_add_f32 v{16+i}, v{16+i}, v{24+i}')
        p(f'v_add_f32 v{32+i}, v{32+i}, v{40+i}')
        p(f'v_add_f32 v{48+i}, v{48+i}, v{56+i}')
        p(f'v_add_f32 v{64+i}, v{64+i}, v{72+i}')
    for i in range(8):
        p(f'v_add_f32 v{16+i}, v{16+i}, v{32+i}')
        p(f'v_add_f32 v{16+i}, v{16+i}, v{48+i}')
    for i in range(4):
        p(f'v_cvt_pk_bf16_f32 v{24+i}, v{16+2*i}, v{17+2*i}')
        p(f'v_cvt_pk_bf16_f32 v{72+i}, v{64+2*i}, v{65+2*i}')
    for i in range(4):
        p(f'v_lshlrev_b32 v{16+2*i}, 16, v{24+i}')
        p(f'v_and_b32 v{17+2*i}, 0xffff0000, v{24+i}')
        p(f'v_lshlrev_b32 v{64+2*i}, 16, v{72+i}')
        p(f'v_and_b32 v{65+2*i}, 0xffff0000, v{72+i}')
    NL2E = f2u(-math.log2(math.e))
    for i in range(8): p(f'v_mul_f32 v{32+i}, {NL2E:#x}, v{64+i}')
    for i in range(8): p(f'v_exp_f32 v{32+i}, v{32+i}')
    for i in range(8): p(f'v_add_f32 v{32+i}, 1.0, v{32+i}')
    for i in range(8): p(f'v_rcp_f32 v{32+i}, v{32+i}')
    for i in range(8): p(f'v_mul_f32 v{32+i}, v{32+i}, v{64+i}')
    for i in range(4): p(f'v_cvt_pk_bf16_f32 v{40+i}, v{32+2*i}, v{33+2*i}')
    for i in range(4):
        p(f'v_lshlrev_b32 v{32+2*i}, 16, v{40+i}')
        p(f'v_and_b32 v{33+2*i}, 0xffff0000, v{40+i}')
    for i in range(8): p(f'v_mul_f32 v{32+i}, v{32+i}, v{16+i}')
    for i in range(4): p(f'v_cvt_pk_bf16_f32 v{40+i}, v{32+2*i}, v{33+2*i}')
    for i in range(4):
        p(f'v_lshlrev_b32 v{32+2*i}, 16, v{40+i}')
        p(f'v_and_b32 v{33+2*i}, 0xffff0000, v{40+i}')
        p(f'v_lshlrev_b32 v{48+2*i}, 16, v{XR+i}')
        p(f'v_and_b32 v{49+2*i}, 0xffff0000, v{XR+i}')
    for i in range(8): p(f'v_add_f32 v{32+i}, v{32+i}, v{48+i}')
    for i in range(4): p(f'v_cvt_pk_bf16_f32 v{40+i}, v{32+2*i}, v{33+2*i}')
    p('buffer_store_dwordx2 v[40:41], v9, s[36:39], s59 offen')
    p('buffer_store_dwordx2 v[42:43], v9, s[36:39], s59 offen offset:16')
    if PROF: p('s_waitcnt vmcnt(0)')
    st.stamp()
    st.dump(p, 8, 0, 20, 50, 57, 8)
    p('s_endpgm')

    ool = p.begin_alt()
    def routine(name):
        p.alt_branch(ool); p.label(name)
    def fin_code():
        p(f"""
s_nop 15
s_nop 7
v_mov_b32 v9, v{VLSAVE}
v_permlane32_swap_b32 v{VLSAVE}, v9
v_add_f32 v9, v{VLSAVE}, v9
v_rcp_f32 v9, v9
s_mul_i32 s52, s27, {AF_MT}
s_lshl_b32 s54, s21, 13
s_add_u32 s52, s52, s54
s_add_u32 s52, s52, {AF_OFF:#x}
s_add_u32 s53, s52, 4096
""")
        for half in range(2):
            for i in range(32): p(f'v_mul_f32 v{O+32*half+i}, v{O+32*half+i}, v9')
            for i in range(16): p(f'v_cvt_pk_bf16_f32 v{TT+16*half+i}, v{O+32*half+2*i}, v{O+32*half+2*i+1}')
            for k in range(4): p(f'buffer_store_dwordx4 {vr(TT+16*half+4*k,4)}, v{VL16}, s[8:11], s{52+half} offen offset:{k*1024}{SC}')
        for i in range(64): p(f'v_mov_b32 v{O+i}, 0')
    for kind, nm, hf in outl:
        if kind == 'evt':
            routine(f'LF_evt{nm}')
            p('s_lshl_b32 s68, s47, 1')
            if nm in ('loop0', 'drain0'):
                p(f"""
s_add_u32 s69, s68, 2
s_cmp_lg_u32 s62, s69
s_cbranch_scc1 LF_nofin{nm}
s_cmp_eq_u32 s25, 0
s_cbranch_scc1 LF_nofin{nm}
""")
                fin_code()
                p.label(f'LF_nofin{nm}')
            if nm == 'loop0':
                p(f"""
s_add_u32 s69, s68, 4
s_cmp_lg_u32 s62, s69
s_cbranch_scc1 LF_nopubS
s_add_u32 s69, s24, {CNT_CTX}
s_lshl_b32 s69, s69, 2
""")
                emit(publish([69]))
                p(f"""
LF_nopubS:
s_cmp_lg_u32 s62, s68
s_cbranch_scc1 LF_nosw
s_cmp_eq_u32 s25, 0
s_cbranch_scc1 LF_nosw
s_lshl_b32 s69, s26, 13
s_add_u32 s69, s69, {QX}
v_add_u32 v9, s69, v{VL16}
s_nop 7
""")
                for ks in range(8): p(f'ds_read_b128 {vr(Q+4*ks,4)}, v9 offset:{ks*1024}')
                for i in range(16): p(f'v_mov_b32 v{MN+i}, 0')
                p(f"""
v_mov_b32 v{VM}, 0
s_mov_b32 s61, s28
s_mov_b32 s60, 0
s_waitcnt lgkmcnt(0)
LF_nosw:
""")
            if nm == 'loop1':
                p(f"""
s_add_u32 s69, s68, 1
s_cmp_lg_u32 s62, s69
s_cbranch_scc1 LF_nomid
s_cmp_eq_u32 s25, 0
s_cbranch_scc1 LF_nomid
v_mov_b32 v{VLSAVE}, v{VLS}
v_mov_b32 v{VLS}, 0
s_mov_b32 s60, 1.0
s_mov_b32 s57, 0xbf800000
s_mov_b32 s58, {FLOOR1:#x}
s_mov_b32 s59, 1
LF_nomid:
""")
            if nm != 'drain0':
                p(f"""
s_lshr_b32 s68, s62, 1
s_lshl_b32 s69, s68, 1
s_sub_u32 s69, s69, s47
s_add_u32 s69, s69, s25
s_cmp_ge_u32 s68, s47
s_cselect_b32 s68, s69, s68
s_lshl_b32 s68, s68, 1
s_add_u32 s68, s68, {hf}
s_cmp_lt_u32 s68, s61
s_cbranch_scc1 LF_nomask{nm}
s_sub_u32 s68, s61, s68
s_lshl_b32 s68, s68, 5
v_add_u32 v9, s68, v{VZ}
v_mov_b32 v10, {NEG:#x}
""")
                for r in range(16):
                    cr = 8 * (r >> 2) + (r & 3)
                    p(f'v_cmp_gt_i32 vcc, {cr}, v9')
                    p(f'v_cndmask_b32 v{MN+r}, v{MN+r}, v10, vcc')
                p.label(f'LF_nomask{nm}')
            p(f"""
s_add_u32 s68, s62, 1
s_max_u32 s66, s68, 32
s_cmp_le_u32 s68, s49
s_cselect_b32 s66, s68, s66
s_branch LF_eret{nm}
""")
            p.end_branch()
        else:
            routine(f'LF_rare{nm}')
            c = S[1 - hf]; nx = S[hf]; pc = PP[1 - hf]
            p('s_nop 15\ns_nop 7')
            p(f'v_max3_f32 v9, v{c}, v{c+1}, v{c+2}')
            for k in range(3, 15, 2): p(f'v_max3_f32 v9, v9, v{c+k}, v{c+k+1}')
            p(f'v_max_f32 v9, v9, v{c+15}')
            p(f'''
v_mov_b32 v10, v9
v_permlane32_swap_b32 v9, v10
v_max_f32 v9, v9, v10
v_max_f32 v9, s58, v9
v_sub_f32 v10, 0, v9
v_min_f32 v10, 0x42fc0000, v10
v_exp_f32 v10, v10
v_mul_f32 v11, s60, v9
''')
            for k in range(16): p(f'v_sub_f32 v{c+k}, v{c+k}, v9')
            for k in range(16): p(f'v_exp_f32 v{TT+k}, v{c+k}')
            p(f'v_add_f32 v{VTS}, v{TT}, v{TT+1}')
            for k in range(2, 16): p(f'v_add_f32 v{VTS}, v{VTS}, v{TT+k}')
            for k in range(8): p(f'v_cvt_pk_bf16_f32 v{pc+k}, v{TT+2*k}, v{TT+2*k+1}')
            for k in range(16): p(f'v_sub_f32 v{nx+k}, v{nx+k}, v11')
            for k in range(16): p(f'v_sub_f32 v{MN+k}, v{MN+k}, v11')
            p(f'v_add_f32 v{VM}, v{VM}, v11')
            p(f'v_mul_f32 v{VLS}, v{VLS}, v10')
            p('s_cmp_lg_u32 s59, 0')
            p(f's_cbranch_scc1 LF_rskip{nm}')
            for k in range(64): p(f'v_mul_f32 v{O+k}, v{O+k}, v10')
            p.label(f'LF_rskip{nm}')
            p(f'''
s_mov_b32 s{56+hf}, {THR:#x}
''')
            if hf == 1:
                p('s_mov_b32 s58, 0\ns_mov_b32 s59, 0')
            if nm == 'loop1': p('s_cmp_lt_u32 s55, 17')
            p(f's_branch LF_ret{nm}')
            p.end_branch()
    p.alt_branch(ool); emit_slow(); p.end_branch()
    p.label('LF_end')
    p('s_endpgm')
    return ('kf_kernel', p, 256, 512, 163840, 256, 256)
```

```python
from common import *
from k1 import ln_stream
import struct, math

def f2u(x): return struct.unpack('<I', struct.pack('<f', x))[0]
MF = 'v_mfma_f32_32x32x16_bf16'
SC = os.environ.get('FSC', ' sc1')
CNT_LN = 0; CNT_KV = 16; CNT_CTX = 32; CNT_REG = 48
LS = os.environ.get('LS', ' sc1')
SPIN_MAX = 1 << 22

KVSC = os.environ.get('KVSC', '')
KVN = int(os.environ.get('KVN', '0'))
def gen_kf():
    p = Prog()
    st = Stamps(p, 70, 10)
    st.skip = set(int(x) for x in os.environ.get('STSKIP', '').split(',') if x)
    def emit(lst):
        for f in lst:
            if isinstance(f, list): emit(f)
            elif callable(f): f(p)
            else: p(f)
    VL16 = 1
    uid = [0]
    def publish(sreg_idx_list):
        uid[0] += 1; L = f'LF_pub{uid[0]}'
        out = ['s_cmp_lg_u32 s20, 0', f's_cbranch_scc1 {L}', '@COND', 'v_mov_b32 v14, 1', 'v_mov_b32 v15, 0', 's_mov_b64 exec, 1']
        for s in sreg_idx_list:
            out.append(f'buffer_atomic_add v14, v15, s[96:99], s{s} offen sc1')
        out += ['s_mov_b64 exec, -1', '@ENDCOND', f'{L}:']
        return out
    def poll(pairs):
        uid[0] += 1; L = f'LF_poll{uid[0]}'
        out = ['s_cmp_lg_u32 s20, 0', f's_cbranch_scc1 {L}_done', '@COND', 'v_mov_b32 v15, 0', f's_mov_b32 s3, {SPIN_MAX}']
        for n, (s, tgt) in enumerate(pairs):
            out += [f'{L}_{n}:',
                    f'buffer_load_dword v14, v15, s[96:99], s{s} offen sc1',
                    's_waitcnt vmcnt(0)',
                    'v_readfirstlane_b32 s100, v14',
                    's_sub_u32 s3, s3, 1',
                    's_cmp_eq_u32 s3, 0',
                    f's_cbranch_scc1 {L}_acq',
                    f's_cmp_ge_u32 s100, {tgt}',
                    f's_cbranch_scc1 {L}_{n}_ok',
                    's_sleep 2',
                    f's_branch {L}_{n}',
                    f'{L}_{n}_ok:']
        out += [f'{L}_acq:', 'buffer_inv sc1', 's_waitcnt vmcnt(0)', '@ENDCOND', f'{L}_done:']
        return out
    def poll_noinv(pairs):
        out = poll(pairs)
        i = out.index('buffer_inv sc1')
        return out[:i] + out[i + 2:]
    slow = []
    def poll_issue(sregs, vb=14, vz=8):
        uid[0] += 1; L = f'LF_pi{uid[0]}'
        out = ['s_cmp_lg_u32 s20, 0', f's_cbranch_scc1 {L}', '@COND', f'v_mov_b32 v{vz}, 0']
        for n, s in enumerate(sregs): out.append(f'buffer_load_dword v{vb+n}, v{vz}, s[96:99], s{s} offen sc1')
        out += ['@ENDCOND', f'{L}:']
        return out
    def poll_check(pairs, inv_flag=None, vb=14):
        uid[0] += 1; L = f'LF_pc{uid[0]}'
        out = ['s_cmp_lg_u32 s20, 0', f's_cbranch_scc1 {L}', '@COND']
        for n, (s, tgt) in enumerate(pairs):
            out += [f'v_readfirstlane_b32 s100, v{vb+n}', f's_cmp_lt_u32 s100, {tgt}', f's_cbranch_scc1 {L}_slow']
        out += [f'{L}_ok:']
        if inv_flag is not None and inv_flag >= 0:
            out += [f's_cmp_lg_u32 s{inv_flag}, 0', f's_cbranch_scc1 {L}', (lambda pp: pp('buffer_inv sc1', 'inv'))]
        elif inv_flag is not None:
            out += [(lambda pp: pp('buffer_inv sc1', 'inv'))]
        out += ['@ENDCOND', f'{L}:']
        slow.append((L, pairs))
        return out
    def publish_kv():
        uid[0] += 1; L = f'LF_pkv{uid[0]}'
        return ['s_cmp_lg_u32 s20, 0', f's_cbranch_scc1 {L}', '@COND',
                'v_readfirstlane_b32 s100, v15',
                's_and_b32 s3, s100, 63', 's_bfe_u32 s29, s100, 0x90006', 's_lshr_b32 s30, s100, 15',
                's_mul_i32 s29, s29, s29', 's_lshl_b32 s30, s30, 5',
                's_cmp_eq_u32 s29, s30', 's_cselect_b32 s94, 1, 0',
                's_cmp_eq_u32 s3, 32', 's_cselect_b32 s94, s94, 0',
                's_cmp_lg_u32 s94, 0', f's_cbranch_scc1 {L}_fast',
                'buffer_wbl2 sc1', 's_waitcnt vmcnt(0)',
                f'{L}_fast:',
                'v_mov_b32 v14, 1', 'v_mov_b32 v15, 0', 's_mov_b64 exec, 1',
                'buffer_atomic_add v14, v15, s[96:99], s33 offen sc1',
                's_mov_b64 exec, -1', '@ENDCOND', f'{L}:']
    def w0_drain():
        uid[0] += 1; L = f'LF_dr{uid[0]}'
        return ['s_cmp_lg_u32 s20, 0', f's_cbranch_scc1 {L}', '@COND', (lambda pp: pp.wait_tag('inv')), '@ENDCOND', f'{L}:']
    def emit_slow():
        for L, pairs in slow:
            p.label(f'{L}_slow')
            p(f's_mov_b32 s3, {SPIN_MAX}')
            p('v_mov_b32 v8, 0')
            for n, (s, tgt) in enumerate(pairs):
                p(f"""
{L}_s{n}:
buffer_load_dword v14, v8, s[96:99], s{s} offen sc1
s_waitcnt vmcnt(0)
v_readfirstlane_b32 s100, v14
s_sub_u32 s3, s3, 1
s_cmp_eq_u32 s3, 0
s_cbranch_scc1 {L}_ok
s_cmp_ge_u32 s100, {tgt}
s_cbranch_scc1 {L}_s{n}_ok
s_sleep 2
s_branch {L}_s{n}
{L}_s{n}_ok:
""")
            p(f's_branch {L}_ok')
    p(f'''
s_cmp_ge_u32 s2, 256
s_cbranch_scc1 LF_end
s_load_dwordx4 s[28:31], s[0:1], 0
s_load_dwordx4 s[32:35], s[0:1], 24
s_load_dwordx4 s[36:39], s[0:1], 88
s_load_dwordx4 s[64:67], s[0:1], 56
s_load_dwordx2 s[68:69], s[0:1], 16
s_load_dwordx2 s[56:57], s[0:1], 40
s_load_dwordx2 s[58:59], s[0:1], 72
v_lshrrev_b32 v9, 6, v0
v_and_b32 v10, 63, v0
v_readfirstlane_b32 s20, v9
s_and_b32 s22, s2, 7
s_lshr_b32 s23, s2, 3
''')
    st.stamp()
    p('''
s_and_b32 s48, s23, 1
s_bfe_u32 s49, s23, 0x10001
s_lshr_b32 s50, s23, 2
s_lshl_b32 s51, s22, 9
s_lshl_b32 s3, s48, 8
s_add_u32 s51, s51, s3
''')
    p(f'v_lshlrev_b32 v{VL16}, 4, v10')
    STG = 65536
    p('''
v_lshrrev_b32 v11, 3, v10
v_and_b32 v12, 7, v10
v_lshrrev_b32 v13, 4, v10
v_xor_b32 v14, v12, v13
v_lshlrev_b32 v14, 4, v14
v_lshl_add_u32 v2, v11, 10, v14
v_xor_b32 v3, 64, v2
''')
    p('''
v_and_b32 v13, 1, v13
v_lshlrev_b32 v13, 2, v13
v_xor_b32 v14, v12, v13
v_lshlrev_b32 v14, 4, v14
v_lshl_add_u32 v4, v11, 13, v14
''')
    p(f'''
v_and_b32 v11, 31, v10
v_lshrrev_b32 v12, 5, v10
v_bfe_u32 v13, v11, 1, 3
v_xor_b32 v13, v12, v13
v_lshlrev_b32 v13, 4, v13
v_lshl_add_u32 v13, v11, 7, v13
s_lshl_b32 s52, s20, 13
s_add_u32 s52, s52, {STG}
v_add_u32 v16, s52, v13
v_xor_b32 v17, 32, v16
v_xor_b32 v18, 64, v16
v_xor_b32 v19, 96, v16
''')
    p('''
v_bfe_u32 v11, v10, 2, 2
v_lshl_add_u32 v13, v12, 3, v11
v_lshlrev_b32 v13, 7, v13
v_lshrrev_b32 v11, 1, v11
v_lshl_add_u32 v13, v11, 6, v13
v_bfe_u32 v11, v10, 4, 1
v_lshl_add_u32 v13, v11, 5, v13
v_and_b32 v11, 3, v10
v_lshl_add_u32 v20, v11, 3, v13
v_xor_b32 v21, 64, v20
v_add_u32 v22, 0x8000, v20
v_add_u32 v23, 0x8000, v21
v_add_u32 v24, 0x20000, v20
v_add_u32 v25, 0x20000, v21
v_add_u32 v26, 0x10000, v20
v_add_u32 v27, 0x10000, v21
v_lshlrev_b32 v14, 7, v10
v_lshrrev_b32 v15, 2, v10
v_lshlrev_b32 v15, 13, v15
v_and_b32 v11, 3, v10
v_lshl_add_u32 v15, v11, 7, v15
v_lshrrev_b32 v5, 1, v10
v_lshlrev_b32 v5, 10, v5
v_and_b32 v11, 1, v10
v_lshl_add_u32 v5, v11, 9, v5
''')
    p('s_waitcnt lgkmcnt(0)')
    srd(p, 12, 30, 31, 2 << 20)
    srd(p, 16, 28, 29, 2 << 20)
    srd(p, 8, 38, 39, WS_BYTES)
    srd(p, 96, 36, 37, 256)
    p('''
s_cmp_eq_u32 s49, 0
s_cselect_b32 s4, s32, s34
s_cselect_b32 s5, s33, s35
s_and_b32 s5, s5, 0xffff
s_mov_b32 s6, 0x400000
s_mov_b32 s7, 0x00020000
s_lshl_b32 s40, s50, 8
s_lshl_b32 s41, s20, 5
s_add_u32 s40, s40, s41
s_lshl_b32 s40, s40, 10
s_lshl_b32 s42, s20, 18
s_lshl_b32 s43, s51, 1
s_add_u32 s42, s42, s43
s_lshl_b32 s43, s20, 12
''')
    WS = [0, 32768, 131072, 65536]
    def wdma(u, q):
        sc = u >> 1; kh = u & 1
        return [f's_add_u32 m0, s43, {WS[u % 4] + q*1024}',
                f's_add_u32 s53, s42, {(kh*256 + 8*q)*8192 + sc*128}',
                (lambda pp: pp('buffer_load_dwordx4 v4, s[4:7], s53 offen lds', f'w{u}'))]
    def adma(e, jj):
        return [f's_add_u32 m0, s52, {(e&1)*4096 + jj*1024}',
                f's_add_u32 s54, s40, {8*jj*1024 + e*128}',
                (lambda pp: pp(f'buffer_load_dwordx4 v{2+(jj&1)}, s[12:15], s54 offen lds', f'a{e}'))]
    AR = 128
    def aread(e, k):
        ks = 4 * e + k
        return (lambda pp: pp(f'ds_read_b128 {vr(AR+4*ks,4)}, v{16+k} offset:{(e&1)*4096}', f'ar{e}'))
    for jj in range(4): emit(adma(0, jj))
    for q in range(4): emit(wdma(0, q))
    for jj in range(4): emit(adma(1, jj))
    p('''
s_lshl_b32 s29, s2, 3
s_add_u32 s29, s29, s20
s_lshl_b32 s30, s29, 10
''')
    LNR = 96; LNT = 100
    p(f'buffer_load_dwordx4 {vr(LNR,4)}, v{VL16}, s[16:19], s30 offen')
    if 'pf' in os.environ.get('XP1', '').split('_'):
        p("""
s_cmp_lt_u32 s2, 128
s_cselect_b32 s60, s32, s34
s_cselect_b32 s61, s33, s35
s_mov_b32 s62, 0x400000
s_and_b32 s3, s2, 127
s_lshl_b32 s3, s3, 15
s_lshl_b32 s53, s20, 13
s_add_u32 s3, s3, s53
s_lshl_b32 s53, s2, 13
s_cmp_eq_u32 s20, 4
s_cselect_b32 s60, s12, s60
s_cselect_b32 s61, s13, s61
s_cselect_b32 s62, s14, s62
s_cselect_b32 s3, s53, s3
s_cmp_gt_u32 s20, 4
s_cselect_b32 s3, 0x7f000000, s3
s_and_b32 s61, s61, 0xffff
s_mov_b32 s63, 0x00020000
buffer_load_dword v104, v14, s[60:63], s3 offen
""")
    for q in range(4): emit(wdma(1, q))
    if os.environ.get('W2P', '1') == '1':
        for q in range(4): emit(wdma(2, q))
    p(f'''
s_lshr_b32 s44, s51, 7
s_lshl_b32 s44, s44, 19
s_lshl_b32 s45, s50, 3
s_add_u32 s45, s45, s20
s_lshl_b32 s45, s45, 13
s_add_u32 s44, s44, s45
s_mov_b32 s45, {KF_OFF:#x}
s_mov_b32 s46, {VF_OFF:#x}
s_cmp_eq_u32 s49, 0
s_cselect_b32 s45, s45, s46
s_add_u32 s41, s44, s45
s_lshr_b32 s31, s29, 5
s_lshl_b32 s31, s31, 15
s_and_b32 s3, s29, 31
s_lshl_b32 s3, s3, 4
s_add_u32 s31, s31, s3
s_lshr_b32 s32, s2, 4
s_lshl_b32 s32, s32, 2
s_lshr_b32 s33, s51, 8
s_add_u32 s33, s33, {CNT_KV}
s_lshl_b32 s33, s33, 2
s_getreg_b32 s3, hwreg(HW_REG_XCC_ID, 0, 4)
s_mul_i32 s53, s3, s3
s_lshl_b32 s53, s53, 15
s_lshl_b32 s3, s3, 6
s_add_u32 s53, s53, s3
s_add_u32 s53, s53, 1
s_add_u32 s101, s22, {CNT_REG}
s_lshl_b32 s101, s101, 2
s_cmp_lg_u32 s20, 0
s_cbranch_scc1 LF_noreg
@COND
v_mov_b32 v8, s53
v_mov_b32 v9, 0
s_mov_b64 exec, 1
buffer_atomic_add v8, v9, s[96:99], s101 offen sc1
s_mov_b64 exec, -1
@ENDCOND
LF_noreg:
''')
    if XF_OFF: p(f's_add_u32 s31, s31, {XF_OFF:#x}')
    p('''
s_and_b32 s3, s23, 3
s_lshl_b32 s21, s22, 2
s_add_u32 s21, s21, s3
s_lshr_b32 s24, s23, 2
s_lshr_b32 s25, s20, 2
s_and_b32 s26, s20, 3
s_sub_u32 s28, 15, s24
s_lshl_b32 s28, s28, 2
s_add_u32 s28, s28, s26
s_lshl_b32 s27, s24, 2
s_add_u32 s27, s27, s26
s_cmp_eq_u32 s25, 0
s_cselect_b32 s27, s28, s27
''')
    if os.environ.get('P1P', '1') == '1':
        p('s_cmp_eq_u32 s25, 0')
        p('s_cbranch_scc1 LF_noprio1')
        p('s_setprio 1')
        p.label('LF_noprio1')
    p.wait_tag('a0')
    for k in range(4): emit([aread(0, k)])
    p.wait_tag('ar0')
    for jj in range(4): emit(adma(2, jj))
    p.wait_tag('w0')
    p('s_barrier')
    st.stamp()
    p('s_cmp_lg_u32 s49, 0')
    p('s_cbranch_scc1 LF_v')

    WF = 32; NST = 4; ACC = 64; PK = 96
    def trread(u, kk):
        out = []
        for nt in range(2):
            w = WF + 8 * (kk % NST) + 4 * nt
            out.append(f'ds_read_b64_tr_b16 {vr(w,2)}, v{20+2*(u%4)+nt} offset:{kk*2048}')
            out.append(f'ds_read_b64_tr_b16 {vr(w+2,2)}, v{20+2*(u%4)+nt} offset:{kk*2048+512}')
        return out
    def kv_epilogue(sc, nt):
        g = []
        PKB = PK if sc < 3 else 32
        for half in range(2):
            pk = PKB + 8 * nt + 4 * half
            for i in range(4):
                s = ACC + 16 * nt + 8 * half + 2 * i
                g.append(f'v_cvt_pk_bf16_f32 v{pk+i}, v{s}, v{s+1}')
        off = (sc >> 1) * 524288 + (sc & 1) * 4096
        st_ = [[f's_add_u32 s55, s41, {off + nt*2048 + half*1024}',
                (lambda pp, half=half: pp(f'buffer_store_dwordx4 {vr(PKB+8*nt+4*half,4)}, v{VL16}, s[8:11], s55 offen{KVSC if sc >= KVN else SC}', 'kvst'))]
               for half in range(2)]
        return g, st_
    lns = ln_stream(LNR, LNT, LNT + 16)
    lns.append(lambda pp: pp(f'buffer_store_dwordx4 {vr(LNR,4)}, v5, s[8:11], s31 offen{SC}', 'lnst'))
    SLOT = 29184
    GSL = [0, SLOT, 131072, 65536]
    KSL = 0; VSL = 65536; QX = 131072
    GD = 28
    def p2_setup():
        q = Prog(); pp = q
        pp("""
v_and_b32 v10, 63, v0
v_lshrrev_b32 v11, 4, v10
v_bfe_u32 v12, v10, 2, 2
v_and_b32 v13, 3, v11
v_xor_b32 v12, v12, v13
v_lshlrev_b32 v12, 6, v12
v_and_b32 v13, 3, v10
v_lshl_add_u32 v12, v13, 4, v12
v_lshl_add_u32 v12, v11, 13, v12
s_lshl_b32 s29, s26, 17
v_add_u32 v28, s29, v12
v_add_u32 v29, 0x8000, v28
v_add_u32 v30, 0x10000, v28
v_add_u32 v31, 0x18000, v28
s_and_b32 s29, s20, 1
s_mul_i32 s29, s29, 192
s_mov_b32 s30, 43691
s_movk_i32 s34, 2752
s_cmp_eq_u32 s25, 0
s_cselect_b64 s[36:37], -1, 0
""")
        for t in range(3):
            pp(f"""
v_add_u32 v11, s29, v10
v_add_u32 v11, {64*t}, v11
v_mul_lo_u32 v12, v11, s30
v_lshrrev_b32 v12, 18, v12
v_mul_u32_u24 v13, 6, v12
v_sub_u32 v13, v11, v13
v_mul_lo_u32 v12, v12, s34
v_lshl_add_u32 v9, v13, 4, v12
v_cndmask_b32 v{28+t}, v9, v{28+t}, s[36:37]
""")
        pp('v_cndmask_b32 v31, v9, v31, s[36:37]')
        pp("""
v_lshrrev_b32 v11, 5, v10
v_bfe_u32 v12, v10, 2, 2
v_lshl_add_u32 v13, v11, 3, v12
v_lshlrev_b32 v6, 8, v13
v_lshl_add_u32 v6, v12, 6, v6
v_bfe_u32 v7, v10, 4, 1
v_lshl_add_u32 v6, v7, 5, v6
v_and_b32 v9, 3, v10
v_lshl_add_u32 v6, v9, 3, v6
v_mul_u32_u24 v13, 96, v13
v_mul_u32_u24 v7, 6272, v7
v_add_u32 v13, v13, v7
v_lshl_add_u32 v13, v9, 3, v13
v_add_u32 v7, 0x4000, v13
""")
        pp("""
s_mov_b32 s60, s68
s_mov_b32 s61, s69
s_cmp_eq_u32 s20, 2
s_cselect_b32 s60, s64, s60
s_cselect_b32 s61, s65, s61
s_cmp_eq_u32 s20, 3
s_cselect_b32 s60, s66, s60
s_cselect_b32 s61, s67, s61
s_cmp_ge_u32 s20, 4
s_cselect_b32 s60, s56, s60
s_cselect_b32 s61, s57, s61
s_cmp_ge_u32 s20, 6
s_cselect_b32 s60, s58, s60
s_cselect_b32 s61, s59, s61
s_and_b32 s61, s61, 0xffff
s_mov_b32 s63, 0x00020000
s_mov_b32 s62, 0x158000
s_movk_i32 s35, 5504
s_and_b32 s38, s20, 2
s_cmp_eq_u32 s38, 0
s_cselect_b32 s62, 0x400000, s62
s_cselect_b32 s35, 0x4000, s35
s_mul_i32 s35, s35, s2
s_and_b32 s39, s20, 1
s_lshl_b32 s39, s39, 13
s_cmp_eq_u32 s38, 0
s_cselect_b32 s39, s39, 0
s_add_u32 s35, s35, s39
s_cmp_ge_u32 s20, 4
s_cselect_b32 s35, 0x7f000000, s35
v_lshlrev_b32 v12, 3, v1
buffer_load_dword v11, v12, s[60:63], s35 offen
""")
        pp("""
s_bfe_u32 s29, s20, 0x10001
s_cmp_eq_u32 s29, 0
s_cselect_b32 s16, s64, s66
s_cselect_b32 s17, s65, s67
s_mov_b32 s18, 0x158000
s_cmp_eq_u32 s25, 0
s_cselect_b32 s16, s68, s16
s_cselect_b32 s17, s69, s17
s_cselect_b32 s18, 0x400000, s18
s_and_b32 s17, s17, 0xffff
s_mov_b32 s19, 0x00020000
s_lshl_b32 s56, s21, 8
s_mul_i32 s38, s21, 96
s_lshl_b32 s58, s26, 12
s_mul_i32 s39, s29, 6272
s_and_b32 s30, s20, 1
s_mul_i32 s30, s30, 3072
s_add_u32 s39, s39, s30
s_add_u32 s39, s39, 16384
s_cmp_eq_u32 s25, 0
s_cselect_b32 s56, s56, s38
s_mov_b32 s57, 0x2b000
s_cselect_b32 s57, 0x80000, s57
s_cselect_b32 s58, s58, s39
s_movk_i32 s59, 2048
s_cselect_b32 s59, 3072, s59
s_add_u32 s59, s59, s58
s_lshl_b32 s60, s27, 15
""")
        if XF_OFF: pp(f's_add_u32 s60, s60, {XF_OFF:#x}')
        return [i.text for i in q.items]
    GX = 128; GW = 192; GT = [48, 64, 80, 96, 112, 160, 176]
    def gdma(sl):
        base = GSL[sl % 4]
        out = []
        for t in range(4):
            out.append([f's_add_u32 m0, s{58 if t < 3 else 59}, {base + (t*1024 if t < 3 else 0)}',
                        's_nop 0',
                        (lambda pp, t=t, sl=sl: pp(f'buffer_load_dwordx4 v{GD+t}, s[16:19], s56 offen lds', f'g{sl}'))])
        out[3].append('s_add_u32 s56, s56, s57')
        return out
    def xload(sl):
        out = []
        b = GX + 16 * (sl & 1)
        for k in range(4):
            out.append(f'buffer_load_dwordx4 {vr(b+4*k,4)}, v{VL16}, s[8:11], s61 offen offset:{k*1024}{LS}')
        return [f's_add_u32 s61, s60, {sl*4096}'] + out

    alt = p.begin_alt(join=True)
    for variant in ('k', 'v'):
        p.alt_branch(alt)
        if variant == 'v': p.label('LF_v')
        for kk in range(3): emit(trread(0, kk))
        pend = []
        for u in range(8):
            sc = u >> 1; kh = u & 1
            bb = []; fl = {}
            def add(slot, items): fl.setdefault(slot, []).extend(items)
            for kk in range(16):
                ks = kh * 16 + kk
                for nt in range(2):
                    w = WF + 8 * (kk % NST) + 4 * nt
                    acc = vr(ACC + 16 * nt, 16); cc = '0' if ks == 0 else acc
                    A = vr(AR + 4 * ks, 4)
                    if variant == 'k': bb.append(f'{MF} {acc}, {vr(w,4)}, {A}, {cc}')
                    else:              bb.append(f'{MF} {acc}, {A}, {vr(w,4)}, {cc}')
            for kk in range(3, 16):
                t = trread(u, kk)
                s0 = min(2 * (kk - 3), 24)
                add(s0, t[:2]); add(s0 + 1, t[2:])
            if u < 2:
                for q4 in range(4):
                    e = 4 * kh + q4; base = 8 * q4
                    if e + 1 < 8:
                        add(base + 1, [lambda pp, e=e: pp.wait_tag(f'a{e+1}')])
                        for k_ in range(4): add(base + 1 + k_ // 2, [aread(e + 1, k_)])
                        if e + 3 < 8:
                            add(base + 5, [lambda pp, e=e: pp.wait_tag(f'ar{e+1}')])
                            for jj in range(4): add(base + 5 + jj // 2, adma(e + 3, jj))
            loads = {0: [2], 2: [3, 4], 3: [5], 4: [6], 5: [7]}.get(u, [])
            if os.environ.get('W2P', '1') == '1' and u == 0: loads = []
            grps = [wdma(lu, q) for lu in loads for q in range(4)]
            if grps: spread(add, grps, 2 if u else 10, 25)
            X1 = os.environ.get('XP1', '')
            WT = os.environ.get('WT', '0,4')
            AT = os.environ.get('AT', '')
            if AT and u == 0:
                add(int(AT), ['v_and_b32 v126, 63, v0', 'v_lshrrev_b32 v125, 2, v126', 'v_and_b32 v126, 3, v126', 'v_lshlrev_b32 v125, 10, v125',
                       'v_lshl_add_u32 v125, v126, 7, v125',
                       's_and_b32 s3, s23, 3', 's_lshl_b32 s3, s3, 6', 's_lshl_b32 s54, s50, 8', 's_add_u32 s3, s3, s54', 's_and_b32 s54, s20, 3', 's_lshl_b32 s54, s54, 4',
                       's_add_u32 s3, s3, s54', 's_lshl_b32 s3, s3, 10', 's_add_u32 s3, s3, 512', 's_cmp_lt_u32 s20, 4', 's_cselect_b32 s3, 0x7f000000, s3',
                       'buffer_load_dword v126, v125, s[12:15], s3 offen'])
            QT = os.environ.get('QT', '')
            if QT and u == int(QT):
                add(6, ['v_and_b32 v126, 63, v0', 'v_lshrrev_b32 v125, 1, v126', 'v_and_b32 v126, 1, v126', 'v_lshlrev_b32 v125, 13, v125',
                       'v_lshl_add_u32 v125, v126, 7, v125',
                       's_lshl_b32 s3, s24, 6', 's_lshl_b32 s54, s20, 5', 's_add_u32 s3, s3, s54', 's_lshl_b32 s3, s3, 13', 's_lshl_b32 s54, s21, 8',
                       's_add_u32 s3, s3, s54', 's_cmp_ge_u32 s20, 2', 's_cselect_b32 s3, 0x7f000000, s3',
                       'buffer_load_dword v126, v125, s[16:19], s3 offen'])
            if WT and u == int(WT.split(',')[0]):
                add(int(WT.split(',')[1]), ['s_lshl_b32 s3, s50, 6', 's_lshl_b32 s54, s20, 4', 's_add_u32 s3, s3, s54', 's_lshl_b32 s3, s3, 13',
                       's_lshl_b32 s54, s51, 1', 's_add_u32 s3, s3, s54', 's_cmp_ge_u32 s20, 4', 's_cselect_b32 s3, 0x7f000000, s3',
                       'buffer_load_dword v127, v15, s[4:7], s3 offen'])
            if u == 1: spread(add, atomic_groups(lns, 3), 1, 25)
            if u == int(os.environ.get('P2U', '2')): spread(add, atomic_groups(p2_setup(), 4), 10, 26)
            if kh == 0 and sc > 0:
                for nt in range(2):
                    g, st_ = kv_epilogue(sc - 1, nt)
                    fl.setdefault(('pre', nt), []).extend(g)
                    pend.extend(st_)
            if pend:
                a_, b_ = pend.pop(0), pend.pop(0)
                if 'nokvst' not in os.environ.get('XP1', ''): add(12, a_); add(24, b_)
            extra = []; post = []
            if u == (3 if 'latepub' in X1 else 2): extra = [lambda pp: pp.wait_tag('lnst')]; post = publish([32])
            if u == 5 and 'nopoll' not in X1: add(18, ['s_sub_u32 s29, 15, s24', 's_lshl_b32 s29, s29, 2', 's_lshl_b32 s30, s24, 2'] + poll_issue([29, 30]))
            if u == 5 and 'nopoll' not in X1: post = poll_check([(29, 16), (30, 16)])
            if u == 6 and 'nog01' not in X1:
                spread(add, gdma(0) + gdma(1), 1, 25)
            if u == 7 and 'nog01' in X1:
                spread(add, gdma(0) + gdma(1), 1, 25)
            if u == 7:
                xl = xload(0)
                spread(add, [xl[:2], [xl[2]], [xl[3]], [xl[4]]] + gdma(2), 1, 28)
            if u < 7:
                add(27, [lambda pp, u=u: pp.wait_tag(f'w{u+1}'), 's_waitcnt lgkmcnt(0)'] + extra + ['s_barrier'] + post)
                for kk in range(3):
                    t = trread(u + 1, kk)
                    add(min(27 + 2 * kk, 31), t[:2]); add(min(28 + 2 * kk, 31), t[2:])
            interleave(p, bb, fl)
            if os.environ.get('P1ST'): st.i = 2 + u; st.stamp()
        for nt in range(2):
            g, st_ = kv_epilogue(3, nt)
            emit(g); pend.extend(st_)
        if variant == 'k': p('s_branch LF_p2')
        p.end_branch()
    p.label('LF_p2')
    st.stamp()
    VK = 2; VV = 3; VZ = 4; VLS = 5; VM = 6; VTS = 7; VLSAVE = 8
    T0 = 9
    Q = 16; O = 48; S = [112, 128]; PP = [144, 152]; MN = 160; FR = 176; E = 208; TT = 216
    THR = f2u(float(2 ** 20)); NEG = f2u(-1e30); FLOOR1 = f2u(-1e20)
    p(f"""
s_lshl_b32 s44, s21, 19
s_lshl_b32 s46, s20, 11
s_add_u32 s44, s44, s46
s_add_u32 s45, s44, {VF_OFF:#x}
s_add_u32 s44, s44, {KF_OFF:#x}
s_lshl_b32 s47, s24, 1
s_add_u32 s47, s47, 2
""")
    AQ = [T0, T0 + 1, T0 + 2, T0 + 3]; AF_ = T0 + 4
    def set_addr(sl):
        base = GSL[sl % 4]
        out = [f'v_add_u32 v{AQ[0]}, {base}, v6']
        for nt in range(1, 4): out.append(f'v_xor_b32 v{AQ[nt]}, {nt<<6}, v{AQ[0]}')
        out.append(f'v_add_u32 v{AF_}, {base}, v7')
        return out
    assert all((s & 0xff) == 0 for s in GSL)
    def gtr(g):
        kk = g & 3; out = []
        for tl in range(7):
            w = GW + 28 * (g & 1) + 4 * tl
            if tl < 4:
                out.append(f'ds_read_b64_tr_b16 {vr(w,2)}, v{AQ[tl]} offset:{kk*4096}')
                out.append(f'ds_read_b64_tr_b16 {vr(w+2,2)}, v{AQ[tl]} offset:{kk*4096+1024}')
            else:
                o = kk * 1536 + (tl - 4) * 32
                out.append(f'ds_read_b64_tr_b16 {vr(w,2)}, v{AF_} offset:{o}')
                out.append(f'ds_read_b64_tr_b16 {vr(w+2,2)}, v{AF_} offset:{o+384}')
        return out
    def kvcopy(sbase, chunk_off, ldsbase, tag, tmp=43):
        return [f's_add_u32 m0, s46, {ldsbase}',
                f's_add_u32 s{tmp}, s{sbase}, {chunk_off}',
                (lambda pp: pp(f'buffer_load_dwordx4 v{VL16}, s[8:11], s{tmp} offen{LS} lds', tag)),
                (lambda pp: pp(f'buffer_load_dwordx4 v{VL16}, s[8:11], s{tmp} offen offset:1024{LS} lds', tag))]
    PUB_SL = int(os.environ.get('PUB_SL', '4'))
    PFN = 8; PFS = int(os.environ.get('PFS', '0')); PFO = int(os.environ.get('PFO', '0'))
    p.wait_tag('g0')
    p('s_waitcnt lgkmcnt(0)')
    p('s_barrier')
    emit(set_addr(0))
    emit(gtr(0))
    for sl in range(8):
        bb = []; fl = {}
        def add(slot, items): fl.setdefault(slot, []).extend(items)
        for kk in range(4):
            g = sl * 4 + kk
            xb = GX + 16 * (sl & 1) + 4 * kk
            for tl in range(7):
                w = GW + 28 * (g & 1) + 4 * tl
                acc = vr(GT[tl], 16); cc = '0' if g == 0 else acc
                bb.append(f'{MF} {acc}, {vr(w,4)}, {vr(xb,4)}, {cc}')
            ng = g + 1
            if ng < 32:
                if kk == 3: add(7 * kk - 1, set_addr(sl + 1))
                rd = gtr(ng)
                for i in range(7): add(7 * kk + i, rd[2 * i:2 * i + 2])
        if sl + 1 < 8:
            xl = xload(sl + 1)
            add(0, xl[:1])
            for k in range(4): add(1 + k, [xl[1 + k]])
            pre = []; post = []
            if sl < 4: add(10, pend[sl])
            if sl == PUB_SL:
                pre = [lambda pp: pp.wait_tag('kvst')]; post = publish_kv()
            if sl == PUB_SL - 1:
                add(6, poll_issue([101, 101]))
            if sl == 6:
                add(8, [f's_lshr_b32 s29, s21, 1', f's_add_u32 s29, s29, {CNT_KV}', 's_lshl_b32 s29, s29, 2'] + poll_issue([29]))
                post = poll_check([(29, 16)], inv_flag=(94 if os.environ.get('KVINV', 'cond') == 'cond' else -1))

            add(17, [lambda pp, sl=sl: pp.wait_tag(f'g{sl+1}')] + pre + ['s_barrier'] + post)
            if sl + 3 < 8:
                for t, grp in enumerate(gdma(sl + 3)): add(18 + 2 * t if t < 1 else 21 + 2 * (t - 1), grp)
        interleave(p, bb, fl)
    st.stamp()
    p('s_waitcnt lgkmcnt(0)')
    emit(w0_drain())
    p('s_barrier')
    emit(kvcopy(44, 0, KSL, 'k0'))
    emit(kvcopy(44, 16384, KSL + 32768, 'k1'))
    emit(kvcopy(45, 0, VSL, 'v0'))
    p("""
s_load_dwordx2 s[56:57], s[0:1], 40
s_load_dwordx2 s[58:59], s[0:1], 72
s_waitcnt lgkmcnt(0)
s_cmp_ge_u32 s20, 2
s_cselect_b32 s60, s58, s56
s_cselect_b32 s61, s59, s57
s_mov_b32 s62, 0x400000
s_cselect_b32 s62, 0x158000, s62
s_movk_i32 s35, 0x4000
s_cselect_b32 s35, 5504, s35
s_and_b32 s61, s61, 0xffff
s_mov_b32 s63, 0x00020000
s_mul_i32 s35, s35, s2
s_cmp_eq_u32 s20, 1
s_cselect_b32 s39, 0x2000, 0
s_add_u32 s35, s35, s39
s_cmp_ge_u32 s20, 3
s_cselect_b32 s35, 0x7f000000, s35
v_lshlrev_b32 v12, 3, v1
buffer_load_dword v255, v12, s[60:63], s35 offen
s_lshr_b32 s17, s23, 2
s_and_b32 s18, s23, 3
s_cmp_ge_u32 s17, 6
s_cselect_b32 s12, s58, s56
s_cselect_b32 s13, s59, s57
s_mov_b32 s14, 0x400000
s_cselect_b32 s14, 0x158000, s14
s_cselect_b32 s19, 6, 0
s_and_b32 s13, s13, 0xffff
s_mov_b32 s15, 0x00020000
s_sub_u32 s19, s17, s19
s_mul_i32 s16, s19, 43
s_cmp_eq_u32 s17, 5
s_cselect_b32 s19, 1, 0
s_sub_u32 s16, s16, s19
s_lshl_b32 s16, s16, 4
s_mul_i32 s18, s18, 84
s_add_u32 s16, s16, s18
s_mul_i32 s18, s20, PFROWS
s_add_u32 s16, s16, s18
s_lshl_b32 s16, s16, 10
v_lshlrev_b32 v249, 3, v1
""".replace('PFROWS', str(PFN * PFS)))
    CQ = f2u(math.log2(math.e) / math.sqrt(128.0))
    p(f's_mov_b32 s48, {CQ:#x}')
    p(f's_mov_b32 s49, {CQ:#x}')
    for tl in range(4):
        for i in range(8): p(f'v_pk_mul_f32 {vr(GT[tl]+2*i,2)}, {vr(GT[tl]+2*i,2)}, s[48:49]')
        for i in range(8): p(f'v_cvt_pk_bf16_f32 v{Q+8*tl+i}, v{GT[tl]+2*i}, v{GT[tl]+2*i+1}')
    p(f'''
s_lshl_b32 s49, s26, 13
s_add_u32 s49, s49, {QX}
v_add_u32 v9, s49, v{VL16}
s_cmp_lg_u32 s25, 0
s_cbranch_scc1 LF_noqx
@COND
''')
    for ks in range(8): p(f'ds_write_b128 v9, {vr(Q+4*ks,4)} offset:{ks*1024}')
    p('s_waitcnt lgkmcnt(0)')
    p('@ENDCOND')
    p.label('LF_noqx')
    KG = -2.0 * math.sqrt(2.0 / math.pi) * math.log2(math.e)
    p(f's_mov_b32 s50, {f2u(KG*0.044715):#x}')
    p(f's_mov_b32 s51, {f2u(KG*0.044715):#x}')
    p(f'v_mov_b32 v{GW+16}, {f2u(KG):#x}')
    p(f'v_mov_b32 v{GW+17}, {f2u(KG):#x}')
    p(f'''
s_mul_i32 s52, s27, {AF_MT}
s_mul_i32 s53, s21, 3
s_add_u32 s54, s53, 256
s_lshl_b32 s54, s54, 10
s_add_u32 s52, s52, s54
s_add_u32 s52, s52, {AF_OFF:#x}
''')
    for tt in range(3):
        a = GT[4 + tt]; t = GW
        p(f's_add_u32 s54, s53, {tt}')
        p('s_cmp_ge_u32 s54, 86')
        p(f's_cbranch_scc1 LF_ffn_skip{tt}')
        p('@COND')
        P2 = lambda r: vr(r, 2)
        for i in range(0, 8, 2): p(f'v_pk_mul_f32 {P2(t+i)}, {P2(a+i)}, {P2(a+i)}')
        for i in range(0, 8, 2): p(f'v_pk_fma_f32 {P2(t+i)}, {P2(t+i)}, s[50:51], {P2(t+16)}')
        for i in range(0, 8, 2): p(f'v_pk_mul_f32 {P2(t+i)}, {P2(t+i)}, {P2(a+i)}')
        for i in range(8): p(f'v_exp_f32 v{t+i}, v{t+i}')
        for i in range(0, 8, 2): p(f'v_pk_mul_f32 {P2(t+8+i)}, {P2(a+i)}, {P2(a+8+i)}')
        for i in range(0, 8, 2): p(f'v_pk_add_f32 {P2(t+i)}, {P2(t+i)}, 1.0 op_sel_hi:[1,0]')
        for i in range(8): p(f'v_rcp_f32 v{t+i}, v{t+i}')
        for i in range(0, 8, 2): p(f'v_pk_mul_f32 {P2(t+i)}, {P2(t+i)}, {P2(t+8+i)}')
        for i in range(4): p(f'v_cvt_pk_bf16_f32 v{t+20+4*tt+i}, v{t+2*i}, v{t+2*i+1}')
        p(f'buffer_store_dwordx4 {vr(t+20+4*tt,4)}, v{VL16}, s[8:11], s52 offen offset:{tt*1024}{SC}')
        p('@ENDCOND')
        p.label(f'LF_ffn_skip{tt}')
    st.stamp()
    for i in range(0, 64, 2): p(f'v_pk_mov_b32 {vr(O+i,2)}, 0, 0')
    for i in range(0, 16, 2): p(f'v_pk_mov_b32 {vr(MN+i,2)}, 0, 0')
    p(f"""
v_mov_b32 v{VLS}, 0
v_mov_b32 v{VM}, 0
v_mov_b32 v{VLSAVE}, 0
s_mov_b32 s56, {THR:#x}
s_mov_b32 s57, 0xbf800000
s_mov_b32 s58, {FLOOR1:#x}
s_mov_b32 s59, 1
s_mov_b32 s60, 1.0
s_mov_b32 s61, s27
s_mov_b32 s62, 0
s_lshl_b32 s67, s25, 14
v_add_u32 v{VK}, {KSL}, v{VL16}
v_add_u32 v{VV}, {VSL}, v{VL16}
v_and_b32 v10, 63, v0
v_and_b32 v12, 31, v10
v_lshrrev_b32 v11, 5, v10
v_lshlrev_b32 v13, 2, v11
v_sub_u32 v{VZ}, v12, v13
s_mov_b32 s55, 0
s_mov_b32 s63, 16384
s_add_u32 s64, s46, 32768
s_lshl_b32 s49, s47, 1
s_add_u32 s49, s49, 2
s_cmp_eq_u32 s25, 0
s_cselect_b32 s49, 0, s49
s_cselect_b32 s66, 32, s27
s_lshl_b32 s68, s47, 1
s_add_u32 s68, s68, 4
s_min_u32 s68, s68, 32
s_cmp_eq_u32 s20, 0
s_cselect_b32 s66, s68, s66
""")
    p('s_waitcnt vmcnt(0) lgkmcnt(0)')
    p('s_barrier')
    st.stamp()

    def frag_read(f):
        hf = f >> 4; i = f & 15; dst = vr(FR + 4 * (f % 8), 4)
        if i < 8:  return f'ds_read_b128 {dst}, v{VK} offset:{hf*8192 + i*1024}'
        else:      return f'ds_read_b128 {dst}, v{VV} offset:{hf*8192 + (i-8)*1024}'
    def mfma(f):
        hf = f >> 4; i = f & 15; fr = vr(FR + 4 * (f % 8), 4)
        if i < 8:
            s = vr(S[hf], 16); c = vr(MN, 16) if i == 0 else s
            return f'{MF} {s}, {fr}, {vr(Q+4*i,4)}, {c}'
        dt = (i - 8) >> 1; tp = (i - 8) & 1
        o = vr(O + 16 * dt, 16)
        return f'{MF} {o}, {fr}, {vr(PP[hf]+4*tp,4)}, {o}'
    def bstage(hf, nslots):
        c = S[1 - hf]; pp_ = PP[1 - hf]
        groups = [[] for _ in range(nslots)]
        span = nslots - 2
        pos_e = [(kk * span) // 16 for kk in range(16)]
        late = [[] for _ in range(nslots)]
        for k in range(8):
            ea = E + (2 * k) % 8; eb = E + (2 * k + 1) % 8
            groups[pos_e[2 * k]].append(f'v_exp_f32 v{ea}, v{c+2*k}')
            groups[pos_e[2 * k + 1]].append(f'v_exp_f32 v{eb}, v{c+2*k+1}')
            sa = pos_e[2 * k] + 1; sb = pos_e[2 * k + 1] + 1
            if k == 0:
                late[sb].append(f'v_add_f32 v{VTS}, v{ea}, v{eb}')
            else:
                late[sa].append(f'v_add_f32 v{VTS}, v{VTS}, v{ea}')
                late[sb].append(f'v_add_f32 v{VTS}, v{VTS}, v{eb}')
            late[sb].append(f'v_cvt_pk_bf16_f32 v{pp_+k}, v{ea}, v{eb}')
        return [late[i] + groups[i] for i in range(nslots)]
    outl = []
    DIST = int(os.environ.get('DIST', '4'))
    DS_ = int(os.environ.get('DMAS', '2')); D0_ = int(os.environ.get('DMA0', '1')); NTAIL = int(os.environ.get('NTAIL', '0'))

    def step(kind):
        doA = kind != 'drain'
        slots = []
        for f in range(32):
            hf = f >> 4; i = f & 15
            isA = i < 8
            if isA and not doA: continue
            if not isA and kind == 'first': continue
            slots.append(f)
        pos = {f: n for n, f in enumerate(slots)}
        bb = [mfma(f) for f in slots]
        fl = {}
        def add(n, items): fl.setdefault(n, []).extend(items)
        nS = len(slots)
        last_read_slot = nS - DIST - 2
        for n in range(DIST, nS):
            add(min(n - DIST, last_read_slot) if kind != 'drain' else n - DIST, [frag_read(slots[n])])
        for hf in range(2):
            if kind == 'first' and hf == 0: continue
            if kind == 'drain' and hf == 1: continue
            hs = [n for n, f in enumerate(slots) if (f >> 4) == hf]
            groups = bstage(hf, len(hs))
            for gi, g in enumerate(groups): add(hs[gi], g)
            nm = f'{kind}{hf}'
            add(hs[-2], [f'v_cmp_nge_f32 vcc, s{56+hf}, v{VTS}'])
            add(hs[-1], [f's_cbranch_vccnz LF_rare{nm}', f'LF_ret{nm}:', f'v_add_f32 v{VLS}, v{VLS}, v{VTS}'])
            outl.append(('rare', nm, hf))
        for hf in range(2):
            if kind == 'drain' and hf == 1: continue
            nm = f'{kind}{hf}'
            first_slot = [n for n, f in enumerate(slots) if (f >> 4) == hf][0]
            fl.setdefault(('pre', first_slot), []).extend(
                ['s_cmp_ge_u32 s62, s66', f's_cbranch_scc1 LF_evt{nm}', f'LF_eret{nm}:'])
            add(first_slot, ['s_add_u32 s62, s62, 1'])
            outl.append(('evt', nm, hf))
        return bb, fl, add, pos, slots

    def prep_next():
        return [['s_add_u32 s55, s55, 1', 's_and_b32 s50, s55, 1'],
                ['s_lshl_b32 s50, s50, 15', 's_cmp_ge_u32 s55, s47'],
                ['s_cselect_b32 s69, s67, 0', 's_add_u32 s50, s50, s69', f's_add_u32 s50, s50, {KSL}']]
    def barrier_blk():
        return ['s_waitcnt vmcnt(0) lgkmcnt(0)', 's_barrier',
                f'v_add_u32 v{VV}, {(VSL - KSL) & 0xffffffff:#x}, v{VK}',
                f'v_add_u32 v{VK}, s50, v{VL16}']
    def dma_issue(name):
        L = f'buffer_load_dwordx4 v{VL16}, s[8:11], s43 offen{LS} lds'
        L2 = f'buffer_load_dwordx4 v{VL16}, s[8:11], s43 offen offset:1024{LS} lds'
        g = []
        g.append([f's_add_u32 m0, s64, {VSL}', 's_add_u32 s43, s45, s63', L])
        g.append([L2, 's_cmp_lt_u32 s55, s47'])
        g.append([f's_cbranch_scc1 LF_nov2{name}', '@COND', f's_add_u32 m0, s64, {VSL + 16384}', 's_add_u32 s43, s43, 16384', L, L2,
                  's_add_u32 s63, s63, 16384', '@ENDCOND', f'LF_nov2{name}:'])
        g.append(['s_add_u32 s63, s63, 16384', 's_xor_b32 s64, s64, 32768'])
        g.append([f's_add_u32 m0, s64, {KSL}', 's_add_u32 s43, s44, s63', L])
        g.append([L2, 's_add_u32 s65, s55, 1', 's_cmp_lt_u32 s65, s47'])
        g.append([f's_cbranch_scc1 LF_nok{name}', '@COND', f's_add_u32 m0, s64, {KSL + 16384}', 's_add_u32 s43, s43, 16384', L, L2,
                  '@ENDCOND', f'LF_nok{name}:'])
        return g

    KVT = os.environ.get('KVT', '')
    if KVT:
        p(f"""
s_lshl_b32 s18, s21, 19
s_cmp_ge_u32 s24, 4
s_cselect_b32 s19, {VF_OFF:#x}, {0}
s_cselect_b32 s17, 0, 1
s_mul_i32 s17, s17, {KF_OFF:#x}
s_add_u32 s18, s18, s19
s_add_u32 s18, s18, s17
s_and_b32 s19, s24, 3
s_lshl_b32 s19, s19, 13
s_add_u32 s18, s18, s19
s_add_u32 s18, s18, {int(KVT) * 32768}
s_cmp_lg_u32 s20, 3
s_cselect_b32 s18, 0x7f000000, s18
""")
    PRIO = os.environ.get('PRIO', '1')
    if PRIO:
        p(f's_cmp_eq_u32 s25, {0 if PRIO == "1" else 1}')
        p('s_cbranch_scc1 LF_noprio')
        p('s_setprio 1')
        p.label('LF_noprio')
    bb, fl, add, pos, slots = step('first')
    for n in range(DIST): p(frag_read(slots[n]))
    nS = len(slots)
    for gi, g in enumerate(prep_next()): add(4 + gi, g)
    add(nS - DIST, barrier_blk())
    for n in range(DIST): add(nS - DIST + n, [frag_read(n)])
    if NTAIL:
        add(nS - DIST, [x for g in dma_issue('first')[:NTAIL] for x in g])
    interleave(p, bb, fl)
    p.begin_loop()
    p.label('LF_loop')
    bb, fl, add, pos, slots = step('loop')
    XP = os.environ.get('XP', '')
    if 'nodma' not in XP:
        for gi, g in enumerate(dma_issue('loop')[NTAIL:]): add(D0_ + DS_ * gi, g)
    if KVT:
        add(15, ['s_add_u32 s18, s18, 32768', (lambda pp: pp('buffer_load_dword v248, v249, s[8:11], s18 offen', 'discard'))])
    if PFS:
        blk = [f's_cmp_lt_u32 s55, {17 - PFS - PFO}', 's_cbranch_scc1 LF_nopf', f's_cmp_ge_u32 s55, {17 - PFO}', 's_cbranch_scc1 LF_nopf', '@COND',
               f'buffer_load_dword v248, v249, s[12:15], s16 offen',
               f's_add_u32 s16, s16, 8192', '@ENDCOND', 'LF_nopf:']
        add(2, blk)
    for gi, g in enumerate(prep_next()): add(27 - DIST + gi, g)
    nb_ = barrier_blk()
    if KVT: nb_[0] = 's_waitcnt vmcnt(1) lgkmcnt(0)'
    if 'nobar' in XP: nb_ = [x for x in nb_ if x != 's_barrier']
    add(32 - DIST, nb_)
    for n in range(DIST): add(min(32 - DIST + n, 30), [frag_read(n)])
    if NTAIL:
        add(32 - DIST, ['s_cmp_ge_u32 s55, 17', 's_cbranch_scc1 LF_notail', '@COND'] + [x for g in dma_issue('tail')[:NTAIL] for x in g] + ['@ENDCOND', 'LF_notail:'])
    add(30, ['s_cmp_lt_u32 s55, 17'])
    if XP:
        for kk_ in fl: fl[kk_] = [x for x in fl[kk_] if not (isinstance(x, str) and x.startswith('s_cbranch_vccnz'))]
    if 'noexp' in XP:
        for kk_ in fl: fl[kk_] = [x.replace('v_exp_f32', 'v_mov_b32') if isinstance(x, str) else x for x in fl[kk_]]
    if 'novalu' in XP:
        for kk_ in fl: fl[kk_] = [x for x in fl[kk_] if not (isinstance(x, str) and x.startswith(('v_exp', 'v_add_f32 v7', 'v_cvt')))]
    if 'nolds' in XP:
        for kk_ in fl: fl[kk_] = [x for x in fl[kk_] if not (isinstance(x, str) and x.startswith('ds_read'))]
    interleave(p, bb, fl)
    p('s_cbranch_scc1 LF_loop')
    p.end_loop()
    st.stamp()
    p('s_waitcnt lgkmcnt(0)')
    bb, fl, add, pos, slots = step('drain')
    for n in range(DIST): p(frag_read(slots[n]))
    interleave(p, bb, fl)
    st.stamp()
    p(f"""
s_cmp_ge_u32 s24, 4
s_cselect_b32 s17, 8, 0
s_add_u32 s17, s17, s22
s_add_u32 s17, s17, {CNT_CTX}
s_lshl_b32 s17, s17, 2
""")
    if os.environ.get('P4X', '0') == '1': emit(poll_issue([17], vb=250, vz=251))
    p(f'''
v_mov_b32 v9, v{VLS}
v_permlane32_swap_b32 v{VLS}, v9
v_add_f32 v{VLS}, v{VLS}, v9
s_waitcnt lgkmcnt(0)
s_barrier
''')
    p(f'''
s_mul_i32 s49, s20, 8704
s_xor_b32 s50, s20, 4
s_mul_i32 s50, s50, 8704
v_add_u32 v9, s49, v{VL16}
v_add_u32 v10, s50, v{VL16}
v_lshrrev_b32 v11, 1, v{VL16}
v_add_u32 v12, s49, v11
v_add_u32 v13, s50, v11
v_mov_b32 v14, v{VLS}
v_mov_b32 v15, v{VM}
s_cmp_eq_u32 s25, 0
s_cbranch_scc1 LF_mg0
''')
    X = TT
    alt = p.begin_alt(join=True)
    for g in (1, 0):
        p.alt_branch(alt)
        if g == 0: p.label('LF_mg0')
        keep = O + 32 * g; send = O + 32 * (1 - g)
        for k in range(8): p(f'ds_write_b128 v9, {vr(send+4*k,4)} offset:{k*1024}')
        p('ds_write_b64 v12, v[14:15] offset:8192')
        p('s_waitcnt lgkmcnt(0)')
        p('s_barrier')
        p(f'ds_read_b64 v[{E}:{E+1}], v13 offset:8192')
        for k in range(8): p(f'ds_read_b128 {vr(X+4*k,4)}, v10 offset:{k*1024}')
        p(f'''
v_max_f32 v{E+2}, v{VM}, v{E+1}
v_sub_f32 v{E+4}, v{VM}, v{E+2}
v_sub_f32 v{E+6}, v{E+1}, v{E+2}
v_exp_f32 v{E+4}, v{E+4}
v_exp_f32 v{E+6}, v{E+6}
v_mul_f32 v{E+3}, v{E+4}, v{VLS}
v_fmac_f32 v{E+3}, v{E+6}, v{E}
v_rcp_f32 v{E+3}, v{E+3}
v_mul_f32 v{E+4}, v{E+4}, v{E+3}
v_mul_f32 v{E+6}, v{E+6}, v{E+3}
''')
        for i in range(0, 32, 2):
            p(f'v_pk_mul_f32 {vr(keep+i,2)}, {vr(keep+i,2)}, {vr(E+4,2)} op_sel_hi:[1,0]')
            p(f'v_pk_fma_f32 {vr(keep+i,2)}, {vr(X+i,2)}, {vr(E+6,2)}, {vr(keep+i,2)} op_sel_hi:[1,0,1]')
        for i in range(16): p(f'v_cvt_pk_bf16_f32 v{S[0]+i}, v{keep+2*i}, v{keep+2*i+1}')
        p(f'''
s_mul_i32 s52, s28, {AF_MT}
s_lshl_b32 s54, s21, 13
s_add_u32 s52, s52, s54
s_add_u32 s52, s52, {AF_OFF + g*4096:#x}
''')
        for k in range(4): p(f'buffer_store_dwordx4 {vr(S[0]+4*k,4)}, v{VL16}, s[8:11], s52 offen offset:{k*1024}{SC}')
        if g == 1: p('s_branch LF_p4')
        p.end_branch()
    p.label('LF_p4')
    P4P = os.environ.get('P4P', '1')
    if PRIO and P4P == '0': p('s_setprio 0')
    st.stamp()
    NK = 43; D = int(os.environ.get("K3D", "6"))
    NL = int(os.environ.get("K3L", "9")); NR = int(os.environ.get("K3R", "12"))
    VA1 = 2; VW = 3; VT = [4, 5]
    ACT = 16; WF4 = ACT + 8 * D; ACC4 = WF4 + 16; WR = ACC4 + 64; XR = 240
    assert WR + 8 * NR <= XR
    AF_END = AF_OFF + 64 * AF_MT
    p(f"""
s_load_dwordx2 s[28:29], s[0:1], 40
s_load_dwordx4 s[32:35], s[0:1], 72
s_load_dwordx2 s[30:31], s[0:1], 0
s_load_dwordx2 s[36:37], s[0:1], 96
v_and_b32 v10, 63, v0
v_add_u32 v{VA1}, {AF_MT}, v{VL16}
v_lshrrev_b32 v11, 3, v10
v_and_b32 v12, 7, v10
v_bfe_u32 v13, v10, 4, 1
v_lshlrev_b32 v13, 2, v13
v_xor_b32 v12, v12, v13
v_lshlrev_b32 v12, 4, v12
v_lshl_add_u32 v{VW}, v11, 10, v12
v_lshrrev_b32 v11, 5, v10
v_bfe_u32 v12, v10, 2, 2
v_lshl_add_u32 v13, v11, 2, v12
v_lshlrev_b32 v13, 7, v13
v_lshrrev_b32 v12, 1, v12
v_lshl_add_u32 v13, v12, 6, v13
v_bfe_u32 v12, v10, 4, 1
v_lshl_add_u32 v13, v12, 5, v13
v_and_b32 v12, 3, v10
v_lshl_add_u32 v13, v12, 3, v13
s_mul_i32 s25, s20, {NL*2048}
v_add_u32 v{VT[0]}, s25, v13
v_xor_b32 v{VT[1]}, 64, v{VT[0]}
s_mul_i32 s26, s20, 43
s_cmp_ge_u32 s20, 4
s_cselect_b32 s27, 1, 0
s_sub_u32 s26, s26, s27
s_cmp_ge_u32 s20, 5
s_cselect_b32 s27, 1, 0
s_sub_u32 s26, s26, s27
s_and_b32 s44, s23, 7
s_bfe_u32 s45, s23, 0x10003
s_cmp_ge_u32 s24, 4
s_cselect_b32 s46, 8, 0
s_add_u32 s46, s46, s22
s_lshl_b32 s47, s46, 1
s_add_u32 s47, s47, s45
s_sub_u32 s48, 15, s24
s_add_u32 s48, s48, {CNT_CTX}
s_lshl_b32 s48, s48, 2
s_add_u32 s49, s24, {CNT_CTX}
s_lshl_b32 s49, s49, 2
s_add_u32 s50, s46, {CNT_CTX}
s_lshl_b32 s50, s50, 2
""")
    st.stamp()
    p('s_waitcnt vmcnt(0) lgkmcnt(0)')
    st.stamp()
    p('s_barrier')
    st.stamp()
    emit(publish([48]))
    p('s_cmp_lg_u32 s24, 7')
    p('s_cbranch_scc1 LF_nopubS2')
    emit(publish([49]))
    p.label('LF_nopubS2')
    srd(p, 12, 36, 37, AF_END)
    srd(p, 16, 30, 31, 2 << 20)
    srd(p, 36, 34, 35, 2 << 20)
    p(f"""
s_cmp_ge_u32 s20, 6
s_cselect_b32 s4, s32, s28
s_cselect_b32 s5, s33, s29
s_mov_b32 s6, 0x400000
s_cselect_b32 s6, 0x158000, s6
s_and_b32 s5, s5, 0xffff
s_mov_b32 s7, 0x00020000
s_mul_i32 s40, s47, {2*AF_MT}
s_lshl_b32 s43, s26, 10
s_add_u32 s40, s40, s43
s_add_u32 s40, s40, {AF_OFF:#x}
s_cmp_ge_u32 s20, 6
s_cselect_b32 s43, 256, 0
s_sub_u32 s43, s26, s43
s_lshl_b32 s42, s43, 14
s_lshl_b32 s43, s44, 7
s_add_u32 s42, s42, s43
s_sub_u32 s51, s20, 4
s_cmp_lt_u32 s51, 2
s_cselect_b32 s41, 0x7fff0000, s40
s_cselect_b32 s52, 0x4000, 0
s_add_u32 s52, s52, s42
""")
    def wloads(ks):
        sl = ks % NL
        if ks == 0:
            a0 = ['s_mov_b32 s54, s52', 's_add_u32 s53, s52, 0x2000']
        else:
            a0 = [f's_add_u32 s54, s42, {ks*16384}', f's_add_u32 s53, s42, {ks*16384+8192}']
        return [f's_add_u32 m0, s25, {sl*2048}'] + a0 + [
                (lambda pp: pp(f'buffer_load_dwordx4 v{VW}, s[4:7], s54 offen lds', f'x{ks}')),
                f's_add_u32 m0, s25, {sl*2048+1024}', 's_nop 0',
                (lambda pp: pp(f'buffer_load_dwordx4 v{VW}, s[4:7], s53 offen lds', f'x{ks}'))]
    def aloads(ks):
        a = ACT + 8 * (ks % D)
        pre = ['s_mov_b32 s55, s41'] if ks == 0 else [f's_add_u32 s55, s40, {ks*1024}']
        return pre + [f'buffer_load_dwordx4 {vr(a,4)}, v{VL16}, s[12:15], s55 offen{LS}',
                      f'buffer_load_dwordx4 {vr(a+4,4)}, v{VA1}, s[12:15], s55 offen{LS}']
    p(f"""
s_lshr_b32 s56, s20, 2
s_bfe_u32 s57, s20, 0x10001
s_and_b32 s58, s20, 1
s_lshl_b32 s59, s47, 6
s_lshl_b32 s60, s57, 5
s_add_u32 s59, s59, s60
s_lshl_b32 s59, s59, 10
s_lshl_b32 s60, s44, 6
s_lshl_b32 s61, s56, 5
s_add_u32 s60, s60, s61
s_lshl_b32 s61, s58, 4
s_add_u32 s60, s60, s61
s_lshl_b32 s60, s60, 1
s_add_u32 s59, s59, s60
v_and_b32 v11, 31, v10
v_lshrrev_b32 v12, 5, v10
v_lshlrev_b32 v11, 10, v11
v_lshl_add_u32 v9, v12, 3, v11
buffer_load_dwordx2 v[{XR}:{XR+1}], v9, s[16:19], s59 offen
buffer_load_dwordx2 v[{XR+2}:{XR+3}], v9, s[16:19], s59 offen offset:16
""")
    def p4_main(NR_, early):
        def wreg(ks, nt):
            return (WR + 8 * ks + 4 * nt) if ks < NR_ else (WF4 + 8 * (ks & 1) + 4 * nt)
        def trr(ks):
            sl = ks % NL; out = [lambda pp: pp.wait_tag(f'x{ks}')]
            for nt in range(2):
                w = wreg(ks, nt)
                out.append((lambda pp, w=w, nt=nt: pp(f'ds_read_b64_tr_b16 {vr(w,2)}, v{VT[nt]} offset:{sl*2048}', f'r{ks}')))
                out.append((lambda pp, w=w, nt=nt: pp(f'ds_read_b64_tr_b16 {vr(w+2,2)}, v{VT[nt]} offset:{sl*2048+1024}', f'r{ks}')))
            return out
        if early:
            emit(poll_check([(50, 32)], vb=250))
            p('s_barrier')
            for ks in range(NL):
                emit(wloads(ks))
                if ks < D: emit(aloads(ks))
            emit(trr(0))
        else:
            for ks in range(NL): emit(wloads(ks))
            for ks in range(NR_):
                emit(trr(ks))
                if ks >= 1:
                    p.wait_tag(f'r{ks-1}')
                    emit(wloads(ks - 1 + NL))
            p.wait_tag(f'r{NR_-1}')
            emit(wloads(NR_ - 1 + NL))
            emit(poll_noinv([(50, 32)]))
            p('s_barrier')
            if os.environ.get('DIAG_STAG'):
                p(f"""
s_lshr_b32 s3, s23, 3
s_lshl_b32 s3, s3, 1
s_add_u32 s3, s3, s44
s_and_b32 s3, s3, 7
LF_stag:
s_cmp_eq_u32 s3, 0
s_cbranch_scc1 LF_stag_e
s_sleep {os.environ['DIAG_STAG']}
s_sub_u32 s3, s3, 1
s_branch LF_stag
LF_stag_e:
""")
            for ks in range(D): emit(aloads(ks))
        for ks in range(NK):
            a = ACT + 8 * (ks % D)
            if NR_ <= ks + 1 < NK: emit(trr(ks + 1))
            for nt in range(2):
                for mt in range(2):
                    w = wreg(ks, nt)
                    acc = vr(ACC4 + 16 * (2 * nt + mt), 16); cc = '0' if ks == 0 else acc
                    p(f'{MF} {acc}, {vr(w,4)}, {vr(a+4*mt,4)}, {cc}')
            if ks + D < NK: emit(aloads(ks + D))
            if ks >= NR_ and ks + NL < NK:
                p.wait_tag(f'r{ks}')
                emit(wloads(ks + NL))
        p('s_waitcnt vmcnt(0)')
    if os.environ.get('P4X', '0') == '1':
        p('s_cmp_ge_u32 s24, 4')
        p('s_cbranch_scc1 LF_p4y')
        alt4 = p.begin_alt(join=True)
        p.alt_branch(alt4); p4_main(0, True); p('s_waitcnt lgkmcnt(0)'); p('s_branch LF_p4j'); p.end_branch()
        p.alt_branch(alt4); p.label('LF_p4y'); p4_main(NR, False); p('s_waitcnt lgkmcnt(0)'); p.end_branch()
        p.label('LF_p4j')
    else:
        p4_main(NR, False)
    p('s_waitcnt lgkmcnt(0)')
    p('s_barrier')
    p('s_lshl_b32 s25, s20, 14')
    p(f'v_add_u32 v6, s25, v{VL16}')
    for b in range(16): p(f'ds_write_b128 v6, {vr(ACC4+4*b,4)} offset:{b*1024}')
    p(f"""
s_lshl_b32 s56, s20, 11
v_add_u32 v7, s56, v{VL16}
v_add_u32 v8, 0x10000, v7
s_waitcnt lgkmcnt(0)
s_barrier
""")
    for src in range(8):
        base = 7 if src < 4 else 8
        for b in range(2):
            p(f'ds_read_b128 {vr(16+8*src+4*b,4)}, v{base} offset:{(src%4)*16384 + b*1024}')
    for i in range(8):
        p(f'v_add_f32 v{16+i}, v{16+i}, v{24+i}')
        p(f'v_add_f32 v{32+i}, v{32+i}, v{40+i}')
        p(f'v_add_f32 v{48+i}, v{48+i}, v{56+i}')
        p(f'v_add_f32 v{64+i}, v{64+i}, v{72+i}')
    for i in range(8):
        p(f'v_add_f32 v{16+i}, v{16+i}, v{32+i}')
        p(f'v_add_f32 v{16+i}, v{16+i}, v{48+i}')
    for i in range(4):
        p(f'v_cvt_pk_bf16_f32 v{24+i}, v{16+2*i}, v{17+2*i}')
        p(f'v_cvt_pk_bf16_f32 v{72+i}, v{64+2*i}, v{65+2*i}')
    for i in range(4):
        p(f'v_lshlrev_b32 v{16+2*i}, 16, v{24+i}')
        p(f'v_and_b32 v{17+2*i}, 0xffff0000, v{24+i}')
        p(f'v_lshlrev_b32 v{64+2*i}, 16, v{72+i}')
        p(f'v_and_b32 v{65+2*i}, 0xffff0000, v{72+i}')
    NL2E = f2u(-math.log2(math.e))
    for i in range(8): p(f'v_mul_f32 v{32+i}, {NL2E:#x}, v{64+i}')
    for i in range(8): p(f'v_exp_f32 v{32+i}, v{32+i}')
    for i in range(8): p(f'v_add_f32 v{32+i}, 1.0, v{32+i}')
    for i in range(8): p(f'v_rcp_f32 v{32+i}, v{32+i}')
    for i in range(8): p(f'v_mul_f32 v{32+i}, v{32+i}, v{64+i}')
    for i in range(4): p(f'v_cvt_pk_bf16_f32 v{40+i}, v{32+2*i}, v{33+2*i}')
    for i in range(4):
        p(f'v_lshlrev_b32 v{32+2*i}, 16, v{40+i}')
        p(f'v_and_b32 v{33+2*i}, 0xffff0000, v{40+i}')
    for i in range(8): p(f'v_mul_f32 v{32+i}, v{32+i}, v{16+i}')
    for i in range(4): p(f'v_cvt_pk_bf16_f32 v{40+i}, v{32+2*i}, v{33+2*i}')
    for i in range(4):
        p(f'v_lshlrev_b32 v{32+2*i}, 16, v{40+i}')
        p(f'v_and_b32 v{33+2*i}, 0xffff0000, v{40+i}')
        p(f'v_lshlrev_b32 v{48+2*i}, 16, v{XR+i}')
        p(f'v_and_b32 v{49+2*i}, 0xffff0000, v{XR+i}')
    for i in range(8): p(f'v_add_f32 v{32+i}, v{32+i}, v{48+i}')
    for i in range(4): p(f'v_cvt_pk_bf16_f32 v{40+i}, v{32+2*i}, v{33+2*i}')
    p('buffer_store_dwordx2 v[40:41], v9, s[36:39], s59 offen')
    p('buffer_store_dwordx2 v[42:43], v9, s[36:39], s59 offen offset:16')
    if PROF: p('s_waitcnt vmcnt(0)')
    st.stamp()
    st.dump(p, 8, 0, 20, 50, 57, 8)
    p('s_endpgm')

    ool = p.begin_alt()
    def routine(name):
        p.alt_branch(ool); p.label(name)
    def fin_code():
        p(f"""
s_nop 15
s_nop 7
v_mov_b32 v9, v{VLSAVE}
v_permlane32_swap_b32 v{VLSAVE}, v9
v_add_f32 v9, v{VLSAVE}, v9
v_rcp_f32 v9, v9
s_mul_i32 s52, s27, {AF_MT}
s_lshl_b32 s54, s21, 13
s_add_u32 s52, s52, s54
s_add_u32 s52, s52, {AF_OFF:#x}
s_add_u32 s53, s52, 4096
""")
        for half in range(2):
            for i in range(32): p(f'v_mul_f32 v{O+32*half+i}, v{O+32*half+i}, v9')
            for i in range(16): p(f'v_cvt_pk_bf16_f32 v{TT+16*half+i}, v{O+32*half+2*i}, v{O+32*half+2*i+1}')
            for k in range(4): p(f'buffer_store_dwordx4 {vr(TT+16*half+4*k,4)}, v{VL16}, s[8:11], s{52+half} offen offset:{k*1024}{SC}')
        for i in range(64): p(f'v_mov_b32 v{O+i}, 0')
    for kind, nm, hf in outl:
        if kind == 'evt':
            routine(f'LF_evt{nm}')
            p('s_lshl_b32 s68, s47, 1')
            if nm in ('loop0', 'drain0'):
                p(f"""
s_add_u32 s69, s68, 2
s_cmp_lg_u32 s62, s69
s_cbranch_scc1 LF_nofin{nm}
s_cmp_eq_u32 s25, 0
s_cbranch_scc1 LF_nofin{nm}
""")
                fin_code()
                p.label(f'LF_nofin{nm}')
            if nm == 'loop0':
                p(f"""
s_add_u32 s69, s68, 4
s_cmp_lg_u32 s62, s69
s_cbranch_scc1 LF_nopubS
s_add_u32 s69, s24, {CNT_CTX}
s_lshl_b32 s69, s69, 2
""")
                emit(publish([69]))
                p(f"""
LF_nopubS:
s_cmp_lg_u32 s62, s68
s_cbranch_scc1 LF_nosw
s_cmp_eq_u32 s25, 0
s_cbranch_scc1 LF_nosw
s_lshl_b32 s69, s26, 13
s_add_u32 s69, s69, {QX}
v_add_u32 v9, s69, v{VL16}
s_nop 7
""")
                for ks in range(8): p(f'ds_read_b128 {vr(Q+4*ks,4)}, v9 offset:{ks*1024}')
                for i in range(16): p(f'v_mov_b32 v{MN+i}, 0')
                p(f"""
v_mov_b32 v{VM}, 0
s_mov_b32 s61, s28
s_mov_b32 s60, 0
s_waitcnt lgkmcnt(0)
LF_nosw:
""")
            if nm == 'loop1':
                p(f"""
s_add_u32 s69, s68, 1
s_cmp_lg_u32 s62, s69
s_cbranch_scc1 LF_nomid
s_cmp_eq_u32 s25, 0
s_cbranch_scc1 LF_nomid
v_mov_b32 v{VLSAVE}, v{VLS}
v_mov_b32 v{VLS}, 0
s_mov_b32 s60, 1.0
s_mov_b32 s57, 0xbf800000
s_mov_b32 s58, {FLOOR1:#x}
s_mov_b32 s59, 1
LF_nomid:
""")
            if nm != 'drain0':
                p(f"""
s_lshr_b32 s68, s62, 1
s_lshl_b32 s69, s68, 1
s_sub_u32 s69, s69, s47
s_add_u32 s69, s69, s25
s_cmp_ge_u32 s68, s47
s_cselect_b32 s68, s69, s68
s_lshl_b32 s68, s68, 1
s_add_u32 s68, s68, {hf}
s_cmp_lt_u32 s68, s61
s_cbranch_scc1 LF_nomask{nm}
s_sub_u32 s68, s61, s68
s_lshl_b32 s68, s68, 5
v_add_u32 v9, s68, v{VZ}
v_mov_b32 v10, {NEG:#x}
""")
                for r in range(16):
                    cr = 8 * (r >> 2) + (r & 3)
                    p(f'v_cmp_gt_i32 vcc, {cr}, v9')
                    p(f'v_cndmask_b32 v{MN+r}, v{MN+r}, v10, vcc')
                p.label(f'LF_nomask{nm}')
            p(f"""
s_add_u32 s68, s62, 1
s_max_u32 s66, s68, 32
s_cmp_le_u32 s68, s49
s_cselect_b32 s66, s68, s66
s_branch LF_eret{nm}
""")
            p.end_branch()
        else:
            routine(f'LF_rare{nm}')
            c = S[1 - hf]; nx = S[hf]; pc = PP[1 - hf]
            p('s_nop 15\ns_nop 7')
            p(f'v_max3_f32 v9, v{c}, v{c+1}, v{c+2}')
            for k in range(3, 15, 2): p(f'v_max3_f32 v9, v9, v{c+k}, v{c+k+1}')
            p(f'v_max_f32 v9, v9, v{c+15}')
            p(f'''
v_mov_b32 v10, v9
v_permlane32_swap_b32 v9, v10
v_max_f32 v9, v9, v10
v_max_f32 v9, s58, v9
v_sub_f32 v10, 0, v9
v_min_f32 v10, 0x42fc0000, v10
v_exp_f32 v10, v10
v_mul_f32 v11, s60, v9
''')
            for k in range(16): p(f'v_sub_f32 v{c+k}, v{c+k}, v9')
            for k in range(16): p(f'v_exp_f32 v{TT+k}, v{c+k}')
            p(f'v_add_f32 v{VTS}, v{TT}, v{TT+1}')
            for k in range(2, 16): p(f'v_add_f32 v{VTS}, v{VTS}, v{TT+k}')
            for k in range(8): p(f'v_cvt_pk_bf16_f32 v{pc+k}, v{TT+2*k}, v{TT+2*k+1}')
            for k in range(16): p(f'v_sub_f32 v{nx+k}, v{nx+k}, v11')
            for k in range(16): p(f'v_sub_f32 v{MN+k}, v{MN+k}, v11')
            p(f'v_add_f32 v{VM}, v{VM}, v11')
            p(f'v_mul_f32 v{VLS}, v{VLS}, v10')
            p('s_cmp_lg_u32 s59, 0')
            p(f's_cbranch_scc1 LF_rskip{nm}')
            for k in range(64): p(f'v_mul_f32 v{O+k}, v{O+k}, v10')
            p.label(f'LF_rskip{nm}')
            p(f'''
s_mov_b32 s{56+hf}, {THR:#x}
''')
            if hf == 1:
                p('s_mov_b32 s58, 0\ns_mov_b32 s59, 0')
            if nm == 'loop1': p('s_cmp_lt_u32 s55, 17')
            p(f's_branch LF_ret{nm}')
            p.end_branch()
    p.alt_branch(ool); emit_slow(); p.end_branch()
    p.label('LF_end')
    p('s_endpgm')
    return ('kf_kernel', p, 256, 512, 163840, 256, 256)
```
